```python
import torch

def _softmax(x, axis=-1):
    return torch.softmax(x, dim=axis)
def _gelu(x):
    return torch.nn.functional.gelu(x, approximate="tanh")
def _silu(x):
    return torch.nn.functional.silu(x)
def _sigmoid(x):
    return torch.sigmoid(x)
def _layernorm(x, axis=-1, eps=1e-5):
    m = x.mean(dim=axis, keepdim=True)
    v = x.var(dim=axis, keepdim=True, unbiased=False)
    return (x - m) / torch.sqrt(v + eps)
def _scatter_add(tgt, idx, src, axis=0):
    return tgt.clone().index_add_(axis, idx, src)
def _segment_sum(src, seg, n):
    out = torch.zeros((n,) + src.shape[1:], dtype=src.dtype)
    return out.index_add_(0, seg, src)
def _pad(x, pw):
    flat = tuple(v for pair in reversed(pw) for v in pair)
    return torch.nn.functional.pad(x, flat)

kernel_name = 'interleave_layers__softmax_full_mha__dense_activation_gelu__prompt'

def setup_inputs():

    _w = (lambda a: (lambda t: t.to(torch.bfloat16) if t.is_floating_point() else t)(torch.as_tensor(a)))
    def _A_setup():
        B, S, D = 1, 2048, 640
        return {
            "x": _w((lambda *s: torch.randn(*s, dtype=torch.bfloat16) * 0.05)(B, S, D)),
            "wqkv": _w((lambda *s: torch.randn(*s, dtype=torch.bfloat16) * 0.05)(D, 3 * D)),
            "wo": _w((lambda *s: torch.randn(*s, dtype=torch.bfloat16) * 0.05)(D, D)),
        }
    _A_in = _A_setup()

    def _B_setup():
        B, S, D, F = 1, 2048, 640, 1536
        return {
            "x": _w((lambda *s: torch.randn(*s, dtype=torch.bfloat16) * 0.05)(B, S, D)),
            "w1": _w((lambda *s: torch.randn(*s, dtype=torch.bfloat16) * 0.8)(D, F) * (D ** -0.5)),
            "b1": _w((lambda *s: torch.randn(*s, dtype=torch.bfloat16) * 0.8)(F) * 0.01),
            "w2": _w((lambda *s: torch.randn(*s, dtype=torch.bfloat16) * 0.8)(F, D) * (F ** -0.5)),
            "b2": _w((lambda *s: torch.randn(*s, dtype=torch.bfloat16) * 0.8)(D) * 0.01),
        }
    _B_in = _B_setup()

    return {
        "A_x": _A_in["x"],
        "A_wqkv": _A_in["wqkv"],
        "A_wo": _A_in["wo"],
        "B_x": _B_in["x"],
        "B_w1": _B_in["w1"],
        "B_b1": _B_in["b1"],
        "B_w2": _B_in["w2"],
        "B_b2": _B_in["b2"],
    }

def reference(A_x, A_wqkv, A_wo, B_x, B_w1, B_b1, B_w2, B_b2):
    def _A_ref(x, wqkv, wo):
        B, S, D = x.shape
        H = 32; Dh = D // H
        qkv = (lambda x, *d: x.permute(*d))((x @ wqkv).reshape(B, S, 3, H, Dh), 2, 0, 3, 1, 4)
        q, k, v = qkv[0], qkv[1], qkv[2]
        scale = Dh ** -0.5
        scores = torch.einsum("bhqd,bhkd->bhqk", q, k) * scale
        p = _softmax(scores, axis=-1)
        o = torch.einsum("bhqk,bhkd->bhqd", p, v)
        return (lambda x, *d: x.permute(*d))(o, 0, 2, 1, 3).reshape(B, S, D) @ wo

    def _B_ref(x, w1, b1, w2, b2):
        h = torch.einsum("bsd,df->bsf", x, w1) + b1
        h = _gelu(h)
        return torch.einsum("bsf,fd->bsd", h, w2) + b2

    x = A_x
    x = x + _A_ref(_layernorm(x, axis=-1), A_wqkv, A_wo)
    x = x + _B_ref(_layernorm(x, axis=-1), B_w1, B_b1, B_w2, B_b2)
    x = x + _A_ref(_layernorm(x, axis=-1), A_wqkv, A_wo)
    x = x + _B_ref(_layernorm(x, axis=-1), B_w1, B_b1, B_w2, B_b2)
    return x
```

```python
import re

class Asm:
    def __init__(self):
        self.lines = []
    def __call__(self, s):
        for l in s.split("\n"):
            l = l.strip()
            if l:
                self.lines.append(l)
        return self
    def extend(self, ls):
        for l in ls:
            self(l)
    def text(self):
        out = []
        for l in self.lines:
            if l.endswith(":") or l.startswith(".") or l.startswith(";"):
                out.append(l)
            else:
                out.append("    " + l)
        return "\n".join(out) + "\n"

def vr(b, n=1):
    return f"v{b}" if n == 1 else f"v[{b}:{b+n-1}]"
def ar(b, n=1):
    return f"a{b}" if n == 1 else f"a[{b}:{b+n-1}]"
def sr(b, n=1):
    return f"s{b}" if n == 1 else f"s[{b}:{b+n-1}]"

_REG = re.compile(r"^(-|abs\(|neg\()?([vas])(\d+|\[(\d+):(\d+)\])\)?$")
def regs_of(op):
    op = op.strip()
    if op in ("vcc", "exec", "m0", "scc"):
        return {op}
    if op in ("vcc_lo", "vcc_hi"): return {"vcc"}
    if op in ("exec_lo", "exec_hi"): return {"exec"}
    m = _REG.match(op)
    if not m:
        return set()
    k = m.group(2)
    if m.group(4) is not None:
        return {f"{k}{i}" for i in range(int(m.group(4)), int(m.group(5)) + 1)}
    return {f"{k}{int(m.group(3))}"}

TRANS = ("v_exp_", "v_log_", "v_rcp_", "v_rsq_", "v_sqrt_", "v_sin_", "v_cos_")
def passes(op):
    if "_2b_" in op: return 16
    if "32x32" in op: return 8
    if "16x16" in op: return 4
    raise ValueError(op)

class I:
    def __init__(self, line):
        self.line = line
        code = line.split(";")[0].strip()
        parts = code.split(None, 1)
        self.op = parts[0]
        rest = parts[1] if len(parts) > 1 else ""
        ops, depth, cur = [], 0, ""
        for ch in rest:
            if ch in "[(": depth += 1
            if ch in "])": depth -= 1
            if ch == "," and depth == 0:
                ops.append(cur.strip()); cur = ""
            else:
                cur += ch
        if cur.strip(): ops.append(cur.strip())
        mods = ""
        if ops:
            last = ops[-1].split(None, 1)
            ops[-1] = last[0]
            mods = last[1] if len(last) > 1 else ""
        self.ops, self.mods = ops, mods
        op = self.op
        self.mfma = op.startswith("v_mfma") or op.startswith("v_smfmac")
        self.valu = op.startswith("v_") and not self.mfma
        self.salu = op.startswith("s_")
        self.ds = op.startswith("ds_")
        self.vmem = op.startswith(("buffer_", "global_"))
        self.trans = op.startswith(TRANS)
        self.dpp = "dpp" in op or "quad_perm" in mods or "row_" in mods
        R = [regs_of(o) for o in ops]
        self.w, self.r = set(), set()
        self.srcC = set(); self.srcAB = set()
        if self.mfma:
            self.w = R[0]
            if op.startswith("v_smfmac"):
                self.srcC = R[0]; self.srcAB = R[1] | R[2] | R[3]
            else:
                self.srcC = R[3]; self.srcAB = R[1] | R[2]
            self.r = self.srcC | self.srcAB
        elif self.valu:
            if op.startswith("v_nop"):
                pass
            elif op.startswith("v_cmpx"):
                self.w = R[0] | {"exec"}; self.r = set().union(*R[1:])
            elif op.startswith(("v_permlane32_swap", "v_permlane16_swap", "v_swap")):
                self.w = R[0] | R[1]; self.r = R[0] | R[1]
            elif "_co_" in op or op.startswith(("v_div_scale", "v_mad_u64")):
                self.w = R[0] | R[1]; self.r = set().union(*R[2:])
            else:
                self.w = R[0]; self.r = set().union(*R[1:]) if len(R) > 1 else set()
                if op.startswith(("v_fmac", "v_dot2c", "v_pk_fmac", "v_writelane")) or "UNUSED_PRESERVE" in mods or self.dpp:
                    self.r |= R[0]
                if op.startswith("v_cndmask") and len(ops) == 3: self.r |= {"vcc"}
        elif self.ds:
            if op.startswith(("ds_read", "ds_bpermute", "ds_permute", "ds_swizzle")):
                self.w = R[0]; self.r = set().union(*R[1:])
            else:
                self.r = set().union(*R)
        elif self.vmem:
            lds = " lds" in (" " + mods) or "_lds_" in op
            self.ldsdma = lds
            if op.startswith(("buffer_wbl2", "buffer_inv")):
                pass
            elif "load" in op and not lds:
                self.w = R[0]; self.r = set().union(*R[1:])
            elif "atomic" in op and "sc0" in mods:
                self.w = R[0]; self.r = set().union(*R)
            else:
                self.r = set().union(*R)
            if lds: self.r |= {"m0"}
        elif self.salu:
            if op.startswith(("s_cmp", "s_waitcnt", "s_nop", "s_barrier", "s_branch", "s_cbranch", "s_endpgm", "s_sleep", "s_setprio", "s_bitcmp")):
                self.r = set().union(*R) if R else set()
            else:
                self.w = R[0] if R else set(); self.r = set().union(*R[1:]) if len(R) > 1 else set()
                if "saveexec" in op: self.w |= {"exec"}
        self.states = 1
        if op == "s_nop": self.states = int(ops[0], 0) + 1
        self.wide_store = self.vmem and "store" in op and op.endswith(("x3", "x4"))
        if self.wide_store:
            self.stdata = R[0] if op.startswith("buffer") else R[1]

def need(p, c):
    n = 0
    isv = lambda s: {x for x in s if x[0] in "va" and x not in ("vcc",)}
    iss = lambda s: {x for x in s if x[0] == "s" or x in ("vcc",)}
    if p.valu:
        wv, ws = isv(p.w), iss(p.w)
        if c.mfma and wv & c.r: n = max(n, 2)
        if c.vmem and ws & c.r: n = max(n, 5)
        if c.valu and ws & c.r: n = max(n, 2)
        if c.op.startswith(("v_readlane", "v_writelane")) and ws & c.r: n = max(n, 4)
        if c.op.startswith(("v_readlane", "v_readfirstlane")) and wv & c.r: n = max(n, 1)
        if c.valu and c.dpp and wv & c.r: n = max(n, 2)
        if c.op.startswith("v_permlane") and wv & c.r: n = max(n, 2)
        if p.trans and (c.valu and not c.trans) and wv & (c.r): n = max(n, 1)
        if ("sdwa" in p.op or "op_sel" in p.mods) and c.valu and wv & (c.r | c.w): n = max(n, 1)
        if "exec" in p.w:
            if c.mfma or c.op.startswith(("v_readlane", "v_readfirstlane", "v_writelane", "v_permlane")): n = max(n, 4)
            if c.dpp: n = max(n, 5)
        if p.op.startswith("v_dot"):
            if (c.valu or c.mfma or c.vmem or c.ds) and wv & (c.r | c.w):
                same = c.op == p.op
                if same:
                    ab = regs_of(c.ops[1]) | regs_of(c.ops[2])
                    if wv & ab: n = max(n, 3)
                else:
                    n = max(n, 3)
    if p.salu and "m0" in p.w and c.vmem and getattr(c, "ldsdma", False): n = max(n, 1)
    if p.wide_store and (c.valu or c.mfma) and p.stdata & c.w: n = max(n, 2)
    if p.wide_store and (c.ds or c.vmem) and p.stdata & c.w: n = max(n, 1)
    if p.mfma:
        k = {2: 0, 4: 1, 8: 2, 16: 3}[passes(p.op)]
        if c.mfma:
            if p.w & c.srcAB: n = max(n, (5, 8, 12, 20)[k])
            if p.w & c.srcC:
                if p.w == c.srcC and passes(p.op) == passes(c.op): n = max(n, (2, 0, 0, 0)[k])
                else: n = max(n, (4, 6, 10, 18)[k])
            elif p.w & c.w:
                n = max(n, (4, 6, 10, 18)[k])
        elif (c.valu or c.vmem or c.ds) and p.w & (c.r | c.w):
            n = max(n, (5, 8, 12, 20)[k])
        if c.valu and p.srcC & c.w: n = max(n, (1, 3, 7, 15)[k])
    return n

def check_hazards(lines, name=""):
    ins, labels = [], {}
    for l in lines:
        if l.startswith((";", ".")): continue
        if l.endswith(":"):
            labels[l[:-1]] = len(ins); continue
        ins.append(I(l))
    probs = []
    W = 22
    for i, p in enumerate(ins):
        if not (p.valu or p.mfma or p.wide_store or (p.salu and "m0" in p.w)): continue
        stack = [(i + 1, 0)]
        seen = set()
        while stack:
            j, d = stack.pop()
            while j < len(ins) and d < W:
                if (j, d) in seen: break
                seen.add((j, d))
                c = ins[j]
                n = need(p, c)
                if n > d:
                    probs.append(f"{name}: need {n} have {d}: [{p.line}] -> [{c.line}]")
                d += c.states
                if c.op == "s_endpgm": break
                if c.op == "s_branch":
                    j = labels[c.ops[0]]; continue
                if c.op.startswith("s_cbranch"):
                    stack.append((labels[c.ops[0]], d))
                j += 1
    return sorted(set(probs))
```

```python
import sys, math, struct
from asmlib import *

NAME = "interleave_layers__softmax_full_mha__dense_activation_gelu__prompt"
STAMP = False

XF    = lambda i: i * 0x280000
STAT  = lambda i: 0xA00000 + i * 0x20000
WEXT_QKV = 0xA80000
WEXT_W1  = 0xA88000
QF    = lambda l: 0xB00000 + l * 0x280000
KVF   = lambda l: 0x1000000 + l * 0x500000
OF    = lambda l: 0x1A00000 + l * 0x280000
HF    = lambda l: 0x2000000 + l * 0x600000
STAMPS = 0x4000000
WS_BYTES = 0x10000000
KA = dict(x=0, wqkv=8, wo=16, w1=32, b1=40, w2=48, b2=56, out=64, dbg=72, ws=80)
SZ = dict(x=2048*640*2, wqkv=640*1920*2, wo=640*640*2, w1=640*1536*2, b1=1536*2, w2=1536*640*2, b2=640*2, out=2048*640*2, ws=WS_BYTES)

def f2u(x): return struct.unpack("<I", struct.pack("<f", x))[0]
def hx(x): return f"0x{x & 0xffffffff:x}"

class Cnt:
    def __init__(self, name, mx): self.q = []; self.name = name; self.mx = mx; self.done = 0
    def issue(self, tag):
        self.q.append(tag)
        assert len(self.q) - self.done <= self.mx, (self.name, "too many outstanding")
    def wait(self, *tags):
        last = max((i for i, t in enumerate(self.q) if t in tags), default=-1)
        assert last >= 0, tags
        if last < self.done: return None
        n = len(self.q) - 1 - last
        self.done = last + 1
        return f"s_waitcnt {self.name}({n})"

def load_srds(a, items):
    for n, s in items:
        a(f"s_load_dwordx2 {sr(s,2)}, s[0:1], {KA[n]}")
    for n, s in items:
        a(f"s_mov_b32 s{s+2}, {hx(SZ[n])}")
        a(f"s_mov_b32 s{s+3}, 0x00020000")

def stamp_begin(a):
    if STAMP: a("s_memrealtime s[96:97]")
def stamp_end(a, ws, slot_sgpr_or_int):
    if not STAMP: return
    a("s_waitcnt vmcnt(0) lgkmcnt(0)")
    a("s_memrealtime s[98:99]")
    a(f"s_lshl_b32 s100, {slot_sgpr_or_int}, 12")
    a("s_lshl_b32 s101, s2, 4")
    a("s_add_u32 s100, s100, s101")
    a(f"s_add_u32 s100, s100, {hx(STAMPS)}")
    a("s_waitcnt lgkmcnt(0)")
    a("v_mov_b32 v2, s96"); a("v_mov_b32 v3, s98"); a("v_mov_b32 v1, 0")
    a("s_mov_b64 exec, 1")
    a(f"buffer_store_dwordx2 v[2:3], v1, {sr(ws,4)}, s100 offen")

def desc(name, vgpr, accum, sgpr=102):
    return f""".amdhsa_kernel {name}
  .amdhsa_next_free_vgpr {vgpr}
  .amdhsa_next_free_sgpr {sgpr}
  .amdhsa_accum_offset {accum}
  .amdhsa_group_segment_fixed_size 0
  .amdhsa_kernarg_size 88
  .amdhsa_user_sgpr_count 2
  .amdhsa_user_sgpr_kernarg_segment_ptr 1
  .amdhsa_system_sgpr_workgroup_id_x 1
.end_amdhsa_kernel
"""

def entries(a, base, n):
    for l in range(n - 1, -1, -1):
        a(".p2align 8")
        a(f"{base}{l}_kernel:")
        a(f"s_mov_b32 s3, {l}")
        if l > 0: a(f"s_branch {base}_body")
    a(f"{base}_body:")

def csel(a, d, x, y):
    a(f"s_mov_b32 {d}, {y}"); a(f"s_cmov_b32 {d}, {x}")

def swap_add(a, v, t, which):
    a(f"v_mov_b32 v{t}, v{v}")
    a("s_nop 1")
    a(f"v_permlane{which}_swap_b32 v{v}, v{t}")
    a("s_nop 1")
    a(f"v_add_f32 v{v}, v{v}, v{t}")

def gen_p0():
    a = Asm()
    a(".p2align 8"); a("pre0_kernel:")
    stamp_begin(a)
    a("s_cmp_ge_u32 s2, 236"); a("s_cbranch_scc1 pre_end")
    WS, X, W, W1, B1 = 4, 8, 12, 16, 20
    load_srds(a, [("ws", WS), ("x", X), ("wqkv", W), ("w1", W1), ("b1", B1)])
    a("v_and_b32 v1, 63, v0"); a("v_lshrrev_b32 v2, 6, v0"); a("s_nop 0"); a("v_readfirstlane_b32 s24, v2")
    a("s_cmp_ge_u32 s2, 128"); a("s_cbranch_scc1 pre_cols")
    a("s_lshl_b32 s25, s2, 2"); a("s_add_u32 s25, s25, s24")
    a("s_lshr_b32 s26, s25, 3"); a("s_and_b32 s27, s25, 7")
    a("v_and_b32 v3, 31, v1"); a("v_lshrrev_b32 v4, 5, v1")
    a("v_mul_u32_u24 v5, 1280, v3"); a("v_lshl_add_u32 v5, v4, 4, v5")
    a("s_mul_i32 s28, s26, 40960"); a("s_mul_i32 s29, s27, 160"); a("s_add_u32 s28, s28, s29")
    a("s_waitcnt lgkmcnt(0)")
    for s in range(5):
        a(f"buffer_load_dwordx4 {vr(16+4*s,4)}, v5, {sr(X,4)}, s28 offen offset:{32*s}")
    a("v_mov_b32 v8, 0"); a("v_mov_b32 v9, 0"); a("v_mov_b32 v10, 0x3f803f80")
    a("v_lshlrev_b32 v6, 4, v1")
    a("s_mul_i32 s28, s26, 40960"); a("s_mul_i32 s29, s27, 5120"); a("s_add_u32 s28, s28, s29")
    a(f"s_add_u32 s28, s28, {hx(XF(0))}"); a("s_add_u32 s30, s28, 4096")
    a("s_waitcnt vmcnt(0)")
    for s in range(4):
        a(f"buffer_store_dwordx4 {vr(16+4*s,4)}, v6, {sr(WS,4)}, s28 offen offset:{1024*s}")
    a(f"buffer_store_dwordx4 {vr(32,4)}, v6, {sr(WS,4)}, s30 offen")
    for i in range(20):
        a(f"v_dot2_f32_bf16 v8, v{16+i}, v10, v8")
        a(f"v_dot2_f32_bf16 v9, v{16+i}, v{16+i}, v9")
    a("s_nop 2")
    swap_add(a, 8, 11, 32); swap_add(a, 9, 11, 32)
    a("s_lshl_b32 s28, s25, 8"); a(f"s_add_u32 s28, s28, {hx(STAT(0))}")
    a("v_lshlrev_b32 v7, 3, v3")
    a(f"buffer_store_dwordx2 v[8:9], v7, {sr(WS,4)}, s28 offen")
    a("s_branch pre_fin")
    a("pre_cols:")
    a("s_waitcnt lgkmcnt(0)")
    a("s_sub_u32 s25, s2, 128")
    a("s_cmp_lt_u32 s25, 60")
    csel(a, "s26", 3840, 3072)
    a("s_cselect_b32 s27, 0, 60")
    csel(a, "s31", hx(WEXT_QKV), hx(WEXT_W1))
    a(f"s_cselect_b32 s{B1+2}, 0, s{B1+2}")
    a(f"s_cselect_b32 s{W}, s{W}, s{W1}"); a(f"s_cselect_b32 s{W+1}, s{W+1}, s{W1+1}"); a(f"s_cselect_b32 s{W+2}, s{W+2}, s{W1+2}")
    a("s_sub_u32 s25, s25, s27")
    a("v_lshrrev_b32 v3, 2, v0"); a("v_and_b32 v4, 3, v0")
    a("v_mul_lo_u32 v5, v3, s26"); a("v_lshl_add_u32 v5, v4, 4, v5")
    a("s_lshl_b32 s28, s25, 6"); a("s_lshl_b32 s29, s26, 6")
    for i in range(10):
        a(f"buffer_load_dwordx4 {vr(16+4*i,4)}, v5, {sr(W,4)}, s28 offen")
        a("s_add_u32 s28, s28, s29")
    a("v_and_b32 v6, 31, v0"); a("v_lshlrev_b32 v7, 1, v6"); a("s_lshl_b32 s28, s25, 6")
    a(f"buffer_load_ushort v60, v7, {sr(B1,4)}, s28 offen")
    for j in range(8): a(f"v_mov_b32 v{8+j}, 0")
    a("s_waitcnt vmcnt(0)")
    for i in range(10):
        for j in range(4):
            r = 16 + 4*i + j
            a(f"v_lshlrev_b32 v61, 16, v{r}"); a(f"v_and_b32 v62, 0xffff0000, v{r}")
            a(f"v_add_f32 v{8+2*j}, v{8+2*j}, v61"); a(f"v_add_f32 v{9+2*j}, v{9+2*j}, v62")
    a("v_lshlrev_b32 v5, 5, v0")
    a("ds_write_b128 v5, v[8:11]"); a("ds_write_b128 v5, v[12:15] offset:16")
    a("s_waitcnt lgkmcnt(0)"); a("s_barrier")
    a("v_lshrrev_b32 v3, 5, v0"); a("v_lshlrev_b32 v3, 10, v3"); a("v_lshl_add_u32 v3, v6, 2, v3")
    for i in range(8): a(f"ds_read_b32 v{16+i}, v3 offset:{128*i}")
    a("s_waitcnt lgkmcnt(0)")
    for i in range(1, 8): a(f"v_add_f32 v16, v16, v{16+i}")
    a("s_barrier")
    a("v_lshlrev_b32 v3, 2, v0"); a("ds_write_b32 v3, v16")
    a("s_waitcnt lgkmcnt(0)"); a("s_barrier")
    a("v_lshlrev_b32 v3, 2, v6")
    for i in range(8): a(f"ds_read_b32 v{16+i}, v3 offset:{128*i}")
    a("s_waitcnt lgkmcnt(0)")
    for i in range(1, 8): a(f"v_add_f32 v16, v16, v{16+i}")
    a("v_cvt_pk_bf16_f32 v17, v16, v16"); a("v_and_b32 v17, 0xffff0000, v17"); a("v_sub_f32 v17, v16, v17")
    a("v_cvt_pk_bf16_f32 v20, v16, v17")
    a("v_lshlrev_b32 v18, 16, v60"); a("v_cvt_pk_bf16_f32 v21, v16, v18")
    a("v_mov_b32 v22, v60"); a("v_mov_b32 v23, 0")
    a("s_lshl_b32 s28, s25, 9"); a("s_add_u32 s28, s28, s31")
    a("v_lshlrev_b32 v3, 4, v6")
    a(f"buffer_store_dwordx4 v[20:23], v3, {sr(WS,4)}, s28 offen")
    a("pre_fin:")
    stamp_end(a, WS, 0)
    a("pre_end:")
    a("s_endpgm")
    return a, [("pre0_kernel", 64, 64)]

def gen_ga(kind):
    qkv = kind == "qkv"
    NB = 4 if qkv else 3
    RB = 64 * NB
    LDW = 3840 if qkv else 3072
    ITB = 64 * RB
    ND = NB
    PRE = 6 if qkv else 7
    base = kind
    a = Asm()
    entries(a, base, 2)
    stamp_begin(a)
    WS, W = 4, 8
    sMT, sNT, sWV, sRB, sA, sM0, sD, sT, sO, sHS = 16, 17, 18, 19, 20, 21, 22, 26, 27, 28
    a("s_cmp_ge_u32 s2, 256"); a(f"s_cbranch_scc1 {base}_end")
    a("s_lshr_b32 s12, s2, 3"); a(f"s_and_b32 s{sNT}, s12, 15")
    if qkv:
        a(f"s_cmp_eq_u32 s{sNT}, 15"); a(f"s_cbranch_scc1 {base}_end")
    load_srds(a, [("ws", WS), ("wqkv" if qkv else "w1", W)])
    a("s_and_b32 s13, s2, 7"); a("s_lshl_b32 s13, s13, 1"); a("s_lshr_b32 s12, s12, 4"); a(f"s_add_u32 s{sMT}, s13, s12")
    vL, vM, vH, vL16, vT0, vT1 = 1, 2, 3, 4, 5, 6
    vRD = 8
    vDM = 12
    vST = 16
    vRS = 24
    vTX = 28
    vAD = 32
    vRV = 48
    vAC = 64
    vB  = 128
    vWX = 160
    vP  = 176
    a(f"v_and_b32 v{vL}, 63, v0"); a(f"v_lshrrev_b32 v{vT0}, 6, v0")
    a(f"v_and_b32 v{vM}, 31, v0"); a(f"v_readfirstlane_b32 s{sWV}, v{vT0}")
    a(f"v_lshrrev_b32 v{vH}, 5, v{vL}"); a(f"v_lshlrev_b32 v{vL16}, 4, v{vL}")
    a(f"s_lshl_b32 s{sRB}, s{sMT}, 2"); a(f"s_add_u32 s{sRB}, s{sRB}, s{sWV}")
    a(f"s_mul_i32 s{sA}, s3, {hx(2*0x280000)}"); a(f"s_mul_i32 s12, s{sRB}, 40960"); a(f"s_add_u32 s{sA}, s{sA}, s12")
    if not qkv: a(f"s_add_u32 s{sA}, s{sA}, {hx(XF(1))}")
    a(f"s_lshl_b32 s{sT}, s3, 18"); a(f"s_lshl_b32 s12, s{sRB}, 11"); a(f"s_add_u32 s{sT}, s{sT}, s12")
    a(f"s_add_u32 s{sT}, s{sT}, {hx(STAT(0 if qkv else 1))}")
    a(f"s_mul_i32 s13, s{sNT}, {NB*512}"); a(f"s_add_u32 s13, s13, {hx(WEXT_QKV if qkv else WEXT_W1)}")
    if qkv:
        a(f"v_lshrrev_b32 v{vT0}, 4, v{vL}")
        a(f"v_bfe_u32 v{vT1}, v{vL}, 2, 2"); a(f"v_xor_b32 v{vT1}, v{vT1}, v{vT0}")
        a(f"v_mul_u32_u24 v{vDM}, {LDW}, v{vT0}"); a(f"v_lshl_add_u32 v{vDM}, v{vT1}, 6, v{vDM}")
        a(f"v_and_b32 v{vT1}, 3, v{vL}"); a(f"v_lshl_add_u32 v{vDM}, v{vT1}, 4, v{vDM}")
    else:
        for i in range(3):
            a(f"v_add_u32 v{vT0}, {64*i}, v{vL}")
            a(f"v_mul_u32_u24 v{vT1}, 171, v{vT0}"); a(f"v_lshrrev_b32 v{vT1}, 11, v{vT1}")
            a(f"v_mul_u32_u24 v{vDM+i}, {LDW-192}, v{vT1}"); a(f"v_lshl_add_u32 v{vDM+i}, v{vL}, 4, v{vDM+i}")
    a(f"s_mul_i32 s{sD}, s{sWV}, {16*LDW}"); a(f"s_mul_i32 s12, s{sNT}, {RB}"); a(f"s_add_u32 s{sD}, s{sD}, s12")
    if qkv:
        for i in range(1, 4): a(f"s_add_u32 s{sD+i}, s{sD}, {i*(4*LDW-1024)}")
    a(f"s_mul_i32 s{sM0}, s{sWV}, {ND*1024}")
    a(f"v_lshlrev_b32 v{vT0}, 3, v{vM}"); a(f"v_lshl_add_u32 v{vT0}, v{vH}, 8, v{vT0}")
    a(f"v_lshlrev_b32 v{vT1}, 4, v{vM}")
    vm = Cnt("vmcnt", 63); lg = Cnt("lgkmcnt", 15)
    a("s_waitcnt lgkmcnt(0)")
    for i in range(4):
        a(f"buffer_load_dwordx2 {vr(vST+2*i,2)}, v{vT0}, {sr(WS,4)}, s{sT} offen offset:{512*i}"); vm.issue("small")
    for nb in range(NB):
        a(f"buffer_load_dwordx4 {vr(vWX+4*nb,4)}, v{vT1}, {sr(WS,4)}, s13 offen offset:{512*nb}"); vm.issue("small")
    def loads(it):
        g = []
        for i in range(ND):
            pre = []
            if i == 0: pre = [f"s_mov_b32 m0, s{sM0}", f"s_add_u32 s{sM0}, s{sM0}, {ITB}"]
            if qkv:
                ls = pre + [f"buffer_load_dwordx4 v{vDM}, {sr(W,4)}, s{sD+i} offen offset:{1024*i} lds", f"s_add_u32 s{sD+i}, s{sD+i}, {64*LDW}"]
            else:
                ls = pre + [f"buffer_load_dwordx4 v{vDM+i}, {sr(W,4)}, s{sD} offen offset:{1024*i} lds"]
                if i == ND - 1: ls.append(f"s_add_u32 s{sD}, s{sD}, {64*LDW}")
            g.append((ls, ("it", it)))
        for i in range(4):
            ls = [f"buffer_load_dwordx4 {ar(16*it+4*i,4)}, v{vL16}, {sr(WS,4)}, s{sA} offen offset:{1024*i}"]
            if i == 3: ls.append(f"s_add_u32 s{sA}, s{sA}, 4096")
            g.append((ls, ("it", it)))
        return g
    for it in range(PRE):
        for ls, tag in loads(it):
            a.extend(ls); vm.issue(tag)
    a(f"v_bfe_u32 v{vT0}, v{vL}, 2, 2")
    a(f"v_lshl_add_u32 v{vT1}, v{vH}, 3, v{vT0}")
    a(f"v_mul_u32_u24 v{vRD}, {RB}, v{vT1}")
    a(f"v_bfe_u32 v{vT1}, v{vL}, 4, 1"); a(f"v_lshl_add_u32 v{vRD}, v{vT1}, 5, v{vRD}")
    a(f"v_and_b32 v{vT1}, 3, v{vL}"); a(f"v_lshl_add_u32 v{vRD}, v{vT1}, 3, v{vRD}")
    if qkv:
        for nb in (3, 2, 1, 0):
            a(f"v_xor_b32 v{vT1}, {nb}, v{vT0}"); a(f"v_lshl_add_u32 v{vRD+nb}, v{vT1}, 6, v{vRD}")
    if qkv:
        a(f"s_cmp_ge_u32 s{sNT}, 10"); a(f"s_cbranch_scc1 {base}_adV")
        a(f"s_cmp_ge_u32 s{sNT}, 5")
        a(f"s_cselect_b32 s12, 5, 0"); csel(a, f"s{sHS}", 163840-1280, 81920-1280)
        csel(a, "s13", 2560, 1280); csel(a, "s14", hx(KVF(0)), hx(QF(0))); csel(a, "s15", hx(0x500000), hx(0x280000))
        a(f"s_cselect_b32 s29, {hx(f2u(1.0))}, {hx(f2u(20**-0.5*math.log2(math.e)))}")
        a(f"s_sub_u32 s12, s{sNT}, s12"); a("s_lshl_b32 s12, s12, 5")
        a(f"s_mul_i32 s{sO}, s{sRB}, s13"); a(f"s_add_u32 s{sO}, s{sO}, s14"); a("s_mul_i32 s15, s15, s3"); a(f"s_add_u32 s{sO}, s{sO}, s15")
        a(f"v_add_u32 v{vT0}, s12, v{vH}")
        a(f"v_lshlrev_b32 v{vT1}, 8, v{vT0}"); a(f"v_lshl_add_u32 v{vT1}, v{vM}, 3, v{vT1}")
        a(f"v_mul_u32_u24 v{vT0}, 205, v{vT0}")
        for j in range(16):
            if j == 8: a(f"v_add_u32 v{vT1}, 4096, v{vT1}")
            a(f"v_add_u32 v{vAD+j}, {410*j}, v{vT0}"); a(f"v_lshrrev_b32 v{vAD+j}, 10, v{vAD+j}")
            a(f"v_mad_u32_u24 v{vAD+j}, v{vAD+j}, s{sHS}, v{vT1}")
        a(f"s_branch {base}_adDone")
        a(f"{base}_adV:")
        a(f"s_mov_b32 s29, {hx(f2u(1.0))}")
        a(f"s_sub_u32 s12, s{sNT}, 10"); a("s_lshl_b32 s12, s12, 7")
        a(f"s_mul_i32 s{sO}, s{sRB}, 2560"); a(f"s_add_u32 s{sO}, s{sO}, {hx(KVF(0)+1280)}"); a(f"s_mul_i32 s15, s3, {hx(0x500000)}"); a(f"s_add_u32 s{sO}, s{sO}, s15")
        a(f"s_mov_b32 s{sHS}, {163840-320}")
        a(f"v_mul_u32_u24 v{vT1}, 320, v{vH}")
        for nb in range(4):
            a(f"v_add_u32 v{vT0}, s12, v{vM}")
            a(f"v_mul_u32_u24 v{vAD+nb}, 3277, v{vT0}"); a(f"v_lshrrev_b32 v{vAD+nb}, 16, v{vAD+nb}")
            a(f"v_lshl_add_u32 v{vT0}, v{vT0}, 4, v{vT1}")
            a(f"v_mad_u32_u24 v{vAD+nb}, v{vAD+nb}, s{sHS}, v{vT0}")
            a("s_add_u32 s12, s12, 32")
        for j in range(4, 16): a(f"v_mov_b32 v{vAD+j}, 0")
        a(f"{base}_adDone:")
    else:
        a(f"v_lshrrev_b32 v{vT0}, 4, v{vM}"); a(f"v_mul_u32_u24 v{vAD}, 49152, v{vT0}")
        a(f"v_lshl_add_u32 v{vAD}, v{vH}, 8, v{vAD}"); a(f"v_and_b32 v{vT0}, 15, v{vM}"); a(f"v_lshl_add_u32 v{vAD}, v{vT0}, 4, v{vAD}")
        a(f"s_mul_i32 s{sO}, s{sRB}, {2*49152}"); a(f"s_mul_i32 s12, s{sNT}, 3072"); a(f"s_add_u32 s{sO}, s{sO}, s12")
        a(f"s_mul_i32 s12, s3, {hx(0x600000)}"); a(f"s_add_u32 s{sO}, s{sO}, s12"); a(f"s_add_u32 s{sO}, s{sO}, {hx(HF(0))}")
    a(vm.wait("small"))
    for i in range(1, 4):
        a(f"v_add_f32 v{vST}, v{vST}, v{vST+2*i}"); a(f"v_add_f32 v{vST+1}, v{vST+1}, v{vST+2*i+1}")
    swap_add(a, vST, vT0, 32); swap_add(a, vST+1, vT0, 32)
    a(f"v_mul_f32 v{vST}, {hx(f2u(-1.0/640))}, v{vST}")
    a(f"v_mul_f32 v{vST+1}, {hx(f2u(1.0/640))}, v{vST+1}")
    a(f"v_fma_f32 v{vST+1}, -v{vST}, v{vST}, v{vST+1}")
    a(f"v_max_f32 v{vST+1}, 0, v{vST+1}"); a(f"v_add_f32 v{vST+1}, {hx(f2u(1e-5))}, v{vST+1}")
    a(f"v_rsq_f32 v{vRS}, v{vST+1}")
    a(f"v_cmp_eq_u32 vcc, 0, v{vH}")
    a(f"v_mul_f32 v{vST+1}, v{vST+1}, v{vRS}")
    a(f"v_mov_b32 v{vTX+3}, 0")
    a(f"v_cndmask_b32 v{vST}, 0, v{vST}, vcc"); a(f"v_cndmask_b32 v{vST+1}, 0, v{vST+1}, vcc")
    a(f"v_cvt_pk_bf16_f32 v{vTX}, v{vST}, v{vST}"); a(f"v_and_b32 v{vT0}, 0xffff0000, v{vTX}"); a(f"v_sub_f32 v{vT0}, v{vST}, v{vT0}")
    a(f"v_cvt_pk_bf16_f32 v{vTX+1}, v{vT0}, v{vST+1}"); a(f"v_and_b32 v{vT0}, 0xffff0000, v{vTX+1}"); a(f"v_sub_f32 v{vT0}, v{vST+1}, v{vT0}")
    a(f"v_cvt_pk_bf16_f32 v{vTX+2}, v{vT0}, v{vTX+3}")
    if qkv:
        a(f"v_mul_f32 v{vRS}, s29, v{vRS}")
    a(f"v_mov_b32 v{vRS+1}, v{vRS}")

    def mainloop(a, vm, lg, transposed):
        def mf(nb, wfrag, xfrag, c):
            x, y = (wfrag, xfrag) if transposed else (xfrag, wfrag)
            return f"v_mfma_f32_32x32x16_bf16 {vr(vAC+16*nb,16)}, {x}, {y}, {c}"
        a("s_nop 1")
        for nb in range(NB): a(mf(nb, vr(vWX+4*nb,4), vr(vTX,4), "0"))
        per = 65536 // ITB
        def reads(gs, nb):
            it, s = divmod(gs, 4)
            off = (it % per) * ITB + s * 16 * RB + (0 if qkv else nb * 64)
            ad = vRD + (nb if qkv else 0)
            d = vB + 16 * (gs & 1) + 4 * nb
            return [f"ds_read_b64_tr_b16 {vr(d,2)}, v{ad} offset:{off}", f"ds_read_b64_tr_b16 {vr(d+2,2)}, v{ad} offset:{off+4*RB}"]
        a(vm.wait(("it", 0))); a("s_barrier")
        for nb in range(NB):
            for l in reads(0, nb): a(l); lg.issue((0, nb))
        pend = []
        for gs in range(40):
            it, s = divmod(gs, 4)
            if s == 0 and it + PRE < 10: pend += loads(it + PRE)
            if s == 3 and it < 9:
                assert not pend
                w = vm.wait(("it", it + 1))
                if w: a(w)
                a("s_barrier")
                if (it + 1) % per == 0:
                    for r in range(4 if qkv else 1): a(f"v_add_u32 v{vRD+r}, {per*ITB}, v{vRD+r}")
            for nb in range(NB):
                w = lg.wait((gs, nb))
                if w: a(w)
                a(mf(nb, vr(vB + 16*(gs & 1) + 4*nb, 4), ar(4*gs, 4), vr(vAC+16*nb, 16)))
                if gs + 1 < 40:
                    for l in reads(gs + 1, nb): a(l); lg.issue((gs + 1, nb))
                if pend:
                    ls, tag = pend.pop(0); a.extend(ls); vm.issue(tag)

    import copy
    if qkv:
        a(f"s_cmp_ge_u32 s{sNT}, 10"); a(f"s_cbranch_scc1 {base}_V")
        mainloop(a, copy.deepcopy(vm), copy.deepcopy(lg), True)
        a("s_nop 8")
        for nb in range(4):
            if nb == 3: a("s_nop 0")
            for q in range(4):
                r = vAC + 16*nb + 4*q; j = 4*nb + q; p = vP + 2*(j % 8)
                a(f"v_pk_mul_f32 {vr(r,2)}, {vr(r,2)}, {vr(vRS,2)}"); a(f"v_pk_mul_f32 {vr(r+2,2)}, {vr(r+2,2)}, {vr(vRS,2)}")
                a(f"v_cvt_pk_bf16_f32 v{p}, v{r}, v{r+1}"); a(f"v_cvt_pk_bf16_f32 v{p+1}, v{r+2}, v{r+3}")
                a(f"buffer_store_dwordx2 {vr(p,2)}, v{vAD+j}, {sr(WS,4)}, s{sO} offen offset:{512*(j%8)}")
        a(f"s_branch {base}_fin")
        a(f"{base}_V:")
        a(f"v_lshlrev_b32 v{vT0}, 4, v{vH}")
        for r in range(16):
            a(f"ds_bpermute_b32 v{vRV+r}, v{vT0}, v{vRS} offset:{32*(r>>2)+4*(r&3)}")
            if r == 7: a("s_waitcnt lgkmcnt(0)")
        a("s_waitcnt lgkmcnt(0)")
        mainloop(a, vm, lg, False)
        a("s_nop 8")
        for nb in range(4):
            for h2 in range(2):
                r = vAC + 16*nb + 8*h2; p = vP + 4*((2*nb + h2) % 4)
                for i in range(4): a(f"v_pk_mul_f32 {vr(r+2*i,2)}, {vr(r+2*i,2)}, {vr(vRV+8*h2+2*i,2)}")
                for i in range(4): a(f"v_cvt_pk_bf16_f32 v{p+i}, v{r+2*i}, v{r+2*i+1}")
                a(f"buffer_store_dwordx4 {vr(p,4)}, v{vAD+nb}, {sr(WS,4)}, s{sO} offen offset:{640*h2}")
        a(f"{base}_fin:")
    else:
        mainloop(a, vm, lg, True)
        c1 = 2*math.sqrt(2/math.pi)*math.log2(math.e); c2 = c1*0.044715
        a(f"s_mov_b32 s30, {hx(f2u(-c1))}"); a("s_mov_b32 s31, s30"); a(f"s_mov_b32 s32, {hx(f2u(-c2))}"); a("s_mov_b32 s33, s32")
        a(f"v_mov_b32 v{vST}, s30"); a(f"v_mov_b32 v{vST+1}, s30")
        a("s_nop 4")
        T = vB
        for nb in range(3):
            for h2 in range(2):
                r = vAC + 16*nb + 8*h2; p = vP + 4*((2*nb + h2) % 4)
                for i in range(4): a(f"v_pk_mul_f32 {vr(r+2*i,2)}, {vr(r+2*i,2)}, {vr(vRS,2)}")
                for i in range(4): a(f"v_pk_mul_f32 {vr(T+2*i,2)}, {vr(r+2*i,2)}, {vr(r+2*i,2)}")
                for i in range(4): a(f"v_pk_fma_f32 {vr(T+2*i,2)}, {vr(T+2*i,2)}, s[32:33], {vr(vST,2)}")
                for i in range(4): a(f"v_pk_mul_f32 {vr(T+2*i,2)}, {vr(T+2*i,2)}, {vr(r+2*i,2)}")
                for i in range(8): a(f"v_exp_f32 v{T+i}, v{T+i}")
                for i in range(4): a(f"v_pk_add_f32 {vr(T+2*i,2)}, {vr(T+2*i,2)}, 1.0 op_sel_hi:[1,0]")
                for i in range(8): a(f"v_rcp_f32 v{T+i}, v{T+i}")
                for i in range(4): a(f"v_pk_mul_f32 {vr(r+2*i,2)}, {vr(r+2*i,2)}, {vr(T+2*i,2)}")
                for i in range(4): a(f"v_cvt_pk_bf16_f32 v{p+i}, v{r+2*i}, v{r+2*i+1}")
                a(f"buffer_store_dwordx4 {vr(p,4)}, v{vAD}, {sr(WS,4)}, s{sO} offen offset:{1024*nb+512*h2}")
    if STAMP:
        a("s_mul_i32 s95, s3, 5"); a(f"s_add_u32 s95, s95, {1 if qkv else 4}")
    stamp_end(a, WS, "s95")
    a(f"{base}_end:")
    a("s_endpgm")
    return a, [(f"{base}{l}_kernel", 192 + 160, 192) for l in range(2)]

def gen_gb(kind):
    op = kind == "oproj"
    KS = 20 if op else 48
    NIT = KS // 4
    NSL = 5 if op else 7
    SCR = NSL * 20480
    PRE = 5
    base = kind
    a = Asm()
    entries(a, base, 2)
    stamp_begin(a)
    WS, W, BI, OUT = 4, 8, 12, 16
    sMT, sNT, sWV, sWM, sWK, sA0, sA1, sM0, sD, sR, sO, sST = 24, 25, 26, 27, 28, 29, 30, 31, 32, 33, 36, 34
    a("s_cmp_ge_u32 s2, 256"); a(f"s_cbranch_scc1 {base}_end")
    srds = [("ws", WS), ("wo" if op else "w2", W)]
    if not op: srds += [("b2", BI), ("out", OUT)]
    load_srds(a, srds)
    a("s_lshr_b32 s20, s2, 3"); a(f"s_and_b32 s{sNT}, s20, 7"); a("s_lshr_b32 s20, s20, 3")
    a("s_and_b32 s21, s2, 7"); a("s_lshl_b32 s21, s21, 2"); a(f"s_add_u32 s{sMT}, s21, s20")
    vL, vJ, vG, vL16, vT0, vT1, vT2 = 1, 2, 3, 4, 5, 6, 7
    vRD = 8
    vDM = 12
    vXA = 18
    vOA = 19
    vRES = 20
    vBIAS = 32
    vAC = 44
    vB = 84
    vP = 124
    a(f"v_and_b32 v{vL}, 63, v0"); a(f"v_lshrrev_b32 v{vT0}, 6, v0")
    a(f"v_and_b32 v{vJ}, 15, v0"); a(f"v_readfirstlane_b32 s{sWV}, v{vT0}")
    a(f"v_lshrrev_b32 v{vG}, 4, v{vL}"); a(f"v_lshlrev_b32 v{vL16}, 4, v{vL}")
    a(f"s_and_b32 s{sWM}, s{sWV}, 1"); a(f"s_lshr_b32 s{sWK}, s{sWV}, 1")
    a(f"s_lshl_b32 s20, s{sMT}, 1"); a(f"s_add_u32 s20, s20, s{sWM}")
    a(f"s_lshl_b32 s21, s20, 1"); a(f"s_add_u32 s21, s21, s{sWK}")
    a(f"s_xor_b32 s22, s21, 1")
    a(f"s_mul_i32 s23, s3, {hx(0x280000 if op else 0x600000)}"); a(f"s_add_u32 s23, s23, {hx(OF(0) if op else HF(0))}")
    a(f"s_mul_i32 s{sA0}, s{sWK}, {KS//2*1024}"); a(f"s_add_u32 s23, s23, s{sA0}")
    a(f"s_mul_i32 s{sA0}, s21, {KS*1024}"); a(f"s_add_u32 s{sA0}, s{sA0}, s23")
    a(f"s_mul_i32 s{sA1}, s22, {KS*1024}"); a(f"s_add_u32 s{sA1}, s{sA1}, s23")
    a(f"s_mul_i32 s{sR}, s3, {hx(2*0x280000)}"); a("s_mul_i32 s23, s20, 40960"); a(f"s_add_u32 s{sR}, s{sR}, s23")
    a(f"s_mul_i32 s23, s{sNT}, 5120"); a(f"s_add_u32 s{sR}, s{sR}, s23")
    if not op: a(f"s_add_u32 s{sR}, s{sR}, {hx(XF(1))}")
    a(f"s_lshl_b32 s{sST}, s3, 18"); a("s_lshl_b32 s23, s20, 11"); a(f"s_add_u32 s{sST}, s{sST}, s23")
    a(f"s_lshl_b32 s23, s{sNT}, 8"); a(f"s_add_u32 s{sST}, s{sST}, s23"); a(f"s_lshl_b32 s23, s{sWK}, 7"); a(f"s_add_u32 s{sST}, s{sST}, s23")
    a(f"s_add_u32 s{sST}, s{sST}, {hx(STAT(1 if op else 2))}")
    a(f"v_lshrrev_b32 v{vT0}, 1, v{vG}"); a(f"v_lshlrev_b32 v{vXA}, 9, v{vT0}")
    a(f"v_and_b32 v{vT0}, 1, v{vG}"); a(f"v_lshl_add_u32 v{vXA}, v{vT0}, 3, v{vXA}")
    a(f"v_lshl_add_u32 v{vXA}, v{vJ}, 4, v{vXA}"); a(f"s_lshl_b32 s23, s{sWK}, 8"); a(f"v_add_u32 v{vXA}, s23, v{vXA}")
    for i in range(5):
        a(f"v_add_u32 v{vT0}, {64*i}, v{vL}")
        a(f"v_mul_u32_u24 v{vT1}, 205, v{vT0}"); a(f"v_lshrrev_b32 v{vT1}, 11, v{vT1}")
        a(f"v_mul_u32_u24 v{vT2}, 10, v{vT1}"); a(f"v_sub_u32 v{vT0}, v{vT0}, v{vT2}")
        if op:
            a(f"v_and_b32 v{vT2}, 12, v{vT1}"); a(f"v_lshlrev_b32 v{vT2}, 1, v{vT2}")
            a(f"v_and_or_b32 v{vT2}, v{vT1}, 3, v{vT2}")
            a(f"v_lshrrev_b32 v{vT1}, 4, v{vT1}"); a(f"v_lshl_add_u32 v{vT2}, v{vT1}, 2, v{vT2}")
        else:
            a(f"v_and_b32 v{vT2}, 8, v{vT1}"); a(f"v_lshlrev_b32 v{vT2}, 1, v{vT2}")
            a(f"v_and_or_b32 v{vT2}, v{vT1}, 7, v{vT2}")
            a(f"v_lshrrev_b32 v{vT1}, 4, v{vT1}"); a(f"v_lshl_add_u32 v{vT2}, v{vT1}, 3, v{vT2}")
        a(f"v_mul_u32_u24 v{vT2}, 1280, v{vT2}"); a(f"v_lshl_add_u32 v{vDM+i}, v{vT0}, 4, v{vT2}")
    a(f"s_mul_i32 s{sD}, s{sWK}, {KS//2}"); a(f"s_add_u32 s{sD}, s{sD}, s{sWM}"); a(f"s_mul_i32 s{sD}, s{sD}, {32*1280}")
    a(f"s_mul_i32 s23, s{sNT}, 160"); a(f"s_add_u32 s{sD}, s{sD}, s23")
    a(f"s_mul_i32 s{sM0}, s{sWV}, 5120")
    a(f"v_lshlrev_b32 v{vT0}, 3, v{vG}")
    a(f"s_add_u32 s22, s{sR}, 4096")
    vm = Cnt("vmcnt", 63); lg = Cnt("lgkmcnt", 15)
    a("s_waitcnt lgkmcnt(0)")
    for nb in range(5):
        so, off = (sR, 1024*nb) if nb < 4 else (22, 0)
        a(f"buffer_load_dwordx2 {vr(vRES+2*nb,2)}, v{vXA}, {sr(WS,4)}, s{so} offen offset:{off}"); vm.issue("small")
    if not op:
        for nb in range(5):
            a(f"buffer_load_dwordx2 {vr(vBIAS+2*nb,2)}, v{vT0}, {sr(BI,4)}, s23 offen offset:{32*nb}"); vm.issue("small")
    def loads(it):
        g = []
        for i in range(5):
            ls = [f"s_add_u32 m0, s{sM0}, {(it % NSL)*20480 + 1024*i}", "s_nop 0", f"buffer_load_dwordx4 v{vDM+i}, {sr(W,4)}, s{sD} offen lds"]
            if i == 4: ls.append(f"s_add_u32 s{sD}, s{sD}, {64*1280}")
            g.append((ls, ("it", it)))
        for s in range(2):
            for rbi in range(2):
                gs = 2*it + s
                sa = sA0 if rbi == 0 else sA1
                ls = [f"buffer_load_dwordx4 {ar(8*gs+4*rbi,4)}, v{vL16}, {sr(WS,4)}, s{sa} offen offset:{1024*(gs%4)}"]
                if gs % 4 == 3: ls.append(f"s_add_u32 s{sa}, s{sa}, 4096")
                g.append((ls, ("it", it)))
        return g
    for it in range(PRE):
        for ls, tag in loads(it):
            a.extend(ls); vm.issue(tag)
    a(f"v_lshrrev_b32 v{vT0}, 2, v{vL}"); a(f"v_mul_u32_u24 v{vRD}, 160, v{vT0}")
    a(f"v_and_b32 v{vT0}, 3, v{vL}"); a(f"v_lshl_add_u32 v{vRD}, v{vT0}, 3, v{vRD}")
    a(f"s_mul_i32 s23, s{sWK}, 10240"); a(f"v_add_u32 v{vRD}, s23, v{vRD}")
    a(f"v_add_u32 v{vRD+1}, 61440, v{vRD}"); a(f"v_add_u32 v{vRD+2}, 122880, v{vRD}")
    if op:
        a(f"s_add_u32 s{sO}, s{sR}, {hx(0x280000)}")
        for nb in range(1, 5): a(f"s_add_u32 s{sO+nb}, s{sO}, {1024*nb}")
        a(f"v_mov_b32 v{vOA}, v{vXA}")
    else:
        a(f"v_mul_u32_u24 v{vOA}, 1280, v{vJ}"); a(f"v_lshl_add_u32 v{vOA}, v{vG}, 3, v{vOA}")
        a("s_mul_i32 s22, s21, 20480"); a(f"s_mul_i32 s23, s{sNT}, 160"); a("s_add_u32 s22, s22, s23")
        a(f"s_add_u32 s{sO}, s{sR}, {hx(0x280000)}")
        a("s_cmp_eq_u32 s3, 0")
        a(f"s_cselect_b32 s{sO}, s{sO}, s22"); a("s_cselect_b32 s23, 1024, 32")
        a("s_cselect_b64 vcc, -1, 0")
        for i in range(3): a(f"s_cselect_b32 s{OUT+i}, s{WS+i}, s{OUT+i}")
        a(f"v_cndmask_b32 v{vOA}, v{vOA}, v{vXA}, vcc")
        for nb in range(1, 5): a(f"s_add_u32 s{sO+nb}, s{sO+nb-1}, s23")
    a(vm.wait("small"))
    for nb in range(5):
        for i in range(2):
            r = vAC + 4*nb + 2*i
            a(f"v_lshlrev_b32 v{r}, 16, v{vRES+2*nb+i}"); a(f"v_and_b32 v{r+1}, 0xffff0000, v{vRES+2*nb+i}")
            if not op:
                a(f"v_lshlrev_b32 v{vT0}, 16, v{vBIAS+2*nb+i}"); a(f"v_and_b32 v{vT1}, 0xffff0000, v{vBIAS+2*nb+i}")
                a(f"v_add_f32 v{r}, v{r}, v{vT0}"); a(f"v_add_f32 v{r+1}, v{r+1}, v{vT1}")
    NG = KS // 2
    def reads(gs, nb):
        it, s = divmod(gs, 2)
        sl = it % NSL
        off = (sl % 3) * 20480 + s * 5120 + nb * 32
        d = vB + 20 * (gs & 1) + 4 * nb
        return [f"ds_read_b64_tr_b16 {vr(d,2)}, v{vRD+sl//3} offset:{off}", f"ds_read_b64_tr_b16 {vr(d+2,2)}, v{vRD+sl//3} offset:{off+2560}"]
    a(vm.wait(("it", 0))); a("s_barrier")
    pend = []
    if PRE < NIT: pend += loads(PRE)
    for nb in range(5):
        for l in reads(0, nb): a(l); lg.issue((0, nb))
    for gs in range(NG):
        it, s = divmod(gs, 2)
        if s == 1 and it < NIT - 1:
            while pend:
                ls, tag = pend.pop(0); a.extend(ls); vm.issue(tag)
            w = vm.wait(("it", it + 1))
            if w: a(w)
            a("s_barrier")
            if it + 1 + PRE < NIT: pend += loads(it + 1 + PRE)
        for nb in range(5):
            w = lg.wait((gs, nb))
            if w: a(w)
            rd = reads(gs + 1, nb) if gs + 1 < NG else []
            for rbi in range(2):
                c = "0" if (gs == 0 and rbi == 1) else vr(vAC + 20*rbi + 4*nb, 4)
                a(f"v_mfma_f32_16x16x32_bf16 {vr(vAC+20*rbi+4*nb,4)}, {vr(vB+20*(gs&1)+4*nb,4)}, {ar(8*gs+4*rbi,4)}, {c}")
                if rd: a(rd[rbi]); lg.issue((gs + 1, nb))
            if pend:
                ls, tag = pend.pop(0); a.extend(ls); vm.issue(tag)
    a(f"s_mul_i32 s22, s{sWV}, 5120"); a(f"s_add_u32 s22, s22, {SCR}"); a(f"v_add_u32 v{vT0}, s22, v{vL16}")
    a(f"s_xor_b32 s22, s{sWV}, 2"); a("s_mul_i32 s22, s22, 5120"); a(f"s_add_u32 s22, s22, {SCR}"); a(f"v_add_u32 v{vT1}, s22, v{vL16}")
    a(f"v_mov_b32 v{vRES}, 0"); a(f"v_mov_b32 v{vRES+1}, 0"); a(f"v_mov_b32 v{vRES+2}, 0x3f803f80")
    for nb in range(5): a(f"ds_write_b128 v{vT0}, {vr(vAC+20+4*nb,4)} offset:{1024*nb}")
    a("s_waitcnt lgkmcnt(0)"); a("s_barrier")
    for nb in range(5): a(f"ds_read_b128 {vr(vB+4*nb,4)}, v{vT1} offset:{1024*nb}")
    DST = WS if op else OUT
    for nb in range(5):
        a(f"s_waitcnt lgkmcnt({4-nb})")
        r = vAC + 4*nb
        a(f"v_pk_add_f32 {vr(r,2)}, {vr(r,2)}, {vr(vB+4*nb,2)}"); a(f"v_pk_add_f32 {vr(r+2,2)}, {vr(r+2,2)}, {vr(vB+4*nb+2,2)}")
        a(f"v_cvt_pk_bf16_f32 v{vP+2*nb}, v{r}, v{r+1}"); a(f"v_cvt_pk_bf16_f32 v{vP+2*nb+1}, v{r+2}, v{r+3}")
        a(f"buffer_store_dwordx2 {vr(vP+2*nb,2)}, v{vOA}, {sr(DST,4)}, s{sO+nb} offen")
    if not op:
        a("s_cmp_eq_u32 s3, 0"); a(f"s_cbranch_scc0 {base}_fin")
    for i in range(10):
        a(f"v_dot2_f32_bf16 v{vRES}, v{vP+i}, v{vRES+2}, v{vRES}")
        a(f"v_dot2_f32_bf16 v{vRES+1}, v{vP+i}, v{vP+i}, v{vRES+1}")
    a("s_nop 2")
    for wch in (16, 32):
        swap_add(a, vRES, vT0, wch); swap_add(a, vRES+1, vT0, wch)
    a(f"v_lshlrev_b32 v{vT0}, 3, v{vJ}")
    a("s_mov_b64 exec, 0xffff")
    a(f"buffer_store_dwordx2 {vr(vRES,2)}, v{vT0}, {sr(WS,4)}, s{sST} offen")
    a(f"{base}_fin:")
    if STAMP:
        a("s_mul_i32 s95, s3, 5"); a(f"s_add_u32 s95, s95, {3 if op else 5}")
    stamp_end(a, WS, "s95")
    a(f"{base}_end:")
    a("s_endpgm")
    na = 8 * NG
    return a, [(f"{base}{l}_kernel", 136 + na, 136) for l in range(2)], SCR + 20480

def gen_attn():
    base = "attn"
    a = Asm()
    entries(a, base, 2)
    stamp_begin(a)
    WS = 4
    sHD, sQB, sWV, sK, sM0, sO, sIT, sPASS = 16, 17, 18, 19, 20, 21, 22, 23
    sMK = 24
    a("s_cmp_ge_u32 s2, 256"); a(f"s_cbranch_scc1 {base}_end")
    load_srds(a, [("ws", WS)])
    a("s_and_b32 s12, s2, 7"); a("s_lshl_b32 s12, s12, 2"); a("s_bfe_u32 s13, s2, 0x20003"); a(f"s_add_u32 s{sHD}, s12, s13")
    a(f"s_lshr_b32 s{sQB}, s2, 5")
    vL, vM, vH, vL16, vT0, vT1, vIDX = 1, 2, 3, 4, 5, 6, 7
    vAK, vAK4, vAV = 8, 9, 10
    vOA = 12
    vQ = 16
    vQ4 = 20
    vK4 = 22
    vKa, vKb = 24, 28
    vV = 32
    vO = 64
    vNM = 80
    vS = [112, 144]
    NV = 176
    a(f"v_and_b32 v{vL}, 63, v0"); a(f"v_lshrrev_b32 v{vT0}, 6, v0")
    a(f"v_and_b32 v{vM}, 31, v0"); a(f"v_readfirstlane_b32 s{sWV}, v{vT0}")
    a(f"v_lshrrev_b32 v{vH}, 5, v{vL}"); a(f"v_lshlrev_b32 v{vL16}, 4, v{vL}")
    a(f"s_mul_i32 s{sK}, s{sHD}, 163840"); a(f"s_mul_i32 s12, s3, {hx(0x500000)}"); a(f"s_add_u32 s{sK}, s{sK}, s12")
    a(f"s_lshl_b32 s{sM0}, s{sWV}, 10"); a(f"s_add_u32 s{sK}, s{sK}, s{sM0}"); a(f"s_add_u32 s{sK}, s{sK}, {hx(KVF(0))}")
    a(f"s_lshl_b32 s13, s{sQB}, 3"); a(f"s_add_u32 s13, s13, s{sWV}")
    a(f"s_mul_i32 s14, s{sHD}, 81920"); a("s_mul_i32 s15, s13, 1280"); a("s_add_u32 s14, s14, s15")
    a(f"s_mul_i32 s15, s3, {hx(0x280000)}"); a("s_add_u32 s14, s14, s15"); a(f"s_add_u32 s14, s14, {hx(QF(0))}")
    a(f"v_lshlrev_b32 v{vT0}, 3, v{vM}"); a(f"v_lshl_add_u32 v{vT1}, v{vH}, 8, v{vT0}")
    a("s_waitcnt lgkmcnt(0)")
    a(f"buffer_load_dwordx2 {vr(vQ,2)}, v{vT1}, {sr(WS,4)}, s14 offen")
    a(f"buffer_load_dwordx2 {vr(vQ+2,2)}, v{vT1}, {sr(WS,4)}, s14 offen offset:512")
    a(f"buffer_load_dwordx2 {vr(vQ4,2)}, v{vT0}, {sr(WS,4)}, s14 offen offset:1024")
    for i in range(20):
        a(f"s_mov_b32 m0, s{sM0}"); a(f"s_add_u32 s{sM0}, s{sM0}, 8192")
        a(f"buffer_load_dwordx4 v{vL16}, {sr(WS,4)}, s{sK} offen lds"); a(f"s_add_u32 s{sK}, s{sK}, 8192")
    a(f"s_mul_i32 s{sO}, s13, {2*20480}"); a(f"s_add_u32 s{sO}, s{sO}, s15"); a(f"s_add_u32 s{sO}, s{sO}, {hx(OF(0))}")
    a(f"s_mul_i32 s12, s{sHD}, 5")
    a(f"v_lshrrev_b32 v{vT0}, 4, v{vM}"); a(f"v_mul_u32_u24 v{vT0}, 20480, v{vT0}")
    a(f"v_and_b32 v{vT1}, 15, v{vM}"); a(f"v_lshl_add_u32 v{vT0}, v{vT1}, 4, v{vT0}")
    for jj in range(3):
        a(f"v_add_u32 v{vT1}, s12, v{vH}")
        a(f"v_lshrrev_b32 v{vOA+jj}, 1, v{vT1}"); a(f"v_lshl_add_u32 v{vOA+jj}, v{vOA+jj}, 8, v{vT0}")
        a(f"v_and_b32 v{vT1}, 1, v{vT1}"); a(f"v_lshl_add_u32 v{vOA+jj}, v{vT1}, 3, v{vOA+jj}")
        a("s_add_u32 s12, s12, 2")
    a(f"v_mov_b32 v{vIDX}, 0xdddddddd")
    a(f"s_mov_b32 s{sMK}, 0x000fffff"); a(f"s_mov_b32 s{sMK+1}, 0x000fffff")
    a(f"v_cmp_eq_u32 vcc, 20, v{vM}"); a(f"v_cmp_eq_u32 s[12:13], 24, v{vM}"); a("s_or_b64 vcc, vcc, s[12:13]")
    a(f"v_mov_b32 v{vT0}, 0x3f803f80")
    a(f"v_cndmask_b32 v{vT0}, 0, v{vT0}, vcc")
    for i in range(24): a(f"v_mov_b32 v{vV+i}, v{vT0}")
    for i in range(32): a(f"v_mov_b32 v{vNM+i}, 0")
    a(f"s_mov_b32 s{sPASS}, 0")
    def addr_init():
        a(f"v_and_b32 v{vT0}, 19, v{vM}"); a(f"v_bfe_u32 v{vT1}, v{vM}, 2, 1"); a(f"v_lshl_add_u32 v{vT0}, v{vT1}, 3, v{vT0}")
        a(f"v_bfe_u32 v{vT1}, v{vM}, 3, 1"); a(f"v_lshl_add_u32 v{vT0}, v{vT1}, 2, v{vT0}")
        a(f"v_lshlrev_b32 v{vT0}, 3, v{vT0}")
        a(f"v_lshl_add_u32 v{vAK}, v{vH}, 8, v{vT0}")
        a(f"v_mul_u32_u24 v{vT1}, 2560, v{vH}"); a(f"v_add3_u32 v{vAK4}, v{vT0}, v{vT1}, s26")
        a(f"v_mul_u32_u24 v{vT1}, 20, v{vH}"); a(f"v_add_u32 v{vT1}, v{vT1}, v{vM}"); a(f"v_lshlrev_b32 v{vAV}, 4, v{vT1}")
    a("s_mov_b32 s26, 1024")
    UN = 4
    ITB = UN * 5120
    def rdK4(t):  return f"ds_read_b64 {vr(vK4,2)}, v{vAK4} offset:{t*5120}"
    def rdK(t, b): return f"ds_read2st64_b64 {vr(vKa if b == 0 else vKb,4)}, v{vAK} offset0:{t*10+5*b} offset1:{t*10+5*b+1}"
    def vreg(t, i): return vV + 8*(t & 1) + 4*i if i < 2 else vV + 16 + 4*(i - 2)
    def rdV(t, i): return f"ds_read_b128 {vr(vreg(t,i),4)}, v{vAV} offset:{t*5120 + (i>>1)*2560 + 1280 + (i&1)*640}"
    def m2b(t):   return f"v_mfma_f32_32x32x4_2b_bf16 {vr(vS[t&1],32)}, {vr(vK4,2)}, {vr(vQ4,2)}, {vr(vNM,32)}"
    def mk(t, b): return f"v_mfma_f32_32x32x16_bf16 {vr(vS[t&1]+16*b,16)}, {vr(vKa if b == 0 else vKb,4)}, {vr(vQ,4)}, {vr(vS[t&1]+16*b,16)}"
    def pv(t, i): return f"v_smfmac_f32_32x32x32_bf16 {vr(vO,16)}, {vr(vreg(t,i),4)}, {vr(vS[t&1]+8*i,8)}, v{vIDX}"
    EXM, EXF = f"s_mov_b64 exec, {sr(sMK,2)}", "s_mov_b64 exec, -1"

    a("s_waitcnt vmcnt(16)"); a("s_barrier")
    a(f"{base}_pass:")
    addr_init()
    for i in range(16): a(f"v_mov_b32 v{vO+i}, 0")
    for i in range(8): a(f"v_mov_b32 v{vS[1]+24+i}, 0")
    a(rdK4(0)); a(rdK(0, 0)); a(rdK(0, 1))
    a(EXM); a(rdV(0, 0)); a(rdV(0, 1)); a(EXF)
    a("s_waitcnt lgkmcnt(4)"); a(m2b(0)); a(rdK4(1))
    a("s_nop 15"); a("s_waitcnt lgkmcnt(3)")
    a(mk(0, 0)); a(rdK(1, 0)); a(mk(0, 1)); a(rdK(1, 1))
    a(f"s_mov_b32 s{sIT}, 0")
    a("s_nop 7")
    a(".p2align 6")
    a(f"{base}_loop:")
    for t in range(UN):
        S = vS[t & 1]
        ins = {
            1: [pv(t - 1, 3), EXM, rdV(t, 2), rdV(t, 3), rdV(t + 1, 0), rdV(t + 1, 1), EXF],
            5: ["s_waitcnt lgkmcnt(4)", m2b(t + 1), rdK4(t + 2)],
            13: [pv(t, 0)],
            17: [pv(t, 1)],
            21: [mk(t + 1, 0), rdK(t + 2, 0)],
            25: ["s_waitcnt lgkmcnt(2)", pv(t, 2)],
            29: [mk(t + 1, 1), rdK(t + 2, 1)],
        }
        for e in range(32):
            a(f"v_exp_f32 v{S+e}, v{S+e}")
            for l in ins.get(e, []): a(l)
    for r in (vAK, vAK4, vAV): a(f"v_add_u32 v{r}, {ITB}, v{r}")
    a(f"s_add_u32 s{sIT}, s{sIT}, 1")
    a(f"s_cmp_lg_u32 s{sIT}, 1"); a(f"s_cbranch_scc1 {base}_nobar")
    a(f"s_cmp_lg_u32 s{sPASS}, 0"); a(f"s_cbranch_scc1 {base}_nobar")
    a("s_waitcnt vmcnt(0)"); a("s_barrier")
    a(f"{base}_nobar:")
    a(f"s_cmp_lt_u32 s{sIT}, {32//UN}"); a(f"s_cbranch_scc1 {base}_loop")
    a(pv(UN - 1, 3))
    a("s_waitcnt lgkmcnt(0)")
    a(f"v_cmp_eq_u32 vcc, 0, v{vH}")
    a("s_nop 10")
    a(f"v_cndmask_b32 v{vT0}, v{vO+8}, v{vO+12}, vcc")
    a(f"v_rcp_f32 v{vT1}, v{vT0}")
    a(f"v_cndmask_b32 v{vO+8}, 0, v{vO+8}, vcc")
    for i in range(12): a(f"v_mul_f32 v{vO+i}, v{vO+i}, v{vT1}")
    a(f"s_cmp_lg_u32 s{sPASS}, 0"); a(f"s_cbranch_scc1 {base}_store")
    a(f"v_max3_f32 v{vT1}, abs(v{vO}), abs(v{vO+1}), abs(v{vO+2})")
    for i in range(3, 11, 2): a(f"v_max3_f32 v{vT1}, v{vT1}, abs(v{vO+i}), abs(v{vO+i+1})")
    a(f"v_max_f32 v{vT1}, v{vT1}, abs(v{vO+11})")
    for i in range(12): a(f"v_fma_f32 v{vT1}, v{vO+i}, 0, v{vT1}")
    a(f"s_mov_b32 s12, {hx(f2u(2.0**-24))}"); a(f"s_mov_b32 s13, {hx(f2u(2.0**48))}"); a(f"s_mov_b32 s14, {hx(f2u(2.0**120))}")
    a(f"v_cmp_nle_f32 vcc, s12, v{vT0}"); a(f"v_cmp_nge_f32 s[28:29], s13, v{vT0}"); a(f"v_cmp_nge_f32 s[30:31], s14, v{vT1}")
    a("s_or_b64 vcc, vcc, s[28:29]"); a("s_or_b64 vcc, vcc, s[30:31]")
    a("s_cmp_eq_u64 vcc, 0"); a(f"s_cbranch_scc1 {base}_store")
    addr_init()
    a(f"v_mov_b32 v{vO}, 0xff800000")
    a(f"s_mov_b32 s{sIT}, 0")
    a(f"{base}_max:")
    a(rdK4(0)); a(rdK(0, 0)); a(rdK(0, 1))
    a("s_waitcnt lgkmcnt(0)")
    a(m2b(0)); a("s_nop 15"); a("s_nop 1"); a(mk(0, 0)); a(mk(0, 1)); a("s_nop 11")
    for i in range(0, 32, 2): a(f"v_max3_f32 v{vO}, v{vO}, v{vS[0]+i}, v{vS[0]+i+1}")
    for r in (vAK, vAK4): a(f"v_add_u32 v{r}, 5120, v{r}")
    a(f"s_add_u32 s{sIT}, s{sIT}, 1"); a(f"s_cmp_lt_u32 s{sIT}, 32"); a(f"s_cbranch_scc1 {base}_max")
    a(f"v_mov_b32 v{vT0}, v{vO}"); a("s_nop 1"); a(f"v_permlane32_swap_b32 v{vO}, v{vT0}"); a("s_nop 1")
    a(f"v_max_f32 v{vT0}, v{vO}, v{vT0}")
    for i in range(32): a(f"v_sub_f32 v{vNM+i}, 0, v{vT0}")
    a(f"s_mov_b32 s{sPASS}, 1"); a(f"s_branch {base}_pass")
    a(f"{base}_store:")
    for i in range(6): a(f"v_cvt_pk_bf16_f32 v{vO+i}, v{vO+2*i}, v{vO+2*i+1}")
    a(f"buffer_store_dwordx2 {vr(vO,2)}, v{vOA}, {sr(WS,4)}, s{sO} offen")
    a(f"buffer_store_dwordx2 {vr(vO+2,2)}, v{vOA+1}, {sr(WS,4)}, s{sO} offen")
    a("s_mov_b32 exec_hi, 0")
    a(f"buffer_store_dwordx2 {vr(vO+4,2)}, v{vOA+2}, {sr(WS,4)}, s{sO} offen")
    if STAMP:
        a("s_mul_i32 s95, s3, 5"); a("s_add_u32 s95, s95, 2")
    stamp_end(a, WS, "s95")
    a(f"{base}_end:")
    a("s_endpgm")
    return a, [(f"{base}{l}_kernel", NV, NV) for l in range(2)]

def build(stamp=False):
    global STAMP
    STAMP = stamp
    parts, descs = [], []
    p0, d = gen_p0(); parts.append(p0); descs += d
    q, d = gen_ga("qkv"); parts.append(q); descs += d
    at, d = gen_attn(); parts.append(at); descs += d
    o, d, lo = gen_gb("oproj"); parts.append(o); descs += d
    f1, d = gen_ga("ffna"); parts.append(f1); descs += d
    f2, d, lf = gen_gb("ffnb"); parts.append(f2); descs += d
    probs = []
    for p in parts: probs += check_hazards(p.lines)
    if probs:
        print("\n".join(probs), file=sys.stderr); raise SystemExit("hazards")
    hdr = open("cdna_kernels/" + NAME + ".s.ref").read().split("; Override launch")[0]
    L = ["; @launch kernel=pre0_kernel grid=(236,1,1) block=(256,1,1) lds=8192"]
    for l in range(2):
        L += [f"; @launch kernel=qkv{l}_kernel grid=(256,1,1) block=(256,1,1) lds=163840",
              f"; @launch kernel=attn{l}_kernel grid=(256,1,1) block=(512,1,1) lds=163840",
              f"; @launch kernel=oproj{l}_kernel grid=(256,1,1) block=(256,1,1) lds={lo}",
              f"; @launch kernel=ffna{l}_kernel grid=(256,1,1) block=(256,1,1) lds=122880",
              f"; @launch kernel=ffnb{l}_kernel grid=(256,1,1) block=(256,1,1) lds={lf}"]
    s = hdr + "\n".join(L) + "\n" + '.amdgcn_target "amdgcn-amd-amdhsa--gfx950"\n.text\n'
    for n, _, _ in descs: s += f".globl {n}\n.type {n},@function\n"
    for p in parts: s += p.text()
    s += '.section .rodata,"a"\n'
    for n, v, ac in descs: s += ".p2align 6\n" + desc(n, v, ac)
    return s

if __name__ == "__main__":
    out = sys.argv[1] if len(sys.argv) > 1 else "cdna_kernels/" + NAME + ".s"
    open(out, "w").write(build("--stamp" in sys.argv))
```

```python
import sys, math, struct
from asmlib import *

NAME = "interleave_layers__softmax_full_mha__dense_activation_gelu__prompt"
OPT = dict(stamp=False, forceslow=False)

XF   = 0x0
OF   = 0x280000
HF   = 0x500000
KVF  = lambda l: 0xB00000 + l * 0x500000
STAT = 0x1500000
FLG  = 0x1520000
STAMPS = 0x4000000
WS_BYTES = 0x10000000
KA = dict(x=0, wqkv=8, wo=16, w1=32, b1=40, w2=48, b2=56, out=64, dbg=72, ws=80)
SZ = dict(x=2048*640*2, wqkv=640*1920*2, wo=640*640*2, w1=640*1536*2, b1=1536*2, w2=1536*640*2, b2=640*2, out=2048*640*2, ws=WS_BYTES, dbg=256)
SL = 20480

def f2u(x): return struct.unpack("<I", struct.pack("<f", x))[0]
def hx(x): return f"0x{x & 0xffffffff:x}"

class Cnt:
    def __init__(self, name, mx): self.q = []; self.name = name; self.mx = mx; self.done = 0
    def issue(self, tag):
        self.q.append(tag)
        assert len(self.q) - self.done <= self.mx, (self.name, "too many outstanding")
    def wait(self, *tags):
        last = max((i for i, t in enumerate(self.q) if t in tags), default=-1)
        assert last >= 0, tags
        if last < self.done: return ""
        n = len(self.q) - 1 - last
        self.done = last + 1
        return f"s_waitcnt {self.name}({n})"

LAY = 3
WS, WQ, WO, W1, W2, B1, B2, XIN, OUT, DBG = 4, 8, 12, 16, 20, 24, 28, 32, 36, 40
G, IDX, WV, FAST, BUD, NT, ODD, WM, WK, HW = range(44, 54)
COL = 54
XA, XS, STO, FXO, RBO = 59, 60, 61, 62, 63
VMK = 64
T = 66
FB = 80
A0, A1, DS, IT, KVS, PASS, OS, FO = 81, 82, 83, 84, 85, 86, 87, 88
vL, vL16, vJ, vG, t0, t1, t2, t3 = 0, 1, 2, 3, 4, 5, 6, 7
RES = 8
CSQ = 28
PB = 32

class Gen:
    def __init__(self):
        self.a = Asm(); self.tail = Asm(); self.nlab = 0
    def lab(self, s):
        self.nlab += 1; return f"L{self.nlab}_{s}"
    def stamp(self, i):
        if not OPT["stamp"]: return
        a = self.a
        a("s_memrealtime s[96:97]"); a("s_memtime s[98:99]"); a("s_waitcnt lgkmcnt(0)")
        a(f"v_writelane_b32 v254, s96, {i}"); a(f"v_writelane_b32 v255, s98, {i}")
    def stamp_dump(self):
        if not OPT["stamp"]: return
        a = self.a
        a(f"s_lshl_b32 s96, s2, 3"); a(f"s_add_u32 s96, s96, s{WV}"); a("s_lshl_b32 s96, s96, 1"); a(f"s_add_u32 s96, s96, s{LAY}")
        a("s_lshl_b32 s96, s96, 9"); a(f"s_add_u32 s96, s96, {hx(STAMPS)}")
        a(f"v_lshlrev_b32 v253, 3, v{vL}")
        a(f"buffer_store_dwordx2 v[254:255], v253, {sr(WS,4)}, s96 offen")
    def mstore(self, lines, force=None):
        a = self.a
        sc = lambda l: l + " sc1" if l.startswith("buffer_store") else l
        if force == "sc1":
            for l in lines: a(sc(l))
            return
        ls, lb = self.lab("slow"), self.lab("back")
        a(f"s_cmp_eq_u32 s{FAST}, 0"); a(f"s_cbranch_scc1 {ls}")
        for l in lines: a(l)
        a(f"{lb}:")
        self.tail(f"{ls}:")
        for l in lines: self.tail(sc(l))
        self.tail(f"s_branch {lb}")
    def flag(self, soff, sval, force=None):
        a = self.a
        a(f"v_mov_b32 v{t0}, {sval}"); a(f"v_mov_b32 v{t1}, 0")
        a("s_waitcnt vmcnt(0)")
        a("s_mov_b64 exec, 1")
        self.mstore([f"buffer_store_dword v{t0}, v{t1}, {sr(WS,4)}, {soff} offen"], force)
        a("s_mov_b64 exec, -1")
    def poll(self, srd, vaddr, soff, starget, issued=False):
        a = self.a
        lp, ld, lc = self.lab("poll"), self.lab("seen"), self.lab("chk")
        if issued: a(f"s_branch {lc}")
        a(f"{lp}:")
        a(f"buffer_load_dword v{t3}, v{vaddr}, {sr(srd,4)}, {soff} offen sc1")
        a(f"{lc}:")
        a("s_waitcnt vmcnt(0)")
        a(f"v_cmp_gt_u32 vcc, {starget}, v{t3}")
        a(f"s_cbranch_vccz {ld}")
        a(f"s_sub_u32 s{BUD}, s{BUD}, 1"); a(f"s_cbranch_scc0 {lp}")
        a(f"s_mov_b32 s{BUD}, 0")
        a(f"{ld}:")
    def swap_add(self, vs, tmp, which, op="v_add_f32"):
        a = self.a
        for i, v in enumerate(vs): a(f"v_mov_b32 v{tmp+i}, v{v}")
        a("s_nop 1")
        for i, v in enumerate(vs): a(f"v_permlane{which}_swap_b32 v{v}, v{tmp+i}")
        if len(vs) < 2: a("s_nop 0")
        for i, v in enumerate(vs): a(f"{op} v{v}, v{v}, v{tmp+i}")

    def dma_addr(self, dst, n, kind):
        a = self.a
        upr, mul, sh = (12, 171, 11) if kind == "w1" else (10, 205, 11)
        ld = dict(wq=3840, w1=3072, w80=1280)[kind]
        for i in range(n):
            a(f"v_add_u32 v{t0}, {64*i}, v{vL}")
            a(f"v_mul_u32_u24 v{t1}, {mul}, v{t0}"); a(f"v_lshrrev_b32 v{t1}, {sh}, v{t1}")
            a(f"v_mul_u32_u24 v{t2}, {upr}, v{t1}"); a(f"v_sub_u32 v{t0}, v{t0}, v{t2}")
            a(f"v_mul_u32_u24 v{t1}, {ld}, v{t1}")
            if kind == "wq":
                a(f"v_mul_u32_u24 v{t2}, 11, v{t0}"); a(f"v_lshrrev_b32 v{t2}, 5, v{t2}"); a(f"v_min_u32 v{t2}, 2, v{t2}")
                a(f"v_mul_u32_u24 v{t2}, 1232, v{t2}"); a(f"v_add_u32 v{t1}, v{t1}, v{t2}")
            elif kind == "w80":
                a(f"v_lshl_add_u32 v{t0}, s{ODD}, 1, v{t0}")
                a(f"v_subrev_u32 v{t2}, 10, v{t0}"); a(f"v_min_u32 v{t0}, v{t0}, v{t2}")
            a(f"v_lshl_add_u32 v{dst+i}, v{t0}, 4, v{t1}")
    def dma(self, vaddr, srd, soff, m0base, m0imm, mods=""):
        return [f"s_add_u32 m0, {m0base}, {m0imm}", "s_nop 0", f"buffer_load_dwordx4 v{vaddr}, {sr(srd,4)}, {soff} offen {mods} lds".replace("  ", " ")]

    def ln_stats(self, ST, RS, TX, tmp):
        a = self.a
        for rb in range(2):
            s = ST + 4*rb
            a(f"v_add_f32 v{s}, v{s}, v{s+2}"); a(f"v_add_f32 v{s+1}, v{s+1}, v{s+3}")
        vs = [ST, ST+1, ST+4, ST+5]
        self.swap_add(vs, tmp, 16); self.swap_add(vs, tmp, 32)
        a(f"v_cmp_eq_u32 vcc, 0, v{vG}")
        for rb in range(2):
            s = ST + 4*rb; x = TX + 4*rb
            a(f"v_mul_f32 v{s}, {hx(f2u(-1.0/640))}, v{s}"); a(f"v_mul_f32 v{s+1}, {hx(f2u(1.0/640))}, v{s+1}")
            a(f"v_fma_f32 v{s+1}, -v{s}, v{s}, v{s+1}")
            a(f"v_max_f32 v{s+1}, 0, v{s+1}"); a(f"v_add_f32 v{s+1}, {hx(f2u(1e-5))}, v{s+1}")
            a(f"v_rsq_f32 v{RS+rb}, v{s+1}")
            a(f"v_mov_b32 v{x+3}, 0")
            a(f"v_mul_f32 v{s+1}, v{s+1}, v{RS+rb}")
            a(f"v_cndmask_b32 v{s}, 0, v{s}, vcc"); a(f"v_cndmask_b32 v{s+1}, 0, v{s+1}, vcc")
            a(f"v_cvt_pk_bf16_f32 v{x}, v{s}, v{s}"); a(f"v_and_b32 v{tmp}, 0xffff0000, v{x}"); a(f"v_sub_f32 v{tmp}, v{s}, v{tmp}")
            a(f"v_cvt_pk_bf16_f32 v{x+1}, v{tmp}, v{s+1}"); a(f"v_and_b32 v{tmp}, 0xffff0000, v{x+1}"); a(f"v_sub_f32 v{tmp}, v{s+1}, v{tmp}")
            a(f"v_cvt_pk_bf16_f32 v{x+2}, v{tmp}, v{x+3}")

    def a_loads(self, gs, RD, AR):
        out = []
        for rb in range(2):
            sa = A0 + rb
            ls = [f"buffer_load_dwordx4 {vr(AR + 8*(gs % RD) + 4*rb, 4)}, v{vL16}, {sr(WS,4)}, s{sa} offen offset:{1024*(gs % 4)} sc1"]
            if gs % 4 == 3: ls.append(f"s_add_u32 s{sa}, s{sa}, 4096")
            out.append(ls)
        return out
    def gemm(self, NS, NB, RD, AR, BR, AC, rdaddr, second, vm, bars={}, std=(), czero=(0, 1), extra={}, wgrp=1):
        a = self.a
        lg = Cnt("lgkmcnt", 15)
        def reads(gs, nb):
            v, off = rdaddr(gs, nb)
            d = BR + 4*nb
            return [(f"ds_read_b64_tr_b16 {vr(d,2)}, v{v} offset:{off}", (gs, nb)), (f"ds_read_b64_tr_b16 {vr(d+2,2)}, v{v} offset:{off+second}", (gs, nb))]
        for nb in range(NB):
            for l, tg in reads(0, nb): a(l); lg.issue(tg)
        pr = []
        for gs in range(NS):
            if gs in bars:
                while pr:
                    l, tg = pr.pop(0); a(l); lg.issue(tg)
                for l in bars[gs]: a(l)
            a(vm.wait(("A", gs)))
            pend = [(ls, ("A", gs + RD - 1)) for ls in self.a_loads(gs + RD - 1, RD, AR)] if gs + RD - 1 < NS else []
            ex = list(extra.get(gs, []))
            for nb in range(NB):
                if nb % wgrp == 0:
                    tags = [(gs, n) for n in range(nb, min(nb + wgrp, NB))]
                    while any(tg in tags for _, tg in pr):
                        l, tg = pr.pop(0); a(l); lg.issue(tg)
                    a(lg.wait(*tags))
                for rb in range(2):
                    d = vr(AC + 4*(NB*rb + nb), 4)
                    c = "0" if (gs == 0 and rb in czero) else d
                    w, x = vr(BR + 4*nb, 4), vr(AR + 8*(gs % RD) + 4*rb, 4)
                    p, q = (x, w) if nb in std else (w, x)
                    a(f"v_mfma_f32_16x16x32_bf16 {d}, {p}, {q}, {c}")
                    if rb == 1 and gs + 1 < NS: pr += reads(gs + 1, nb)
                    if pr:
                        l, tg = pr.pop(0); a(l); lg.issue(tg)
                    if rb == 0 and pend:
                        ls, tg = pend.pop(0); a.extend(ls); vm.issue(tg)
                    elif ex:
                        e = ex.pop(0)
                        e(lg) if callable(e) else a(e)
            for e in ex:
                e(lg) if callable(e) else a(e)
        return lg

    def xstore(self, sval, P, force=None):
        a = self.a
        for i in range(10): a(f"v_cvt_pk_bf16_f32 v{P+i}, v{RES+2*i}, v{RES+2*i+1}")
        a(f"v_mov_b32 v{P+10}, 0"); a(f"v_mov_b32 v{P+11}, 0"); a(f"v_mov_b32 v{P+12}, 0x3f803f80")
        self.mstore([f"buffer_store_dwordx4 {vr(P,4)}, v{vL16}, {sr(WS,4)}, s{XA} offen",
                     f"buffer_store_dwordx4 {vr(P+4,4)}, v{vL16}, {sr(WS,4)}, s{XA} offen offset:1024",
                     f"buffer_store_dwordx2 {vr(P+8,2)}, v{vL16}, {sr(WS,4)}, s{XS} offen"], force)
        for i in range(10):
            a(f"v_dot2_f32_bf16 v{P+10}, v{P+i}, v{P+12}, v{P+10}")
            a(f"v_dot2_f32_bf16 v{P+11}, v{P+i}, v{P+i}, v{P+11}")
        a("s_nop 2")
        self.swap_add([P+10, P+11], P+14, 16); self.swap_add([P+10, P+11], P+14, 32)
        a("s_mov_b64 exec, 0xffff")
        self.mstore([f"buffer_store_dwordx2 {vr(P+10,2)}, v{vL16}, {sr(WS,4)}, s{STO} offen"], force)
        a("s_mov_b64 exec, -1")
        self.flag(f"s{FXO}", sval, force)

    def exchange(self, AC, BR, slot):
        a = self.a
        a(f"s_mul_i32 s{T}, s{WV}, 5120"); a(f"s_add_u32 s{T}, s{T}, {slot*SL}"); a(f"v_add_u32 v{t0}, s{T}, v{vL16}")
        a(f"s_xor_b32 s{T}, s{WV}, 2"); a(f"s_mul_i32 s{T}, s{T}, 5120"); a(f"s_add_u32 s{T}, s{T}, {slot*SL}"); a(f"v_add_u32 v{t1}, s{T}, v{vL16}")
        a("s_barrier")
        for nb in range(5): a(f"ds_write_b128 v{t0}, {vr(AC+20+4*nb,4)} offset:{1024*nb}")
        a("s_waitcnt lgkmcnt(0)"); a("s_barrier")
        for nb in range(5): a(f"ds_read_b128 {vr(BR+4*nb,4)}, v{t1} offset:{1024*nb}")
        for nb in range(5):
            a(f"s_waitcnt lgkmcnt({4-nb})")
            for i in (0, 2): a(f"v_pk_add_f32 {vr(RES+4*nb+i,2)}, {vr(AC+4*nb+i,2)}, {vr(BR+4*nb+i,2)}")

    def entry(self):
        a = self.a
        a(".p2align 8"); a(f"{NAME}_kernel:")
        a("s_cmp_ge_u32 s2, 256"); a("s_cbranch_scc1 L_end")
        srds = [("ws", WS), ("x", XIN), ("wqkv", WQ), ("dbg", DBG), ("wo", WO), ("w1", W1), ("w2", W2), ("b1", B1), ("b2", B2), ("out", OUT)]
        for n, s in srds: a(f"s_load_dwordx2 {sr(s,2)}, s[0:1], {KA[n]}")
        for n, s in srds:
            a(f"s_mov_b32 s{s+2}, {hx(SZ[n])}"); a(f"s_mov_b32 s{s+3}, 0x00020000")
        a(f"v_lshrrev_b32 v{t0}, 6, v0"); a(f"v_and_b32 v{vL}, 63, v0"); a(f"v_readfirstlane_b32 s{WV}, v{t0}")
        a(f"v_lshlrev_b32 v{vL16}, 4, v{vL}"); a(f"v_and_b32 v{vJ}, 15, v{vL}"); a(f"v_lshrrev_b32 v{vG}, 4, v{vL}")
        if OPT["stamp"]:
            a("v_mov_b32 v254, 0"); a("v_mov_b32 v255, 0")
        a(f"s_and_b32 s{G}, s2, 7"); a(f"s_lshr_b32 s{IDX}, s2, 3")
        a(f"s_mov_b32 s{FAST}, 0"); a(f"s_mov_b32 s{BUD}, 0x80000"); a(f"s_mov_b32 s{LAY}, 0")
        a(f"s_and_b32 s{NT}, s{IDX}, 7"); a(f"s_and_b32 s{ODD}, s{IDX}, 1")
        a(f"s_and_b32 s{WM}, s{WV}, 1"); a(f"s_bfe_u32 s{WK}, s{WV}, 0x10001"); a(f"s_and_b32 s{HW}, s{WV}, 3")
        a(f"s_mov_b32 s{VMK}, 0x000fffff"); a(f"s_mov_b32 s{VMK+1}, 0x000fffff")
        a(f"s_lshl_b32 s{FB}, s{G}, 12"); a(f"s_add_u32 s{FB}, s{FB}, {hx(FLG)}")
        a(f"s_mul_i32 s{T}, s{NT}, 160"); a(f"s_lshl_b32 s{T+1}, s{ODD}, 5"); a(f"s_add_u32 s{COL}, s{T}, s{T+1}")
        for i in range(1, 4): a(f"s_add_u32 s{COL+i}, s{COL}, {32*i}")
        a(f"s_add_u32 s{COL+4}, s{T}, 128"); a(f"s_cmp_eq_u32 s{ODD}, 1"); a(f"s_cmov_b32 s{COL+4}, s{T}")
        a(f"s_lshr_b32 s{T}, s{IDX}, 3"); a(f"s_lshl_b32 s{T}, s{T}, 1"); a(f"s_add_u32 s{T}, s{T}, s{WM}")
        a(f"s_lshl_b32 s{FXO}, s{T}, 8"); a(f"s_add_u32 s{FXO}, s{FXO}, s{FB}")
        a(f"s_lshl_b32 s{T+1}, s{NT}, 1"); a(f"s_add_u32 s{T+1}, s{T+1}, s{WK}"); a(f"s_lshl_b32 s{T+1}, s{T+1}, 2"); a(f"s_add_u32 s{FXO}, s{FXO}, s{T+1}")
        a(f"s_lshl_b32 s{RBO}, s{G}, 3"); a(f"s_add_u32 s{RBO}, s{RBO}, s{T}"); a(f"s_lshl_b32 s{RBO}, s{RBO}, 1"); a(f"s_add_u32 s{RBO}, s{RBO}, s{WK}")
        a(f"s_lshr_b32 s{T}, s{NT}, 1"); a(f"s_mul_i32 s{T+1}, s{T}, 5120"); a(f"s_mul_i32 s{T+2}, s{RBO}, 20480"); a(f"s_add_u32 s{T+1}, s{T+1}, s{T+2}")
        a(f"s_mul_i32 s{XA}, s{ODD}, 3072"); a(f"s_add_u32 s{XA}, s{XA}, s{T+1}")
        a(f"s_lshl_b32 s{XS}, s{ODD}, 3"); a(f"s_add_u32 s{XS}, s{XS}, s{T+1}"); a(f"s_add_u32 s{XS}, s{XS}, 2048")
        a(f"s_lshl_b32 s{STO}, s{RBO}, 10"); a(f"s_lshl_b32 s{T}, s{T}, 8"); a(f"s_add_u32 s{STO}, s{STO}, s{T}")
        a(f"s_lshl_b32 s{T}, s{ODD}, 3"); a(f"s_add_u32 s{STO}, s{STO}, s{T}"); a(f"s_add_u32 s{STO}, s{STO}, {hx(STAT)}")
        a("s_waitcnt lgkmcnt(0)")
        self.stamp(0)
        a(f"s_cmp_ge_u32 s{WV}, 4"); a("s_cbranch_scc1 L_pre_h")
        P = PB
        a(f"v_mul_u32_u24 v{t0}, 1280, v{vJ}"); a(f"v_lshl_add_u32 v{t0}, v{vG}, 3, v{t0}")
        a(f"s_mul_i32 s{T}, s{RBO}, 20480"); a(f"v_add_u32 v{t0}, s{T}, v{t0}")
        for i in range(5): a(f"buffer_load_dwordx2 {vr(P+2*i,2)}, v{t0}, {sr(XIN,4)}, s{COL+i} offen")
        a(f"s_getreg_b32 s{T}, hwreg(HW_REG_XCC_ID)"); a(f"s_and_b32 s{T}, s{T}, 15")
        a(f"v_mov_b32 v{t1}, s{T}"); a(f"v_mov_b32 v{t2}, 0")
        a(f"s_lshl_b32 s{T}, s{IDX}, 2"); a(f"s_add_u32 s{T}, s{T}, s{FB}")
        a("s_mov_b64 exec, 1")
        a(f"buffer_store_dword v{t1}, v{t2}, {sr(WS,4)}, s{T} offen offset:3072 sc1")
        a("s_mov_b64 exec, -1")
        a(f"v_and_b32 v{t2}, 7, v{vL}"); a(f"v_lshlrev_b32 v{t2}, 2, v{t2}")
        self.poll(DBG, t2, "0", "1")
        for i in range(10):
            a(f"v_lshlrev_b32 v{RES+2*i}, 16, v{P+i}"); a(f"v_and_b32 v{RES+2*i+1}, 0xffff0000, v{P+i}")
        self.xstore("1", P + 12, "sc1")
        a("s_branch L_qkv")
        a("L_pre_h:")
        a(f"s_cmp_eq_u32 s{WV}, 4"); a("s_cbranch_scc0 L_pre_h1")
        a(f"s_cmp_eq_u32 s{IDX}, 0"); a("s_cbranch_scc0 L_pre_h1")
        for i in range(4): a(f"v_mov_b32 v{P+i}, 0")
        a(f"v_mov_b32 v{t0}, 1"); a(f"v_mov_b32 v{t1}, 0"); a(f"s_lshl_b32 s{T}, s{G}, 2")
        for i in range(3): a(f"buffer_store_dwordx4 {vr(P,4)}, v{vL16}, {sr(WS,4)}, s{FB} offen offset:{1024*i} sc1")
        a("s_waitcnt vmcnt(0)")
        a("s_mov_b64 exec, 1")
        a(f"buffer_store_dword v{t0}, v{t1}, {sr(DBG,4)}, s{T} offen sc1")
        a("s_mov_b64 exec, -1")
        a("L_pre_h1:")
        a(f"s_cmp_eq_u32 s{WV}, 7"); a("s_cbranch_scc0 L_pre_h2")
        a(f"s_getpc_b64 {sr(T,2)}")
        a("L_pc:")
        a(f"s_lshl_b32 s{T+2}, s{IDX}, 13"); a(f"s_cmp_lt_u32 s{T+2}, L_last-L_pc"); a("s_cbranch_scc0 L_pre_h2")
        a(f"v_lshlrev_b32 v{t0}, 7, v{vL}"); a(f"v_add_u32 v{t0}, s{T+2}, v{t0}"); a(f"v_min_u32 v{t0}, L_last-L_pc, v{t0}")
        a(f"global_load_dword v{P}, v{t0}, {sr(T,2)}")
        a("L_pre_h2:")
        for grp in self.wq_dma(): a.extend(grp)
        a(f"v_and_b32 v{t2}, 7, v{vL}"); a(f"v_lshlrev_b32 v{t2}, 2, v{t2}")
        self.poll(DBG, t2, "0", "1")

    def wq_dma(self, order=(0, 1, 2, 3, 4)):
        a = self.a
        D = PB + 8
        self.dma_addr(D, 5, "wq")
        a(f"s_mul_i32 s{DS}, s{HW}, {32*3840}"); a(f"s_mul_i32 s{T}, s{IDX}, 40"); a(f"s_and_b32 s{T}, s{T}, -16"); a(f"s_add_u32 s{DS}, s{DS}, s{T}")
        a(f"s_mul_i32 s{T+8}, s{HW}, 5120")
        out = []
        for c in order:
            for i in range(5):
                pre = [f"s_add_u32 s{T+9}, s{DS}, {c*128*3840}"] if i == 0 else []
                out.append(pre + self.dma(D+i, WQ, f"s{T+9}", f"s{T+8}", c*SL + 1024*i))
        return out

    def qkv(self):
        a = self.a
        RD = 4
        RA = PB
        ST = PB + 4
        RS = PB + 12
        TX = PB + 20
        RT = PB + 28
        WX = PB + 36
        AR = PB + 48
        BR = PB + 80
        AC = PB + 96
        PK = PB + 128
        a("L_qkv:")
        self.stamp(1)
        a(f"s_lshl_b32 s{T}, s{G}, 3"); a(f"s_add_u32 s{T}, s{T}, s{WV}")
        a(f"s_mul_i32 s{A0}, s{T}, 40960"); a(f"s_add_u32 s{A1}, s{A0}, 20480")
        a(f"s_lshl_b32 s{T+1}, s{T}, 11"); a(f"s_add_u32 s{T+1}, s{T+1}, {hx(STAT)}")
        a(f"s_lshl_b32 s{T+2}, s{WV}, 8"); a(f"s_add_u32 s{T+2}, s{T+2}, s{FB}")
        a(f"s_lshl_b32 s{T+3}, s{LAY}, 1"); a(f"s_add_u32 s{T+3}, s{T+3}, 1")
        a(f"v_lshrrev_b32 v{t0}, 2, v{vL}"); a(f"v_mul_u32_u24 v{t0}, 160, v{t0}"); a(f"v_lshl_add_u32 v{t0}, s{ODD}, 3, v{t0}")
        a(f"v_and_b32 v{t1}, 3, v{vL}"); a(f"v_lshl_add_u32 v{RA}, v{t1}, 3, v{t0}")
        a(f"v_min_u32 v{t1}, 2, v{t1}"); a(f"v_mul_u32_u24 v{t1}, 48, v{t1}"); a(f"v_add3_u32 v{RA+1}, v{t0}, v{t1}, 32")
        a(f"v_add_u32 v{RA+2}, 61440, v{RA}"); a(f"v_add_u32 v{RA+3}, 61440, v{RA+1}")
        a(f"v_lshlrev_b32 v{t2}, 2, v{vJ}")
        self.poll(WS, t2, f"s{T+2}", f"s{T+3}")
        self.stamp(2)
        vm = Cnt("vmcnt", 63)
        for ls in self.a_loads(0, RD, AR): a.extend(ls); vm.issue(("A", 0))
        for rb in range(2):
            a(f"buffer_load_dwordx4 {vr(ST+4*rb,4)}, v{vL16}, {sr(WS,4)}, s{T+1} offen offset:{1024*rb} sc1"); vm.issue("st")
        for gs in range(1, RD - 1):
            for ls in self.a_loads(gs, RD, AR): a.extend(ls); vm.issue(("A", gs))
        a("s_barrier")
        def rdaddr(gs, nb):
            hi = 2 if gs >= 12 else 0
            return RA + hi + (1 if nb == 3 else 0), (gs % 12) * 5120 + (48*nb if nb < 3 else 0)
        self.gemm(20, 4, RD, AR, BR, AC, rdaddr, 2560, vm, std=(2,))
        self.stamp(3)
        a(f"s_cmp_lg_u32 s{LAY}, 0"); a("s_cbranch_scc1 L_qkv_cs")
        a(f"s_mul_i32 s{T}, s{WV}, 5120")
        a(f"v_add_u32 v{RA}, s{T}, v{RA}"); a(f"v_add_u32 v{RA+1}, s{T}, v{RA+1}")
        a(f"v_add_u32 v{RA+2}, {16*5120}, v{RA}"); a(f"v_add_u32 v{RA+3}, {16*5120}, v{RA+1}")
        a(f"v_mov_b32 v{WX}, 0x3f803f80")
        for nb in range(4): a(f"v_mov_b32 v{CSQ+nb}, 0")
        for r in range(3):
            if r == 2:
                a(f"s_cmp_ge_u32 s{WV}, 4"); a("s_cbranch_scc1 L_qkv_cs2")
            for nb in range(4):
                v = RA + (2 if r == 2 else 0) + (1 if nb == 3 else 0); off = (8*5120 if r == 1 else 0) + (48*nb if nb < 3 else 0)
                a(f"ds_read_b64_tr_b16 {vr(BR+4*nb,2)}, v{v} offset:{off}"); a(f"ds_read_b64_tr_b16 {vr(BR+4*nb+2,2)}, v{v} offset:{off+2560}")
            a("s_waitcnt lgkmcnt(0)")
            for i in range(4):
                for nb in range(4): a(f"v_dot2_f32_bf16 v{CSQ+nb}, v{BR+4*nb+i}, v{WX}, v{CSQ+nb}")
        a("L_qkv_cs2:")
        a(f"s_lshl_b32 s{T}, s{WV}, 10"); a(f"s_add_u32 s{T}, s{T}, {5*SL}"); a(f"v_add_u32 v{t0}, s{T}, v{vL16}")
        a(f"ds_write_b128 v{t0}, {vr(CSQ,4)}")
        a(f"v_add_u32 v{t0}, {5*SL}, v{vL16}")
        a("s_waitcnt lgkmcnt(0)"); a("s_barrier")
        for w in range(8): a(f"ds_read_b128 {vr(AR+4*w,4)}, v{t0} offset:{1024*w}")
        a("s_waitcnt lgkmcnt(0)")
        for w in (4, 2, 1):
            for u in range(w):
                for i in (0, 2): a(f"v_pk_add_f32 {vr(AR+4*u+i,2)}, {vr(AR+4*u+i,2)}, {vr(AR+4*(u+w)+i,2)}")
        for nb in range(4): a(f"v_mov_b32 v{CSQ+nb}, v{AR+nb}")
        cs = [CSQ+nb for nb in range(4)]
        self.swap_add(cs, AR+4, 16); self.swap_add(cs, AR+4, 32)
        a("L_qkv_cs:")
        self.ln_stats(ST, RS, TX, WX + 4)
        a(f"v_lshlrev_b32 v{t0}, 4, v{vG}")
        for rb in range(2):
            for i in range(4): a(f"ds_bpermute_b32 v{RT+4*rb+i}, v{t0}, v{RS+rb} offset:{4*i}")
        cq = hx(f2u(20**-0.5 * math.log2(math.e)))
        for rb in range(2):
            a(f"v_mul_f32 v{RS+2+rb}, {cq}, v{RS+rb}")
        for rb in range(2):
            a(f"v_cndmask_b32 v{RS+4+rb}, v{RS+rb}, v{RS+2+rb}, vcc")
        for nb in range(4):
            x = BR + 4*nb
            a(f"v_cvt_pk_bf16_f32 v{x}, v{CSQ+nb}, v{CSQ+nb}"); a(f"v_and_b32 v{t1}, 0xffff0000, v{x}"); a(f"v_sub_f32 v{t1}, v{CSQ+nb}, v{t1}")
            a(f"v_and_b32 v{x+1}, 0xffff, v{x}"); a(f"v_cvt_pk_bf16_f32 v{x}, v{CSQ+nb}, v{t1}")
            a(f"v_mov_b32 v{x+2}, 0"); a(f"v_mov_b32 v{x+3}, 0")
        AQ, AK, A4, AV, AVS = RA, RA+1, RA+2, RA+3, WX
        a(f"s_mul_i32 s{T}, s{WV}, 1280"); a(f"s_add_u32 s{T}, s{T}, {6*SL}")
        a(f"s_mul_i32 s{T+1}, s{WV}, 2560"); a(f"s_add_u32 s{T+1}, s{T+1}, {7*SL}")
        a(f"v_lshlrev_b32 v{t0}, 3, v{vJ}"); a(f"v_lshl_add_u32 v{t1}, v{vG}, 8, v{t0}")
        a(f"v_add_u32 v{AQ}, s{T}, v{t1}"); a(f"v_add_u32 v{AK}, s{T+1}, v{t1}")
        for nb in range(4):
            for rb in range(2):
                d = vr(AC + 4*(4*rb + nb), 4); w, x = vr(BR+4*nb, 4), vr(TX+4*rb, 4)
                p, q = (x, w) if nb == 2 else (w, x)
                a(f"v_mfma_f32_16x16x32_bf16 {d}, {p}, {q}, {d}")
        a(f"v_add_u32 v{t1}, s{T}, v{t0}"); a(f"v_add_u32 v{t2}, s{T+1}, v{t0}"); a(f"v_cndmask_b32 v{A4}, v{t2}, v{t1}, vcc")
        a(f"v_lshrrev_b32 v{t1}, 1, v{vG}"); a(f"v_mul_u32_u24 v{t1}, 320, v{t1}"); a(f"v_lshl_add_u32 v{t1}, v{vJ}, 4, v{t1}")
        a(f"v_and_b32 v{t2}, 1, v{vG}"); a(f"v_lshl_add_u32 v{t1}, v{t2}, 3, v{t1}"); a(f"v_add_u32 v{AV}, s{T+1}, v{t1}")
        a(f"v_lshrrev_b32 v{t1}, 3, v{vJ}"); a(f"v_mul_u32_u24 v{t1}, 320, v{t1}"); a(f"v_and_b32 v{t2}, 7, v{vJ}")
        a(f"v_lshl_add_u32 v{t1}, v{t2}, 1, v{t1}"); a(f"v_add_u32 v{AVS}, s{T+1}, v{t1}")
        a("s_waitcnt lgkmcnt(0)")
        for nb in (1, 2, 3, 0):
            for rb in range(2):
                r = AC + 4*(4*rb + nb); p = PK + 2*(4*rb + nb)
                for i in range(4):
                    m = {0: RS+2+rb, 1: RS+rb, 2: RT+4*rb+i, 3: RS+4+rb}[nb]
                    a(f"v_mul_f32 v{r+i}, v{r+i}, v{m}")
                a(f"v_cvt_pk_bf16_f32 v{p}, v{r}, v{r+1}"); a(f"v_cvt_pk_bf16_f32 v{p+1}, v{r+2}, v{r+3}")
                if nb == 0: a(f"ds_write_b64 v{AQ}, {vr(p,2)} offset:{128*rb}")
                if nb == 1: a(f"ds_write_b64 v{AK}, {vr(p,2)} offset:{128*rb}")
                if nb == 2: a(f"ds_write_b64 v{AV}, {vr(p,2)} offset:{1280+640*rb}")
            if nb == 3:
                a("s_mov_b32 exec_hi, 0")
                for rb in range(2): a(f"ds_write_b64 v{A4}, {vr(PK+2*(4*rb+3),2)} offset:{1024+128*rb}")
                a("s_bfm_b64 exec, 16, 32")
                for rb in range(2):
                    for i in range(4):
                        a(f"ds_write_b16{'_d16_hi' if i & 1 else ''} v{AVS}, v{PK+2*(4*rb+3)+(i>>1)} offset:{1280+640*rb+256+16*i}")
                a("s_mov_b64 exec, -1")
                a(f"v_add_u32 v{t0}, s{T+1}, v{vL16}")
                a("s_waitcnt lgkmcnt(0)")
                for i in range(3): a(f"ds_read_b128 {vr(AR+4*i,4)}, v{t0} offset:{1024*i}")
        a(f"s_mul_i32 s{KVS}, s{IDX}, 163840"); a(f"s_mul_i32 s{T}, s{LAY}, {hx(0x500000)}"); a(f"s_add_u32 s{KVS}, s{KVS}, s{T}")
        a(f"s_mul_i32 s{T}, s{WV}, 2560"); a(f"s_add_u32 s{KVS}, s{KVS}, s{T}"); a(f"s_add_u32 s{KVS}, s{KVS}, {hx(KVF(0))}")
        a(f"s_mul_i32 s{T}, s{G}, {SL}"); a(f"s_add_u32 s{T}, s{T}, s{KVS}")
        a("s_waitcnt lgkmcnt(0)")
        for i in range(3):
            if i == 2: a("s_mov_b32 exec_hi, 0")
            a(f"buffer_store_dwordx4 {vr(AR+4*i,4)}, v{vL16}, {sr(WS,4)}, s{T} offen offset:{1024*i} sc1")
        a("s_mov_b64 exec, -1")
        a("s_barrier")
        self.stamp(4)

    def attention(self):
        a = self.a
        vM, vH, IDXR = PB, PB+1, PB+2
        AK, AK4, AV = PB+3, PB+4, PB+5
        OA = PB+6
        WD = PB+9
        Q = [PB+12, PB+16]; Q4 = PB+20; K4 = PB+22
        KK = [PB+24, PB+28]
        V = PB+32
        O = [PB+48, PB+64]
        S = [PB+80, PB+112]
        NM = PB+144
        PF = PB+176
        EXM, EXF = f"s_mov_b64 exec, {sr(VMK,2)}", "s_mov_b64 exec, -1"
        off = lambda t: t*2560 if t < 4 else SL + (t-4)*2560
        def rdK4(t): return f"ds_read_b64 {vr(K4,2)}, v{AK4} offset:{off(t)}"
        def rdK(t): return f"ds_read2st64_b64 {vr(KK[t&1],4)}, v{AK} offset0:{off(t)//512} offset1:{off(t)//512+1}"
        def rdV(t, i): return f"ds_read_b128 {vr(V+8*(t&1)+4*i,4)}, v{AV} offset:{off(t)+1280+640*i}"
        def m2b(t, c="0"): return f"v_mfma_f32_32x32x4_2b_bf16 {vr(S[t&1],32)}, {vr(K4,2)}, {vr(Q4,2)}, {c}"
        def mk(t, q): return f"v_mfma_f32_32x32x16_bf16 {vr(S[t&1]+16*q,16)}, {vr(KK[t&1],4)}, {vr(Q[q],4)}, {vr(S[t&1]+16*q,16)}"
        def pv(t, i): return f"v_smfmac_f32_32x32x32_bf16 {vr(O[i>>1],16)}, {vr(V+8*(t&1)+4*(i&1),4)}, {vr(S[t&1]+8*i,8)}, v{IDXR}"
        def set_addr(base):
            a(f"s_lshr_b32 s{T}, s{WV}, 2"); a(f"s_mul_i32 s{T}, s{T}, 10240"); a(f"s_add_u32 s{T}, s{T}, {base}")
            a(f"v_lshl_add_u32 v{AK4}, v{vM}, 3, s{T}"); a(f"v_lshl_add_u32 v{AK}, v{vH}, 8, v{AK4}"); a(f"v_add_u32 v{AK4}, 1024, v{AK4}")
            a(f"v_mul_u32_u24 v{t0}, 20, v{vH}"); a(f"v_add_u32 v{t0}, v{t0}, v{vM}"); a(f"v_lshl_add_u32 v{AV}, v{t0}, 4, s{T}")
        def fill():
            a(rdK4(0)); a(rdK(0)); a(rdK(1)); a(EXM); a(rdV(0, 0)); a(rdV(0, 1)); a(EXF)
            a("s_waitcnt lgkmcnt(4)"); a(m2b(0)); a(rdK4(1)); a("s_nop 15"); a("s_waitcnt lgkmcnt(4)")
            a(mk(0, 0)); a(mk(0, 1)); a("s_nop 10")
        def step(t, first=False, nqk=True, nrd=True, nv=True, hook={}):
            ins = {1: ([] if first else [pv(t-1, 3)]) + ["s_waitcnt lgkmcnt(0)"],
                   5: ([m2b(t+1)] if nqk else []) + ([rdK4(t+2)] if nrd else []),
                   13: [pv(t, 0)] + ([EXM, rdV(t+1, 0), rdV(t+1, 1), EXF] if nv else []),
                   17: [pv(t, 1)] + ([rdK(t+2)] if nrd else []),
                   21: [mk(t+1, 0)] if nqk else [], 25: [pv(t, 2)], 29: [mk(t+1, 1)] if nqk else []}
            for e in range(32):
                a(f"v_exp_f32 v{S[t&1]+e}, v{S[t&1]+e}")
                for l in ins.get(e, []): a(l)
                if e in hook: hook[e]()
        def kv_dma(sblk, sm0):
            a(f"s_mul_i32 s{T+1}, s{sblk}, {SL}"); a(f"s_add_u32 s{T+1}, s{T+1}, s{KVS}")
            a(f"s_mul_i32 s{T+2}, s{WV}, 2560"); a(f"s_add_u32 m0, s{T+2}, s{sm0}")
            for i in range(3):
                a("s_mov_b32 exec_hi, 0" if i == 2 else "s_nop 0" if i == 0 else "")
                a(f"buffer_load_dwordx4 v{vL16}, {sr(WS,4)}, s{T+1} offen offset:{1024*i} sc1 lds")
            a(EXF)

        a(f"v_and_b32 v{vM}, 31, v{vL}"); a(f"v_lshrrev_b32 v{vH}, 5, v{vL}")
        a(f"s_lshl_b32 s{T+4}, s{HW}, 1"); a(f"s_lshr_b32 s{T}, s{WV}, 2"); a(f"s_add_u32 s{T+4}, s{T+4}, s{T}")
        a(f"s_mul_i32 s{T}, s{T+4}, 1280"); a(f"s_add_u32 s{T}, s{T}, {6*SL}")
        a(f"s_xor_b32 s{T+1}, s{T+4}, 1"); a(f"s_mul_i32 s{T+1}, s{T+1}, 1280"); a(f"s_add_u32 s{T+1}, s{T+1}, {6*SL}")
        a(f"v_lshlrev_b32 v{t0}, 3, v{vM}"); a(f"v_lshl_add_u32 v{t1}, v{vH}, 8, v{t0}")
        a(f"v_add_u32 v{t2}, s{T}, v{t1}"); a(f"ds_read2st64_b64 {vr(Q[0],4)}, v{t2} offset0:0 offset1:1")
        a(f"v_add_u32 v{t2}, s{T+1}, v{t1}"); a(f"ds_read2st64_b64 {vr(Q[1],4)}, v{t2} offset0:0 offset1:1")
        a(f"s_sub_u32 s{T+1}, s{T+1}, s{T}"); a(f"v_mul_lo_u32 v{t1}, v{vH}, s{T+1}"); a(f"v_add3_u32 v{t2}, v{t0}, v{t1}, s{T}")
        a(f"ds_read_b64 {vr(Q4,2)}, v{t2} offset:1024")
        set_addr(7*SL)
        a(f"v_mov_b32 v{IDXR}, 0xdddddddd")
        a(f"v_cmp_eq_u32 vcc, 20, v{vM}"); a(f"v_mov_b32 v{t0}, 0x3f803f80"); a("s_nop 0"); a(f"v_cndmask_b32 v{t0}, 0, v{t0}, vcc")
        for i in range(16): a(f"v_mov_b32 v{V+i}, v{t0}")
        for q in range(2):
            for i in range(0, 16, 2): a(f"v_mov_b64 {vr(O[q]+i,2)}, 0")
        a(f"s_mov_b32 s{PASS}, 0")
        fill()
        def misc0():
            a(f"s_lshl_b32 s{T}, s{G}, 3"); a(f"s_add_u32 s{T}, s{T}, s{T+4}"); a(f"s_mul_i32 s{OS}, s{T}, 40960"); a(f"s_add_u32 s{OS}, s{OS}, {hx(OF)}")
            a(f"s_lshl_b32 s{FO}, s{T+4}, 8"); a(f"s_add_u32 s{FO}, s{FO}, s{FB}"); a(f"s_lshl_b32 s{T}, s{IDX}, 2"); a(f"s_add_u32 s{FO}, s{FO}, s{T}"); a(f"s_add_u32 s{FO}, s{FO}, 128")
            a(f"s_mul_i32 s{T}, s{IDX}, 5")
            a(f"v_lshrrev_b32 v{t0}, 4, v{vM}"); a(f"v_mul_u32_u24 v{t0}, 20480, v{t0}"); a(f"v_lshl_add_u32 v{t0}, v{vJ}, 4, v{t0}")
            for jj in range(3):
                a(f"v_add_u32 v{t1}, s{T}, v{vH}")
                a(f"v_lshrrev_b32 v{t2}, 3, v{t1}"); a(f"v_lshl_add_u32 v{OA+jj}, v{t2}, 10, v{t0}")
                a(f"v_and_b32 v{t2}, 3, v{t1}"); a(f"v_lshl_add_u32 v{OA+jj}, v{t2}, 8, v{OA+jj}")
                a(f"v_bfe_u32 v{t2}, v{t1}, 2, 1"); a(f"v_lshl_add_u32 v{OA+jj}, v{t2}, 3, v{OA+jj}")
                a(f"s_add_u32 s{T}, s{T}, 2")
            a(f"v_lshlrev_b32 v{t2}, 2, v{vM}")
            a(f"buffer_load_dword v{PF}, v{t2}, {sr(WS,4)}, s{FB} offen offset:3072 sc1")
        def misc1():
            self.dma_addr(WD, 3, "w80")
            for i in (1, 2): a(f"v_subrev_u32 v{WD+i}, {1024*i}, v{WD+i}")
            a(f"s_lshr_b32 s{T}, s{WV}, 2"); a(f"s_mul_i32 s{T}, s{T}, 20"); a(f"s_add_u32 s{T}, s{T}, s{HW}"); a(f"s_mul_i32 s{DS}, s{T}, {16*1280}")
            a(f"s_mul_i32 s{T}, s{NT}, 160"); a(f"s_add_u32 s{DS}, s{DS}, s{T}")
        step(0, first=True, hook={31: misc0})
        step(1, hook={31: misc1})
        a(f"s_and_b32 s{T}, s{IDX}, 7"); a(f"s_lshl_b32 s{T}, s{T}, 12"); a(f"s_lshr_b32 s{T+1}, s{IDX}, 3"); a(f"s_lshl_b32 s{T+1}, s{T+1}, 8"); a(f"s_add_u32 s{T}, s{T}, s{T+1}")
        a(f"s_lshl_b32 s{T+1}, s{WV}, 5"); a(f"s_add_u32 s{T}, s{T}, s{T+1}"); a(f"s_add_u32 s{T+5}, s{T}, {hx(FLG+2048)}")
        a(f"s_lshl_b32 s{T}, s{G}, 2"); a(f"s_add_u32 s{T}, s{T}, s{T+5}"); a(f"s_add_u32 s{T+6}, s{LAY}, 1")
        self.flag(f"s{T}", f"s{T+6}", "sc1")
        self.stamp(5)
        if not OPT["forceslow"]:
            a(f"v_readfirstlane_b32 s{T}, v{PF}"); a("s_nop 1"); a(f"v_cmp_ne_u32 vcc, s{T}, v{PF}")
            a("s_cmp_eq_u64 vcc, 0"); a(f"s_cselect_b32 s{FAST}, 1, 0")
        a(f"v_and_b32 v{PF+1}, 7, v{vL}"); a(f"v_lshlrev_b32 v{PF+1}, 2, v{PF+1}")
        step(2, nrd=False, hook={16: lambda: a(f"buffer_load_dword v{t3}, v{PF+1}, {sr(WS,4)}, s{T+5} offen sc1")})
        self.poll(WS, PF+1, f"s{T+5}", f"s{T+6}", issued=True)
        self.stamp(6)
        for i in (1, 2):
            a(f"s_add_u32 s{T+7}, s{G}, {i}"); a(f"s_and_b32 s{T+7}, s{T+7}, 7"); a(f"s_mov_b32 s{T+8}, {(i-1)*SL}")
            kv_dma(T+7, T+8)
        step(3, nqk=False, nrd=False, nv=False)
        set_addr(0)
        a(pv(3, 3))
        a("s_waitcnt vmcnt(3)"); a("s_barrier")
        self.stamp(7)
        a(f"s_add_u32 s{T+7}, s{G}, 3"); a(f"s_and_b32 s{T+7}, s{T+7}, 7"); a(f"s_mov_b32 s{T+8}, {2*SL}")
        kv_dma(T+7, T+8)
        for i in range(0, 8, 2): a(f"v_mov_b64 {vr(S[1]+24+i,2)}, 0")
        a(f"s_mov_b32 s{IT}, 1")
        fill()
        a(".p2align 6")
        a("L_att_loop:")
        step(0); step(1)
        a("s_waitcnt vmcnt(3)"); a("s_barrier")
        lw, lk = self.lab("nowo"), self.lab("nokv")
        a(f"s_sub_u32 s{T}, s{IT}, 2"); a(f"s_cmp_lt_u32 s{T}, 5"); a(f"s_cbranch_scc0 {lw}")
        self.l2_prefetch(PF)
        a(f"s_mul_i32 s{T}, s{T}, {SL}"); a(f"s_mul_i32 s{T+2}, s{WV}, 2560"); a(f"s_add_u32 m0, s{T+2}, s{T}")
        for i in range(3):
            a("s_mov_b32 exec_hi, 0" if i == 2 else "s_nop 0" if i == 0 else "")
            a(f"buffer_load_dwordx4 v{WD+i}, {sr(WO,4)}, s{DS} offen offset:{1024*i} lds")
        a(EXF)
        a(f"s_add_u32 s{DS}, s{DS}, {64*1280}")
        a(f"{lw}:")
        a(f"s_cmp_lt_u32 s{IT}, 5"); a(f"s_cbranch_scc0 {lk}")
        a(f"s_add_u32 s{T+7}, s{G}, s{IT}"); a(f"s_add_u32 s{T+7}, s{T+7}, 3"); a(f"s_and_b32 s{T+7}, s{T+7}, 7")
        a(f"s_add_u32 s{T+8}, s{IT}, 2"); a(f"s_mul_i32 s{T+8}, s{T+8}, {SL}")
        kv_dma(T+7, T+8)
        a(f"{lk}:")
        step(2); step(3)
        for r in (AK, AK4, AV): a(f"v_add_u32 v{r}, {SL}, v{r}")
        a(f"s_add_u32 s{IT}, s{IT}, 1"); a(f"s_cmp_lt_u32 s{IT}, 8"); a("s_cbranch_scc1 L_att_loop")
        a(pv(3, 3))
        self.stamp(8)
        a("L_att_fin:")
        a(f"s_lshr_b32 s{T}, s{WV}, 2"); a(f"s_mul_i32 s{T+1}, s{T}, {2*SL}"); a(f"s_mul_i32 s{T+2}, s{HW}, 3072")
        a(f"s_add_u32 s{T+1}, s{T+1}, s{T+2}"); a(f"s_add_u32 s{T+1}, s{T+1}, {5*SL}"); a(f"v_add_u32 v{t0}, s{T+1}, v{vL16}")
        a(f"s_xor_b32 s{T}, s{T}, 1"); a(f"s_mul_i32 s{T+1}, s{T}, {2*SL}")
        a(f"s_add_u32 s{T+1}, s{T+1}, s{T+2}"); a(f"s_add_u32 s{T+1}, s{T+1}, {5*SL}"); a(f"v_add_u32 v{t1}, s{T+1}, v{vL16}")
        a("s_waitcnt vmcnt(0) lgkmcnt(0)")
        for i in range(3): a(f"ds_write_b128 v{t0}, {vr(O[1]+4*i,4)} offset:{1024*i}")
        a("s_waitcnt lgkmcnt(0)"); a("s_barrier")
        for i in range(3): a(f"ds_read_b128 {vr(S[0]+4*i,4)}, v{t1} offset:{1024*i}")
        a(f"v_cmp_eq_u32 vcc, 0, v{vH}")
        a(f"s_lshl_b32 s{T}, s{WV}, 2"); a(f"s_add_u32 s{T}, s{T}, {8*SL-32}"); a(f"v_mov_b32 v{t2}, s{T}")
        a("s_waitcnt lgkmcnt(0)")
        for i in range(0, 12, 2): a(f"v_pk_add_f32 {vr(O[0]+i,2)}, {vr(O[0]+i,2)}, {vr(S[0]+i,2)}")
        a(f"v_mov_b32 v{t0}, v{O[0]+8}"); a(f"v_mov_b32 v{t1}, v{O[0]+8}"); a("s_nop 1")
        a(f"v_permlane32_swap_b32 v{t1}, v{t0}")
        a("s_nop 0")
        a(f"v_rcp_f32 v{t1}, v{t0}")
        a(f"v_cndmask_b32 v{O[0]+8}, 0, v{O[0]+8}, vcc")
        for i in range(12): a(f"v_mul_f32 v{O[0]+i}, v{O[0]+i}, v{t1}")
        for i in range(6): a(f"v_cvt_pk_bf16_f32 v{S[0]+i}, v{O[0]+2*i}, v{O[0]+2*i+1}")
        self.mstore([f"buffer_store_dwordx2 {vr(S[0],2)}, v{OA}, {sr(WS,4)}, s{OS} offen",
                     f"buffer_store_dwordx2 {vr(S[0]+2,2)}, v{OA+1}, {sr(WS,4)}, s{OS} offen",
                     "s_mov_b32 exec_hi, 0",
                     f"buffer_store_dwordx2 {vr(S[0]+4,2)}, v{OA+2}, {sr(WS,4)}, s{OS} offen",
                     EXF])
        a(f"v_mul_f32 v{t1}, 0, v{O[0]}")
        for i in range(1, 12): a(f"v_fma_f32 v{t1}, v{O[0]+i}, 0, v{t1}")
        a(f"s_mov_b32 s{T}, {hx(f2u(2.0**-24))}"); a(f"s_mov_b32 s{T+1}, {hx(f2u(2.0**48))}")
        a(f"v_cmp_nle_f32 vcc, s{T}, v{t0}"); a(f"v_cmp_nge_f32 {sr(T+2,2)}, s{T+1}, v{t0}"); a(f"v_cmp_u_f32 {sr(T+4,2)}, v{t1}, v{t1}")
        a(f"s_or_b64 vcc, vcc, {sr(T+2,2)}"); a(f"s_or_b64 vcc, vcc, {sr(T+4,2)}")
        a("s_cmp_lg_u64 vcc, 0"); a(f"s_cselect_b32 s{T}, 1, 0"); a(f"v_mov_b32 v{t1}, s{T}")
        a(f"ds_write_b32 v{t2}, v{t1}")
        a(f"v_and_b32 v{t2}, 7, v{vL}"); a(f"v_lshlrev_b32 v{t2}, 2, v{t2}"); a(f"v_add_u32 v{t2}, {8*SL-32}, v{t2}")
        a("s_waitcnt lgkmcnt(0)"); a("s_barrier")
        a(f"ds_read_b32 v{t1}, v{t2}")
        a(f"s_add_u32 s{T+6}, s{LAY}, 1")
        a("s_waitcnt lgkmcnt(0)")
        a(f"v_cmp_lt_u32 vcc, s{PASS}, v{t1}")
        a("s_cbranch_vccnz L_att_redo")
        self.flag(f"s{FO}", f"s{T+6}")
        self.stamp(9)
        main, self.a = self.a, self.tail
        a = self.a
        a("L_att_redo:")
        for i in range(32): a(f"v_mov_b32 v{NM+i}, 0")
        a(f"v_mov_b32 v{PF}, 0xff800000"); a(f"v_mov_b32 v{PF+1}, 0xff800000")
        for q in range(2):
            for i in range(16): a(f"v_mov_b32 v{O[q]+i}, 0")
        a("L_fb_pass:")
        a(f"s_mov_b32 s{IT}, 0")
        a("L_fb_blk:")
        a("s_waitcnt vmcnt(0) lgkmcnt(0)"); a("s_barrier")
        a(f"s_mov_b32 s{T+8}, {6*SL}")
        kv_dma(IT, T+8)
        set_addr(6*SL)
        a(f"s_mov_b32 s{T+9}, 0")
        a("s_waitcnt vmcnt(0)"); a("s_barrier")
        a("L_fb_step:")
        a(rdK4(0)); a(rdK(0)); a(EXM); a(rdV(0, 0)); a(rdV(0, 1)); a(EXF)
        a("s_waitcnt lgkmcnt(0)")
        a(m2b(0, vr(NM, 32))); a("s_nop 15"); a("s_nop 1"); a(mk(0, 0)); a(mk(0, 1)); a("s_nop 11")
        a(f"s_cmp_eq_u32 s{PASS}, 0"); a("s_cbranch_scc0 L_fb_sum")
        for q in range(2):
            for i in range(0, 16, 2): a(f"v_max3_f32 v{PF+q}, v{PF+q}, v{S[0]+16*q+i}, v{S[0]+16*q+i+1}")
        a("s_branch L_fb_next")
        a("L_fb_sum:")
        for e in range(32): a(f"v_exp_f32 v{S[0]+e}, v{S[0]+e}")
        a("s_nop 1")
        for i in range(4): a(pv(0, i))
        a("L_fb_next:")
        for r in (AK, AK4, AV): a(f"v_add_u32 v{r}, 2560, v{r}")
        a(f"s_add_u32 s{T+9}, s{T+9}, 1"); a(f"s_cmp_lt_u32 s{T+9}, 4"); a("s_cbranch_scc1 L_fb_step")
        a(f"s_add_u32 s{IT}, s{IT}, 1"); a(f"s_cmp_lt_u32 s{IT}, 8"); a("s_cbranch_scc1 L_fb_blk")
        a("s_nop 15")
        a(f"s_cmp_eq_u32 s{PASS}, 0"); a("s_cbranch_scc0 L_att_fin")
        self.swap_add([PF, PF+1], t0, 32, "v_max_f32")
        a(f"s_lshl_b32 s{T}, s{WV}, 9"); a(f"s_add_u32 s{T}, s{T}, {5*SL}"); a(f"v_lshl_add_u32 v{t0}, v{vL}, 3, s{T}")
        a(f"s_xor_b32 s{T}, s{WV}, 4"); a(f"s_lshl_b32 s{T}, s{T}, 9"); a(f"s_add_u32 s{T}, s{T}, {5*SL}"); a(f"v_lshl_add_u32 v{t1}, v{vL}, 3, s{T}")
        a(f"ds_write_b64 v{t0}, {vr(PF,2)}")
        a("s_waitcnt lgkmcnt(0)"); a("s_barrier")
        a(f"ds_read_b64 {vr(t2,2)}, v{t1}")
        a("s_waitcnt lgkmcnt(0)")
        a(f"v_max_f32 v{PF}, v{PF}, v{t3}"); a(f"v_max_f32 v{PF+1}, v{PF+1}, v{t2}")
        for i in range(32): a(f"v_sub_f32 v{NM+i}, 0, v{PF+(i>>4)}")
        a(f"s_mov_b32 s{PASS}, 1"); a("s_branch L_fb_pass")
        self.a = main

    def l2_prefetch(self, PF):
        a = self.a
        for which, srd in ((OPT.get("pf_w1", 2), W1), (OPT.get("pf_w2", 4), W2)):
            if which is None: continue
            l = self.lab("nopf")
            a(f"s_cmp_eq_u32 s{T}, {which}"); a(f"s_cbranch_scc0 {l}")
            a(f"s_lshl_b32 s{T+1}, s{IDX}, 3"); a(f"s_add_u32 s{T+1}, s{T+1}, s{WV}"); a(f"s_lshl_b32 s{T+1}, s{T+1}, 13")
            a(f"v_lshlrev_b32 v{PF+1}, 7, v{vL}")
            a(f"buffer_load_dword v{PF}, v{PF+1}, {sr(srd,4)}, s{T+1} offen")
            a(f"{l}:")

    def chain(self):
        a = self.a
        a(f"s_cmp_ge_u32 s{WV}, 4"); a("s_cbranch_scc1 L_ch_h")
        RA = PB
        BI = PB + 4
        AR = PB + 16
        BR = PB + 64
        AC = PB + 88
        P  = PB + 136
        ST = PB + 160; RS = PB + 168; TX = PB + 172; CP = PB + 180
        def rd80():
            a(f"v_lshrrev_b32 v{t0}, 2, v{vL}"); a(f"v_mul_u32_u24 v{RA}, 160, v{t0}")
            a(f"v_and_b32 v{t0}, 3, v{vL}"); a(f"v_lshl_add_u32 v{RA}, v{t0}, 3, v{RA}")
            a(f"s_mul_i32 s{T}, s{WK}, 10240"); a(f"v_add_u32 v{RA}, s{T}, v{RA}")
            a(f"v_add_u32 v{RA+1}, {3*SL}, v{RA}"); a(f"v_add_u32 v{RA+2}, {6*SL}, v{RA}")
        def rdaddr80(slots):
            def f(gs, nb):
                sl = slots[gs // 2]
                return RA + sl // 3, (sl % 3) * SL + (gs & 1) * 5120 + nb * 32
            return f
        def abase(buf, ks):
            a(f"s_mul_i32 s{T}, s{WK}, {ks//2*1024}"); a(f"s_add_u32 s{T}, s{T}, {hx(buf)}")
            a(f"s_mul_i32 s{A0}, s{RBO}, {ks*1024}"); a(f"s_add_u32 s{A0}, s{A0}, s{T}")
            a(f"s_xor_b32 s{A1}, s{RBO}, 1"); a(f"s_mul_i32 s{A1}, s{A1}, {ks*1024}"); a(f"s_add_u32 s{A1}, s{A1}, s{T}")
        RD = 6
        a("s_setprio 1")
        rd80(); abase(OF, 20)
        for i in range(20): a(f"v_mov_b32 v{AC+i}, v{RES+i}")
        a(f"s_and_b32 s{T+2}, s{FXO}, -256"); a(f"s_lshl_b32 s{T}, s{WK}, 6"); a(f"s_add_u32 s{T+2}, s{T+2}, s{T}"); a(f"s_add_u32 s{T+2}, s{T+2}, 128")
        a(f"s_add_u32 s{T+3}, s{LAY}, 1")
        a(f"v_lshlrev_b32 v{t2}, 2, v{vJ}")
        self.poll(WS, t2, f"s{T+2}", f"s{T+3}")
        self.stamp(10)
        vm = Cnt("vmcnt", 63)
        for gs in range(RD - 1):
            for ls in self.a_loads(gs, RD, AR): a.extend(ls); vm.issue(("A", gs))
        self.gemm(10, 5, RD, AR, BR, AC, rdaddr80([0, 1, 2, 3, 4]), 2560, vm, czero=(1,))
        self.stamp(11)
        self.exchange(AC, BR, 0)
        a(f"s_lshl_b32 s{T+3}, s{LAY}, 1"); a(f"s_add_u32 s{T+3}, s{T+3}, 2")
        self.xstore(f"s{T+3}", P)
        self.stamp(12)
        RD = 5
        a(f"s_lshr_b32 s{T}, s{IDX}, 4"); a(f"s_lshl_b32 s{T}, s{T}, 2"); a(f"s_add_u32 s{T}, s{T}, s{WV}")
        a(f"s_lshl_b32 s{T+2}, s{T}, 8"); a(f"s_add_u32 s{T+2}, s{T+2}, s{FB}")
        a(f"s_and_b32 s{T+4}, s{IDX}, 15")
        a(f"s_lshl_b32 s{FO}, s{T+4}, 2"); a(f"s_add_u32 s{FO}, s{FO}, s{T+2}"); a(f"s_add_u32 s{FO}, s{FO}, 64")
        a(f"s_lshl_b32 s{T+1}, s{G}, 3"); a(f"s_add_u32 s{T}, s{T}, s{T+1}")
        a(f"s_mul_i32 s{A0}, s{T}, 40960"); a(f"s_add_u32 s{A1}, s{A0}, 20480")
        a(f"s_lshl_b32 s{T+1}, s{T}, 11"); a(f"s_add_u32 s{T+1}, s{T+1}, {hx(STAT)}")
        a(f"s_mul_i32 s{OS}, s{T}, {2*49152}"); a(f"s_mul_i32 s{T}, s{T+4}, 3072"); a(f"s_add_u32 s{OS}, s{OS}, s{T}"); a(f"s_add_u32 s{OS}, s{OS}, {hx(HF)}")
        a(f"s_mul_i32 s{T+4}, s{T+4}, 192")
        self.rd96(RA)
        a(f"v_lshlrev_b32 v{t1}, 1, v{vJ}")
        for nb in range(6): a(f"buffer_load_ushort v{BI+nb}, v{t1}, {sr(B1,4)}, s{T+4} offen offset:{32*nb}")
        a(f"v_lshlrev_b32 v{t2}, 2, v{vJ}")
        self.poll(WS, t2, f"s{T+2}", f"s{T+3}")
        self.stamp(13)
        vm = Cnt("vmcnt", 63)
        for ls in self.a_loads(0, RD, AR): a.extend(ls); vm.issue(("A", 0))
        for rb in range(2):
            a(f"buffer_load_dwordx4 {vr(ST+4*rb,4)}, v{vL16}, {sr(WS,4)}, s{T+1} offen offset:{1024*rb} sc1"); vm.issue("st")
        for gs in range(1, RD - 1):
            for ls in self.a_loads(gs, RD, AR): a.extend(ls); vm.issue(("A", gs))
        a(f"s_mov_b32 s{T}, {SL}"); a(f"v_lshl_add_u32 v{t2}, v{vJ}, 4, s{T}")
        a(vm.wait("st"))
        self.ln_stats(ST, RS, TX, P)
        a("s_barrier")
        self.stamp(14)
        def cpread(nb):
            def f(lg):
                a(f"ds_read_b128 {vr(CP+4*nb,4)}, v{t2} offset:{256*nb}"); lg.issue("cp")
            return f
        extra = {11 + i: [cpread(2*i), cpread(2*i+1)] for i in range(3)}
        WX = P
        prep = []
        for nb in range(6):
            c = CP + 4*nb; x = WX + 4*nb
            prep.append([f"v_add_f32 v{c}, v{c}, v{c+1}", f"v_add_f32 v{c+2}, v{c+2}, v{c+3}", f"v_add_f32 v{c}, v{c}, v{c+2}",
                         f"v_cvt_pk_bf16_f32 v{x}, v{c}, v{c}", f"v_and_b32 v{c+1}, 0xffff0000, v{x}", f"v_sub_f32 v{c+1}, v{c}, v{c+1}",
                         f"v_and_b32 v{x+1}, 0xffff, v{x}", f"v_cvt_pk_bf16_f32 v{x}, v{c}, v{c+1}",
                         f"v_lshl_or_b32 v{x+1}, v{BI+nb}, 16, v{x+1}", f"v_mov_b32 v{x+2}, v{BI+nb}", f"v_mov_b32 v{x+3}, 0"])
        flat = [l for p in prep for l in p]
        for i, gs in enumerate(range(15, 20)):
            extra[gs] = flat[i*14:(i+1)*14]
        self.gemm(20, 6, RD, AR, BR, AC, self.rdaddr96(RA), 16*192, vm, bars={10: ["s_barrier"]}, extra=extra, wgrp=2)
        a("s_nop 1")
        for nb in range(6):
            for rb in range(2):
                d = vr(AC + 4*(6*rb + nb), 4)
                a(f"v_mfma_f32_16x16x32_bf16 {d}, {vr(WX+4*nb,4)}, {vr(TX+4*rb,4)}, {d}")
        a("s_barrier")
        self.stamp(15)
        c1 = 2*math.sqrt(2/math.pi)*math.log2(math.e); c2 = c1*0.044715
        a(f"s_mov_b32 s{T}, {hx(f2u(-c2))}"); a(f"s_mov_b32 s{T+1}, s{T}"); a(f"s_add_u32 s{T+2}, s{OS}, 49152")
        a(f"v_mov_b32 v{ST}, {hx(f2u(-c1))}"); a(f"v_mov_b32 v{ST+1}, v{ST}")
        a(f"v_mov_b32 v{RS+2}, v{RS+1}"); a(f"v_mov_b32 v{RS+3}, v{RS+1}"); a(f"v_mov_b32 v{RS+1}, v{RS}")
        TM = AR
        for kp in range(3):
            for rb in range(2):
                r = AC + 4*(6*rb + 2*kp); p = BR + 4*(2*kp + rb)
                for i in range(4): a(f"v_pk_mul_f32 {vr(r+2*i,2)}, {vr(r+2*i,2)}, {vr(RS+2*rb,2)}")
                for i in range(4): a(f"v_pk_mul_f32 {vr(TM+2*i,2)}, {vr(r+2*i,2)}, {vr(r+2*i,2)}")
                for i in range(4): a(f"v_pk_fma_f32 {vr(TM+2*i,2)}, {vr(TM+2*i,2)}, {sr(T,2)}, {vr(ST,2)}")
                for i in range(4): a(f"v_pk_mul_f32 {vr(TM+2*i,2)}, {vr(TM+2*i,2)}, {vr(r+2*i,2)}")
                for i in range(8): a(f"v_exp_f32 v{TM+i}, v{TM+i}")
                for i in range(4): a(f"v_pk_add_f32 {vr(TM+2*i,2)}, {vr(TM+2*i,2)}, 1.0 op_sel_hi:[1,0]")
                for i in range(8): a(f"v_rcp_f32 v{TM+i}, v{TM+i}")
                for i in range(4): a(f"v_pk_mul_f32 {vr(r+2*i,2)}, {vr(r+2*i,2)}, {vr(TM+2*i,2)}")
                for i in range(4): a(f"v_cvt_pk_bf16_f32 v{p+i}, v{r+2*i}, v{r+2*i+1}")
                self.mstore([f"buffer_store_dwordx4 {vr(p,4)}, v{vL16}, {sr(WS,4)}, s{OS if rb == 0 else T+2} offen offset:{1024*kp}"])
        a(f"s_add_u32 s{T+3}, s{LAY}, 1")
        self.flag(f"s{FO}", f"s{T+3}")
        self.stamp(16)
        RD = 6
        rd80(); abase(HF, 48)
        a(f"v_lshlrev_b32 v{t1}, 3, v{vG}")
        for nb in range(5): a(f"buffer_load_dwordx2 {vr(BI+2*nb,2)}, v{t1}, {sr(B2,4)}, s{COL+nb} offen")
        a(f"s_and_b32 s{T+2}, s{FXO}, -256"); a(f"s_lshl_b32 s{T}, s{WK}, 5"); a(f"s_add_u32 s{T+2}, s{T+2}, s{T}"); a(f"s_add_u32 s{T+2}, s{T+2}, 64")
        a(f"v_and_b32 v{t2}, 7, v{vL}"); a(f"v_lshlrev_b32 v{t2}, 2, v{t2}")
        self.poll(WS, t2, f"s{T+2}", f"s{T+3}")
        self.stamp(17)
        vm = Cnt("vmcnt", 63)
        for gs in range(RD - 1):
            for ls in self.a_loads(gs, RD, AR): a.extend(ls); vm.issue(("A", gs))
        for i in range(10):
            a(f"v_lshlrev_b32 v{t0}, 16, v{BI+i}"); a(f"v_and_b32 v{t1}, 0xffff0000, v{BI+i}")
            a(f"v_pk_add_f32 {vr(AC+2*i,2)}, {vr(RES+2*i,2)}, {vr(t0,2)}")
        a("s_barrier")
        self.stamp(18)
        B_ = ["s_barrier"]
        self.gemm(24, 5, RD, AR, BR, AC, rdaddr80([0, 5, 6, 7, 1, 2, 3, 4, 0, 5, 6, 7]), 2560, vm, bars={4: B_, 8: B_, 15: B_, 19: B_}, czero=(1,))
        self.stamp(19)
        self.exchange(AC, BR, 5)
        a("s_setprio 0")
        a(f"s_cmp_lg_u32 s{LAY}, 0"); a("s_cbranch_scc1 L_out")
        self.xstore("3", P)
        self.stamp(20); self.stamp_dump()
        a(f"s_mov_b32 s{LAY}, 1"); a("s_branch L_qkv")
        a("L_out:")
        a(f"v_mul_u32_u24 v{t0}, 1280, v{vJ}"); a(f"v_lshl_add_u32 v{t0}, v{vG}, 3, v{t0}")
        a(f"s_mul_i32 s{T}, s{RBO}, 20480"); a(f"v_add_u32 v{t0}, s{T}, v{t0}")
        for nb in range(5):
            a(f"v_cvt_pk_bf16_f32 v{P+2*nb}, v{RES+4*nb}, v{RES+4*nb+1}"); a(f"v_cvt_pk_bf16_f32 v{P+2*nb+1}, v{RES+4*nb+2}, v{RES+4*nb+3}")
            a(f"buffer_store_dwordx2 {vr(P+2*nb,2)}, v{t0}, {sr(OUT,4)}, s{COL+nb} offen")
        if OPT["stamp"]: a("s_waitcnt vmcnt(0)")
        self.stamp(20); self.stamp_dump()
        a("s_endpgm")

        a("L_ch_h:")
        D1 = PB + 16
        D2 = PB + 20
        HB = PB + 28
        HC = PB + 52
        self.dma_addr(D1, 3, "w1")
        a(f"s_and_b32 s{T}, s{IDX}, 15"); a(f"s_mul_i32 s{DS}, s{T}, 192"); a(f"s_mul_i32 s{T}, s{HW}, {16*3072}"); a(f"s_add_u32 s{DS}, s{DS}, s{T}")
        a(f"s_mul_i32 s{T+8}, s{HW}, 3072")
        for i in range(3):
            a(f"v_add_u32 v{t0}, {64*i}, v{vL}"); a(f"v_mul_u32_u24 v{t0}, 171, v{t0}"); a(f"v_bfe_u32 v{t0}, v{t0}, 13, 1")
            a(f"v_lshlrev_b32 v{t0}, 5, v{t0}"); a(f"v_xor_b32 v{D1+i}, v{D1+i}, v{t0}")
        def w1grp(c):
            base = (5*SL if c < 5 else 2*SL) + (c % 5) * 12288
            out = []
            for i in range(3):
                pre = [f"s_add_u32 s{T+9}, s{DS}, {c*64*3072}"]
                out.append(pre + self.dma(D1+i, W1, f"s{T+9}", f"s{T+8}", base + 1024*i))
            return out
        first = [g for c in range(5) for g in w1grp(c)]
        second = [g for c in range(5, 10) for g in w1grp(c)]
        for g in first[:-1]: a.extend(g)
        self.dma_addr(D2, 5, "w80")
        a("s_barrier")
        a.extend(first[-1])
        for g in second[:2]: a.extend(g)
        a("s_barrier")
        for g in second[2:]: a.extend(g)
        self.rd96(PB)
        a(f"s_mul_i32 s{T}, s{HW}, 6144")
        for i in range(4): a(f"v_add_u32 v{PB+i}, s{T}, v{PB+i}")
        a(f"s_lshr_b32 s{T}, s{HW}, 1"); a(f"s_mul_i32 s{T}, s{T}, 24"); a(f"s_add_u32 s{T}, s{T}, s{WM}"); a(f"s_mul_i32 s{DS}, s{T}, {32*1280}")
        a(f"s_mul_i32 s{T}, s{NT}, 160"); a(f"s_add_u32 s{DS}, s{DS}, s{T}")
        a(f"s_mul_i32 s{T+8}, s{HW}, 5120")
        slots = [0, 5, 6, 7, 1, 2, 3, 4, 0, 5, 6, 7]
        vm = Cnt("vmcnt", 63)
        def w2it(it):
            for i in range(5):
                if i == 0: a(f"s_add_u32 s{T+9}, s{DS}, {it*64*1280}")
                a.extend(self.dma(D2+i, W2, f"s{T+9}", f"s{T+8}", slots[it]*SL + 1024*i)); vm.issue(it)
        a("s_waitcnt vmcnt(0)"); a("s_barrier")
        w2it(0)
        for nb in range(6): a(f"v_mov_b32 v{HC+nb}, 0")
        a(f"v_mov_b32 v{HC+6}, 0x3f803f80")
        for r in range(5):
            for nb in range(6):
                if r < 2: v, off = PB + (nb & 1), 4*r*6144
                elif r > 2: v, off = PB + 2 + (nb & 1), (4*r - 10)*6144
                else: v, off = t2 + (nb & 1), 0
                if r == 2 and nb == 0:
                    a(f"s_cmp_lt_u32 s{HW}, 2"); a("s_cselect_b64 vcc, -1, 0")
                    for u in range(2):
                        a(f"v_add_u32 v{t0}, {8*6144}, v{PB+u}"); a(f"v_subrev_u32 v{t1}, {2*6144}, v{PB+2+u}")
                        a(f"v_cndmask_b32 v{t2+u}, v{t1}, v{t0}, vcc")
                o = off + (nb >> 1)*64
                a(f"ds_read_b64_tr_b16 {vr(HB+4*nb,2)}, v{v} offset:{o}"); a(f"ds_read_b64_tr_b16 {vr(HB+4*nb+2,2)}, v{v} offset:{o+16*192}")
            a("s_waitcnt lgkmcnt(0)")
            for i in range(4):
                for nb in range(6): a(f"v_dot2_f32_bf16 v{HC+nb}, v{HB+4*nb+i}, v{HC+6}, v{HC+nb}")
        a("s_nop 2")
        cs = [HC+nb for nb in range(6)]
        self.swap_add(cs, HB, 16); self.swap_add(cs, HB, 32)
        a(f"s_lshl_b32 s{T}, s{HW}, 2"); a(f"s_add_u32 s{T}, s{T}, {SL}"); a(f"v_lshl_add_u32 v{t0}, v{vJ}, 4, s{T}")
        for nb in range(6): a(f"ds_write_b32 v{t0}, v{HC+nb} offset:{256*nb}")
        a("s_waitcnt lgkmcnt(0)"); a("s_barrier")
        for it in (1, 2, 3): w2it(it)
        a("s_barrier")
        for it in (4, 5, 6, 7): w2it(it)
        a(vm.wait(7)); a("s_barrier")
        a("s_barrier")
        w2it(8); w2it(9)
        a("s_barrier")
        w2it(10); w2it(11)
        a(vm.wait(9)); a("s_barrier")
        a(vm.wait(11)); a("s_barrier")
        a(f"s_cmp_lg_u32 s{LAY}, 0"); a("s_cbranch_scc1 L_h_last")
        wq = self.wq_dma()
        for g in wq[:5]: a.extend(g)
        a("s_barrier"); a("s_barrier")
        for g in wq[5:]: a.extend(g)
        self.stamp_dump()
        a(f"s_mov_b32 s{LAY}, 1"); a("s_branch L_qkv")
        a("L_h_last:")
        a("s_barrier"); a("s_barrier")
        self.stamp_dump()
        a("L_end:")
        a("s_endpgm")

    def rd96(self, RA):
        a = self.a
        a(f"v_lshrrev_b32 v{t0}, 2, v{vL}"); a(f"v_mul_u32_u24 v{RA}, 192, v{t0}")
        a(f"v_and_b32 v{t0}, 3, v{vL}"); a(f"v_lshl_add_u32 v{RA}, v{t0}, 3, v{RA}")
        a(f"v_and_b32 v{t0}, 1, v{vG}"); a(f"v_lshl_add_u32 v{RA}, v{t0}, 5, v{RA}")
        a(f"v_xor_b32 v{RA+1}, 32, v{RA}")
        a(f"v_add_u32 v{RA+2}, {2*SL}, v{RA}"); a(f"v_add_u32 v{RA+3}, {2*SL}, v{RA+1}")
        a(f"v_add_u32 v{RA}, {5*SL}, v{RA}"); a(f"v_add_u32 v{RA+1}, {5*SL}, v{RA+1}")
    def rdaddr96(self, RA):
        return lambda gs, nb: (RA + (2 if gs >= 10 else 0) + (nb & 1), (gs % 10) * 6144 + (nb >> 1) * 64)

def build(**opt):
    OPT.update(opt)
    g = Gen()
    g.entry(); g.qkv(); g.attention(); g.chain()
    a = g.a
    a.lines += g.tail.lines
    a("L_last:"); a("s_endpgm")
    probs = check_hazards(a.lines)
    if probs:
        print("\n".join(probs), file=sys.stderr); raise SystemExit("hazards")
    hdr = open("cdna_kernels/" + NAME + ".s.ref").read().split("; Override launch")[0]
    s = hdr + "; @launch grid=(256,1,1) block=(512,1,1) lds=163840\n" + '.amdgcn_target "amdgcn-amd-amdhsa--gfx950"\n.text\n'
    s += f".globl {NAME}_kernel\n.type {NAME}_kernel,@function\n" + a.text()
    s += f""".section .rodata,"a"
.p2align 6
.amdhsa_kernel {NAME}_kernel
  .amdhsa_next_free_vgpr 256
  .amdhsa_next_free_sgpr 102
  .amdhsa_accum_offset 256
  .amdhsa_group_segment_fixed_size 0
  .amdhsa_kernarg_size 88
  .amdhsa_user_sgpr_count 2
  .amdhsa_user_sgpr_kernarg_segment_ptr 1
  .amdhsa_system_sgpr_workgroup_id_x 1
.end_amdhsa_kernel
"""
    return s

if __name__ == "__main__":
    out = sys.argv[1]
    opt = {}
    for x in sys.argv[2:]:
        k, v = x.split("="); opt[k] = eval(v)
    open(out, "w").write(build(**opt))
```

```python
import sys, math, struct
from asmlib import *

NAME = "interleave_layers__softmax_full_mha__dense_activation_gelu__prompt"
OPT = dict(stamp=False, forceslow=False)

XF   = 0x0
OF   = 0x280000
HF   = 0x500000
KVF  = lambda l: 0xB00000 + l * 0x500000
STAT = 0x1500000
FLG  = 0x1520000
PK1  = 0x1600000
PK2  = 0x1800000
PKO  = 0x1A00000
PKQ  = 0x1B00000
STAMPS = 0x4000000
WS_BYTES = 0x10000000
KA = dict(x=0, wqkv=8, wo=16, w1=32, b1=40, w2=48, b2=56, out=64, dbg=72, ws=80)
SZ = dict(x=2048*640*2, wqkv=640*1920*2, wo=640*640*2, w1=640*1536*2, b1=1536*2, w2=1536*640*2, b2=640*2, out=2048*640*2, ws=WS_BYTES, dbg=256)
SL = 20480

def f2u(x): return struct.unpack("<I", struct.pack("<f", x))[0]
def hx(x): return f"0x{x & 0xffffffff:x}"

class Cnt:
    def __init__(self, name, mx): self.q = []; self.name = name; self.mx = mx; self.done = 0
    def issue(self, tag):
        self.q.append(tag)
        assert len(self.q) - self.done <= self.mx, (self.name, "too many outstanding")
    def wait(self, *tags):
        last = max((i for i, t in enumerate(self.q) if t in tags), default=-1)
        assert last >= 0, tags
        if last < self.done: return ""
        n = len(self.q) - 1 - last
        self.done = last + 1
        return f"s_waitcnt {self.name}({n})"

LAY = 3
WS, WQ, WO, W1, W2, B1, B2, XIN, OUT, DBG = 4, 8, 12, 16, 20, 24, 28, 32, 36, 40
G, IDX, WV, FAST, BUD, NT, ODD, WM, WK, HW = range(44, 54)
COL = 54
XA, XS, STO, FXO, RBO = 59, 60, 61, 62, 63
VMK = 64
T = 66
FB = 80
A0, A1, DS, IT, KVS, PASS, OS, FO = 81, 82, 83, 84, 85, 86, 87, 88
vL, vL16, vJ, vG, t0, t1, t2, t3 = 0, 1, 2, 3, 4, 5, 6, 7
RES = 8
CSQ = 28
CS1 = 32
PB = 40

class Proxy:
    def __init__(self, g): self.g = g
    def __call__(self, s): self.g.a(s)
    def extend(self, ls): self.g.a.extend(ls)

class Gen:
    def __init__(self):
        self.a = Asm(); self.tail = Asm(); self.nlab = 0; self.p = Proxy(self)
    def lab(self, s):
        self.nlab += 1; return f"L{self.nlab}_{s}"
    def stamp(self, i):
        if not OPT["stamp"]: return
        a = self.a
        a("s_memrealtime s[96:97]"); a("s_memtime s[98:99]"); a("s_waitcnt lgkmcnt(0)")
        a(f"v_writelane_b32 v254, s96, {i}"); a(f"v_writelane_b32 v255, s98, {i}")
    def stamp_dump(self):
        if not OPT["stamp"]: return
        a = self.a
        a(f"s_lshl_b32 s96, s2, 3"); a(f"s_add_u32 s96, s96, s{WV}"); a("s_lshl_b32 s96, s96, 1"); a(f"s_add_u32 s96, s96, s{LAY}")
        a("s_lshl_b32 s96, s96, 9"); a(f"s_add_u32 s96, s96, {hx(STAMPS)}")
        a(f"v_lshlrev_b32 v253, 3, v{vL}")
        a(f"buffer_store_dwordx2 v[254:255], v253, {sr(WS,4)}, s96 offen")
    def mstore(self, lines, force=None):
        a = self.a
        sc = lambda l: l + " sc1" if l.startswith("buffer_store") else l
        if force == "sc1":
            for l in lines: a(sc(l))
            return
        ls, lb = self.lab("slow"), self.lab("back")
        a(f"s_cmp_eq_u32 s{FAST}, 0"); a(f"s_cbranch_scc1 {ls}")
        for l in lines: a(l)
        a(f"{lb}:")
        self.tail(f"{ls}:")
        for l in lines: self.tail(sc(l))
        self.tail(f"s_branch {lb}")
    def flag(self, soff, sval, force=None):
        a = self.a
        a(f"v_mov_b32 v{t0}, {sval}"); a(f"v_mov_b32 v{t1}, 0")
        a("s_waitcnt vmcnt(0)")
        a("s_mov_b64 exec, 1")
        self.mstore([f"buffer_store_dword v{t0}, v{t1}, {sr(WS,4)}, {soff} offen"], force)
        a("s_mov_b64 exec, -1")
    def poll(self, srd, vaddr, soff, starget, issued=False):
        a = self.a
        lp, ld, lc = self.lab("poll"), self.lab("seen"), self.lab("chk")
        if issued: a(f"s_branch {lc}")
        a(f"{lp}:")
        a(f"buffer_load_dword v{t3}, v{vaddr}, {sr(srd,4)}, {soff} offen sc1")
        a(f"{lc}:")
        a("s_waitcnt vmcnt(0)")
        a(f"v_cmp_gt_u32 vcc, {starget}, v{t3}")
        a(f"s_cbranch_vccz {ld}")
        a(f"s_sub_u32 s{BUD}, s{BUD}, 1"); a(f"s_cbranch_scc0 {lp}")
        a(f"s_mov_b32 s{BUD}, 0")
        a(f"{ld}:")
    def swap_add(self, vs, tmp, which, op="v_add_f32"):
        a = self.a
        for i, v in enumerate(vs): a(f"v_mov_b32 v{tmp+i}, v{v}")
        a("s_nop 1")
        for i, v in enumerate(vs): a(f"v_permlane{which}_swap_b32 v{v}, v{tmp+i}")
        if len(vs) < 2: a("s_nop 0")
        for i, v in enumerate(vs): a(f"{op} v{v}, v{v}, v{tmp+i}")

    def dma_addr(self, dst, n, kind):
        a = self.a
        upr, mul, sh = (12, 171, 11) if kind == "w1" else (10, 205, 11)
        ld = dict(wq=3840, w1=3072, w80=1280)[kind]
        for i in range(n):
            a(f"v_add_u32 v{t0}, {64*i}, v{vL}")
            a(f"v_mul_u32_u24 v{t1}, {mul}, v{t0}"); a(f"v_lshrrev_b32 v{t1}, {sh}, v{t1}")
            a(f"v_mul_u32_u24 v{t2}, {upr}, v{t1}"); a(f"v_sub_u32 v{t0}, v{t0}, v{t2}")
            a(f"v_mul_u32_u24 v{t1}, {ld}, v{t1}")
            if kind == "wq":
                a(f"v_mul_u32_u24 v{t2}, 11, v{t0}"); a(f"v_lshrrev_b32 v{t2}, 5, v{t2}"); a(f"v_min_u32 v{t2}, 2, v{t2}")
                a(f"v_mul_u32_u24 v{t2}, 1232, v{t2}"); a(f"v_add_u32 v{t1}, v{t1}, v{t2}")
            elif kind == "w80":
                a(f"v_lshl_add_u32 v{t0}, s{ODD}, 1, v{t0}")
                a(f"v_subrev_u32 v{t2}, 10, v{t0}"); a(f"v_min_u32 v{t0}, v{t0}, v{t2}")
            a(f"v_lshl_add_u32 v{dst+i}, v{t0}, 4, v{t1}")
    def dma(self, vaddr, srd, soff, m0base, m0imm, mods=""):
        return [f"s_add_u32 m0, {m0base}, {m0imm}", "s_nop 0", f"buffer_load_dwordx4 v{vaddr}, {sr(srd,4)}, {soff} offen {mods} lds".replace("  ", " ")]

    def ln_stats(self, ST, RS, TX, tmp):
        a = self.a
        for rb in range(2):
            s = ST + 4*rb
            a(f"v_add_f32 v{s}, v{s}, v{s+2}"); a(f"v_add_f32 v{s+1}, v{s+1}, v{s+3}")
        vs = [ST, ST+1, ST+4, ST+5]
        self.swap_add(vs, tmp, 16); self.swap_add(vs, tmp, 32)
        a(f"v_cmp_eq_u32 vcc, 0, v{vG}")
        for rb in range(2):
            s = ST + 4*rb; x = TX + 4*rb
            a(f"v_mul_f32 v{s}, {hx(f2u(-1.0/640))}, v{s}"); a(f"v_mul_f32 v{s+1}, {hx(f2u(1.0/640))}, v{s+1}")
            a(f"v_fma_f32 v{s+1}, -v{s}, v{s}, v{s+1}")
            a(f"v_max_f32 v{s+1}, 0, v{s+1}"); a(f"v_add_f32 v{s+1}, {hx(f2u(1e-5))}, v{s+1}")
            a(f"v_rsq_f32 v{RS+rb}, v{s+1}")
            a(f"v_mov_b32 v{x+3}, 0")
            a(f"v_mul_f32 v{s+1}, v{s+1}, v{RS+rb}")
            a(f"v_cndmask_b32 v{s}, 0, v{s}, vcc"); a(f"v_cndmask_b32 v{s+1}, 0, v{s+1}, vcc")
            a(f"v_cvt_pk_bf16_f32 v{x}, v{s}, v{s}"); a(f"v_and_b32 v{tmp}, 0xffff0000, v{x}"); a(f"v_sub_f32 v{tmp}, v{s}, v{tmp}")
            a(f"v_cvt_pk_bf16_f32 v{x+1}, v{tmp}, v{s+1}"); a(f"v_and_b32 v{tmp}, 0xffff0000, v{x+1}"); a(f"v_sub_f32 v{tmp}, v{s+1}, v{tmp}")
            a(f"v_cvt_pk_bf16_f32 v{x+2}, v{tmp}, v{x+3}")

    def a_loads(self, gs, RD, AR):
        out = []
        for rb in range(2):
            sa = A0 + rb
            ls = [f"buffer_load_dwordx4 {vr(AR + 8*(gs % RD) + 4*rb, 4)}, v{vL16}, {sr(WS,4)}, s{sa} offen offset:{1024*(gs % 4)} sc1"]
            if gs % 4 == 3: ls.append(f"s_add_u32 s{sa}, s{sa}, 4096")
            out.append(ls)
        return out
    def capture(self, fn):
        main, self.a = self.a, Asm()
        fn()
        out, self.a = self.a.lines, main
        return out
    def gemm(self, NS, NB, RD, AR, BR, AC, rdaddr, second, vm, bars={}, std=(), czero=(0, 1), extra={}, wgrp=1, xper=1):
        a = self.a
        lg = Cnt("lgkmcnt", 15)
        def reads(gs, nb):
            v, off = rdaddr(gs, nb)
            d = BR + 4*nb
            if second is None: return [(f"ds_read_b128 {vr(d,4)}, v{v} offset:{off}", (gs, nb))]
            return [(f"ds_read_b64_tr_b16 {vr(d,2)}, v{v} offset:{off}", (gs, nb)), (f"ds_read_b64_tr_b16 {vr(d+2,2)}, v{v} offset:{off+second}", (gs, nb))]
        def emit_x(l):
            if l == "WAITX": a(lg.wait("x")); return
            if l.startswith("WAITV:"): a(vm.wait(l[6:])); return
            a(l)
            if l.startswith("ds_"): lg.issue("x")
        for nb in range(NB):
            for l, tg in reads(0, nb): a(l); lg.issue(tg)
        pr, ex = [], []
        for gs in range(NS):
            if gs in bars:
                while pr:
                    l, tg = pr.pop(0); a(l); lg.issue(tg)
                for l in bars[gs]: a(l)
            a(vm.wait(("A", gs)))
            pend = [(ls, ("A", gs + RD - 1)) for ls in self.a_loads(gs + RD - 1, RD, AR)] if gs + RD - 1 < NS else []
            ex += list(extra.get(gs, []))
            for nb in range(NB):
                if nb % wgrp == 0:
                    tags = [(gs, n) for n in range(nb, min(nb + wgrp, NB))]
                    while any(tg in tags for _, tg in pr):
                        l, tg = pr.pop(0); a(l); lg.issue(tg)
                    a(lg.wait(*tags))
                for rb in range(2):
                    d = vr(AC + 4*(NB*rb + nb), 4)
                    c = "0" if (gs == 0 and rb in czero) else d
                    w, x = vr(BR + 4*nb, 4), vr(AR + 8*(gs % RD) + 4*rb, 4)
                    p, q = (x, w) if nb in std else (w, x)
                    a(f"v_mfma_f32_16x16x32_bf16 {d}, {p}, {q}, {c}")
                    if rb == 1 and gs + 1 < NS: pr += reads(gs + 1, nb)
                    if pr:
                        l, tg = pr.pop(0); a(l); lg.issue(tg)
                    if rb == 0 and pend:
                        ls, tg = pend.pop(0); a.extend(ls); vm.issue(tg)
                    else:
                        for _ in range(xper):
                            if ex: emit_x(ex.pop(0))
        for l in ex: emit_x(l)
        return lg

    def xstore(self, sval, P, force=None, before_flag=None):
        a = self.a
        for i in range(10): a(f"v_cvt_pk_bf16_f32 v{P+i}, v{RES+2*i}, v{RES+2*i+1}")
        a(f"v_mov_b32 v{P+10}, 0"); a(f"v_mov_b32 v{P+11}, 0"); a(f"v_mov_b32 v{P+12}, 0x3f803f80")
        self.mstore([f"buffer_store_dwordx4 {vr(P,4)}, v{vL16}, {sr(WS,4)}, s{XA} offen",
                     f"buffer_store_dwordx4 {vr(P+4,4)}, v{vL16}, {sr(WS,4)}, s{XA} offen offset:1024",
                     f"buffer_store_dwordx2 {vr(P+8,2)}, v{vL16}, {sr(WS,4)}, s{XS} offen"], force)
        for i in range(10):
            a(f"v_dot2_f32_bf16 v{P+10}, v{P+i}, v{P+12}, v{P+10}")
            a(f"v_dot2_f32_bf16 v{P+11}, v{P+i}, v{P+i}, v{P+11}")
        a("s_nop 2")
        self.swap_add([P+10, P+11], P+14, 16); self.swap_add([P+10, P+11], P+14, 32)
        a("s_mov_b64 exec, 0xffff")
        self.mstore([f"buffer_store_dwordx2 {vr(P+10,2)}, v{vL16}, {sr(WS,4)}, s{STO} offen"], force)
        a("s_mov_b64 exec, -1")
        if before_flag: before_flag()
        self.flag(f"s{FXO}", sval, force)

    def exchange(self, AC, BR, slot):
        a = self.a
        a(f"s_mul_i32 s{T}, s{WV}, 5120"); a(f"s_add_u32 s{T}, s{T}, {slot*SL}"); a(f"v_add_u32 v{t0}, s{T}, v{vL16}")
        a(f"s_xor_b32 s{T}, s{WV}, 2"); a(f"s_mul_i32 s{T}, s{T}, 5120"); a(f"s_add_u32 s{T}, s{T}, {slot*SL}"); a(f"v_add_u32 v{t1}, s{T}, v{vL16}")
        a("s_barrier")
        for nb in range(5): a(f"ds_write_b128 v{t0}, {vr(AC+20+4*nb,4)} offset:{1024*nb}")
        a("s_waitcnt lgkmcnt(0)"); a("s_barrier")
        for nb in range(5): a(f"ds_read_b128 {vr(BR+4*nb,4)}, v{t1} offset:{1024*nb}")
        for nb in range(5):
            a(f"s_waitcnt lgkmcnt({4-nb})")
            for i in (0, 2): a(f"v_pk_add_f32 {vr(RES+4*nb+i,2)}, {vr(AC+4*nb+i,2)}, {vr(BR+4*nb+i,2)}")

    def entry(self):
        a = self.p
        a(".p2align 8"); a(f"{NAME}_kernel:")
        a("s_cmp_ge_u32 s2, 256"); a("s_cbranch_scc1 L_end")
        srds = [("ws", WS), ("x", XIN), ("wqkv", WQ), ("dbg", DBG), ("wo", WO), ("w1", W1), ("w2", W2), ("b1", B1), ("b2", B2), ("out", OUT)]
        for n, s in srds: a(f"s_load_dwordx2 {sr(s,2)}, s[0:1], {KA[n]}")
        for n, s in srds:
            a(f"s_mov_b32 s{s+2}, {hx(SZ[n])}"); a(f"s_mov_b32 s{s+3}, 0x00020000")
        a(f"v_lshrrev_b32 v{t0}, 6, v0"); a(f"v_and_b32 v{vL}, 63, v0"); a(f"v_readfirstlane_b32 s{WV}, v{t0}")
        a(f"v_lshlrev_b32 v{vL16}, 4, v{vL}"); a(f"v_and_b32 v{vJ}, 15, v{vL}"); a(f"v_lshrrev_b32 v{vG}, 4, v{vL}")
        if OPT["stamp"]:
            a("v_mov_b32 v254, 0"); a("v_mov_b32 v255, 0")
        a(f"s_and_b32 s{G}, s2, 7"); a(f"s_lshr_b32 s{IDX}, s2, 3")
        a(f"s_mov_b32 s{FAST}, 0"); a(f"s_mov_b32 s{BUD}, 0x80000"); a(f"s_mov_b32 s{LAY}, 0")
        a(f"s_and_b32 s{NT}, s{IDX}, 7"); a(f"s_and_b32 s{ODD}, s{IDX}, 1")
        a(f"s_and_b32 s{WM}, s{WV}, 1"); a(f"s_bfe_u32 s{WK}, s{WV}, 0x10001"); a(f"s_and_b32 s{HW}, s{WV}, 3")
        a(f"s_mov_b32 s{VMK}, 0x000fffff"); a(f"s_mov_b32 s{VMK+1}, 0x000fffff")
        a(f"s_lshl_b32 s{FB}, s{G}, 13"); a(f"s_add_u32 s{FB}, s{FB}, {hx(FLG)}")
        a(f"s_mul_i32 s{T}, s{NT}, 160"); a(f"s_lshl_b32 s{T+1}, s{ODD}, 5"); a(f"s_add_u32 s{COL}, s{T}, s{T+1}")
        for i in range(1, 4): a(f"s_add_u32 s{COL+i}, s{COL}, {32*i}")
        a(f"s_add_u32 s{COL+4}, s{T}, 128"); a(f"s_cmp_eq_u32 s{ODD}, 1"); a(f"s_cmov_b32 s{COL+4}, s{T}")
        a(f"s_lshr_b32 s{T}, s{IDX}, 3"); a(f"s_lshl_b32 s{T}, s{T}, 1"); a(f"s_add_u32 s{T}, s{T}, s{WM}")
        a(f"s_lshl_b32 s{FXO}, s{T}, 8"); a(f"s_add_u32 s{FXO}, s{FXO}, s{FB}")
        a(f"s_lshl_b32 s{T+1}, s{NT}, 1"); a(f"s_add_u32 s{T+1}, s{T+1}, s{WK}"); a(f"s_lshl_b32 s{T+1}, s{T+1}, 2"); a(f"s_add_u32 s{FXO}, s{FXO}, s{T+1}")
        a(f"s_lshl_b32 s{RBO}, s{G}, 3"); a(f"s_add_u32 s{RBO}, s{RBO}, s{T}"); a(f"s_lshl_b32 s{RBO}, s{RBO}, 1"); a(f"s_add_u32 s{RBO}, s{RBO}, s{WK}")
        a(f"s_lshr_b32 s{T}, s{NT}, 1"); a(f"s_mul_i32 s{T+1}, s{T}, 5120"); a(f"s_mul_i32 s{T+2}, s{RBO}, 20480"); a(f"s_add_u32 s{T+1}, s{T+1}, s{T+2}")
        a(f"s_mul_i32 s{XA}, s{ODD}, 3072"); a(f"s_add_u32 s{XA}, s{XA}, s{T+1}")
        a(f"s_lshl_b32 s{XS}, s{ODD}, 3"); a(f"s_add_u32 s{XS}, s{XS}, s{T+1}"); a(f"s_add_u32 s{XS}, s{XS}, 2048")
        a(f"s_lshl_b32 s{STO}, s{RBO}, 10"); a(f"s_lshl_b32 s{T}, s{T}, 8"); a(f"s_add_u32 s{STO}, s{STO}, s{T}")
        a(f"s_lshl_b32 s{T}, s{ODD}, 3"); a(f"s_add_u32 s{STO}, s{STO}, s{T}"); a(f"s_add_u32 s{STO}, s{STO}, {hx(STAT)}")
        a("s_waitcnt lgkmcnt(0)")
        self.stamp(0)
        a(f"s_cmp_ge_u32 s{WV}, 4"); a("s_cbranch_scc1 L_pre_h")
        P = PB
        a(f"s_or_b32 s{T+5}, s{WV}, s{IDX}")
        a(f"s_cmp_eq_u32 s{T+5}, 0"); a("s_cbranch_scc0 L_pre_c1")
        for i in range(4): a(f"v_mov_b32 v{P+12+i}, 0")
        for i in range(4): a(f"buffer_store_dwordx4 {vr(P+12,4)}, v{vL16}, {sr(WS,4)}, s{FB} offen offset:{1024*i} sc1")
        a("L_pre_c1:")
        a(f"v_mul_u32_u24 v{t0}, 1280, v{vJ}"); a(f"v_lshl_add_u32 v{t0}, v{vG}, 3, v{t0}")
        a(f"s_mul_i32 s{T}, s{RBO}, 20480"); a(f"v_add_u32 v{t0}, s{T}, v{t0}")
        for i in range(5): a(f"buffer_load_dwordx2 {vr(P+2*i,2)}, v{t0}, {sr(XIN,4)}, s{COL+i} offen")
        a(f"s_getreg_b32 s{T}, hwreg(HW_REG_XCC_ID)"); a(f"s_and_b32 s{T}, s{T}, 15")
        a(f"v_mov_b32 v{t1}, s{T}"); a(f"v_mov_b32 v{t2}, 0")
        a(f"s_lshl_b32 s{T}, s{IDX}, 2"); a(f"s_add_u32 s{T}, s{T}, s{FB}"); a(f"s_add_u32 s{T}, s{T}, 4096")
        a("s_mov_b64 exec, 1")
        a(f"buffer_store_dword v{t1}, v{t2}, {sr(WS,4)}, s{T} offen sc1")
        a(f"s_cmp_eq_u32 s{T+5}, 0"); a("s_cbranch_scc0 L_pre_c2")
        a(f"v_mov_b32 v{t0}, 1"); a(f"s_lshl_b32 s{T}, s{G}, 2")
        a("s_waitcnt vmcnt(6)")
        a(f"buffer_store_dword v{t0}, v{t2}, {sr(DBG,4)}, s{T} offen sc1")
        a("L_pre_c2:")
        a("s_mov_b64 exec, -1")
        a("s_waitcnt vmcnt(1)")
        self.stamp(21)
        for i in range(10):
            a(f"v_lshlrev_b32 v{RES+2*i}, 16, v{P+i}"); a(f"v_and_b32 v{RES+2*i+1}, 0xffff0000, v{P+i}")
        def boot():
            a(f"v_and_b32 v{t2}, 7, v{vL}"); a(f"v_lshlrev_b32 v{t2}, 2, v{t2}")
            self.poll(DBG, t2, "0", "1")
            self.stamp(22)
        self.xstore("1", P + 12, "sc1", before_flag=boot)
        a("s_branch L_qkv0")
        a("L_pre_h:")
        a(f"s_cmp_eq_u32 s{WV}, 7"); a("s_cbranch_scc0 L_pre_h2")
        a(f"s_getpc_b64 {sr(T,2)}")
        a("L_pc:")
        a(f"s_lshl_b32 s{T+2}, s{IDX}, 13"); a(f"s_cmp_lt_u32 s{T+2}, L_last-L_pc"); a("s_cbranch_scc0 L_pre_h2")
        a(f"v_lshlrev_b32 v{t0}, 7, v{vL}"); a(f"v_add_u32 v{t0}, s{T+2}, v{t0}"); a(f"v_min_u32 v{t0}, L_last-L_pc, v{t0}")
        a(f"global_load_dword v{P}, v{t0}, {sr(T,2)}")
        a("L_pre_h2:")
        D = PB + 8
        self.dma_addr(D, 5, "wq")
        a(f"s_mul_i32 s{DS}, s{HW}, {32*3840}"); a(f"s_mul_i32 s{T}, s{IDX}, 40"); a(f"s_and_b32 s{T}, s{T}, -16"); a(f"s_add_u32 s{DS}, s{DS}, s{T}")
        a(f"s_mul_i32 s{T+8}, s{HW}, 5120")
        for c in range(5):
            for i in range(5):
                a.extend(self.dma(D+i, WQ, f"s{DS}", f"s{T+8}", c*SL + 1024*i))
                if OPT.get("ht0"): a(f"s_waitcnt vmcnt({OPT['ht0']})")
            a(f"s_add_u32 s{DS}, s{DS}, {128*3840}")
        boot()

    def qkv(self):
        a = self.p
        RD = OPT.get("rd_q", 4)
        RA = PB
        ST = PB + 4
        RS = PB + 12
        TX = PB + 20
        RT = PB + 28
        AD = PB + 36
        TM = PB + 42
        WX = PB + 48
        BR = PB + 64
        AC = PB + 80
        AR = PB + 112
        RP = 224
        QP = 240
        AQ, AK, A4, AV, AVS, ARB = AD, AD+1, AD+2, AD+3, AD+4, AD+5
        def setup():
            a(f"s_lshl_b32 s{T}, s{G}, 3"); a(f"s_add_u32 s{T}, s{T}, s{WV}")
            a(f"s_mul_i32 s{A0}, s{T}, 40960"); a(f"s_add_u32 s{A1}, s{A0}, 20480")
            a(f"s_lshl_b32 s{T+1}, s{T}, 11"); a(f"s_add_u32 s{T+1}, s{T+1}, {hx(STAT)}")
            a(f"s_lshl_b32 s{T+2}, s{WV}, 8"); a(f"s_add_u32 s{T+2}, s{T+2}, s{FB}")
            a(f"v_lshlrev_b32 v{t2}, 2, v{vJ}")
        def first_loads(vm):
            for ls in self.a_loads(0, RD, AR): a.extend(ls); vm.issue(("A", 0))
            for rb in range(2):
                a(f"buffer_load_dwordx4 {vr(ST+4*rb,4)}, v{vL16}, {sr(WS,4)}, s{T+1} offen offset:{1024*rb} sc1"); vm.issue("st")
            for gs in range(1, RD - 1):
                for ls in self.a_loads(gs, RD, AR): a.extend(ls); vm.issue(("A", gs))
        def prep():
            self.ln_stats(ST, RS, TX, TM)
            a(f"v_lshlrev_b32 v{t0}, 4, v{vG}")
            for rb in range(2):
                for i in range(4): a(f"ds_bpermute_b32 v{RT+4*rb+i}, v{t0}, v{RS+rb} offset:{4*i}")
            cq = hx(f2u(20**-0.5 * math.log2(math.e)))
            for rb in range(2): a(f"v_mul_f32 v{RS+2+rb}, {cq}, v{RS+rb}")
            for rb in range(2): a(f"v_cndmask_b32 v{RS+4+rb}, v{RS+rb}, v{RS+2+rb}, vcc")
            for i in range(12): a(f"v_mov_b32 v{RP+i}, v{RS+(i>>1)}")
            for nb in range(4):
                x = WX + 4*nb
                a(f"v_cvt_pk_bf16_f32 v{x}, v{CSQ+nb}, v{CSQ+nb}"); a(f"v_and_b32 v{t1}, 0xffff0000, v{x}"); a(f"v_sub_f32 v{t1}, v{CSQ+nb}, v{t1}")
                a(f"v_and_b32 v{x+1}, 0xffff, v{x}"); a(f"v_cvt_pk_bf16_f32 v{x}, v{CSQ+nb}, v{t1}")
                a(f"v_mov_b64 {vr(x+2,2)}, 0")
            a(f"s_mul_i32 s{T}, s{WV}, 1280"); a(f"s_add_u32 s{T}, s{T}, {6*SL}")
            a(f"s_mul_i32 s{T+1}, s{WV}, 2560"); a(f"s_add_u32 s{T+1}, s{T+1}, {7*SL}")
            for nb in range(4):
                for rb in range(2):
                    d = vr(AC + 4*(4*rb + nb), 4); w, x = vr(WX+4*nb, 4), vr(TX+4*rb, 4)
                    p, q = (x, w) if nb == 2 else (w, x)
                    a(f"v_mfma_f32_16x16x32_bf16 {d}, {p}, {q}, {d}")
            a(f"v_lshlrev_b32 v{t0}, 3, v{vJ}"); a(f"v_lshl_add_u32 v{t1}, v{vG}, 8, v{t0}")
            a(f"v_add_u32 v{AQ}, s{T}, v{t1}"); a(f"v_add_u32 v{AK}, s{T+1}, v{t1}")
            a(f"v_add_u32 v{t1}, s{T}, v{t0}"); a(f"v_add_u32 v{t2}, s{T+1}, v{t0}"); a(f"v_cndmask_b32 v{A4}, v{t2}, v{t1}, vcc")
            a(f"v_lshrrev_b32 v{t1}, 1, v{vG}"); a(f"v_mul_u32_u24 v{t1}, 320, v{t1}"); a(f"v_lshl_add_u32 v{t1}, v{vJ}, 4, v{t1}")
            a(f"v_and_b32 v{t2}, 1, v{vG}"); a(f"v_lshl_add_u32 v{t1}, v{t2}, 3, v{t1}"); a(f"v_add_u32 v{AV}, s{T+1}, v{t1}")
            a(f"v_lshrrev_b32 v{t1}, 3, v{vJ}"); a(f"v_mul_u32_u24 v{t1}, 320, v{t1}"); a(f"v_and_b32 v{t2}, 7, v{vJ}")
            a(f"v_lshl_add_u32 v{t1}, v{t2}, 1, v{t1}"); a(f"v_add_u32 v{AVS}, s{T+1}, v{t1}")
            a(f"v_add_u32 v{ARB}, s{T+1}, v{vL16}")
            a(f"s_mul_i32 s{KVS}, s{IDX}, 163840"); a(f"s_mul_i32 s{T}, s{LAY}, {hx(0x500000)}"); a(f"s_add_u32 s{KVS}, s{KVS}, s{T}")
            a(f"s_mul_i32 s{T}, s{WV}, 2560"); a(f"s_add_u32 s{KVS}, s{KVS}, s{T}"); a(f"s_add_u32 s{KVS}, s{KVS}, {hx(KVF(0))}")
            a(f"s_mul_i32 s{T}, s{G}, {SL}"); a(f"s_add_u32 s{T}, s{T}, s{KVS}")
        a("L_qkv0:")
        self.stamp(1)
        a(f"v_lshrrev_b32 v{t0}, 2, v{vL}"); a(f"v_mul_u32_u24 v{t0}, 160, v{t0}"); a(f"v_lshl_add_u32 v{t0}, s{ODD}, 3, v{t0}")
        a(f"v_and_b32 v{t1}, 3, v{vL}"); a(f"v_lshl_add_u32 v{RA}, v{t1}, 3, v{t0}")
        a(f"v_min_u32 v{t1}, 2, v{t1}"); a(f"v_mul_u32_u24 v{t1}, 48, v{t1}"); a(f"v_add3_u32 v{RA+1}, v{t0}, v{t1}, 32")
        a(f"s_mul_i32 s{T}, s{WV}, 5120")
        a(f"v_add_u32 v{RA+2}, s{T}, v{RA}"); a(f"v_add_u32 v{RA+3}, s{T}, v{RA+1}")
        a(f"v_mov_b32 v{TM}, 0x3f803f80")
        for nb in range(4): a(f"v_mov_b32 v{CSQ+nb}, 0")
        for u in range(2):
            a(f"s_mul_i32 s{T}, s{G}, 10")
            if u == 0: a(f"s_add_u32 s{T}, s{T}, s{WV}")
            else: a(f"s_add_u32 s{T}, s{T}, s{WM}"); a(f"s_add_u32 s{T}, s{T}, 8")
            a(f"s_and_b32 s{T+1}, s{T}, 3"); a(f"s_lshr_b32 s{T}, s{T}, 2"); a(f"s_mul_i32 s{T}, s{T}, 5120")
            a(f"s_mul_i32 s{T+2}, s{T+1}, 48"); a(f"s_cmp_eq_u32 s{T+1}, 3"); a("s_cselect_b64 vcc, -1, 0"); a(f"s_cselect_b32 s{T+2}, 0, s{T+2}")
            a(f"s_add_u32 s{T}, s{T}, s{T+2}")
            a(f"v_cndmask_b32 v{TM+1+u}, v{RA}, v{RA+1}, vcc"); a(f"v_add_u32 v{TM+1+u}, s{T}, v{TM+1+u}")
        a("s_barrier")
        for u in range(2):
            a(f"ds_read_b64_tr_b16 {vr(QP+4*u,2)}, v{TM+1+u}"); a(f"ds_read_b64_tr_b16 {vr(QP+4*u+2,2)}, v{TM+1+u} offset:2560")
        for r in range(3):
            if r == 2:
                a(f"s_cmp_ge_u32 s{WV}, 4"); a("s_cbranch_scc1 L_qkv_cs2")
                a(f"v_add_u32 v{RA+2}, {16*5120}, v{RA+2}"); a(f"v_add_u32 v{RA+3}, {16*5120}, v{RA+3}")
            for nb in range(4):
                v = RA + 2 + (1 if nb == 3 else 0); off = (8*5120 if r == 1 else 0) + (48*nb if nb < 3 else 0)
                a(f"ds_read_b64_tr_b16 {vr(BR+4*nb,2)}, v{v} offset:{off}"); a(f"ds_read_b64_tr_b16 {vr(BR+4*nb+2,2)}, v{v} offset:{off+2560}")
            a("s_waitcnt lgkmcnt(0)")
            for i in range(4):
                for nb in range(4): a(f"v_dot2_f32_bf16 v{CSQ+nb}, v{BR+4*nb+i}, v{TM}, v{CSQ+nb}")
        a("L_qkv_cs2:")
        a(f"s_lshl_b32 s{T}, s{WV}, 10"); a(f"s_add_u32 s{T}, s{T}, {5*SL}"); a(f"v_add_u32 v{t0}, s{T}, v{vL16}")
        a(f"ds_write_b128 v{t0}, {vr(CSQ,4)}")
        a(f"v_add_u32 v{RA+2}, 61440, v{RA}"); a(f"v_add_u32 v{RA+3}, 61440, v{RA+1}")
        setup()
        self.poll(WS, t2, f"s{T+2}", "1")
        self.stamp(2)
        vm = Cnt("vmcnt", 63)
        first_loads(vm)
        a(f"v_add_u32 v{t0}, {5*SL}, v{vL16}")
        a("s_waitcnt lgkmcnt(0)"); a("s_barrier")
        for w in range(8): a(f"ds_read_b128 {vr(AC+4*w,4)}, v{t0} offset:{1024*w}")
        a("s_waitcnt lgkmcnt(0)")
        for w in (4, 2, 1):
            for u in range(w):
                for i in (0, 2): a(f"v_pk_add_f32 {vr(AC+4*u+i,2)}, {vr(AC+4*u+i,2)}, {vr(AC+4*(u+w)+i,2)}")
        for nb in range(4): a(f"v_mov_b32 v{CSQ+nb}, v{AC+nb}")
        cs = [CSQ+nb for nb in range(4)]
        self.swap_add(cs, AC+4, 16); self.swap_add(cs, AC+4, 32)
        def rdaddr(gs, nb):
            hi = 2 if gs >= 12 else 0
            return RA + hi + (1 if nb == 3 else 0), (gs % 12) * 5120 + (48*nb if nb < 3 else 0)
        pl = self.capture(prep)
        self.gemm(20, 4, RD, AR, BR, AC, rdaddr, 2560, vm, std=(2,), extra={1: pl}, xper=2, wgrp=2)
        a("s_branch L_qkv_epi")
        a("L_qkv1:")
        self.stamp(1)
        a(f"v_add_u32 v{RA}, 65536, v{vL16}")
        setup()
        self.poll(WS, t2, f"s{T+2}", "3")
        self.stamp(2)
        vm = Cnt("vmcnt", 63)
        first_loads(vm)
        a("s_barrier")
        self.gemm(20, 4, RD, AR, BR, AC, lambda gs, nb: (vL16 if gs < 16 else RA, (gs % 16)*4096 + nb*1024), None, vm, std=(2,), extra={1: pl}, xper=2, wgrp=2)
        a("L_qkv_epi:")
        self.stamp(3)
        PK = WX
        a("s_waitcnt lgkmcnt(0)"); a("s_nop 2")
        for nb in (1, 2, 3, 0):
            for rb in range(2):
                r = AC + 4*(4*rb + nb); p = PK + 2*(4*rb + nb)
                for i in (0, 2):
                    if nb == 2: a(f"v_pk_mul_f32 {vr(r+i,2)}, {vr(r+i,2)}, {vr(RT+4*rb+i,2)}")
                    else:
                        m = RP + {0: 4, 1: 0, 3: 8}[nb] + 2*rb
                        a(f"v_pk_mul_f32 {vr(r+i,2)}, {vr(r+i,2)}, {vr(m,2)}")
                if rb == 0: continue
                for r2 in range(2):
                    r = AC + 4*(4*r2 + nb); p = PK + 2*(4*r2 + nb)
                    a(f"v_cvt_pk_bf16_f32 v{p}, v{r}, v{r+1}"); a(f"v_cvt_pk_bf16_f32 v{p+1}, v{r+2}, v{r+3}")
                    if nb == 1: a(f"ds_write_b64 v{AK}, {vr(p,2)} offset:{128*r2}")
                    if nb == 2: a(f"ds_write_b64 v{AV}, {vr(p,2)} offset:{1280+640*r2}")
            if nb == 3:
                a("s_mov_b32 exec_hi, 0")
                for rb in range(2): a(f"ds_write_b64 v{A4}, {vr(PK+2*(4*rb+3),2)} offset:{1024+128*rb}")
                a("s_bfm_b64 exec, 16, 32")
                for rb in range(2):
                    for i in range(4):
                        a(f"ds_write_b16{'_d16_hi' if i & 1 else ''} v{AVS}, v{PK+2*(4*rb+3)+(i>>1)} offset:{1280+640*rb+256+16*i}")
                a("s_mov_b64 exec, -1")
                a("s_waitcnt lgkmcnt(0)")
                for i in range(3): a(f"ds_read_b128 {vr(AR+4*i,4)}, v{ARB} offset:{1024*i}")
        for i in range(3):
            a(f"s_waitcnt lgkmcnt({2-i})")
            if i == 2: a("s_mov_b32 exec_hi, 0")
            a(f"buffer_store_dwordx4 {vr(AR+4*i,4)}, v{vL16}, {sr(WS,4)}, s{T} offen offset:{1024*i} sc1")
        a("s_mov_b64 exec, -1")
        for r2 in range(2): a(f"ds_write_b64 v{AQ}, {vr(PK+8*r2,2)} offset:{128*r2}")
        self.QP = QP

    def attention(self):
        a = self.p
        vM, vH, IDXR = PB, PB+1, PB+2
        AK, AK4, AV = PB+3, PB+4, PB+5
        OA = PB+6
        PA = PB+9
        Q = [PB+12, PB+16]; Q4 = PB+20; K4 = PB+22
        KK = [PB+24, PB+28]
        V = PB+32
        O = [PB+48, PB+64]
        S = [PB+80, PB+112]
        NM = PB+144
        PF = PB+176
        QP = self.QP
        EXM, EXF = f"s_mov_b64 exec, {sr(VMK,2)}", "s_mov_b64 exec, -1"
        HALF = "s_mov_b32 exec_hi, 0"
        kvm = OPT.get("kvmod", "sc1")
        base = [0]
        def off(n):
            o = (n // 4) * SL + (n % 4) * 2560 - base[0]
            assert 0 <= o < 65536 - 2560
            return o
        def rdK4(t): return f"ds_read_b64 {vr(K4,2)}, v{AK4} offset:{off(t)}"
        def rdK(t): return f"ds_read2st64_b64 {vr(KK[t&1],4)}, v{AK} offset0:{off(t)//512} offset1:{off(t)//512+1}"
        def rdV(t, i): return f"ds_read_b128 {vr(V+8*(t&1)+4*i,4)}, v{AV} offset:{off(t)+1280+640*i}"
        def m2b(t, c="0"): return f"v_mfma_f32_32x32x4_2b_bf16 {vr(S[t&1],32)}, {vr(K4,2)}, {vr(Q4,2)}, {c}"
        def mk(t, q): return f"v_mfma_f32_32x32x16_bf16 {vr(S[t&1]+16*q,16)}, {vr(KK[t&1],4)}, {vr(Q[q],4)}, {vr(S[t&1]+16*q,16)}"
        def pv(t, i): return f"v_smfmac_f32_32x32x32_bf16 {vr(O[i>>1],16)}, {vr(V+8*(t&1)+4*(i&1),4)}, {vr(S[t&1]+8*i,8)}, v{IDXR}"
        def set_addr(b):
            a(f"s_lshr_b32 s{T}, s{WV}, 2"); a(f"s_mul_i32 s{T}, s{T}, 10240"); a(f"s_add_u32 s{T}, s{T}, {b}")
            a(f"v_lshl_add_u32 v{AK4}, v{vM}, 3, s{T}"); a(f"v_lshl_add_u32 v{AK}, v{vH}, 8, v{AK4}"); a(f"v_add_u32 v{AK4}, 1024, v{AK4}")
            a(f"v_mul_u32_u24 v{t0}, 20, v{vH}"); a(f"v_add_u32 v{t0}, v{t0}, v{vM}"); a(f"v_lshl_add_u32 v{AV}, v{t0}, 4, s{T}")
        def fill(mid=[]):
            mid = list(mid)
            a(rdK4(0)); a(rdK(0)); a(rdK(1)); a(EXM); a(rdV(0, 0)); a(rdV(0, 1)); a(EXF)
            a("s_waitcnt lgkmcnt(4)"); a(m2b(0)); a(rdK4(1))
            a.extend(mid[:16])
            if len(mid) < 16: a(f"s_nop {15 - len(mid)}")
            a("s_waitcnt lgkmcnt(4)")
            a(mk(0, 0)); a(mk(0, 1))
            a.extend(mid[16:])
            if len(mid[16:]) < 11: a(f"s_nop {10 - len(mid[16:])}")
        def step(t, last, first=False, hook={}):
            nqk, nrd = t + 1 <= last, t + 2 <= last
            ins = {1: ([] if first else [pv(t-1, 3)]) + ["s_waitcnt lgkmcnt(0)"],
                   5: ([m2b(t+1)] if nqk else []) + ([rdK4(t+2)] if nrd else []),
                   13: [pv(t, 0)] + ([EXM, rdV(t+1, 0), rdV(t+1, 1), EXF] if nqk else []),
                   17: [pv(t, 1)] + ([rdK(t+2)] if nrd else []),
                   21: [mk(t+1, 0)] if nqk else [], 25: [pv(t, 2)], 29: [mk(t+1, 1)] if nqk else []}
            for e in range(32):
                a(f"v_exp_f32 v{S[t&1]+e}, v{S[t&1]+e}")
                for l in ins.get(e, []): a(l)
                for h in hook.get(e, []): h()
        prio = lambda p: (lambda: a(f"s_setprio {p}") if OPT.get("prio", 1) else None)
        WOFF = T + 10
        def kv_dma1(sblk, slot, i):
            a(f"s_add_u32 m0, s{WOFF}, {slot*SL}")
            a(HALF if i == 2 else "s_nop 0")
            a(f"buffer_load_dwordx4 v{vL16}, {sr(WS,4)}, s{sblk} offen offset:{1024*i} {kvm} lds")
            if i == 2: a(EXF)
        def kv_src(sd, b):
            a(f"s_add_u32 s{sd}, s{G}, {b}"); a(f"s_and_b32 s{sd}, s{sd}, 7"); a(f"s_mul_i32 s{sd}, s{sd}, {SL}"); a(f"s_add_u32 s{sd}, s{sd}, s{KVS}")

        a(f"v_and_b32 v{vM}, 31, v{vL}"); a(f"v_lshrrev_b32 v{vH}, 5, v{vL}")
        a(f"s_lshl_b32 s{T+4}, s{HW}, 1"); a(f"s_lshr_b32 s{T}, s{WV}, 2"); a(f"s_add_u32 s{T+4}, s{T+4}, s{T}")
        set_addr(7*SL)
        a(f"s_mul_i32 s{T}, s{T+4}, 1280"); a(f"s_add_u32 s{T}, s{T}, {6*SL}")
        a(f"s_xor_b32 s{T+1}, s{T+4}, 1"); a(f"s_mul_i32 s{T+1}, s{T+1}, 1280"); a(f"s_add_u32 s{T+1}, s{T+1}, {6*SL}")
        a(f"v_lshlrev_b32 v{t0}, 3, v{vM}"); a(f"v_lshl_add_u32 v{t1}, v{vH}, 8, v{t0}")
        a(f"v_add_u32 v{t2}, s{T}, v{t1}"); a(f"v_add_u32 v{t3}, s{T+1}, v{t1}")
        a(f"s_sub_u32 s{T+1}, s{T+1}, s{T}"); a(f"v_mul_lo_u32 v{t1}, v{vH}, s{T+1}"); a(f"v_add3_u32 v{t1}, v{t0}, v{t1}, s{T}")
        a(f"v_cmp_eq_u32 vcc, 20, v{vM}"); a(f"v_mov_b32 v{t0}, 0x3f803f80"); a(f"v_mov_b32 v{IDXR}, 0xdddddddd")
        a("s_waitcnt lgkmcnt(0)")
        a(f"v_cndmask_b32 v{V}, 0, v{t0}, vcc"); a(f"v_cndmask_b32 v{V+1}, 0, v{t0}, vcc")
        for i in range(2, 16, 2): a(f"v_mov_b64 {vr(V+i,2)}, {vr(V,2)}")
        a("s_barrier")
        self.stamp(4)
        prio(3)()
        a(f"ds_read_b64 {vr(Q4,2)}, v{t1} offset:1024")
        a(f"ds_read2st64_b64 {vr(Q[0],4)}, v{t2} offset0:0 offset1:1"); a(f"ds_read2st64_b64 {vr(Q[1],4)}, v{t3} offset0:0 offset1:1")
        def misc0():
            for q in range(2):
                for i in range(0, 16, 2): a(f"v_mov_b64 {vr(O[q]+i,2)}, 0")
            a(f"s_mov_b32 s{PASS}, 0"); a(f"s_mul_i32 s{WOFF}, s{WV}, 2560")
            a(f"s_and_b32 s{T}, s{IDX}, 7"); a(f"s_lshl_b32 s{T}, s{T}, 13"); a(f"s_lshr_b32 s{T+1}, s{IDX}, 3"); a(f"s_lshl_b32 s{T+1}, s{T+1}, 8"); a(f"s_add_u32 s{T}, s{T}, s{T+1}")
            a(f"s_lshl_b32 s{T+1}, s{WV}, 5"); a(f"s_add_u32 s{T}, s{T}, s{T+1}"); a(f"s_add_u32 s{T+5}, s{T}, {hx(FLG+2048)}")
            a(f"s_lshl_b32 s{T+7}, s{G}, 2"); a(f"s_add_u32 s{T+7}, s{T+7}, s{T+5}"); a(f"s_add_u32 s{T+6}, s{LAY}, 1")
        fill(self.capture(misc0))
        def misc1():
            a(f"s_lshl_b32 s{T}, s{G}, 3"); a(f"s_add_u32 s{T}, s{T}, s{T+4}"); a(f"s_mul_i32 s{OS}, s{T}, 40960"); a(f"s_add_u32 s{OS}, s{OS}, {hx(OF)}")
            a(f"s_lshl_b32 s{FO}, s{T+4}, 8"); a(f"s_add_u32 s{FO}, s{FO}, s{FB}"); a(f"s_lshl_b32 s{T}, s{IDX}, 2"); a(f"s_add_u32 s{FO}, s{FO}, s{T}"); a(f"s_add_u32 s{FO}, s{FO}, 128")
            a(f"s_mul_i32 s{T}, s{IDX}, 5")
            a(f"v_lshrrev_b32 v{t0}, 4, v{vM}"); a(f"v_mul_u32_u24 v{t0}, 20480, v{t0}"); a(f"v_lshl_add_u32 v{t0}, v{vJ}, 4, v{t0}")
            for jj in range(3):
                a(f"v_add_u32 v{t1}, s{T}, v{vH}")
                a(f"v_lshrrev_b32 v{t2}, 3, v{t1}"); a(f"v_lshl_add_u32 v{OA+jj}, v{t2}, 10, v{t0}")
                a(f"v_and_b32 v{t2}, 3, v{t1}"); a(f"v_lshl_add_u32 v{OA+jj}, v{t2}, 8, v{OA+jj}")
                a(f"v_bfe_u32 v{t2}, v{t1}, 2, 1"); a(f"v_lshl_add_u32 v{OA+jj}, v{t2}, 3, v{OA+jj}")
                a(f"s_add_u32 s{T}, s{T}, 2")
        def kvflag():
            self.flag(f"s{T+7}", f"s{T+6}", "sc1")
            self.stamp(5)
            a(f"v_and_b32 v{PA}, 7, v{vL}"); a(f"v_lshlrev_b32 v{PA}, 2, v{PA}")
        def kvpoll():
            a(f"buffer_load_dword v{t3}, v{PA}, {sr(WS,4)}, s{T+5} offen sc1")
        vm0, vm1 = Cnt("vmcnt", 63), Cnt("vmcnt", 63)
        def both(tag): vm0.issue(tag); vm1.issue(tag)
        def kvgo():
            self.poll(WS, PA, f"s{T+5}", f"s{T+6}", issued=True)
            self.stamp(6)
            for b in (1, 2):
                kv_src(T+7, b)
                for i in range(3): kv_dma1(T+7, b-1, i); both(("kv", b))
            a(f"v_lshlrev_b32 v{t2}, 2, v{vM}"); a(f"s_add_u32 s{T}, s{FB}, 4096")
            a(f"buffer_load_dword v{PF}, v{t2}, {sr(WS,4)}, s{T} offen sc1"); both("xcc")
        hk = {t: {} for t in range(4)}
        def at(h, pos, f): h[pos // 32].setdefault(pos % 32, []).append(f)
        pf, pp, pg = OPT.get("p1", (63, 84, 95))
        at(hk, 31, prio(2)); at(hk, pf, kvflag); at(hk, pf, prio(1)); at(hk, pp, kvpoll); at(hk, pg, kvgo); at(hk, pg, prio(0))
        for t in range(4): step(t, 3, first=(t == 0), hook=hk[t])
        set_addr(0)
        a(pv(3, 3))
        misc1()
        a(vm1.wait(("kv", 1))); vm0.wait(("kv", 1)); a("s_barrier")
        self.stamp(7)
        prio(3)()
        fill()
        NSTEP = 28
        hk = {t: {} for t in range(NSTEP)}
        def l0only(fn):
            def g():
                l = self.lab("l0")
                a(f"s_cmp_lg_u32 s{LAY}, 0"); a(f"s_cbranch_scc1 {l}")
                fn()
                a(f"{l}:")
            return g
        for b in range(3, 8):
            for i in range(3):
                def f(b=b, i=i):
                    if i == 0: kv_src(T+7, b)
                    kv_dma1(T+7, b-1, i); both(("kv", b))
                at(hk, ((b-3)*4 + i)*32 + 9, f)
        PS = T + 11
        def pack_load():
            a(f"v_lshrrev_b32 v{t0}, 1, v{vL}"); a(f"v_and_b32 v{t1}, 1, v{vL}"); a(f"v_lshlrev_b32 v{t1}, 4, v{t1}")
            a(f"v_mul_u32_u24 v{PA+1}, 3072, v{t0}"); a(f"v_add_u32 v{PA+1}, v{PA+1}, v{t1}")
            a(f"v_mul_u32_u24 v{PA+2}, 1280, v{t0}"); a(f"v_add_u32 v{PA+2}, v{PA+2}, v{t1}")
            a(f"s_lshl_b32 s{T}, s{G}, 1"); a(f"s_lshr_b32 s{T+1}, s{IDX}, 4"); a(f"s_add_u32 s{T}, s{T}, s{T+1}"); a(f"s_lshl_b32 s{T}, s{T}, 3"); a(f"s_add_u32 s{T}, s{T}, s{WV}")
            a(f"s_min_u32 s{T}, s{T}, 119"); a(f"s_and_b32 s{T+3}, s{IDX}, 15")
            a(f"s_mul_i32 s{PS}, s{T+3}, 120"); a(f"s_add_u32 s{PS}, s{PS}, s{T}"); a(f"s_lshl_b32 s{PS}, s{PS}, 10"); a(f"s_add_u32 s{PS}, s{PS}, {hx(PK1)}")
            a(f"s_mul_i32 s{T+1}, s{T}, 171"); a(f"s_lshr_b32 s{T+1}, s{T+1}, 10")
            a(f"s_mul_i32 s{T+2}, s{T+1}, {32*3072 - 6*32}"); a(f"s_lshl_b32 s{T}, s{T}, 5"); a(f"s_add_u32 s{T}, s{T}, s{T+2}")
            a(f"s_mul_i32 s{T+3}, s{T+3}, 192"); a(f"s_add_u32 s{T}, s{T}, s{T+3}")
            a(f"s_lshl_b32 s{T+8}, s{WV}, 11"); a(f"s_add_u32 m0, s{T+8}, {5*SL}"); a("s_nop 0")
            a(f"buffer_load_dwordx4 v{PA+1}, {sr(W1,4)}, s{T} offen lds"); vm0.issue("pk")
            a(f"s_lshl_b32 s{T+9}, s{G}, 2"); a(f"s_lshr_b32 s{T+1}, s{IDX}, 3"); a(f"s_add_u32 s{T+9}, s{T+9}, s{T+1}"); a(f"s_lshl_b32 s{T+9}, s{T+9}, 3"); a(f"s_add_u32 s{T+9}, s{T+9}, s{WV}")
            for u, (srd, nfr, half, dst) in enumerate(((W2, 240, 24, PK2), (WO, 100, 10, PKO))):
                a(f"s_min_u32 s{T}, s{T+9}, {nfr-1}")
                a(f"s_mul_i32 s{PS+1+u}, s{NT}, {nfr}"); a(f"s_add_u32 s{PS+1+u}, s{PS+1+u}, s{T}"); a(f"s_lshl_b32 s{PS+1+u}, s{PS+1+u}, 10"); a(f"s_add_u32 s{PS+1+u}, s{PS+1+u}, {hx(dst)}")
                a(f"s_mul_i32 s{T+1}, s{T}, 205"); a(f"s_lshr_b32 s{T+1}, s{T+1}, 10")
                a(f"s_mul_i32 s{T+2}, s{T+1}, 5"); a(f"s_sub_u32 s{T}, s{T}, s{T+2}")
                a(f"s_add_u32 s{T}, s{T}, s{ODD}"); a(f"s_cmp_eq_u32 s{T}, 5"); a(f"s_cselect_b32 s{T}, 0, s{T}"); a(f"s_lshl_b32 s{T}, s{T}, 5")
                a(f"s_lshr_b32 s{T+2}, s{T+1}, 2"); a(f"s_lshl_b32 s{T+2}, s{T+2}, 1"); a(f"s_and_b32 s{T+3}, s{T+1}, 1"); a(f"s_add_u32 s{T+2}, s{T+2}, s{T+3}")
                a(f"s_bfe_u32 s{T+3}, s{T+1}, 0x10001"); a(f"s_mul_i32 s{T+3}, s{T+3}, {half}"); a(f"s_add_u32 s{T+2}, s{T+2}, s{T+3}")
                a(f"s_mul_i32 s{T+2}, s{T+2}, {32*1280}"); a(f"s_add_u32 s{T}, s{T}, s{T+2}"); a(f"s_mul_i32 s{T+2}, s{NT}, 160"); a(f"s_add_u32 s{T}, s{T}, s{T+2}")
                if u == 0: a(f"s_add_u32 m0, s{T+8}, {5*SL+1024}")
                else: a(f"s_lshl_b32 s{T+2}, s{WV}, 10"); a(f"s_add_u32 m0, s{T+2}, {6*SL+10240}")
                a("s_nop 0")
                a(f"buffer_load_dwordx4 v{PA+2}, {sr(srd,4)}, s{T} offen lds"); vm0.issue("pk")
            for u in range(2):
                a(f"s_mul_i32 s{T}, s{G}, 10")
                if u == 0: a(f"s_add_u32 s{T}, s{T}, s{WV}")
                else: a(f"s_add_u32 s{T}, s{T}, s{WM}"); a(f"s_add_u32 s{T}, s{T}, 8")
                a(f"s_mul_i32 s{T+1}, s{IDX}, 80"); a(f"s_add_u32 s{T}, s{T}, s{T+1}"); a(f"s_lshl_b32 s{T}, s{T}, 10"); a(f"s_add_u32 s{T}, s{T}, {hx(PKQ)}")
                a(f"buffer_store_dwordx4 {vr(QP+4*u,4)}, v{vL16}, {sr(WS,4)}, s{T} offen sc1"); vm0.issue("pks")
        def pack_read():
            a(f"s_lshl_b32 s{T}, s{WV}, 11"); a(f"s_add_u32 s{T}, s{T}, {5*SL}"); a(f"v_lshl_add_u32 v{t0}, v{vL}, 3, s{T}")
            a(f"s_lshl_b32 s{T}, s{WV}, 10"); a(f"s_add_u32 s{T}, s{T}, {6*SL+10240}"); a(f"v_lshl_add_u32 v{t1}, v{vL}, 3, s{T}")
            a(vm0.wait("pk"))
            for u in range(3):
                v, o = (t0, 1024*u) if u < 2 else (t1, 0)
                a(f"ds_read_b64_tr_b16 {vr(NM+4*u,2)}, v{v} offset:{o}"); a(f"ds_read_b64_tr_b16 {vr(NM+4*u+2,2)}, v{v} offset:{o+512}")
        def pack_store():
            for u in range(3):
                a(f"buffer_store_dwordx4 {vr(NM+4*u,4)}, v{vL16}, {sr(WS,4)}, s{PS+u} offen sc1"); vm0.issue("pks")
        def pack_done(): a(vm0.wait("pks"))
        def pack_flag():
            a(f"s_lshl_b32 s{PS}, s{NT}, 13"); a(f"s_add_u32 s{PS}, s{PS}, {hx(FLG+3072)}")
            a(f"s_lshr_b32 s{T}, s{T+9}, 3"); a(f"s_lshl_b32 s{T}, s{T}, 2"); a(f"s_add_u32 s{T}, s{T}, s{PS}")
            a(f"v_mov_b32 v{t0}, 1"); a(f"v_mov_b32 v{t1}, 0"); a(f"v_lshlrev_b32 v{PA}, 2, v{vM}")
            a(f"s_cmp_eq_u32 s{WV}, 0"); a("s_cselect_b64 exec, 1, 0")
            l = self.lab("pkf")
            a(f"s_cbranch_execz {l}")
            a(f"buffer_store_dword v{t0}, v{t1}, {sr(WS,4)}, s{T} offen sc1")
            a(f"{l}:"); a(EXF)
        def pack_wait():
            self.poll(WS, PA, f"s{PS}", "1")
        at(hk, 0*32 + 20, l0only(pack_load))
        at(hk, 5*32 + 20, l0only(pack_read)); at(hk, 6*32 + 3, l0only(pack_store))
        at(hk, 9*32 + 31, l0only(pack_done)); at(hk, 10*32 + 3, l0only(pack_flag))
        at(hk, 15*32 + 25, l0only(pack_wait))
        def mode():
            a(f"v_readfirstlane_b32 s{T}, v{PF}"); a("s_nop 1"); a(f"v_cmp_ne_u32 vcc, s{T}, v{PF}")
            a("s_cmp_eq_u64 vcc, 0"); a(f"s_cselect_b32 s{FAST}, {0 if OPT['forceslow'] else 1}, 0")
        at(hk, 6*32 + 25, mode)
        def wo_piece(n, lds, half=False):
            def f():
                if n == 0:
                    a(f"s_mul_i32 s{DS}, s{NT}, {100*1024}"); a(f"s_add_u32 s{DS}, s{DS}, {hx(PKO)}"); a(f"s_lshl_b32 s{T+8}, s{WV}, 10")
                r = WOFF if lds >= 4*SL else T+8
                a(f"s_add_u32 m0, s{r}, {lds}"); a(f"s_add_u32 s{T}, m0, s{DS}")
                if half: a(HALF)
                a(f"buffer_load_dwordx4 v{vL16}, {sr(WS,4)}, s{T} offen sc1 lds"); both("wo")
                if half: a(EXF)
            return f
        wpos = [16*32+25, 17*32+25, 18*32+25, 19*32+9, 19*32+25, 20*32+9, 20*32+25, 21*32+9, 21*32+25, 22*32+9, 22*32+25, 23*32+9, 23*32+25]
        for n in range(10): at(hk, wpos[n], wo_piece(n, n*8192))
        for i in range(3): at(hk, wpos[10+i], wo_piece(10+i, 4*SL + 1024*i, i == 2))
        def touch(sbase_fn, nlines, k):
            def f():
                sbase_fn()
                a(f"v_min_u32 v{t0}, {nlines-1}, v{vL}"); a(f"v_lshlrev_b32 v{t0}, 7, v{t0}")
                a(f"buffer_load_dword v{PF+1+(k&1)}, v{t0}, {sr(WS,4)}, s{T} offen sc1"); both("pf")
            return f
        def share(buf, per_wave_lines, part, nparts):
            def f():
                a(f"s_lshl_b32 s{T}, s2, 5"); a(f"s_and_b32 s{T}, s{T}, 0xe0"); a(f"s_add_u32 s{T}, s{T}, s{IDX}"); a(f"s_lshl_b32 s{T}, s{T}, 3"); a(f"s_add_u32 s{T}, s{T}, s{WV}")
                a(f"s_mul_i32 s{T}, s{T}, {per_wave_lines*128}"); a(f"s_add_u32 s{T}, s{T}, {hx(buf + part*per_wave_lines//nparts*128)}")
            return f
        def tile(buf, mask, sh, tbytes, part):
            def f():
                a(f"s_and_b32 s{T}, s{IDX}, {mask}"); a(f"s_mul_i32 s{T}, s{T}, {tbytes}")
                a(f"s_lshr_b32 s{T+1}, s{IDX}, {sh}"); a(f"s_lshl_b32 s{T+1}, s{T+1}, 3"); a(f"s_add_u32 s{T+1}, s{T+1}, s{WV}"); a(f"s_mul_i32 s{T+1}, s{T+1}, {30*128}")
                a(f"s_add_u32 s{T}, s{T}, s{T+1}"); a(f"s_add_u32 s{T}, s{T}, {hx(buf + part*tbytes//2)}")
            return f
        tl = dict(o=(share(OF, 10, 0, 1), 10), x=(share(XF, 10, 0, 1), 10), h=(share(HF, 24, 0, 1), 24),
                  a=(tile(PK1, 15, 4, 120*1024, 0), 30), b=(tile(PK1, 15, 4, 120*1024, 1), 30),
                  c=(tile(PK2, 7, 3, 240*1024, 0), 30), d=(tile(PK2, 7, 3, 240*1024, 1), 30))
        for k, (name, st) in enumerate(OPT.get("touch", dict(o=19, x=20, h=21)).items()):
            at(hk, st*32 + 17, touch(tl[name][0], tl[name][1], k))
        for t in range(NSTEP):
            if t % 4 == 2:
                b = t // 4 + 2
                if b <= 7:
                    a(vm1.wait(("kv", b))); vm0.wait(("kv", b))
                a("s_barrier"); prio(3)()
                if t + 3 < NSTEP:
                    at(hk, (t+1)*32 + 31, prio(2)); at(hk, (t+2)*32 + 31, prio(1)); at(hk, (t+3)*32 + OPT.get("plast", 20), prio(0))
            if t == 0:
                at(hk, 31, prio(1)); at(hk, 32 + OPT.get("plast", 20), prio(0))
            if t == NSTEP - 1:
                at(hk, t*32 + 0, prio(1)); at(hk, t*32 + OPT.get("plast", 20), prio(0))
            if t % 8 == 0 and t > 0:
                for r in (AK, AK4, AV): a(f"v_add_u32 v{r}, {2*SL}, v{r}")
                base[0] += 2*SL
            step(t, NSTEP - 1, first=(t == 0), hook=hk[t])
        a("s_nop 1")
        a(pv(NSTEP - 1, 3))
        base[0] = 0
        self.stamp(8)
        a("L_att_fin:")
        a(f"s_lshr_b32 s{T}, s{WV}, 2"); a(f"s_mul_i32 s{T+1}, s{T}, {2*SL}"); a(f"s_mul_i32 s{T+2}, s{HW}, 3072")
        a(f"s_add_u32 s{T+1}, s{T+1}, s{T+2}"); a(f"s_add_u32 s{T+1}, s{T+1}, {5*SL}"); a(f"v_add_u32 v{t0}, s{T+1}, v{vL16}")
        a(f"s_xor_b32 s{T}, s{T}, 1"); a(f"s_mul_i32 s{T+1}, s{T}, {2*SL}")
        a(f"s_add_u32 s{T+1}, s{T+1}, s{T+2}"); a(f"s_add_u32 s{T+1}, s{T+1}, {5*SL}"); a(f"v_add_u32 v{t1}, s{T+1}, v{vL16}")
        a("s_waitcnt vmcnt(0) lgkmcnt(0)")
        for i in range(3): a(f"ds_write_b128 v{t0}, {vr(O[1]+4*i,4)} offset:{1024*i}")
        a("s_waitcnt lgkmcnt(0)"); a("s_barrier")
        for i in range(3): a(f"ds_read_b128 {vr(S[0]+4*i,4)}, v{t1} offset:{1024*i}")
        a(f"v_cmp_eq_u32 vcc, 0, v{vH}")
        a(f"s_lshl_b32 s{T}, s{WV}, 2"); a(f"s_add_u32 s{T}, s{T}, {8*SL-32}"); a(f"v_mov_b32 v{t2}, s{T}")
        a("s_waitcnt lgkmcnt(0)")
        for i in range(0, 12, 2): a(f"v_pk_add_f32 {vr(O[0]+i,2)}, {vr(O[0]+i,2)}, {vr(S[0]+i,2)}")
        a(f"v_mov_b32 v{t0}, v{O[0]+8}"); a(f"v_mov_b32 v{t1}, v{O[0]+8}"); a("s_nop 1")
        a(f"v_permlane32_swap_b32 v{t1}, v{t0}")
        a("s_nop 0")
        a(f"v_rcp_f32 v{t1}, v{t0}")
        a(f"v_cndmask_b32 v{O[0]+8}, 0, v{O[0]+8}, vcc")
        for i in range(12): a(f"v_mul_f32 v{O[0]+i}, v{O[0]+i}, v{t1}")
        for i in range(6): a(f"v_cvt_pk_bf16_f32 v{S[0]+i}, v{O[0]+2*i}, v{O[0]+2*i+1}")
        self.mstore([f"buffer_store_dwordx2 {vr(S[0],2)}, v{OA}, {sr(WS,4)}, s{OS} offen",
                     f"buffer_store_dwordx2 {vr(S[0]+2,2)}, v{OA+1}, {sr(WS,4)}, s{OS} offen",
                     "s_mov_b32 exec_hi, 0",
                     f"buffer_store_dwordx2 {vr(S[0]+4,2)}, v{OA+2}, {sr(WS,4)}, s{OS} offen",
                     EXF])
        a(f"v_mul_f32 v{t1}, 0, v{O[0]}")
        for i in range(1, 12): a(f"v_fma_f32 v{t1}, v{O[0]+i}, 0, v{t1}")
        a(f"s_mov_b32 s{T}, {hx(f2u(2.0**-24))}"); a(f"s_mov_b32 s{T+1}, {hx(f2u(2.0**48))}")
        a(f"v_cmp_nle_f32 vcc, s{T}, v{t0}"); a(f"v_cmp_nge_f32 {sr(T+2,2)}, s{T+1}, v{t0}"); a(f"v_cmp_u_f32 {sr(T+4,2)}, v{t1}, v{t1}")
        a(f"s_or_b64 vcc, vcc, {sr(T+2,2)}"); a(f"s_or_b64 vcc, vcc, {sr(T+4,2)}")
        a("s_cmp_lg_u64 vcc, 0"); a(f"s_cselect_b32 s{T}, 1, 0"); a(f"v_mov_b32 v{t1}, s{T}")
        a(f"ds_write_b32 v{t2}, v{t1}")
        a(f"v_and_b32 v{t2}, 7, v{vL}"); a(f"v_lshlrev_b32 v{t2}, 2, v{t2}"); a(f"v_add_u32 v{t2}, {8*SL-32}, v{t2}")
        a("s_waitcnt lgkmcnt(0)"); a("s_barrier")
        a(f"ds_read_b32 v{t1}, v{t2}")
        a(f"s_add_u32 s{T+6}, s{LAY}, 1")
        a("s_waitcnt lgkmcnt(0)")
        a(f"v_cmp_lt_u32 vcc, s{PASS}, v{t1}")
        if not OPT.get("x_nofb"): a("s_cbranch_vccnz L_att_redo")
        self.flag(f"s{FO}", f"s{T+6}")
        self.stamp(9)
        main, self.a = self.a, self.tail
        a("L_att_redo:")
        for i in range(32): a(f"v_mov_b32 v{NM+i}, 0")
        a(f"v_mov_b32 v{PF}, 0xff800000"); a(f"v_mov_b32 v{PF+1}, 0xff800000")
        for q in range(2):
            for i in range(16): a(f"v_mov_b32 v{O[q]+i}, 0")
        a("L_fb_pass:")
        a(f"s_mov_b32 s{IT}, 0")
        a("L_fb_blk:")
        a("s_waitcnt vmcnt(0) lgkmcnt(0)"); a("s_barrier")
        a(f"s_mul_i32 s{T+7}, s{IT}, {SL}"); a(f"s_add_u32 s{T+7}, s{T+7}, s{KVS}")
        for i in range(3): kv_dma1(T+7, 6, i)
        set_addr(6*SL)
        a(f"s_mov_b32 s{T+9}, 0")
        a("s_waitcnt vmcnt(0)"); a("s_barrier")
        a("L_fb_step:")
        a(rdK4(0)); a(rdK(0)); a(EXM); a(rdV(0, 0)); a(rdV(0, 1)); a(EXF)
        a("s_waitcnt lgkmcnt(0)")
        a(m2b(0, vr(NM, 32))); a("s_nop 15"); a("s_nop 1"); a(mk(0, 0)); a(mk(0, 1)); a("s_nop 11")
        a(f"s_cmp_eq_u32 s{PASS}, 0"); a("s_cbranch_scc0 L_fb_sum")
        for q in range(2):
            for i in range(0, 16, 2): a(f"v_max3_f32 v{PF+q}, v{PF+q}, v{S[0]+16*q+i}, v{S[0]+16*q+i+1}")
        a("s_branch L_fb_next")
        a("L_fb_sum:")
        for e in range(32): a(f"v_exp_f32 v{S[0]+e}, v{S[0]+e}")
        a("s_nop 1")
        for i in range(4): a(pv(0, i))
        a("L_fb_next:")
        for r in (AK, AK4, AV): a(f"v_add_u32 v{r}, 2560, v{r}")
        a(f"s_add_u32 s{T+9}, s{T+9}, 1"); a(f"s_cmp_lt_u32 s{T+9}, 4"); a("s_cbranch_scc1 L_fb_step")
        a(f"s_add_u32 s{IT}, s{IT}, 1"); a(f"s_cmp_lt_u32 s{IT}, 8"); a("s_cbranch_scc1 L_fb_blk")
        a("s_nop 15")
        a(f"s_cmp_eq_u32 s{PASS}, 0"); a("s_cbranch_scc0 L_att_fin")
        self.swap_add([PF, PF+1], t0, 32, "v_max_f32")
        a(f"s_lshl_b32 s{T}, s{WV}, 9"); a(f"s_add_u32 s{T}, s{T}, {5*SL}"); a(f"v_lshl_add_u32 v{t0}, v{vL}, 3, s{T}")
        a(f"s_xor_b32 s{T}, s{WV}, 4"); a(f"s_lshl_b32 s{T}, s{T}, 9"); a(f"s_add_u32 s{T}, s{T}, {5*SL}"); a(f"v_lshl_add_u32 v{t1}, v{vL}, 3, s{T}")
        a(f"ds_write_b64 v{t0}, {vr(PF,2)}")
        a("s_waitcnt lgkmcnt(0)"); a("s_barrier")
        a(f"ds_read_b64 {vr(t2,2)}, v{t1}")
        a("s_waitcnt lgkmcnt(0)")
        a(f"v_max_f32 v{PF}, v{PF}, v{t3}"); a(f"v_max_f32 v{PF+1}, v{PF+1}, v{t2}")
        for i in range(32): a(f"v_sub_f32 v{NM+i}, 0, v{PF+(i>>4)}")
        a(f"s_mov_b32 s{PASS}, 1"); a("s_branch L_fb_pass")
        self.a = main

    def chain(self):
        a = self.p
        a(f"s_cmp_ge_u32 s{WV}, 4"); a("s_cbranch_scc1 L_ch_h")
        RA = PB
        BI = PB + 4
        BR = PB + 16
        AC = PB + 40
        P  = PB + 88
        ST = PB + 112; RS = PB + 120; TX = PB + 124; TM = PB + 132
        AR = PB + 140
        F2S = [0, 5, 6, 7, 1, 2, 3, 4, 0, 5, 6, 7]
        def rd80():
            a(f"s_mul_i32 s{T}, s{WK}, 10240"); a(f"v_add_u32 v{RA}, s{T}, v{vL16}")
            a(f"v_add_u32 v{RA+1}, {3*SL}, v{RA}"); a(f"v_add_u32 v{RA+2}, {6*SL}, v{RA}")
        def rdaddr80(slots):
            def f(gs, nb):
                sl = slots[gs // 2]
                return RA + sl // 3, (sl % 3) * SL + (gs & 1) * 5120 + nb * 1024
            return f
        def abase(buf, ks):
            a(f"s_mul_i32 s{T}, s{WK}, {ks//2*1024}"); a(f"s_add_u32 s{T}, s{T}, {hx(buf)}")
            a(f"s_mul_i32 s{A0}, s{RBO}, {ks*1024}"); a(f"s_add_u32 s{A0}, s{A0}, s{T}")
            a(f"s_xor_b32 s{A1}, s{RBO}, 1"); a(f"s_mul_i32 s{A1}, s{A1}, {ks*1024}"); a(f"s_add_u32 s{A1}, s{A1}, s{T}")
        RD = OPT.get("rd_o", 6)
        a("s_setprio 1")
        rd80(); abase(OF, 20)
        for i in range(0, 20, 2): a(f"v_mov_b64 {vr(AC+i,2)}, {vr(RES+i,2)}")
        a(f"s_and_b32 s{T+2}, s{FXO}, -256"); a(f"s_lshl_b32 s{T}, s{WK}, 6"); a(f"s_add_u32 s{T+2}, s{T+2}, s{T}"); a(f"s_add_u32 s{T+2}, s{T+2}, 128")
        a(f"s_add_u32 s{T+3}, s{LAY}, 1")
        a(f"v_lshlrev_b32 v{t2}, 2, v{vJ}")
        self.poll(WS, t2, f"s{T+2}", f"s{T+3}")
        self.stamp(10)
        vm = Cnt("vmcnt", 63)
        for gs in range(RD - 1):
            for ls in self.a_loads(gs, RD, AR): a.extend(ls); vm.issue(("A", gs))
        self.gemm(10, 5, RD, AR, BR, AC, rdaddr80([0, 1, 2, 3, 4]), None, vm, czero=(1,), wgrp=OPT.get("wg5", 2))
        self.stamp(11)
        self.exchange(AC, BR, 0)
        a(f"s_lshl_b32 s{T+3}, s{LAY}, 1"); a(f"s_add_u32 s{T+3}, s{T+3}, 2")
        self.xstore(f"s{T+3}", P)
        self.stamp(12)
        RD = OPT.get("rd_1", 5)
        a(f"s_lshr_b32 s{T}, s{IDX}, 4"); a(f"s_lshl_b32 s{T}, s{T}, 2"); a(f"s_add_u32 s{T}, s{T}, s{WV}")
        a(f"s_lshl_b32 s{T+2}, s{T}, 8"); a(f"s_add_u32 s{T+2}, s{T+2}, s{FB}")
        a(f"s_and_b32 s{T+4}, s{IDX}, 15")
        a(f"s_lshl_b32 s{FO}, s{T+4}, 2"); a(f"s_add_u32 s{FO}, s{FO}, s{T+2}"); a(f"s_add_u32 s{FO}, s{FO}, 64")
        a(f"s_lshl_b32 s{T+1}, s{G}, 3"); a(f"s_add_u32 s{T}, s{T}, s{T+1}")
        a(f"s_mul_i32 s{A0}, s{T}, 40960"); a(f"s_add_u32 s{A1}, s{A0}, 20480")
        a(f"s_lshl_b32 s{T+1}, s{T}, 11"); a(f"s_add_u32 s{T+1}, s{T+1}, {hx(STAT)}")
        a(f"s_mul_i32 s{OS}, s{T}, {2*49152}"); a(f"s_mul_i32 s{T}, s{T+4}, 3072"); a(f"s_add_u32 s{OS}, s{OS}, s{T}"); a(f"s_add_u32 s{OS}, s{OS}, {hx(HF)}")
        a(f"s_mul_i32 s{T+4}, s{T+4}, 192")
        a(f"v_add_u32 v{RA}, {5*SL}, v{vL16}"); a(f"v_add_u32 v{RA+1}, {2*SL}, v{vL16}")
        a(f"v_lshlrev_b32 v{t2}, 2, v{vJ}")
        a(f"s_cmp_lg_u32 s{LAY}, 0"); a("s_cbranch_scc1 L_c_nocs")
        a("s_barrier")
        a("L_c_nocs:")
        self.poll(WS, t2, f"s{T+2}", f"s{T+3}")
        self.stamp(13)
        vm = Cnt("vmcnt", 63)
        for gs in range(RD - 1):
            for ls in self.a_loads(gs, RD, AR): a.extend(ls); vm.issue(("A", gs))
        for rb in range(2):
            a(f"buffer_load_dwordx4 {vr(ST+4*rb,4)}, v{vL16}, {sr(WS,4)}, s{T+1} offen offset:{1024*rb} sc1"); vm.issue("st")
        a(f"v_lshlrev_b32 v{t1}, 1, v{vJ}")
        for nb in range(6):
            a(f"buffer_load_ushort v{BI+nb}, v{t1}, {sr(B1,4)}, s{T+4} offen offset:{32*nb}"); vm.issue("st")
        a("s_barrier")
        self.stamp(14)
        a(f"s_cmp_lg_u32 s{LAY}, 0"); a("s_cbranch_scc1 L_f1_cs")
        a(f"s_mov_b32 s{T}, {SL}"); a(f"v_lshl_add_u32 v{t2}, v{vJ}, 4, s{T}")
        for nb in range(6): a(f"ds_read_b128 {vr(P+4*nb,4)}, v{t2} offset:{256*nb}")
        a("s_waitcnt lgkmcnt(0)")
        for nb in range(6):
            c = P + 4*nb
            a(f"v_pk_add_f32 {vr(c,2)}, {vr(c,2)}, {vr(c+2,2)}")
        for nb in range(6): a(f"v_add_f32 v{CS1+nb}, v{P+4*nb}, v{P+4*nb+1}")
        a("L_f1_cs:")
        WX = P
        c1 = 2*math.sqrt(2/math.pi)*math.log2(math.e); c2 = c1*0.044715
        def prep():
            a("WAITV:st")
            self.ln_stats(ST, RS, TX, TM)
            for nb in range(6):
                c = CS1 + nb; x = WX + 4*nb
                a(f"v_cvt_pk_bf16_f32 v{x}, v{c}, v{c}"); a(f"v_and_b32 v{TM}, 0xffff0000, v{x}"); a(f"v_sub_f32 v{TM}, v{c}, v{TM}")
                a(f"v_and_b32 v{x+1}, 0xffff, v{x}"); a(f"v_cvt_pk_bf16_f32 v{x}, v{c}, v{TM}")
                a(f"v_lshl_or_b32 v{x+1}, v{BI+nb}, 16, v{x+1}"); a(f"v_mov_b32 v{x+2}, v{BI+nb}"); a(f"v_mov_b32 v{x+3}, 0")
            a(f"s_mov_b32 s{T}, {hx(f2u(-c2))}"); a(f"s_mov_b32 s{T+1}, s{T}"); a(f"s_add_u32 s{T+2}, s{OS}, 49152")
            a(f"v_mov_b32 v{ST}, {hx(f2u(-c1))}"); a(f"v_mov_b32 v{ST+1}, v{ST}"); a(f"v_mov_b32 v{ST+2}, 1.0"); a(f"v_mov_b32 v{ST+3}, 1.0")
            a(f"v_mov_b32 v{RS+2}, v{RS+1}"); a(f"v_mov_b32 v{RS+3}, v{RS+1}"); a(f"v_mov_b32 v{RS+1}, v{RS}")
            for nb in range(6):
                for rb in range(2):
                    d = vr(AC + 4*(6*rb + nb), 4)
                    a(f"v_mfma_f32_16x16x32_bf16 {d}, {vr(WX+4*nb,4)}, {vr(TX+4*rb,4)}, {d}")
        self.gemm(20, 6, RD, AR, BR, AC, lambda gs, nb: (RA + gs // 10, (gs % 10)*6144 + nb*1024), None, vm,
                  bars={10: ["s_barrier"]}, extra={RD: self.capture(prep)}, wgrp=OPT.get("wg6", 2))
        a("s_barrier")
        self.stamp(15)
        TM = AR
        for kp in range(3):
            for rb in range(2):
                r = AC + 4*(6*rb + 2*kp); p = BR + 4*(2*kp + rb)
                for i in range(4): a(f"v_pk_mul_f32 {vr(r+2*i,2)}, {vr(r+2*i,2)}, {vr(RS+2*rb,2)}")
                for i in range(4): a(f"v_pk_mul_f32 {vr(TM+2*i,2)}, {vr(r+2*i,2)}, {vr(r+2*i,2)}")
                for i in range(4): a(f"v_pk_fma_f32 {vr(TM+2*i,2)}, {vr(TM+2*i,2)}, {sr(T,2)}, {vr(ST,2)}")
                for i in range(4): a(f"v_pk_mul_f32 {vr(TM+2*i,2)}, {vr(TM+2*i,2)}, {vr(r+2*i,2)}")
                for i in range(8): a(f"v_exp_f32 v{TM+i}, v{TM+i}")
                for i in range(4): a(f"v_pk_add_f32 {vr(TM+2*i,2)}, {vr(TM+2*i,2)}, {vr(ST+2,2)}")
                for i in range(8): a(f"v_rcp_f32 v{TM+i}, v{TM+i}")
                for i in range(4): a(f"v_pk_mul_f32 {vr(r+2*i,2)}, {vr(r+2*i,2)}, {vr(TM+2*i,2)}")
                for i in range(4): a(f"v_cvt_pk_bf16_f32 v{p+i}, v{r+2*i}, v{r+2*i+1}")
                self.mstore([f"buffer_store_dwordx4 {vr(p,4)}, v{vL16}, {sr(WS,4)}, s{OS if rb == 0 else T+2} offen offset:{1024*kp}"])
        a(f"s_add_u32 s{T+3}, s{LAY}, 1")
        self.flag(f"s{FO}", f"s{T+3}")
        self.stamp(16)
        RD = OPT.get("rd_2", 6)
        rd80(); abase(HF, 48)
        a(f"v_lshlrev_b32 v{t1}, 3, v{vG}")
        for nb in range(5): a(f"buffer_load_dwordx2 {vr(BI+2*nb,2)}, v{t1}, {sr(B2,4)}, s{COL+nb} offen")
        a(f"s_and_b32 s{T+2}, s{FXO}, -256"); a(f"s_lshl_b32 s{T}, s{WK}, 5"); a(f"s_add_u32 s{T+2}, s{T+2}, s{T}"); a(f"s_add_u32 s{T+2}, s{T+2}, 64")
        a(f"v_and_b32 v{t2}, 7, v{vL}"); a(f"v_lshlrev_b32 v{t2}, 2, v{t2}")
        self.poll(WS, t2, f"s{T+2}", f"s{T+3}")
        self.stamp(17)
        vm = Cnt("vmcnt", 63)
        for gs in range(RD - 1):
            for ls in self.a_loads(gs, RD, AR): a.extend(ls); vm.issue(("A", gs))
        for i in range(10):
            a(f"v_lshlrev_b32 v{t0}, 16, v{BI+i}"); a(f"v_and_b32 v{t1}, 0xffff0000, v{BI+i}")
            a(f"v_pk_add_f32 {vr(AC+2*i,2)}, {vr(RES+2*i,2)}, {vr(t0,2)}")
        a("s_barrier")
        self.stamp(18)
        B_ = ["s_barrier"]
        self.gemm(24, 5, RD, AR, BR, AC, rdaddr80(F2S), None, vm, bars={4: B_, 8: B_, 15: B_, 19: B_}, czero=(1,), wgrp=OPT.get("wg5", 2))
        self.stamp(19)
        self.exchange(AC, BR, 5)
        a(f"s_cmp_lg_u32 s{LAY}, 0"); a("s_cbranch_scc1 L_out")
        self.xstore("3", P)
        a("s_setprio 0")
        self.stamp(20); self.stamp_dump()
        a(f"s_mov_b32 s{LAY}, 1"); a("s_branch L_qkv1")
        a("L_out:")
        a(f"v_mul_u32_u24 v{t0}, 1280, v{vJ}"); a(f"v_lshl_add_u32 v{t0}, v{vG}, 3, v{t0}")
        a(f"s_mul_i32 s{T}, s{RBO}, 20480"); a(f"v_add_u32 v{t0}, s{T}, v{t0}")
        for nb in range(5):
            a(f"v_cvt_pk_bf16_f32 v{P+2*nb}, v{RES+4*nb}, v{RES+4*nb+1}"); a(f"v_cvt_pk_bf16_f32 v{P+2*nb+1}, v{RES+4*nb+2}, v{RES+4*nb+3}")
            a(f"buffer_store_dwordx2 {vr(P+2*nb,2)}, v{t0}, {sr(OUT,4)}, s{COL+nb} offen")
        if OPT["stamp"]: a("s_waitcnt vmcnt(0)")
        self.stamp(20); self.stamp_dump()
        a("s_endpgm")

        a("L_ch_h:")
        HB = PB + 4
        HC = PB + 28
        HO = T + 8
        vm = Cnt("vmcnt", 63)
        HT = OPT.get("ht", 6)
        def lin(src, lds, tag):
            a(f"s_add_u32 m0, s{HO}, {lds}"); a(f"s_add_u32 s{T}, s{DS}, {src}")
            a(f"buffer_load_dwordx4 v{vL16}, {sr(WS,4)}, s{T} offen sc1 lds"); vm.issue(tag)
            if HT: a(f"s_waitcnt vmcnt({HT})")
        def tilebase(buf, sreg, nbytes):
            a(f"s_mul_i32 s{DS}, s{sreg}, {nbytes}"); a(f"s_add_u32 s{DS}, s{DS}, s{HO}"); a(f"s_add_u32 s{DS}, s{DS}, {hx(buf)}")
        def colsum(half):
            l = self.lab("cs")
            a(f"s_cmp_lg_u32 s{LAY}, 0"); a(f"s_cbranch_scc1 {l}")
            if half == 0:
                for nb in range(6): a(f"v_mov_b32 v{HC+nb}, 0")
                a(f"v_mov_b32 v{HC+6}, 0x3f803f80")
            a(f"s_mul_i32 s{T}, s{HW}, 6144"); a(f"s_add_u32 s{T}, s{T}, {(5*SL, 2*SL)[half]}"); a(f"v_add_u32 v{t0}, s{T}, v{vL16}")
            l2 = self.lab("cs")
            for r in range(3):
                if r == 2:
                    a(f"s_cmp_ge_u32 s{HW}, 2"); a(f"s_cbranch_scc1 {l2}")
                for nb in range(6): a(f"ds_read_b128 {vr(HB+4*nb,4)}, v{t0} offset:{r*4*6144 + nb*1024}")
                a("s_waitcnt lgkmcnt(0)")
                for i in range(4):
                    for nb in range(6): a(f"v_dot2_f32_bf16 v{HC+nb}, v{HB+4*nb+i}, v{HC+6}, v{HC+nb}")
            a(f"{l2}:")
            if half == 1:
                a("s_nop 2")
                cs = [HC+nb for nb in range(6)]
                self.swap_add(cs, HB, 16); self.swap_add(cs, HB, 32)
                a(f"s_lshl_b32 s{T}, s{HW}, 2"); a(f"s_add_u32 s{T}, s{T}, {SL}"); a(f"v_lshl_add_u32 v{t0}, v{vJ}, 4, s{T}")
                for nb in range(6): a(f"ds_write_b32 v{t0}, v{HC+nb} offset:{256*nb}")
                a("s_waitcnt lgkmcnt(0)")
            a(f"{l}:")
        a(f"s_lshl_b32 s{HO}, s{HW}, 10")
        a(f"s_and_b32 s{T+1}, s{IDX}, 15"); tilebase(PK1, T+1, 120*1024)
        for n in range(14): lin(n*4096, 5*SL + n*4096, "w1")
        a("s_barrier")
        a("s_barrier")
        lin(14*4096, 5*SL + 14*4096, "w1")
        for n in range(15): lin(61440 + n*4096, 2*SL + n*4096, "w1")
        a(vm.wait("w1"))
        a(f"s_cmp_lg_u32 s{LAY}, 0"); a("s_cbranch_scc1 L_h_nocs")
        a("s_barrier")
        a("L_h_nocs:")
        colsum(0); colsum(1)
        tilebase(PK2, NT, 240*1024)
        def w2it(it):
            for i in range(5): lin(it*SL + i*4096, F2S[it]*SL + i*4096, it)
        a("s_barrier")
        w2it(0)
        a("s_barrier")
        for it in (1, 2, 3): w2it(it)
        a("s_barrier")
        for it in (4, 5, 6, 7): w2it(it)
        a(vm.wait(7)); a("s_barrier")
        a("s_barrier")
        w2it(8); w2it(9)
        a("s_barrier")
        w2it(10); w2it(11)
        a(vm.wait(9)); a("s_barrier")
        a(vm.wait(11)); a("s_barrier")
        a(f"s_cmp_lg_u32 s{LAY}, 0"); a("s_cbranch_scc1 L_h_last")
        tilebase(PKQ, IDX, 80*1024)
        nq = OPT.get("nq", 6)
        for n in range(nq): lin(n*4096, n*4096, "q")
        a("s_barrier"); a("s_barrier")
        for n in range(nq, 20): lin(n*4096, n*4096, "q")
        self.stamp_dump()
        a(f"s_mov_b32 s{LAY}, 1"); a("s_branch L_qkv1")
        a("L_h_last:")
        a("s_barrier"); a("s_barrier")
        self.stamp_dump()
        a("L_end:")
        a("s_endpgm")

def build(**opt):
    OPT.update(opt)
    g = Gen()
    g.entry(); g.qkv(); g.attention(); g.chain()
    a = g.a
    a.lines += g.tail.lines
    a("L_last:"); a("s_endpgm")
    probs = check_hazards(a.lines)
    if probs:
        print("\n".join(probs), file=sys.stderr); raise SystemExit("hazards")
    hdr = open("cdna_kernels/" + NAME + ".s.ref").read().split("; Override launch")[0]
    s = hdr + "; @launch grid=(256,1,1) block=(512,1,1) lds=163840\n" + '.amdgcn_target "amdgcn-amd-amdhsa--gfx950"\n.text\n'
    s += f".globl {NAME}_kernel\n.type {NAME}_kernel,@function\n" + a.text()
    s += f""".section .rodata,"a"
.p2align 6
.amdhsa_kernel {NAME}_kernel
  .amdhsa_next_free_vgpr 256
  .amdhsa_next_free_sgpr 102
  .amdhsa_accum_offset 256
  .amdhsa_group_segment_fixed_size 0
  .amdhsa_kernarg_size 88
  .amdhsa_user_sgpr_count 2
  .amdhsa_user_sgpr_kernarg_segment_ptr 1
  .amdhsa_system_sgpr_workgroup_id_x 1
.end_amdhsa_kernel
"""
    return s

if __name__ == "__main__":
    out = sys.argv[1]
    opt = {}
    for x in sys.argv[2:]:
        k, v = x.split("=", 1); opt[k] = eval(v)
    open(out, "w").write(build(**opt))
```

```python
import sys, math, struct
from asmlib import *

NAME = "interleave_layers__softmax_full_mha__dense_activation_gelu__prompt"
OPT = dict(stamp=False, forceslow=False)

XF   = 0x0
HF   = 0x300000
XB   = 21504
HB_  = 50176
OF   = HF
KVF  = lambda l: 0xB00000 + l * 0x500000
FLG  = 0x1520000
PK1  = 0x1600000
PK2  = 0x1800000
PKO  = 0x1A00000
STAMPS = 0x4000000
WS_BYTES = 0x10000000
KA = dict(x=0, wqkv=8, wo=16, w1=32, b1=40, w2=48, b2=56, out=64, dbg=72, ws=80)
SZ = dict(x=2048*640*2, wqkv=640*1920*2, wo=640*640*2, w1=640*1536*2, b1=1536*2, w2=1536*640*2, b2=640*2, out=2048*640*2, ws=WS_BYTES, dbg=256)
SL = 20480

def f2u(x): return struct.unpack("<I", struct.pack("<f", x))[0]
def hx(x): return f"0x{x & 0xffffffff:x}"

class Cnt:
    def __init__(self, name, mx): self.q = []; self.name = name; self.mx = mx; self.done = 0
    def issue(self, tag):
        self.q.append(tag)
        assert self.name == "lgkmcnt" or len(self.q) - self.done <= self.mx, (self.name, "too many outstanding")
    def wait(self, *tags):
        last = max((i for i, t in enumerate(self.q) if t in tags), default=-1)
        assert last >= 0, tags
        if last < self.done: return ""
        n = min(len(self.q) - 1 - last, self.mx)
        self.done = len(self.q) - n
        return f"s_waitcnt {self.name}({n})"

LAY = 3
WS, WQ, WO, W1, W2, B1, B2, XIN, OUT, DBG = 4, 8, 12, 16, 20, 24, 28, 32, 36, 40
G, IDX, WV, FAST, BUD, NT, ODD, WM, WK, HW = range(44, 54)
COL = 54
XA, XS, STO, FXO, RBO = 59, 60, 61, 62, 63
VMK = 64
T = 66
FB = 80
A0, A1, DS, IT, KVS, PASS, OS, FO = 81, 82, 83, 84, 85, 86, 87, 88
vL, vL16, vJ, vG, t0, t1, t2, t3 = 0, 1, 2, 3, 4, 5, 6, 7
RES = 8
CSQ = 28
CS1 = 32
PB = 40
STH = 212

class Proxy:
    def __init__(self, g): self.g = g
    def __call__(self, s): self.g.a(s)
    def extend(self, ls): self.g.a.extend(ls)

class Gen:
    def __init__(self):
        self.a = Asm(); self.tail = Asm(); self.nlab = 0; self.p = Proxy(self)
    def lab(self, s):
        self.nlab += 1; return f"L{self.nlab}_{s}"
    def stamp(self, i):
        if not OPT["stamp"]: return
        a = self.a
        a("s_memrealtime s[96:97]"); a("s_memtime s[98:99]"); a("s_waitcnt lgkmcnt(0)")
        a(f"v_writelane_b32 v254, s96, {i}"); a(f"v_writelane_b32 v255, s98, {i}")
    def stamp_dump(self):
        if not OPT["stamp"]: return
        a = self.a
        a(f"s_lshl_b32 s96, s2, 3"); a(f"s_add_u32 s96, s96, s{WV}"); a("s_lshl_b32 s96, s96, 1"); a(f"s_add_u32 s96, s96, s{LAY}")
        a("s_lshl_b32 s96, s96, 9"); a(f"s_add_u32 s96, s96, {hx(STAMPS)}")
        a(f"v_lshlrev_b32 v253, 3, v{vL}")
        a(f"buffer_store_dwordx2 v[254:255], v253, {sr(WS,4)}, s96 offen")
    def mstore(self, lines, force=None):
        a = self.a
        sc = lambda l: l + " sc1" if l.startswith("buffer_store") else l
        if force == "sc1":
            for l in lines: a(sc(l))
            return
        ls, lb = self.lab("slow"), self.lab("back")
        a(f"s_cmp_eq_u32 s{FAST}, 0"); a(f"s_cbranch_scc1 {ls}")
        for l in lines: a(l)
        a(f"{lb}:")
        self.tail(f"{ls}:")
        for l in lines: self.tail(sc(l))
        self.tail(f"s_branch {lb}")
    def flag(self, soff, sval, force=None):
        a = self.a
        a(f"v_mov_b32 v{t0}, {sval}"); a(f"v_mov_b32 v{t1}, 0")
        a("s_waitcnt vmcnt(0)")
        a("s_mov_b64 exec, 1")
        self.mstore([f"buffer_store_dword v{t0}, v{t1}, {sr(WS,4)}, {soff} offen"], force)
        a("s_mov_b64 exec, -1")
    def poll(self, srd, vaddr, soff, starget, issued=False):
        a = self.a
        lp, ld, lc = self.lab("poll"), self.lab("seen"), self.lab("chk")
        if issued: a(f"s_branch {lc}")
        a(f"{lp}:")
        a(f"buffer_load_dword v{t3}, v{vaddr}, {sr(srd,4)}, {soff} offen sc1")
        a(f"{lc}:")
        a("s_waitcnt vmcnt(0)")
        a(f"v_cmp_gt_u32 vcc, {starget}, v{t3}")
        a(f"s_cbranch_vccz {ld}")
        a(f"s_sub_u32 s{BUD}, s{BUD}, 1"); a(f"s_cbranch_scc0 {lp}")
        a(f"s_mov_b32 s{BUD}, 0")
        a(f"{ld}:")
    def swap_add(self, vs, tmp, which, op="v_add_f32"):
        a = self.a
        for i, v in enumerate(vs): a(f"v_mov_b32 v{tmp+i}, v{v}")
        a("s_nop 1")
        for i, v in enumerate(vs): a(f"v_permlane{which}_swap_b32 v{v}, v{tmp+i}")
        if len(vs) < 2: a("s_nop 0")
        for i, v in enumerate(vs): a(f"{op} v{v}, v{v}, v{tmp+i}")

    def dma_addr(self, dst, n, kind):
        a = self.a
        upr, mul, sh = (12, 171, 11) if kind == "w1" else (10, 205, 11)
        ld = dict(wq=3840, w1=3072, w80=1280)[kind]
        for i in range(n):
            a(f"v_add_u32 v{t0}, {64*i}, v{vL}")
            a(f"v_mul_u32_u24 v{t1}, {mul}, v{t0}"); a(f"v_lshrrev_b32 v{t1}, {sh}, v{t1}")
            a(f"v_mul_u32_u24 v{t2}, {upr}, v{t1}"); a(f"v_sub_u32 v{t0}, v{t0}, v{t2}")
            a(f"v_mul_u32_u24 v{t1}, {ld}, v{t1}")
            if kind == "wq":
                a(f"v_min_u32 v{t0}, 8, v{t0}")
                a(f"v_mul_u32_u24 v{t2}, 11, v{t0}"); a(f"v_lshrrev_b32 v{t2}, 5, v{t2}"); a(f"v_min_u32 v{t2}, 2, v{t2}")
                a(f"v_mul_u32_u24 v{t2}, 1232, v{t2}"); a(f"v_add_u32 v{t1}, v{t1}, v{t2}")
            elif kind == "w80":
                a(f"v_lshl_add_u32 v{t0}, s{ODD}, 1, v{t0}")
                a(f"v_subrev_u32 v{t2}, 10, v{t0}"); a(f"v_min_u32 v{t0}, v{t0}, v{t2}")
            a(f"v_lshl_add_u32 v{dst+i}, v{t0}, 4, v{t1}")
    def dma(self, vaddr, srd, soff, m0base, m0imm, mods=""):
        return [f"s_add_u32 m0, {m0base}, {m0imm}", "s_nop 0", f"buffer_load_dwordx4 v{vaddr}, {sr(srd,4)}, {soff} offen {mods} lds".replace("  ", " ")]

    def stat_loads(self, ST, soff, vm):
        a = self.p
        a(f"v_lshrrev_b32 v{t1}, 1, v{vG}"); a(f"v_mul_u32_u24 v{t1}, {XB-1024}, v{t1}"); a(f"v_lshl_add_u32 v{t1}, v{vG}, 9, v{t1}"); a(f"v_lshl_add_u32 v{t1}, v{vJ}, 4, v{t1}")
        for u in range(2):
            a(f"buffer_load_dwordx4 {vr(ST+4*u,4)}, v{t1}, {sr(WS,4)}, {soff} offen offset:{256*u} sc1"); vm.issue("st")
    def stat_sum(self, ST, tmp):
        a = self.p
        for u in (2, 4, 6):
            for i in range(2): a(f"v_add_f32 v{ST+i}, v{ST+i}, v{ST+u+i}")
        self.swap_add([ST, ST+1], tmp, 16)
    def stat_math(self, ST, RS, TX, bias):
        a = self.p
        s, v, r, u = ST, ST+1, ST+2, ST+3
        x = ST + 4
        a(f"v_mul_f32 v{s}, {hx(f2u(-1.0/640))}, v{s}"); a(f"v_mul_f32 v{v}, {hx(f2u(1.0/640))}, v{v}")
        a(f"v_cmp_eq_u32 vcc, 0, v{vG}"); a(f"v_cmp_eq_u32 {sr(T+2,2)}, 2, v{vG}")
        a(f"v_fma_f32 v{v}, -v{s}, v{s}, v{v}")
        a(f"v_max_f32 v{v}, 0, v{v}"); a(f"v_add_f32 v{v}, {hx(f2u(1e-5))}, v{v}")
        a(f"v_rsq_f32 v{r}, v{v}")
        a(f"v_cvt_pk_bf16_f32 v{x}, v{s}, v{s}"); a(f"v_and_b32 v{u}, 0xffff0000, v{x}"); a(f"v_sub_f32 v{u}, v{s}, v{u}")
        a(f"v_mov_b32 v{RS}, v{r}"); a(f"v_mov_b32 v{RS+1}, v{r}")
        if bias:
            a(f"v_mul_f32 v{v}, v{v}, v{r}")
            a(f"v_cvt_pk_bf16_f32 v{x+1}, v{u}, v{v}"); a(f"v_and_b32 v{u}, 0xffff0000, v{x+1}"); a(f"v_sub_f32 v{u}, v{v}, v{u}")
            a(f"v_cvt_pk_bf16_f32 v{x+2}, v{u}, 0")
        else:
            a(f"v_cvt_pk_bf16_f32 v{x+1}, v{u}, 0"); a("s_nop 0")
        a(f"v_permlane32_swap_b32 v{RS}, v{RS+1}")
        for rb in range(2):
            m = "vcc" if rb == 0 else sr(T+2, 2)
            for i in range(3 if bias else 2): a(f"v_cndmask_b32 v{TX+4*rb+i}, 0, v{x+i}, {m}")
            a(f"v_mov_b32 v{TX+4*rb+3}, 0" if bias else f"v_mov_b64 {vr(TX+4*rb+2,2)}, 0")

    def a_loads(self, gs, RD, AR):
        out = []
        for rb in range(2):
            sa = A0 + rb
            ls = [f"buffer_load_dwordx4 {vr(AR + 8*(gs % RD) + 4*rb, 4)}, v{vL16}, {sr(WS,4)}, s{sa} offen offset:{1024*(gs % 4)} sc1"]
            if gs % 4 == 3: ls.append(f"s_add_u32 s{sa}, s{sa}, 4096")
            out.append(ls)
        return out
    def capture(self, fn):
        main, self.a = self.a, Asm()
        fn()
        out, self.a = self.a.lines, main
        return out
    def gemm(self, NS, NB, RD, AR, BR, AC, rdaddr, second, vm, bars={}, std=(), czero=(0, 1), extra={}, wgrp=1, xper=1, init=None, lper=3):
        a = self.a
        lg = Cnt("lgkmcnt", 15)
        NF = len(BR)
        breg = lambda gs, nb: BR[(gs*NB + nb) % NF]
        def reads(n):
            if n >= NS*NB: return []
            gs, nb = divmod(n, NB)
            v, off = rdaddr(gs, nb)
            return [(f"ds_read_b128 {vr(breg(gs, nb),4)}, v{v} offset:{off}", (gs, nb))]
        def emit_x(l):
            if l == "WAITX": a(lg.wait("x")); return
            if l.startswith("WAITV:"): a(vm.wait(l[6:])); return
            a(l)
            if l.startswith("ds_"): lg.issue("x")
        for n in range(NF):
            for l, tg in reads(n): a(l); lg.issue(tg)
        pr, ex = [], []
        allA = [(ls, ("A", g)) for g in range(NS) for ls in self.a_loads(g, RD, AR)][2*init:]
        lpos = [(i * NB) // lper for i in range(lper)]
        for gs in range(NS):
            if gs in bars:
                while pr:
                    l, tg = pr.pop(0); a(l); lg.issue(tg)
                for l in bars[gs]: a(l)
            a(vm.wait(("A", gs)))
            ex += list(extra.get(gs, []))
            for nb in range(NB):
                if nb % wgrp == 0:
                    tags = [(gs, n) for n in range(nb, min(nb + wgrp, NB))]
                    while any(tg in tags for _, tg in pr):
                        l, tg = pr.pop(0); a(l); lg.issue(tg)
                    a(lg.wait(*tags))
                for rb in range(2):
                    d = vr(AC + 4*(NB*rb + nb), 4)
                    c = "0" if (gs == 0 and rb in czero) else d
                    w, x = vr(breg(gs, nb), 4), vr(AR + 8*(gs % RD) + 4*rb, 4)
                    p, q = (x, w) if nb in std else (w, x)
                    a(f"v_mfma_f32_16x16x32_bf16 {d}, {p}, {q}, {c}")
                    if rb == 1: pr += reads(gs*NB + nb + NF)
                    if pr:
                        l, tg = pr.pop(0); a(l); lg.issue(tg)
                    if rb == 0 and nb in lpos and allA and allA[0][1][1] <= gs + RD - 1:
                        ls, tg = allA.pop(0); a.extend(ls); vm.issue(tg)
                    else:
                        for _ in range(xper):
                            if ex: emit_x(ex.pop(0))
        for l in ex: emit_x(l)
        return lg

    def xstore(self, sval, P, force=None, before_flag=None, packed=False):
        a = self.a
        if not packed:
            for i in range(10): a(f"v_cvt_pk_bf16_f32 v{P+i}, v{RES+2*i}, v{RES+2*i+1}")
        a(f"v_mov_b32 v{P+10}, 0"); a(f"v_mov_b32 v{P+11}, 0"); a(f"v_mov_b32 v{P+12}, 0x3f803f80")
        self.mstore([f"buffer_store_dwordx4 {vr(P,4)}, v{vL16}, {sr(WS,4)}, s{XA} offen",
                     f"buffer_store_dwordx4 {vr(P+4,4)}, v{vL16}, {sr(WS,4)}, s{XA} offen offset:1024",
                     f"buffer_store_dwordx2 {vr(P+8,2)}, v{vL16}, {sr(WS,4)}, s{XS} offen"], force)
        for i in range(10):
            a(f"v_dot2_f32_bf16 v{P+10}, v{P+i}, v{P+12}, v{P+10}")
            a(f"v_dot2_f32_bf16 v{P+11}, v{P+i}, v{P+i}, v{P+11}")
        a("s_nop 2")
        self.swap_add([P+10, P+11], P+14, 16); self.swap_add([P+10, P+11], P+14, 32)
        a("s_mov_b64 exec, 0xffff")
        self.mstore([f"buffer_store_dwordx2 {vr(P+10,2)}, v{vL16}, {sr(WS,4)}, s{STO} offen"], force)
        a("s_mov_b64 exec, -1")
        if before_flag: before_flag()
        self.flag(f"s{FXO}", sval, force)

    def exchange(self, AC, BR, slot):
        a = self.a
        a(f"s_mul_i32 s{T}, s{WV}, 5120"); a(f"s_add_u32 s{T}, s{T}, {slot*SL}"); a(f"v_add_u32 v{t0}, s{T}, v{vL16}")
        a(f"s_xor_b32 s{T}, s{WV}, 2"); a(f"s_mul_i32 s{T}, s{T}, 5120"); a(f"s_add_u32 s{T}, s{T}, {slot*SL}"); a(f"v_add_u32 v{t1}, s{T}, v{vL16}")
        a("s_barrier")
        for nb in range(5): a(f"ds_write_b128 v{t0}, {vr(AC+20+4*nb,4)} offset:{1024*nb}")
        a("s_waitcnt lgkmcnt(0)"); a("s_barrier")
        for nb in range(5): a(f"ds_read_b128 {vr(BR+4*nb,4)}, v{t1} offset:{1024*nb}")
        for nb in range(5):
            a(f"s_waitcnt lgkmcnt({4-nb})")
            for i in (0, 2): a(f"v_pk_add_f32 {vr(RES+4*nb+i,2)}, {vr(AC+4*nb+i,2)}, {vr(BR+4*nb+i,2)}")

    def entry(self):
        a = self.p
        a(".p2align 8"); a(f"{NAME}_kernel:")
        a("s_cmp_ge_u32 s2, 256"); a("s_cbranch_scc1 L_end")
        srds = [("ws", WS), ("x", XIN), ("wqkv", WQ), ("dbg", DBG), ("wo", WO), ("w1", W1), ("w2", W2), ("b1", B1), ("b2", B2), ("out", OUT)]
        for n, s in srds: a(f"s_load_dwordx2 {sr(s,2)}, s[0:1], {KA[n]}")
        for n, s in srds:
            a(f"s_mov_b32 s{s+2}, {hx(SZ[n])}"); a(f"s_mov_b32 s{s+3}, 0x00020000")
        a(f"v_lshrrev_b32 v{t0}, 6, v0"); a(f"v_and_b32 v{vL}, 63, v0"); a(f"v_readfirstlane_b32 s{WV}, v{t0}")
        a(f"v_lshlrev_b32 v{vL16}, 4, v{vL}"); a(f"v_and_b32 v{vJ}, 15, v{vL}"); a(f"v_lshrrev_b32 v{vG}, 4, v{vL}")
        a(f"v_mov_b32 v{PB+9}, 0")
        if OPT["stamp"]:
            a("v_mov_b32 v254, 0"); a("v_mov_b32 v255, 0")
        a(f"s_and_b32 s{G}, s2, 7"); a(f"s_lshr_b32 s{IDX}, s2, 3")
        a(f"s_mov_b32 s{FAST}, 0"); a(f"s_mov_b32 s{BUD}, 0x80000"); a(f"s_mov_b32 s{LAY}, 0")
        a(f"s_and_b32 s{NT}, s{IDX}, 7"); a(f"s_and_b32 s{ODD}, s{IDX}, 1")
        a(f"s_and_b32 s{WM}, s{WV}, 1"); a(f"s_bfe_u32 s{WK}, s{WV}, 0x10001"); a(f"s_and_b32 s{HW}, s{WV}, 3")
        a(f"s_mov_b32 s{VMK}, 0x000fffff"); a(f"s_mov_b32 s{VMK+1}, 0x000fffff")
        a(f"s_lshl_b32 s{FB}, s{G}, 13"); a(f"s_add_u32 s{FB}, s{FB}, {hx(FLG)}")
        a(f"s_mul_i32 s{T}, s{NT}, 160"); a(f"s_lshl_b32 s{T+1}, s{ODD}, 5"); a(f"s_add_u32 s{COL}, s{T}, s{T+1}")
        for i in range(1, 4): a(f"s_add_u32 s{COL+i}, s{COL}, {32*i}")
        a(f"s_add_u32 s{COL+4}, s{T}, 128"); a(f"s_cmp_eq_u32 s{ODD}, 1"); a(f"s_cmov_b32 s{COL+4}, s{T}")
        a(f"s_lshr_b32 s{T}, s{IDX}, 3"); a(f"s_lshl_b32 s{T}, s{T}, 1"); a(f"s_add_u32 s{T}, s{T}, s{WM}")
        a(f"s_lshl_b32 s{FXO}, s{T}, 8"); a(f"s_add_u32 s{FXO}, s{FXO}, s{FB}")
        a(f"s_lshl_b32 s{T+1}, s{NT}, 1"); a(f"s_add_u32 s{T+1}, s{T+1}, s{WK}"); a(f"s_lshl_b32 s{T+1}, s{T+1}, 2"); a(f"s_add_u32 s{FXO}, s{FXO}, s{T+1}")
        a(f"s_lshl_b32 s{RBO}, s{G}, 3"); a(f"s_add_u32 s{RBO}, s{RBO}, s{T}"); a(f"s_lshl_b32 s{RBO}, s{RBO}, 1"); a(f"s_add_u32 s{RBO}, s{RBO}, s{WK}")
        a(f"s_lshr_b32 s{T}, s{NT}, 1"); a(f"s_mul_i32 s{T+1}, s{T}, 5120"); a(f"s_mul_i32 s{T+2}, s{RBO}, {XB}"); a(f"s_add_u32 s{T+1}, s{T+1}, s{T+2}")
        a(f"s_mul_i32 s{XA}, s{ODD}, 3072"); a(f"s_add_u32 s{XA}, s{XA}, s{T+1}")
        a(f"s_lshl_b32 s{XS}, s{ODD}, 3"); a(f"s_add_u32 s{XS}, s{XS}, s{T+1}"); a(f"s_add_u32 s{XS}, s{XS}, 2048")
        a(f"s_lshl_b32 s{T}, s{T}, 8"); a(f"s_add_u32 s{STO}, s{T+2}, s{T}")
        a(f"s_lshl_b32 s{T}, s{ODD}, 3"); a(f"s_add_u32 s{STO}, s{STO}, s{T}"); a(f"s_add_u32 s{STO}, s{STO}, 20480")
        a("s_waitcnt lgkmcnt(0)")
        self.stamp(0)

    def unstash(self, which=range(10)):
        a = self.p
        a(f"s_lshl_b32 s{T}, s{WV}, 10"); a(f"v_add_u32 v{t0}, s{T}, v{vL16}"); a(f"v_add_u32 v{t1}, 40960, v{t0}")
        for i in which: a(f"ds_write_b128 v{t0 + i//5}, {vr(STH+4*i,4)} offset:{(i%5)*8192}")

    def att_setup(self):
        a = self.p
        vM, vH, IDXR, AK, AK4, AV, QA, PA, V = PB, PB+1, PB+2, PB+3, PB+4, PB+5, PB+6, PB+9, PB+32
        a(f"v_and_b32 v{vM}, 31, v{vL}"); a(f"v_lshrrev_b32 v{vH}, 5, v{vL}")
        a(f"s_lshl_b32 s{T+4}, s{HW}, 1"); a(f"s_lshr_b32 s{T}, s{WV}, 2"); a(f"s_add_u32 s{T+4}, s{T+4}, s{T}")
        a(f"s_mul_i32 s{T}, s{T}, 10240"); a(f"s_add_u32 s{T}, s{T}, {7*SL}")
        a(f"v_lshl_add_u32 v{AK4}, v{vM}, 3, s{T}"); a(f"v_lshl_add_u32 v{AK}, v{vH}, 8, v{AK4}"); a(f"v_add_u32 v{AK4}, 1024, v{AK4}")
        a(f"v_mul_u32_u24 v{t0}, 20, v{vH}"); a(f"v_add_u32 v{t0}, v{t0}, v{vM}"); a(f"v_lshl_add_u32 v{AV}, v{t0}, 4, s{T}")
        a(f"s_mul_i32 s{T}, s{T+4}, 1280"); a(f"s_add_u32 s{T}, s{T}, {6*SL}")
        a(f"s_xor_b32 s{T+1}, s{T+4}, 1"); a(f"s_mul_i32 s{T+1}, s{T+1}, 1280"); a(f"s_add_u32 s{T+1}, s{T+1}, {6*SL}")
        a(f"v_lshlrev_b32 v{t0}, 3, v{vM}"); a(f"v_lshl_add_u32 v{t1}, v{vH}, 8, v{t0}")
        a(f"v_add_u32 v{QA}, s{T}, v{t1}"); a(f"v_add_u32 v{QA+1}, s{T+1}, v{t1}")
        a(f"s_sub_u32 s{T+1}, s{T+1}, s{T}"); a(f"v_mul_lo_u32 v{t1}, v{vH}, s{T+1}"); a(f"v_add3_u32 v{QA+2}, v{t0}, v{t1}, s{T}")
        a(f"v_mov_b32 v{IDXR}, 0xdddddddd")
        a(f"s_and_b32 s{T}, s{IDX}, 7"); a(f"s_lshl_b32 s{T}, s{T}, 13"); a(f"s_lshr_b32 s{T+1}, s{IDX}, 3"); a(f"s_lshl_b32 s{T+1}, s{T+1}, 8"); a(f"s_add_u32 s{T}, s{T}, s{T+1}")
        a(f"s_add_u32 s{T}, s{T}, {hx(FLG+2048)}"); a(f"s_lshl_b32 s{T+1}, s{HW}, 5"); a(f"s_add_u32 s{T+5}, s{T}, s{T+1}")
        a(f"s_lshl_b32 s{T+1}, s{WV}, 3"); a(f"s_add_u32 s{T+1}, s{T+1}, s{G}"); a(f"s_lshl_b32 s{T+1}, s{T+1}, 2"); a(f"s_add_u32 s{FO}, s{T+1}, s{T}"); a(f"s_add_u32 s{T+6}, s{LAY}, 1")
        a(f"v_and_b32 v{PA}, 7, v{vL}"); a(f"v_lshlrev_b32 v{PA}, 2, v{PA}")

    def qkv(self):
        a = self.p
        RD = OPT.get("rd_q", 6); IN = OPT.get("in_q", 3)
        RA = PB + 12
        RT = PB + 16
        AD = PB + 24
        RS = PB + 48
        ST = PB + 60
        BR = PB + 68
        AC = PB + 84
        AR = PB + 116
        TX, TM = AR + 28, AR + 36
        RB = PB + 148
        BRL = ([BR + 4*i for i in range(4)] + [PB + 32 + 4*i for i in range(4)])[:OPT.get('nf_q', 8)]
        assert AR + 8*RD <= STH and IN <= 3
        AQ, AK, A4, AV, AVS, ARB = AD, AD+1, AD+2, AD+3, AD+4, AD+5
        self.RB, self.ARB = RB, ARB
        def adprep():
            a(f"s_mul_i32 s{T}, s{WV}, 1280"); a(f"s_add_u32 s{T}, s{T}, {6*SL}")
            a(f"s_mul_i32 s{T+1}, s{WV}, 2560"); a(f"s_add_u32 s{T+1}, s{T+1}, {7*SL}")
            a(f"v_cmp_eq_u32 vcc, 0, v{vG}")
            a(f"v_lshlrev_b32 v{t0}, 3, v{vJ}"); a(f"v_lshl_add_u32 v{t1}, v{vG}, 8, v{t0}")
            a(f"v_add_u32 v{AQ}, s{T}, v{t1}"); a(f"v_add_u32 v{AK}, s{T+1}, v{t1}")
            a(f"v_add_u32 v{t1}, s{T}, v{t0}"); a(f"v_add_u32 v{t2}, s{T+1}, v{t0}"); a(f"v_cndmask_b32 v{A4}, v{t2}, v{t1}, vcc")
            a(f"v_lshrrev_b32 v{t1}, 1, v{vG}"); a(f"v_mul_u32_u24 v{t1}, 320, v{t1}"); a(f"v_lshl_add_u32 v{t1}, v{vJ}, 4, v{t1}")
            a(f"v_and_b32 v{t2}, 1, v{vG}"); a(f"v_lshl_add_u32 v{t1}, v{t2}, 3, v{t1}"); a(f"v_add_u32 v{AV}, s{T+1}, v{t1}")
            a(f"v_lshrrev_b32 v{t1}, 3, v{vJ}"); a(f"v_mul_u32_u24 v{t1}, 320, v{t1}"); a(f"v_and_b32 v{t2}, 7, v{vJ}")
            a(f"v_lshl_add_u32 v{t1}, v{t2}, 1, v{t1}"); a(f"v_add_u32 v{AVS}, s{T+1}, v{t1}")
            a(f"v_add_u32 v{ARB}, s{T+1}, v{vL16}")
            a(f"s_mul_i32 s{KVS}, s{IDX}, 163840"); a(f"s_mul_i32 s{T}, s{LAY}, {hx(0x500000)}"); a(f"s_add_u32 s{KVS}, s{KVS}, s{T}")
            a(f"s_mul_i32 s{T}, s{HW}, 2560"); a(f"s_add_u32 s{KVS}, s{KVS}, s{T}"); a(f"s_add_u32 s{KVS}, s{KVS}, {hx(KVF(0))}")
            a(f"s_lshl_b32 s{T}, s{G}, 1"); a(f"s_lshr_b32 s{T+1}, s{WV}, 2"); a(f"s_add_u32 s{T}, s{T}, s{T+1}")
            a(f"s_mul_i32 s{OS}, s{T}, 10240"); a(f"s_add_u32 s{OS}, s{OS}, s{KVS}")
        def lnprep(first):
            self.stat_math(ST, RS, TX, False)
            a(f"v_lshlrev_b32 v{t0}, 4, v{vG}")
            for rb in range(2):
                for i in range(4): a(f"ds_bpermute_b32 v{RT+4*rb+i}, v{t0}, v{ST+2} offset:{128*rb+4*i}")
            cq = hx(f2u(20**-0.5 * math.log2(math.e)))
            for nb in range(4):
                x = BR + 4*nb
                a(f"v_cvt_pk_bf16_f32 v{x}, v{CSQ+nb}, v{CSQ+nb}"); a(f"v_and_b32 v{t1}, 0xffff0000, v{x}"); a(f"v_sub_f32 v{t1}, v{CSQ+nb}, v{t1}")
                a(f"v_and_b32 v{x+1}, 0xffff, v{x}"); a(f"v_cvt_pk_bf16_f32 v{x}, v{CSQ+nb}, v{t1}")
                a(f"v_mov_b64 {vr(x+2,2)}, 0")
            for rb in range(2): a(f"v_mul_f32 v{RS+2+rb}, {cq}, v{RS+rb}")
            for rb in range(2): a(f"v_cndmask_b32 v{RS+4+rb}, v{RS+rb}, v{RS+2+rb}, vcc")
            for nb in (1, 2, 3, 0):
                for rb in range(2):
                    d = vr(AC + 4*(4*rb + nb), 4); w, x = vr(BR+4*nb, 4), vr(TX+4*rb, 4)
                    p, q = (x, w) if nb == 2 else (w, x)
                    a(f"v_mfma_f32_16x16x32_bf16 {d}, {p}, {q}, {'0' if first else d}")
            a("s_waitcnt lgkmcnt(0)")

        ONE = RT + 4
        def conv_setup():
            a(f"v_lshrrev_b32 v{t0}, 2, v{vL}"); a(f"v_mul_u32_u24 v{t0}, 160, v{t0}"); a(f"v_lshl_add_u32 v{t0}, s{ODD}, 3, v{t0}")
            a(f"v_and_b32 v{t1}, 3, v{vL}"); a(f"v_lshlrev_b32 v{t2}, 3, v{t1}")
            a(f"v_min_u32 v{t1}, 2, v{t1}"); a(f"v_mul_u32_u24 v{t1}, 48, v{t1}")
            a(f"s_mul_i32 s{T}, s{HW}, 48"); a(f"s_cmp_eq_u32 s{HW}, 3"); a("s_cselect_b64 vcc, -1, 0"); a(f"s_cselect_b32 s{T}, 32, s{T}")
            a(f"s_lshr_b32 s{T+1}, s{WV}, 2"); a(f"s_mul_i32 s{T+1}, s{T+1}, 5120"); a(f"s_add_u32 s{T}, s{T}, s{T+1}"); a(f"s_add_u32 s{T}, s{T}, {3*SL}")
            a(f"v_cndmask_b32 v{t1}, v{t2}, v{t1}, vcc"); a(f"v_add3_u32 v{RT}, v{t0}, v{t1}, s{T}"); a(f"v_add_u32 v{RT+1}, 51200, v{RT}")
            for i in range(4): a(f"v_mov_b32 v{ONE+i}, 0x3f803f80")
        def conv(i0, i1):
            for i in range(i0, i1):
                for u in range(2): a(f"ds_read_b64_tr_b16 {vr(STH+4*i+2*u,2)}, v{RT + i//5} offset:{(i % 5)*10240 + 2560*u}")
            a("s_waitcnt lgkmcnt(0)")
            for i in range(i0, i1):
                a(f"v_mfma_f32_16x16x32_bf16 {vr(CSQ,4)}, {vr(ONE,4)}, {vr(STH+4*i,4)}, {'0' if i == 0 else vr(CSQ,4)}")
            self.unstash(range(i0, i1))
        P = AC
        a(f"s_cmp_ge_u32 s{WV}, 4"); a("s_cbranch_scc1 L_q0_load")
        a(f"s_or_b32 s{T+5}, s{WV}, s{IDX}")
        a(f"s_cmp_eq_u32 s{T+5}, 0"); a("s_cbranch_scc0 L_q0_c1")
        for i in range(4): a(f"v_mov_b32 v{BR+i}, 0")
        for i in range(4): a(f"buffer_store_dwordx4 {vr(BR,4)}, v{vL16}, {sr(WS,4)}, s{FB} offen offset:{1024*i} sc1")
        a("L_q0_c1:")
        a(f"v_mul_u32_u24 v{t2}, 1280, v{vJ}"); a(f"v_lshl_add_u32 v{t2}, v{vG}, 3, v{t2}")
        a(f"s_mul_i32 s{T}, s{RBO}, 20480"); a(f"v_add_u32 v{t2}, s{T}, v{t2}")
        for i in range(5): a(f"buffer_load_dwordx2 {vr(P+2*i,2)}, v{t2}, {sr(XIN,4)}, s{COL+i} offen")
        a(f"s_lshl_b32 s{T+7}, s{IDX}, 2"); a(f"s_add_u32 s{T+7}, s{T+7}, s{WV}"); a(f"s_mul_i32 s{T+7}, s{T+7}, 3840")
        NSC = OPT.get("nsc", 0)
        a(f"s_add_u32 s{T+7}, s{T+7}, {(5-NSC)*128*3840}")
        sq = [c*128*3840 + 64*u for c in range(NSC) for u in range(60)]
        def swarm(n):
            for _ in range(min(n, len(sq))): a(f"s_buffer_load_dword s{89 + len(sq) % 4}, {sr(WQ,4)}, s{T+7} offset:{sq.pop(0)}")
        swarm(14)
        conv_setup()
        swarm(OPT.get("ns0", 10))
        a(f"s_lshl_b32 s{T+6}, s{G}, 2")
        a(f"s_cmp_eq_u32 s{T+5}, 0"); a("s_cbranch_scc0 L_q0_c2")
        a(f"v_mov_b32 v{t0}, 1"); a(f"v_mov_b32 v{t1}, 0")
        a("s_waitcnt vmcnt(5)")
        a("s_mov_b64 exec, 1")
        a(f"buffer_store_dword v{t0}, v{t1}, {sr(DBG,4)}, s{T+6} offen sc1")
        a("s_mov_b64 exec, -1")
        a("s_waitcnt vmcnt(1)")
        a("s_branch L_q0_c3")
        a("L_q0_c2:")
        a("s_waitcnt vmcnt(0)")
        a("L_q0_c3:")
        self.stamp(21)
        def boot():
            for i in range(10):
                a(f"v_lshlrev_b32 v{RES+2*i}, 16, v{P+i}"); a(f"v_and_b32 v{RES+2*i+1}, 0xffff0000, v{P+i}")
            a(f"v_mov_b32 v{t2}, 0")
            swarm(OPT.get("ns1_", 60))
            self.poll(DBG, t2, f"s{T+6}", "1")
        self.xstore("1", P, "sc1", before_flag=boot, packed=True)
        self.stamp(23)
        a(f"v_lshlrev_b32 v{t0}, 7, v{vJ}"); a(f"v_and_b32 v{t1}, 0x380, v{t0}")
        a(f"buffer_load_dword v{BR}, v{t0}, {sr(WS,4)}, s{XA} offen sc1"); a(f"buffer_load_dword v{BR+1}, v{t1}, {sr(WS,4)}, s{XS} offen sc1")
        a(f"s_getreg_b32 s{T}, hwreg(HW_REG_XCC_ID)"); a(f"s_and_b32 s{T}, s{T}, 15"); a(f"s_add_u32 s{T}, s{T}, 16")
        a(f"v_mov_b32 v{t1}, s{T}"); a(f"v_mov_b32 v{t2}, 0")
        a(f"s_lshl_b32 s{T}, s{IDX}, 2"); a(f"s_add_u32 s{T}, s{T}, s{FB}")
        a(f"s_cmp_eq_u32 s{WV}, 0"); a("s_cbranch_scc0 L_q0_c4")
        a("s_mov_b64 exec, 1")
        a(f"buffer_store_dword v{t1}, v{t2}, {sr(WS,4)}, s{T} offen offset:3200 sc1")
        a("s_mov_b64 exec, -1")
        a("L_q0_c4:")
        swarm(999)
        a("s_barrier")
        conv(0, 4)
        a(f"v_and_b32 v{t2}, 7, v{vL}"); a(f"v_lshlrev_b32 v{t2}, 2, v{t2}")
        self.poll(DBG, t2, "0", "1")
        a("s_branch L_q0_conv")
        a("L_q0_load:")
        D = AC
        self.dma_addr(D, 5, "wq")
        a(f"s_mul_i32 s{DS}, s{HW}, {32*3840}"); a(f"s_mul_i32 s{T}, s{IDX}, 40"); a(f"s_and_b32 s{T}, s{T}, -16"); a(f"s_add_u32 s{DS}, s{DS}, s{T}")
        a(f"s_mul_i32 s{T+8}, s{HW}, 5120")
        def gather(c):
            for i in range(5):
                a.extend(self.dma(D+i, WQ, f"s{DS}", f"s{T+8}", (3+c)*SL + 1024*i))
                if OPT.get("ht0", 10): a(f"s_waitcnt vmcnt({OPT.get('ht0', 10)})")
            a(f"s_add_u32 s{DS}, s{DS}, {128*3840}")
        gather(0); gather(1)
        conv_setup(); adprep(); self.att_setup()
        g1 = OPT.get("g1", 3)
        for c in range(2, g1): gather(c)
        a(f"s_waitcnt vmcnt({5*(g1-2)})")
        self.stamp(23)
        a("s_barrier")
        for c in range(g1, 5): gather(c)
        conv(0, 4)
        a("s_waitcnt vmcnt(5)")
        a("L_q0_conv:")
        a("s_barrier")
        conv(4, 8)
        a("s_waitcnt vmcnt(0)"); a("s_barrier")
        a(f"s_cmp_eq_u32 s{WV}, 7"); a("s_cbranch_scc0 L_q0_l3")
        a(f"s_getpc_b64 {sr(T,2)}")
        a("L_pc:")
        a(f"s_lshl_b32 s{T+2}, s{IDX}, 11"); a(f"s_cmp_lt_u32 s{T+2}, L_last-L_pc"); a("s_cbranch_scc0 L_q0_l3")
        a(f"v_lshlrev_b32 v{t0}, 7, v{vJ}"); a(f"v_add_u32 v{t0}, s{T+2}, v{t0}"); a(f"v_min_u32 v{t0}, L_last-L_pc, v{t0}")
        a(f"global_load_dword v{t3}, v{t0}, {sr(T,2)}")
        a("L_q0_l3:")
        conv(8, 10)
        a("s_nop 1")
        a(f"s_lshl_b32 s{T}, s{WV}, 2"); a(f"s_add_u32 s{T}, s{T}, {4*SL}"); a(f"v_lshl_add_u32 v{t2}, v{vJ}, 5, s{T}")
        a(f"ds_write_b32 v{t2}, v{CSQ}")
        self.stamp(1)
        a("s_branch L_q1_a")

        a("L_qkv1:")
        self.stamp(1)
        a(f"s_cmp_lt_u32 s{WV}, 4"); a("s_cbranch_scc1 L_q1_a")
        adprep(); self.att_setup()
        a("L_q1_a:")
        a(f"v_add_u32 v{RA}, 65536, v{vL16}")
        a(f"s_lshl_b32 s{T}, s{G}, 3"); a(f"s_add_u32 s{T}, s{T}, s{WV}")
        a(f"s_mul_i32 s{A0}, s{T}, {2*XB}"); a(f"s_add_u32 s{A1}, s{A0}, {XB}")
        a(f"s_add_u32 s{T+1}, s{A0}, 20480")
        a(f"s_lshl_b32 s{T+2}, s{WV}, 8"); a(f"s_add_u32 s{T+2}, s{T+2}, s{FB}")
        a(f"v_lshlrev_b32 v{t2}, 2, v{vJ}")
        a(f"s_lshl_b32 s{T+3}, s{LAY}, 1"); a(f"s_add_u32 s{T+3}, s{T+3}, 1")
        self.poll(WS, t2, f"s{T+2}", f"s{T+3}")
        self.stamp(2)
        vm = Cnt("vmcnt", 63)
        self.stat_loads(ST, f"s{T+1}", vm)
        for gs in range(IN):
            for ls in self.a_loads(gs, RD, AR): a.extend(ls); vm.issue(("A", gs))
        a("s_waitcnt lgkmcnt(0)"); a("s_barrier")
        a(f"s_cmp_lg_u32 s{LAY}, 0"); a("s_cbranch_scc1 L_q1_b")
        a(f"s_mov_b32 s{T}, {4*SL}"); a(f"v_lshl_add_u32 v{t3}, v{vJ}, 5, s{T}")
        a(f"ds_read_b128 {vr(CSQ,4)}, v{t3}"); a(f"ds_read_b128 {vr(BR,4)}, v{t3} offset:16")
        a("s_waitcnt lgkmcnt(0)")
        for i in range(4): a(f"v_add_f32 v{CSQ+i}, v{CSQ+i}, v{BR+i}")
        a("L_q1_b:")
        a(f"s_cmp_ge_u32 s{WV}, 4"); a("s_cbranch_scc1 L_q1_late")
        a("s_setprio 2")
        for i in range(0, 32, 2): a(f"v_mov_b64 {vr(AC+i,2)}, 0")
        adprep()
        a("s_branch L_q1_loop")
        a("L_q1_late:")
        a(vm.wait("st"))
        self.stat_sum(ST, TM); lnprep(True)
        a("L_q1_loop:")
        self.gemm(20, 4, RD, AR, BRL, AC, lambda gs, nb: (vL16 if gs < 16 else RA, (gs % 16)*4096 + nb*1024), None, vm, std=(2,), czero=(), wgrp=2, init=IN)
        self.stamp(3)
        a(f"s_cmp_ge_u32 s{WV}, 4"); a("s_cbranch_scc1 L_q_epi")
        self.stat_sum(ST, TM)
        a("L_q_prep:")
        lnprep(False)
        a("L_q_epi:")
        PK = BR
        a("s_nop 2")
        for nb in (1, 2, 3, 0):
            for rb in range(2):
                r = AC + 4*(4*rb + nb)
                for i in range(4):
                    m = RT + 4*rb + i if nb == 2 else RS + {0: 2, 1: 0, 3: 4}[nb] + rb
                    a(f"v_mul_f32 v{r+i}, v{r+i}, v{m}")
            for r2 in range(2):
                r = AC + 4*(4*r2 + nb); p = PK + 2*(4*r2 + nb)
                a(f"v_cvt_pk_bf16_f32 v{p}, v{r}, v{r+1}"); a(f"v_cvt_pk_bf16_f32 v{p+1}, v{r+2}, v{r+3}")
                if nb == 0 and r2 == 0: a("s_waitcnt lgkmcnt(8)")
                if nb == 0: a(f"ds_write_b64 v{AQ}, {vr(p,2)} offset:{128*r2}")
                if nb == 1: a(f"ds_write_b64 v{AK}, {vr(p,2)} offset:{128*r2}")
                if nb == 2: a(f"ds_write_b64 v{AV}, {vr(p,2)} offset:{1280+640*r2}")
            if nb == 3:
                a("s_mov_b32 exec_hi, 0")
                for rb in range(2): a(f"ds_write_b64 v{A4}, {vr(PK+2*(4*rb+3),2)} offset:{1024+128*rb}")
                a("s_bfm_b64 exec, 16, 32")
                for rb in range(2):
                    for i in range(4):
                        a(f"ds_write_b16{'_d16_hi' if i & 1 else ''} v{AVS}, v{PK+2*(4*rb+3)+(i>>1)} offset:{1280+640*rb+256+16*i}")
                a("s_mov_b64 exec, -1")
        V = PB + 32
        a(f"v_and_b32 v{t1}, 31, v{vL}"); a(f"v_cmp_eq_u32 vcc, 20, v{t1}"); a(f"v_mov_b32 v{t0}, 0x3f803f80"); a("s_nop 0")
        a(f"v_cndmask_b32 v{V}, 0, v{t0}, vcc"); a(f"v_cndmask_b32 v{V+1}, 0, v{t0}, vcc")
        for i in range(2, 16, 2): a(f"v_mov_b64 {vr(V+i,2)}, {vr(V,2)}")
        a("s_waitcnt lgkmcnt(0)")
        for i in range(3): a(f"ds_read_b128 {vr(RB+4*i,4)}, v{ARB} offset:{1024*i}")
        a(f"s_cmp_ge_u32 s{WV}, 4"); a("s_cbranch_scc1 L_att_late")
        a("s_waitcnt lgkmcnt(0)")
        self.publish()
        self.stamp(22)
        a("s_setprio 0")
        self.att_setup()
        self.flag(f"s{FO}", f"s{T+6}", "sc1")
        self.stamp(5)
        a("L_att_late:")
    def publish(self):
        a = self.p
        for i in range(3):
            if i == 2: a("s_mov_b32 exec_hi, 0")
            a(f"buffer_store_dwordx4 {vr(self.RB+4*i,4)}, v{vL16}, {sr(WS,4)}, s{OS} offen offset:{1024*i} sc1")
        a("s_mov_b64 exec, -1")

    def attention(self):
        a = self.p
        vM, vH, IDXR = PB, PB+1, PB+2
        AK, AK4, AV = PB+3, PB+4, PB+5
        OA = PB+6
        PA = PB+9
        Q = [PB+12, PB+16]; Q4 = PB+20; K4 = PB+22
        KK = [PB+24, PB+28]
        V = PB+32
        O = [PB+48, PB+64]
        S = [PB+80, PB+112]
        NM = S[1]
        PF = PB+144
        PR = PB+148
        EXM, EXF = f"s_mov_b64 exec, {sr(VMK,2)}", "s_mov_b64 exec, -1"
        HALF = "s_mov_b32 exec_hi, 0"
        kvm = OPT.get("kvmod", "sc1")
        base = [0]
        def off(n):
            o = (n // 4) * SL + (n % 4) * 2560 - base[0]
            assert 0 <= o < 65536 - 2560
            return o
        def rdK4(t): return f"ds_read_b64 {vr(K4,2)}, v{AK4} offset:{off(t)}"
        def rdK(t): return f"ds_read2st64_b64 {vr(KK[t&1],4)}, v{AK} offset0:{off(t)//512} offset1:{off(t)//512+1}"
        def rdV(t, i): return f"ds_read_b128 {vr(V+8*(t&1)+4*i,4)}, v{AV} offset:{off(t)+1280+640*i}"
        def m2b(t, c="0"): return f"v_mfma_f32_32x32x4_2b_bf16 {vr(S[t&1],32)}, {vr(K4,2)}, {vr(Q4,2)}, {c}"
        def mk(t, q): return f"v_mfma_f32_32x32x16_bf16 {vr(S[t&1]+16*q,16)}, {vr(KK[t&1],4)}, {vr(Q[q],4)}, {vr(S[t&1]+16*q,16)}"
        def pv(t, i): return f"v_smfmac_f32_32x32x32_bf16 {vr(O[i>>1],16)}, {vr(V+8*(t&1)+4*(i&1),4)}, {vr(S[t&1]+8*i,8)}, v{IDXR}"
        def set_addr(b):
            a(f"s_lshr_b32 s{T}, s{WV}, 2"); a(f"s_mul_i32 s{T}, s{T}, 10240"); a(f"s_add_u32 s{T}, s{T}, {b}")
            a(f"v_lshl_add_u32 v{AK4}, v{vM}, 3, s{T}"); a(f"v_lshl_add_u32 v{AK}, v{vH}, 8, v{AK4}"); a(f"v_add_u32 v{AK4}, 1024, v{AK4}")
            a(f"v_mul_u32_u24 v{t0}, 20, v{vH}"); a(f"v_add_u32 v{t0}, v{t0}, v{vM}"); a(f"v_lshl_add_u32 v{AV}, v{t0}, 4, s{T}")
        def fill(mid=[]):
            mid = list(mid)
            a(rdK4(0)); a(rdK(0)); a(rdK(1)); a(EXM); a(rdV(0, 0)); a(rdV(0, 1)); a(EXF)
            a("s_waitcnt lgkmcnt(4)"); a(m2b(0)); a(rdK4(1))
            a.extend(mid[:16])
            if len(mid) < 16: a(f"s_nop {15 - len(mid)}")
            a("s_waitcnt lgkmcnt(4)")
            a(mk(0, 0)); a(mk(0, 1))
            a.extend(mid[16:])
            if len(mid[16:]) < 11: a(f"s_nop {10 - len(mid[16:])}")
        def step(t, last, first=False, hook={}):
            nqk, nrd = t + 1 <= last, t + 2 <= last
            ins = {1: ([] if first else [pv(t-1, 3)]) + ["s_waitcnt lgkmcnt(0)"],
                   5: ([m2b(t+1)] if nqk else []) + ([rdK4(t+2)] if nrd else []),
                   13: [pv(t, 0)] + ([EXM, rdV(t+1, 0), rdV(t+1, 1), EXF] if nqk else []),
                   17: [pv(t, 1)] + ([rdK(t+2)] if nrd else []),
                   21: [mk(t+1, 0)] if nqk else [], 25: [pv(t, 2)], 29: [mk(t+1, 1)] if nqk else []}
            for e in range(32):
                a(f"v_exp_f32 v{S[t&1]+e}, v{S[t&1]+e}")
                for l in ins.get(e, []): a(l)
                for h in hook.get(e, []): h()
        prio = lambda p: (lambda: a(f"s_setprio {p}") if OPT.get("prio", 1) else None)
        WOFF = T + 10
        def kv_dma1(sblk, slot, i, add=0):
            a(f"s_add_u32 m0, s{WOFF}, {slot*SL + add}")
            a(HALF if i == 2 else "s_nop 0")
            a(f"buffer_load_dwordx4 v{vL16}, {sr(WS,4)}, s{sblk} offen offset:{1024*i} {kvm} lds")
            if i == 2: a(EXF)
        def kv_src(sd, b):
            a(f"s_lshr_b32 s{sd}, s{WV}, 2")
            if b == 4: a(f"s_mul_i32 s{T}, s{sd}, 10240"); a(f"s_lshl_b32 s{sd}, s{sd}, 1")
            a(f"s_add_u32 s{sd}, s{sd}, s{G}"); a(f"s_add_u32 s{sd}, s{sd}, {2*b - 1 + (b > 4)}"); a(f"s_and_b32 s{sd}, s{sd}, 7")
            a(f"s_mul_i32 s{sd}, s{sd}, {SL}"); a(f"s_add_u32 s{sd}, s{sd}, s{KVS}")
            if b == 4: a(f"s_add_u32 s{sd}, s{sd}, s{T}")
            if b > 4: a(f"s_add_u32 s{sd}, s{sd}, 10240")

        a("s_barrier")
        self.stamp(4)
        prio(3)()
        a(f"ds_read_b64 {vr(Q4,2)}, v{OA+2} offset:1024")
        a(f"ds_read2st64_b64 {vr(Q[0],4)}, v{OA} offset0:0 offset1:1"); a(f"ds_read2st64_b64 {vr(Q[1],4)}, v{OA+1} offset0:0 offset1:1")
        def misc0():
            for q in range(2):
                for i in range(0, 16, 2): a(f"v_mov_b64 {vr(O[q]+i,2)}, 0")
            a(f"s_mov_b32 s{PASS}, 0"); a(f"s_mul_i32 s{WOFF}, s{WV}, 2560")
            a(f"s_cmp_ge_u32 s{WV}, 4"); a("s_cbranch_scc1 L_att_pub")
            a(f"buffer_load_dword v{t3}, v{PA}, {sr(WS,4)}, s{T+5} offen sc1")
            a("L_att_pubd:")
            a("s_nop 6")
        fill(self.capture(misc0))
        main, self.a = self.a, self.tail
        a("L_att_pub:"); self.publish(); a("s_branch L_att_pubd")
        self.a = main
        def misc1():
            a(f"s_lshl_b32 s{T}, s{G}, 3"); a(f"s_add_u32 s{T}, s{T}, s{T+4}"); a(f"s_mul_i32 s{OS}, s{T}, {2*HB_}"); a(f"s_add_u32 s{OS}, s{OS}, {hx(OF)}")
            a(f"s_lshl_b32 s{FO}, s{T+4}, 8"); a(f"s_add_u32 s{FO}, s{FO}, s{FB}"); a(f"s_lshl_b32 s{T}, s{IDX}, 2"); a(f"s_add_u32 s{FO}, s{FO}, s{T}"); a(f"s_add_u32 s{FO}, s{FO}, 128")
            a(f"s_mul_i32 s{T}, s{IDX}, 5")
            a(f"v_lshrrev_b32 v{t0}, 4, v{vM}"); a(f"v_mul_u32_u24 v{t0}, {HB_}, v{t0}"); a(f"v_lshl_add_u32 v{t0}, v{vJ}, 4, v{t0}")
            for jj in range(3):
                a(f"v_add_u32 v{t1}, s{T}, v{vH}")
                a(f"v_lshrrev_b32 v{t2}, 3, v{t1}"); a(f"v_lshl_add_u32 v{OA+jj}, v{t2}, 10, v{t0}")
                a(f"v_and_b32 v{t2}, 3, v{t1}"); a(f"v_lshl_add_u32 v{OA+jj}, v{t2}, 8, v{OA+jj}")
                a(f"v_bfe_u32 v{t2}, v{t1}, 2, 1"); a(f"v_lshl_add_u32 v{OA+jj}, v{t2}, 3, v{OA+jj}")
                a(f"s_add_u32 s{T}, s{T}, 2")
        vm0, vm1 = Cnt("vmcnt", 63), Cnt("vmcnt", 63)
        def both(tag): vm0.issue(tag); vm1.issue(tag)
        def kvblock(b, pieces=(0, 1, 2)):
            def f():
                if pieces[0] == 0: kv_src(T+7, b)
                for i in pieces: kv_dma1(T+7, b-1, i); both(("kv", b))
            return f
        def early(b):
            def f():
                l = self.lab("early")
                a(f"s_cmp_ge_u32 s{WV}, 4"); a(f"s_cbranch_scc1 {l}")
                if b == 1:
                    self.poll(WS, PA, f"s{T+5}", f"s{T+6}", issued=True)
                    self.stamp(6)
                for k in range(2):
                    a(f"s_add_u32 s{T+7}, s{G}, {2*b - 1 + k}"); a(f"s_and_b32 s{T+7}, s{T+7}, 7"); a(f"s_mul_i32 s{T+7}, s{T+7}, {SL}"); a(f"s_add_u32 s{T+7}, s{T+7}, s{KVS}")
                    for i in range(3): kv_dma1(T+7, b-1, i, 10240*k); both(("kv", b))
                a(f"{l}:")
            return f
        def lateflag():
            l = self.lab("late")
            a(f"s_cmp_lt_u32 s{WV}, 4"); a(f"s_cbranch_scc1 {l}")
            self.flag(f"s{FO}", f"s{T+6}", "sc1")
            self.stamp(5); self.stamp(6)
            a(f"{l}:")
        hk = {t: {} for t in range(4)}
        def at(h, pos, f): h[pos // 32].setdefault(pos % 32, []).append(f)
        pg, pf, p2 = OPT.get("p1", (8, 63, 72))
        at(hk, pg, early(1)); at(hk, pf, lateflag); at(hk, p2, early(2))
        at(hk, 31, prio(2)); at(hk, 95, prio(1)); at(hk, 96 + OPT.get("plast", 20), prio(0))
        for t in range(4): step(t, 3, first=(t == 0), hook=hk[t])
        set_addr(0)
        a(pv(3, 3))
        a(vm1.wait(("kv", 1))); vm0.wait(("kv", 1)); a("s_barrier")
        self.stamp(7)
        prio(3)()
        fill(self.capture(misc1))
        NSTEP = 28
        hk = {t: {} for t in range(NSTEP)}
        def l0only(fn):
            def g():
                l = self.lab("l0")
                a(f"s_cmp_lg_u32 s{LAY}, 0"); a(f"s_cbranch_scc1 {l}")
                fn()
                a(f"{l}:")
            return g
        def late_issue():
            a(f"s_add_u32 s{T+5}, s{T+5}, 128")
            a(f"buffer_load_dword v{t3}, v{PA}, {sr(WS,4)}, s{T+5} offen sc1"); both("lp")
        def late_check():
            lp, ld = self.lab("lpoll"), self.lab("lseen")
            w = vm1.wait("lp"); vm0.wait("lp"); a(w)
            a(f"v_cmp_gt_u32 vcc, s{T+6}, v{t3}"); a(f"s_cbranch_vccnz {lp}")
            a(f"{ld}:")
            main, self.a = self.a, self.tail
            a(f"{lp}:"); self.poll(WS, PA, f"s{T+5}", f"s{T+6}"); a(f"s_branch {ld}")
            self.a = main
        kvs = OPT.get("kvs", {3: 0, 4: 4, 5: 6, 6: 8, 7: 10})
        at(hk, (kvs[4] - 1)*32 + 3, late_issue); at(hk, kvs[4]*32 + 7, late_check)
        for b in range(3, 8):
            for i in range(3): at(hk, kvs[b]*32 + 9 + 16*i, kvblock(b, (i,)))
        PS = T + 11
        def pack_load():
            a(f"v_lshrrev_b32 v{t0}, 1, v{vL}"); a(f"v_and_b32 v{t1}, 1, v{vL}"); a(f"v_lshlrev_b32 v{t1}, 4, v{t1}")
            a(f"v_mul_u32_u24 v{PA+1}, 3072, v{t0}"); a(f"v_add_u32 v{PA+1}, v{PA+1}, v{t1}")
            a(f"v_mul_u32_u24 v{PA+2}, 1280, v{t0}"); a(f"v_add_u32 v{PA+2}, v{PA+2}, v{t1}")
            a(f"s_lshl_b32 s{T}, s{G}, 1"); a(f"s_lshr_b32 s{T+1}, s{IDX}, 4"); a(f"s_add_u32 s{T}, s{T}, s{T+1}"); a(f"s_lshl_b32 s{T}, s{T}, 3"); a(f"s_add_u32 s{T}, s{T}, s{WV}")
            l1 = self.lab("pk1")
            a(f"s_mov_b32 s{PS}, -1"); a(f"s_lshl_b32 s{T+8}, s{WV}, 11")
            a(f"s_cmp_ge_u32 s{T}, 120"); a(f"s_cbranch_scc1 {l1}"); a(f"s_and_b32 s{T+3}, s{IDX}, 15")
            a(f"s_mul_i32 s{PS}, s{T+3}, 120"); a(f"s_add_u32 s{PS}, s{PS}, s{T}"); a(f"s_lshl_b32 s{PS}, s{PS}, 10"); a(f"s_add_u32 s{PS}, s{PS}, {hx(PK1)}")
            a(f"s_mul_i32 s{T+1}, s{T}, 171"); a(f"s_lshr_b32 s{T+1}, s{T+1}, 10")
            a(f"s_mul_i32 s{T+2}, s{T+1}, {32*3072 - 6*32}"); a(f"s_lshl_b32 s{T}, s{T}, 5"); a(f"s_add_u32 s{T}, s{T}, s{T+2}")
            a(f"s_mul_i32 s{T+3}, s{T+3}, 192"); a(f"s_add_u32 s{T}, s{T}, s{T+3}")
            a(f"s_add_u32 m0, s{T+8}, {7*SL}"); a("s_nop 0")
            a(f"buffer_load_dwordx4 v{PA+1}, {sr(W1,4)}, s{T} offen lds")
            a(f"{l1}:")
            a(f"s_lshl_b32 s{T+9}, s{G}, 2"); a(f"s_lshr_b32 s{T+1}, s{IDX}, 3"); a(f"s_add_u32 s{T+9}, s{T+9}, s{T+1}"); a(f"s_lshl_b32 s{T+9}, s{T+9}, 3"); a(f"s_add_u32 s{T+9}, s{T+9}, s{WV}")
            for u, (srd, nfr, half, dst) in enumerate(((W2, 240, 24, PK2), (WO, 100, 10, PKO))):
                l1 = self.lab("pk2")
                a(f"s_mov_b32 s{PS+1+u}, -1"); a(f"s_mov_b32 s{T}, s{T+9}"); a(f"s_cmp_ge_u32 s{T}, {nfr}"); a(f"s_cbranch_scc1 {l1}")
                a(f"s_mul_i32 s{PS+1+u}, s{NT}, {nfr}"); a(f"s_add_u32 s{PS+1+u}, s{PS+1+u}, s{T}"); a(f"s_lshl_b32 s{PS+1+u}, s{PS+1+u}, 10"); a(f"s_add_u32 s{PS+1+u}, s{PS+1+u}, {hx(dst)}")
                a(f"s_mul_i32 s{T+1}, s{T}, 205"); a(f"s_lshr_b32 s{T+1}, s{T+1}, 10")
                a(f"s_mul_i32 s{T+2}, s{T+1}, 5"); a(f"s_sub_u32 s{T}, s{T}, s{T+2}")
                a(f"s_add_u32 s{T}, s{T}, s{ODD}"); a(f"s_cmp_eq_u32 s{T}, 5"); a(f"s_cselect_b32 s{T}, 0, s{T}"); a(f"s_lshl_b32 s{T}, s{T}, 5")
                a(f"s_lshr_b32 s{T+2}, s{T+1}, 2"); a(f"s_lshl_b32 s{T+2}, s{T+2}, 1"); a(f"s_and_b32 s{T+3}, s{T+1}, 1"); a(f"s_add_u32 s{T+2}, s{T+2}, s{T+3}")
                a(f"s_bfe_u32 s{T+3}, s{T+1}, 0x10001"); a(f"s_mul_i32 s{T+3}, s{T+3}, {half}"); a(f"s_add_u32 s{T+2}, s{T+2}, s{T+3}")
                a(f"s_mul_i32 s{T+2}, s{T+2}, {32*1280}"); a(f"s_add_u32 s{T}, s{T}, s{T+2}"); a(f"s_mul_i32 s{T+2}, s{NT}, 160"); a(f"s_add_u32 s{T}, s{T}, s{T+2}")
                if u == 0: a(f"s_add_u32 m0, s{T+8}, {7*SL+1024}")
                else: a(f"s_lshl_b32 s{T+2}, s{WV}, 10"); a(f"s_add_u32 m0, s{T+2}, {6*SL+10240}")
                a("s_nop 0")
                a(f"buffer_load_dwordx4 v{PA+2}, {sr(srd,4)}, s{T} offen lds")
                a(f"{l1}:")
            vm0.issue("pk")
        def pack_read():
            a(f"s_lshl_b32 s{T}, s{WV}, 11"); a(f"s_add_u32 s{T}, s{T}, {7*SL}"); a(f"v_lshl_add_u32 v{t0}, v{vL}, 3, s{T}")
            a(f"s_lshl_b32 s{T}, s{WV}, 10"); a(f"s_add_u32 s{T}, s{T}, {6*SL+10240}"); a(f"v_lshl_add_u32 v{t1}, v{vL}, 3, s{T}")
            a(vm0.wait("pk"))
            for u in range(3):
                v, o = (t0, 1024*u) if u < 2 else (t1, 0)
                a(f"ds_read_b64_tr_b16 {vr(PR+4*u,2)}, v{v} offset:{o}"); a(f"ds_read_b64_tr_b16 {vr(PR+4*u+2,2)}, v{v} offset:{o+512}")
        def pack_store():
            for u in range(3):
                l1 = self.lab("pks")
                a(f"s_cmp_eq_u32 s{PS+u}, -1"); a(f"s_cbranch_scc1 {l1}")
                a(f"buffer_store_dwordx4 {vr(PR+4*u,4)}, v{vL16}, {sr(WS,4)}, s{PS+u} offen sc1")
                a(f"{l1}:")
            vm0.issue("pks")
        def pack_done(): a(vm0.wait("pks"))
        def pack_flag():
            a(f"s_lshl_b32 s{PS}, s{NT}, 13"); a(f"s_add_u32 s{PS}, s{PS}, {hx(FLG+3072)}")
            a(f"s_lshr_b32 s{T}, s{T+9}, 3"); a(f"s_lshl_b32 s{T}, s{T}, 2"); a(f"s_add_u32 s{T}, s{T}, s{PS}")
            a(f"v_mov_b32 v{t0}, 1"); a(f"v_mov_b32 v{t1}, 0"); a(f"v_lshlrev_b32 v{PA+1}, 2, v{vM}")
            a(f"s_cmp_eq_u32 s{WV}, 0"); a("s_cselect_b64 exec, 1, 0")
            l = self.lab("pkf")
            a(f"s_cbranch_execz {l}")
            a(f"buffer_store_dword v{t0}, v{t1}, {sr(WS,4)}, s{T} offen sc1")
            a(f"{l}:"); a(EXF)
        def pack_wait():
            self.poll(WS, PA+1, f"s{PS}", "1")
        pl_, pr_, pd_, pw_ = OPT.get("pk", (0, 3, 6, 12))
        at(hk, pl_*32 + 4, l0only(pack_load))
        at(hk, pr_*32 + 20, l0only(pack_read)); at(hk, (pr_+1)*32 + 3, l0only(pack_store))
        assert pd_ % 4 == 2 and kvs[7] >= pd_ > pr_ + 1
        at(hk, pd_*32 - 1, l0only(pack_done)); at(hk, pd_*32 + 3, l0only(pack_flag))
        at(hk, pw_*32 + 30, l0only(pack_wait))
        def mode():
            a(f"s_add_u32 s{T}, s{FB}, 3200")
            self.poll(WS, PA+1, f"s{T}", "16")
            a(f"v_readfirstlane_b32 s{T}, v{t3}"); a("s_nop 1"); a(f"v_cmp_ne_u32 vcc, s{T}, v{t3}")
            a("s_cmp_eq_u64 vcc, 0"); a(f"s_cselect_b32 s{FAST}, {0 if OPT['forceslow'] else 1}, 0")
        at(hk, pw_*32 + 30, l0only(mode))
        def wo_piece(n, lds, half=False):
            def f():
                if n == 0:
                    a(f"s_mul_i32 s{DS}, s{NT}, {100*1024}"); a(f"s_add_u32 s{DS}, s{DS}, {hx(PKO)}"); a(f"s_lshl_b32 s{T+8}, s{WV}, 10")
                r = WOFF if lds >= 4*SL else T+8
                a(f"s_add_u32 m0, s{r}, {lds}"); a(f"s_add_u32 s{T}, m0, s{DS}")
                if half: a(HALF)
                a(f"buffer_load_dwordx4 v{vL16}, {sr(WS,4)}, s{T} offen sc1 lds"); both("wo")
                if half: a(EXF)
            return f
        wst = OPT.get("wst", [13, 13.5, 14, 14.5, 15, 15.5, 16, 18, 18.5, 19, 22, 22.5, 23])
        wpos = [int(x*32) + 9 for x in wst]
        for n in range(13):
            last = (n*8192 + 8191) // SL if n < 10 else 4
            assert wst[n] >= 4*last + 6 and wst[n] > pw_
        for n in range(10): at(hk, wpos[n], wo_piece(n, n*8192))
        for i in range(3): at(hk, wpos[10+i], wo_piece(10+i, 4*SL + 1024*i, i == 2))
        TB = T + 1
        def touch(setup, nlines, stride, k):
            def f():
                if setup:
                    setup()
                    a(f"v_min_u32 v{PA+2}, {nlines-1}, v{vL}"); a(f"v_lshlrev_b32 v{PA+2}, 7, v{PA+2}")
                else: a(f"s_add_u32 s{TB}, s{TB}, {stride}")
                a(f"buffer_load_dword v{PF+1+(k&1)}, v{PA+2}, {sr(WS,4)}, s{TB} offen sc1"); both("pf")
            return f
        def share(buf, per_wave):
            def f():
                a(f"s_lshl_b32 s{TB}, s{G}, 5"); a(f"s_add_u32 s{TB}, s{TB}, s{IDX}"); a(f"s_lshl_b32 s{TB}, s{TB}, 3"); a(f"s_add_u32 s{TB}, s{TB}, s{WV}")
                a(f"s_mul_i32 s{TB}, s{TB}, {per_wave}"); a(f"s_add_u32 s{TB}, s{TB}, {hx(buf)}")
            return f
        def tile(buf, mask, sh, tbytes, nl):
            def f():
                a(f"s_and_b32 s{T}, s{IDX}, {mask}"); a(f"s_mul_i32 s{T}, s{T}, {tbytes}")
                a(f"s_lshr_b32 s{TB}, s{IDX}, {sh}"); a(f"s_lshl_b32 s{TB}, s{TB}, 3"); a(f"s_add_u32 s{TB}, s{TB}, s{WV}"); a(f"s_mul_i32 s{TB}, s{TB}, {nl*128}")
                a(f"s_add_u32 s{TB}, s{TB}, s{T}"); a(f"s_add_u32 s{TB}, s{TB}, {hx(buf)}")
            return f
        tl = dict(x=(share(XF, XB//16), 11, 0), h=(share(HF, HB_//16), 13, 12*128),
                  a=(tile(PK1, 15, 4, 120*1024, 10), 10, SL), c=(tile(PK2, 7, 3, 240*1024, 10), 10, 2*SL))
        k = 0
        for name, sts in OPT.get("touch", dict(c=[15, 16], a=[17, 18, 19, 20, 21, 22], h=[23, 24], x=[25])).items():
            for i, st in enumerate(sts):
                assert name in "xh" or st > pw_
                at(hk, int(st*32) + 27, touch(tl[name][0] if i == 0 else None, tl[name][1], tl[name][2], k)); k += 1
        for t in range(NSTEP):
            if t % 4 == 2:
                b = t // 4 + 2
                if b <= 7:
                    a(vm1.wait(("kv", b))); vm0.wait(("kv", b))
                a("s_barrier"); prio(3)()
                if t + 3 < NSTEP:
                    at(hk, (t+1)*32 + 31, prio(2)); at(hk, (t+2)*32 + 31, prio(1)); at(hk, (t+3)*32 + OPT.get("plast", 20), prio(0))
            if t == 0:
                at(hk, 31, prio(1)); at(hk, 32 + OPT.get("plast", 20), prio(0))
            if t == NSTEP - 1:
                at(hk, t*32 + 0, prio(1)); at(hk, t*32 + OPT.get("plast", 20), prio(0))
            if t % 8 == 0 and t > 0:
                for r in (AK, AK4, AV): a(f"v_add_u32 v{r}, {2*SL}, v{r}")
                base[0] += 2*SL
            step(t, NSTEP - 1, first=(t == 0), hook=hk[t])
        a("s_nop 1")
        a(pv(NSTEP - 1, 3))
        base[0] = 0
        self.stamp(8)
        a("L_att_fin:")
        a(f"s_lshr_b32 s{T}, s{WV}, 2"); a(f"s_mul_i32 s{T+1}, s{T}, {2*SL}"); a(f"s_mul_i32 s{T+2}, s{HW}, 3072")
        a(f"s_add_u32 s{T+1}, s{T+1}, s{T+2}"); a(f"s_add_u32 s{T+1}, s{T+1}, {5*SL}"); a(f"v_add_u32 v{t0}, s{T+1}, v{vL16}")
        a(f"s_xor_b32 s{T}, s{T}, 1"); a(f"s_mul_i32 s{T+1}, s{T}, {2*SL}")
        a(f"s_add_u32 s{T+1}, s{T+1}, s{T+2}"); a(f"s_add_u32 s{T+1}, s{T+1}, {5*SL}"); a(f"v_add_u32 v{t1}, s{T+1}, v{vL16}")
        a("s_waitcnt vmcnt(0) lgkmcnt(0)")
        for i in range(3): a(f"ds_write_b128 v{t0}, {vr(O[1]+4*i,4)} offset:{1024*i}")
        a("s_waitcnt lgkmcnt(0)"); a("s_barrier")
        for i in range(3): a(f"ds_read_b128 {vr(S[0]+4*i,4)}, v{t1} offset:{1024*i}")
        a(f"v_cmp_eq_u32 vcc, 0, v{vH}")
        a(f"s_lshl_b32 s{T}, s{WV}, 2"); a(f"s_add_u32 s{T}, s{T}, {8*SL-32}"); a(f"v_mov_b32 v{t2}, s{T}")
        a("s_waitcnt lgkmcnt(0)")
        for i in range(0, 12, 2): a(f"v_pk_add_f32 {vr(O[0]+i,2)}, {vr(O[0]+i,2)}, {vr(S[0]+i,2)}")
        a(f"v_mov_b32 v{t0}, v{O[0]+8}"); a(f"v_mov_b32 v{t1}, v{O[0]+8}"); a("s_nop 1")
        a(f"v_permlane32_swap_b32 v{t1}, v{t0}")
        a("s_nop 0")
        a(f"v_rcp_f32 v{t1}, v{t0}")
        a(f"v_cndmask_b32 v{O[0]+8}, 0, v{O[0]+8}, vcc")
        for i in range(12): a(f"v_mul_f32 v{O[0]+i}, v{O[0]+i}, v{t1}")
        for i in range(6): a(f"v_cvt_pk_bf16_f32 v{S[0]+i}, v{O[0]+2*i}, v{O[0]+2*i+1}")
        self.mstore([f"buffer_store_dwordx2 {vr(S[0],2)}, v{OA}, {sr(WS,4)}, s{OS} offen",
                     f"buffer_store_dwordx2 {vr(S[0]+2,2)}, v{OA+1}, {sr(WS,4)}, s{OS} offen",
                     "s_mov_b32 exec_hi, 0",
                     f"buffer_store_dwordx2 {vr(S[0]+4,2)}, v{OA+2}, {sr(WS,4)}, s{OS} offen",
                     EXF])
        a(f"v_mul_f32 v{t1}, 0, v{O[0]}")
        for i in range(1, 12): a(f"v_fma_f32 v{t1}, v{O[0]+i}, 0, v{t1}")
        a(f"s_mov_b32 s{T}, {hx(f2u(2.0**-24))}"); a(f"s_mov_b32 s{T+1}, {hx(f2u(2.0**48))}")
        a(f"v_cmp_nle_f32 vcc, s{T}, v{t0}"); a(f"v_cmp_nge_f32 {sr(T+2,2)}, s{T+1}, v{t0}"); a(f"v_cmp_u_f32 {sr(T+4,2)}, v{t1}, v{t1}")
        a(f"s_or_b64 vcc, vcc, {sr(T+2,2)}"); a(f"s_or_b64 vcc, vcc, {sr(T+4,2)}")
        a("s_cmp_lg_u64 vcc, 0"); a(f"s_cselect_b32 s{T}, 1, 0"); a(f"v_mov_b32 v{t1}, s{T}")
        a(f"ds_write_b32 v{t2}, v{t1}")
        a(f"v_and_b32 v{t2}, 7, v{vL}"); a(f"v_lshlrev_b32 v{t2}, 2, v{t2}"); a(f"v_add_u32 v{t2}, {8*SL-32}, v{t2}")
        a("s_waitcnt lgkmcnt(0)"); a("s_barrier")
        a(f"ds_read_b32 v{t1}, v{t2}")
        a(f"s_add_u32 s{T+6}, s{LAY}, 1")
        a("s_waitcnt lgkmcnt(0)")
        a(f"v_cmp_lt_u32 vcc, s{PASS}, v{t1}")
        if not OPT.get("x_nofb"): a("s_cbranch_vccnz L_att_redo")
        self.flag(f"s{FO}", f"s{T+6}")
        self.stamp(9)
        main, self.a = self.a, self.tail
        a("L_att_redo:")
        for i in range(32): a(f"v_mov_b32 v{NM+i}, 0")
        a(f"v_mov_b32 v{PF}, 0xff800000"); a(f"v_mov_b32 v{PF+1}, 0xff800000")
        for q in range(2):
            for i in range(16): a(f"v_mov_b32 v{O[q]+i}, 0")
        a("L_fb_pass:")
        a(f"s_mov_b32 s{IT}, 0")
        a("L_fb_blk:")
        a("s_waitcnt vmcnt(0) lgkmcnt(0)"); a("s_barrier")
        a(f"s_lshl_b32 s{T+7}, s{IT}, 1"); a(f"s_lshr_b32 s{T}, s{WV}, 2"); a(f"s_add_u32 s{T+7}, s{T+7}, s{T}")
        a(f"s_mul_i32 s{T+7}, s{T+7}, 10240"); a(f"s_add_u32 s{T+7}, s{T+7}, s{KVS}")
        for i in range(3): kv_dma1(T+7, 6, i)
        set_addr(6*SL)
        a(f"s_mov_b32 s{T+9}, 0")
        a("s_waitcnt vmcnt(0)"); a("s_barrier")
        a("L_fb_step:")
        a(rdK4(0)); a(rdK(0)); a(EXM); a(rdV(0, 0)); a(rdV(0, 1)); a(EXF)
        a("s_waitcnt lgkmcnt(0)")
        a(m2b(0, vr(NM, 32))); a("s_nop 15"); a("s_nop 1"); a(mk(0, 0)); a(mk(0, 1)); a("s_nop 11")
        a(f"s_cmp_eq_u32 s{PASS}, 0"); a("s_cbranch_scc0 L_fb_sum")
        for q in range(2):
            for i in range(0, 16, 2): a(f"v_max3_f32 v{PF+q}, v{PF+q}, v{S[0]+16*q+i}, v{S[0]+16*q+i+1}")
        a("s_branch L_fb_next")
        a("L_fb_sum:")
        for e in range(32): a(f"v_exp_f32 v{S[0]+e}, v{S[0]+e}")
        a("s_nop 1")
        for i in range(4): a(pv(0, i))
        a("L_fb_next:")
        for r in (AK, AK4, AV): a(f"v_add_u32 v{r}, 2560, v{r}")
        a(f"s_add_u32 s{T+9}, s{T+9}, 1"); a(f"s_cmp_lt_u32 s{T+9}, 4"); a("s_cbranch_scc1 L_fb_step")
        a(f"s_add_u32 s{IT}, s{IT}, 1"); a(f"s_cmp_lt_u32 s{IT}, 8"); a("s_cbranch_scc1 L_fb_blk")
        a("s_nop 15")
        a(f"s_cmp_eq_u32 s{PASS}, 0"); a("s_cbranch_scc0 L_att_fin")
        self.swap_add([PF, PF+1], t0, 32, "v_max_f32")
        a(f"s_lshl_b32 s{T}, s{WV}, 9"); a(f"s_add_u32 s{T}, s{T}, {5*SL}"); a(f"v_lshl_add_u32 v{t0}, v{vL}, 3, s{T}")
        a(f"s_xor_b32 s{T}, s{WV}, 4"); a(f"s_lshl_b32 s{T}, s{T}, 9"); a(f"s_add_u32 s{T}, s{T}, {5*SL}"); a(f"v_lshl_add_u32 v{t1}, v{vL}, 3, s{T}")
        a(f"ds_write_b64 v{t0}, {vr(PF,2)}")
        a("s_waitcnt lgkmcnt(0)"); a("s_barrier")
        a(f"ds_read_b64 {vr(t2,2)}, v{t1}")
        a("s_waitcnt lgkmcnt(0)")
        a(f"v_max_f32 v{PF}, v{PF}, v{t3}"); a(f"v_max_f32 v{PF+1}, v{PF+1}, v{t2}")
        for i in range(32): a(f"v_sub_f32 v{NM+i}, 0, v{PF+(i>>4)}")
        a(f"s_mov_b32 s{PASS}, 1"); a("s_branch L_fb_pass")
        self.a = main

    def chain(self):
        a = self.p
        a(f"s_cmp_ge_u32 s{WV}, 4"); a("s_cbranch_scc1 L_ch_h")
        RA = PB
        BI = PB + 4
        BR = PB + 16
        AC = PB + 48
        P  = PB + 88
        AR = PB + 104
        ring = lambda b, n: [b + 4*i for i in range(n)]
        NF5, NF6 = OPT.get("nf5", 8), OPT.get("nf6", 8)
        F2S = [0, 1, 2, 3, 4, 5, 6, 7, 0, 1, 2, 4]
        def rd80():
            a(f"s_mul_i32 s{T}, s{WK}, 10240"); a(f"v_add_u32 v{RA}, s{T}, v{vL16}")
            a(f"v_add_u32 v{RA+1}, {3*SL}, v{RA}"); a(f"v_add_u32 v{RA+2}, {6*SL}, v{RA}")
        def rdaddr80(slots):
            def f(gs, nb):
                sl = slots[gs // 2]
                return RA + sl // 3, (sl % 3) * SL + (gs & 1) * 5120 + nb * 1024
            return f
        def abase(buf, ks):
            a(f"s_mul_i32 s{T}, s{WK}, {ks//2*1024}"); a(f"s_add_u32 s{T}, s{T}, {hx(buf)}")
            a(f"s_mul_i32 s{A0}, s{RBO}, {HB_}"); a(f"s_add_u32 s{A0}, s{A0}, s{T}")
            a(f"s_xor_b32 s{A1}, s{RBO}, 1"); a(f"s_mul_i32 s{A1}, s{A1}, {HB_}"); a(f"s_add_u32 s{A1}, s{A1}, s{T}")
        IN = OPT.get("in_c", 3)
        RD = OPT.get("rd_o", 6)
        a("s_setprio 1")
        rd80(); abase(OF, 20)
        for i in range(0, 20, 2): a(f"v_mov_b64 {vr(AC+i,2)}, {vr(RES+i,2)}")
        a(f"s_and_b32 s{T+2}, s{FXO}, -256"); a(f"s_lshl_b32 s{T}, s{WK}, 6"); a(f"s_add_u32 s{T+2}, s{T+2}, s{T}"); a(f"s_add_u32 s{T+2}, s{T+2}, 128")
        a(f"s_add_u32 s{T+3}, s{LAY}, 1")
        a(f"v_lshlrev_b32 v{t2}, 2, v{vJ}")
        self.poll(WS, t2, f"s{T+2}", f"s{T+3}")
        self.stamp(10)
        vm = Cnt("vmcnt", 63)
        for gs in range(IN):
            for ls in self.a_loads(gs, RD, AR): a.extend(ls); vm.issue(("A", gs))
        self.gemm(10, 5, RD, AR, ring(BR, NF5), AC, rdaddr80([0, 1, 2, 3, 4]), None, vm, czero=(1,), wgrp=OPT.get("wg5", 2), init=IN)
        self.stamp(11)
        self.exchange(AC, BR, 0)
        a(f"s_lshl_b32 s{T+3}, s{LAY}, 1"); a(f"s_add_u32 s{T+3}, s{T+3}, 2")
        self.xstore(f"s{T+3}", P)
        self.stamp(12)
        RD = OPT.get("rd_1", 6)
        keep = (BR, AC, AR)
        BR = PB + 12; AC = PB + 44; WX = PB + 92; ST = PB + 100; RS = PB + 108; TX = PB + 112; TM = PB + 120; AR = PB + 124
        assert AR + 8*RD <= STH
        a(f"s_lshr_b32 s{T}, s{IDX}, 4"); a(f"s_lshl_b32 s{T}, s{T}, 2"); a(f"s_add_u32 s{T}, s{T}, s{WV}")
        a(f"s_lshl_b32 s{T+2}, s{T}, 8"); a(f"s_add_u32 s{T+2}, s{T+2}, s{FB}")
        a(f"s_and_b32 s{T+4}, s{IDX}, 15")
        a(f"s_lshl_b32 s{FO}, s{T+4}, 2"); a(f"s_add_u32 s{FO}, s{FO}, s{T+2}"); a(f"s_add_u32 s{FO}, s{FO}, 64")
        a(f"s_lshl_b32 s{T+1}, s{G}, 3"); a(f"s_add_u32 s{T}, s{T}, s{T+1}")
        a(f"s_mul_i32 s{A0}, s{T}, {2*XB}"); a(f"s_add_u32 s{A1}, s{A0}, {XB}")
        a(f"s_add_u32 s{T+1}, s{A0}, 20480")
        a(f"s_mul_i32 s{OS}, s{T}, {2*HB_}"); a(f"s_mul_i32 s{T}, s{T+4}, 3072"); a(f"s_add_u32 s{OS}, s{OS}, s{T}"); a(f"s_add_u32 s{OS}, s{OS}, {hx(HF)}")
        a(f"s_mul_i32 s{T+4}, s{T+4}, 192")
        a(f"v_add_u32 v{RA}, {5*SL}, v{vL16}"); a(f"v_add_u32 v{RA+1}, {2*SL}, v{vL16}")
        a(f"v_lshlrev_b32 v{t2}, 2, v{vJ}")
        a(f"v_lshlrev_b32 v{t1}, 1, v{vJ}")
        for nb in range(6): a(f"buffer_load_ushort v{BI+nb}, v{t1}, {sr(B1,4)}, s{T+4} offen offset:{32*nb}")
        self.poll(WS, t2, f"s{T+2}", f"s{T+3}")
        self.stamp(13)
        vm = Cnt("vmcnt", 63)
        for gs in range(IN):
            for ls in self.a_loads(gs, RD, AR): a.extend(ls); vm.issue(("A", gs))
        self.stat_loads(ST, f"s{T+1}", vm)
        a("s_barrier")
        self.stamp(14)
        a(f"s_cmp_lg_u32 s{LAY}, 0"); a("s_cbranch_scc1 L_f1_cs")
        a(f"s_mov_b32 s{T}, {2*SL - 1024}"); a(f"v_lshl_add_u32 v{t2}, v{vJ}, 3, s{T}")
        for nb in range(6): a(f"ds_read_b64 {vr(AC+2*nb,2)}, v{t2} offset:{128*nb}")
        a("s_waitcnt lgkmcnt(0)")
        for nb in range(6): a(f"v_add_f32 v{CS1+nb}, v{AC+2*nb}, v{AC+2*nb+1}")
        a("L_f1_cs:")
        c1 = 2*math.sqrt(2/math.pi)*math.log2(math.e); c2 = c1*0.044715
        def prep():
            a("WAITV:st")
            self.stat_sum(ST, TM); self.stat_math(ST, RS, TX, True)
            a(f"v_mov_b32 v{WX+3}, 0"); a(f"v_mov_b32 v{WX+7}, 0")
            def ext(nb):
                for rb in range(2):
                    d = vr(AC + 4*(6*rb + nb), 4)
                    a(f"v_mfma_f32_16x16x32_bf16 {d}, {vr(WX+4*(nb&1),4)}, {vr(TX+4*rb,4)}, {d}")
            for nb in range(6):
                c = CS1 + nb; x = WX + 4*(nb & 1)
                a(f"v_cvt_pk_bf16_f32 v{x}, v{c}, v{c}"); a(f"v_and_b32 v{TM}, 0xffff0000, v{x}"); a(f"v_sub_f32 v{TM}, v{c}, v{TM}")
                if nb: ext(nb - 1)
                a(f"v_and_b32 v{x+1}, 0xffff, v{x}"); a(f"v_cvt_pk_bf16_f32 v{x}, v{c}, v{TM}")
                a(f"v_lshl_or_b32 v{x+1}, v{BI+nb}, 16, v{x+1}"); a(f"v_mov_b32 v{x+2}, v{BI+nb}")
            for rb in range(2):
                a(f"v_mul_f32 v{ST+4*rb}, {hx(f2u(-c1))}, v{RS+rb}"); a(f"v_mul_f32 v{TM}, v{RS+rb}, v{RS+rb}")
                a(f"v_mul_f32 v{TM}, {hx(f2u(0.044715))}, v{TM}"); a(f"v_mul_f32 v{ST+4*rb+2}, v{TM}, v{ST+4*rb}")
                a(f"v_mov_b32 v{ST+4*rb+1}, v{ST+4*rb}"); a(f"v_mov_b32 v{ST+4*rb+3}, v{ST+4*rb+2}")
            ext(5)
            a(f"v_rcp_f32 v{RS+2}, v{RS+1}"); a(f"v_rcp_f32 v{RS}, v{RS}"); a(f"s_add_u32 s{T+2}, s{OS}, {HB_}")
            a(f"v_mov_b32 v{RS+3}, v{RS+2}"); a(f"v_mov_b32 v{RS+1}, v{RS}")
        self.gemm(20, 6, RD, AR, ring(BR, NF6), AC, lambda gs, nb: (RA + gs // 10, (gs % 10)*6144 + nb*1024), None, vm,
                  extra={OPT.get("x_prep", IN + 1): self.capture(prep)}, wgrp=OPT.get("wg6", 2), init=IN)
        a("s_barrier")
        self.stamp(15)
        TM = AR
        for kp in range(3):
            for rb in range(2):
                r = AC + 4*(6*rb + 2*kp); p = BR + 4*(2*kp + rb)
                for i in range(4): a(f"v_pk_mul_f32 {vr(TM+2*i,2)}, {vr(r+2*i,2)}, {vr(r+2*i,2)}")
                for i in range(4): a(f"v_pk_fma_f32 {vr(TM+2*i,2)}, {vr(TM+2*i,2)}, {vr(ST+4*rb+2,2)}, {vr(ST+4*rb,2)}")
                for i in range(4): a(f"v_pk_mul_f32 {vr(TM+2*i,2)}, {vr(TM+2*i,2)}, {vr(r+2*i,2)}")
                for i in range(8): a(f"v_exp_f32 v{TM+i}, v{TM+i}")
                for i in range(4): a(f"v_pk_fma_f32 {vr(TM+2*i,2)}, {vr(TM+2*i,2)}, {vr(RS+2*rb,2)}, {vr(RS+2*rb,2)}")
                for i in range(8): a(f"v_rcp_f32 v{TM+i}, v{TM+i}")
                for i in range(4): a(f"v_pk_mul_f32 {vr(r+2*i,2)}, {vr(r+2*i,2)}, {vr(TM+2*i,2)}")
                for i in range(4): a(f"v_cvt_pk_bf16_f32 v{p+i}, v{r+2*i}, v{r+2*i+1}")
                self.mstore([f"buffer_store_dwordx4 {vr(p,4)}, v{vL16}, {sr(WS,4)}, s{OS if rb == 0 else T+2} offen offset:{1024*kp}"])
        a(f"s_add_u32 s{T+3}, s{LAY}, 1")
        self.flag(f"s{FO}", f"s{T+3}")
        self.stamp(16)
        RD = OPT.get("rd_2", 8)
        BR, AC, AR = keep
        rd80(); abase(HF, 48)
        a(f"v_lshlrev_b32 v{t1}, 3, v{vG}")
        for nb in range(5): a(f"buffer_load_dwordx2 {vr(BI+2*nb,2)}, v{t1}, {sr(B2,4)}, s{COL+nb} offen")
        a(f"s_and_b32 s{T+2}, s{FXO}, -256"); a(f"s_lshl_b32 s{T}, s{WK}, 5"); a(f"s_add_u32 s{T+2}, s{T+2}, s{T}"); a(f"s_add_u32 s{T+2}, s{T+2}, 64")
        a(f"v_and_b32 v{t2}, 7, v{vL}"); a(f"v_lshlrev_b32 v{t2}, 2, v{t2}")
        self.poll(WS, t2, f"s{T+2}", f"s{T+3}")
        self.stamp(17)
        vm = Cnt("vmcnt", 63)
        for gs in range(IN):
            for ls in self.a_loads(gs, RD, AR): a.extend(ls); vm.issue(("A", gs))
        for i in range(10):
            a(f"v_lshlrev_b32 v{t0}, 16, v{BI+i}"); a(f"v_and_b32 v{t1}, 0xffff0000, v{BI+i}")
            a(f"v_pk_add_f32 {vr(AC+2*i,2)}, {vr(RES+2*i,2)}, {vr(t0,2)}")
        a("s_barrier")
        self.stamp(18)
        B_ = ["s_barrier"]
        self.gemm(24, 5, RD, AR, ring(BR, NF5), AC, rdaddr80(F2S), None, vm, bars={6: B_, 14: B_, 20: B_}, czero=(1,), wgrp=OPT.get("wg5", 2), init=IN)
        self.stamp(19)
        self.exchange(AC, BR, 7)
        a(f"s_cmp_lg_u32 s{LAY}, 0"); a("s_cbranch_scc1 L_out")
        self.xstore("3", P)
        a("s_setprio 0")
        self.unstash()
        self.stamp(20); self.stamp_dump()
        a(f"s_mov_b32 s{LAY}, 1"); a("s_branch L_qkv1")
        a("L_out:")
        a(f"v_mul_u32_u24 v{t0}, 1280, v{vJ}"); a(f"v_lshl_add_u32 v{t0}, v{vG}, 3, v{t0}")
        a(f"s_mul_i32 s{T}, s{RBO}, 20480"); a(f"v_add_u32 v{t0}, s{T}, v{t0}")
        for nb in range(5):
            a(f"v_cvt_pk_bf16_f32 v{P+2*nb}, v{RES+4*nb}, v{RES+4*nb+1}"); a(f"v_cvt_pk_bf16_f32 v{P+2*nb+1}, v{RES+4*nb+2}, v{RES+4*nb+3}")
            a(f"buffer_store_dwordx2 {vr(P+2*nb,2)}, v{t0}, {sr(OUT,4)}, s{COL+nb} offen")
        if OPT["stamp"]: a("s_waitcnt vmcnt(0)")
        self.stamp(20); self.stamp_dump()
        a("s_endpgm")

        a("L_ch_h:")
        HB = PB + 4
        HC = PB + 28
        HO = T + 8
        vm = Cnt("vmcnt", 63)
        h0, h1, hg, h2 = OPT.get("ht", (6, 1, 6, 6))
        HT = {None: h0, 0: h1, 1: h1, 2: hg, 3: hg, 4: hg, 5: hg, 6: hg, 7: hg}
        def lin(src, lds, tag):
            if tag in OPT.get("x_skip", ()):
                vm.issue(tag); return
            if OPT.get("x_fake"): src %= SL
            a(f"s_add_u32 m0, s{HO}, {lds}"); a(f"s_add_u32 s{T}, s{DS}, {src}")
            a(f"buffer_load_dwordx4 v{vL16}, {sr(WS,4)}, s{T} offen sc1 lds"); vm.issue(tag)
            ht = HT.get(tag, HT[None])
            if ht is not None: a(f"s_waitcnt vmcnt({ht})")
        def tilebase(buf, sreg, nbytes):
            a(f"s_mul_i32 s{DS}, s{sreg}, {nbytes}"); a(f"s_add_u32 s{DS}, s{DS}, s{HO}"); a(f"s_add_u32 s{DS}, s{DS}, {hx(buf)}")
        def colsum(half, n0, n1):
            l = self.lab("cs")
            a(f"s_cmp_lg_u32 s{LAY}, 0"); a(f"s_cbranch_scc1 {l}")
            a("s_waitcnt vmcnt(0)")
            a(f"s_add_u32 s{T}, s{HO}, {(5*SL, 2*SL)[half]}"); a(f"v_add_u32 v{t0}, s{T}, v{vL16}")
            for n in range(n0, n1, 6):
                grp = list(range(n, min(n + 6, n1)))
                for u, m in enumerate(grp): a(f"ds_read_b128 {vr(HB+4*u,4)}, v{t0} offset:{m*4096}")
                a("s_waitcnt lgkmcnt(0)")
                for i in range(4):
                    for u, m in enumerate(grp): a(f"v_dot2_f32_bf16 v{HC+m%3}, v{HB+4*u+i}, v{HC+3}, v{HC+m%3}")
            if half == 1:
                a("s_nop 2")
                cs = [HC+m for m in range(3)]
                self.swap_add(cs, HB, 16); self.swap_add(cs, HB, 32)
                a(f"s_lshr_b32 s{T+1}, s{HW}, 1"); a(f"s_lshl_b32 s{T+1}, s{T+1}, 2"); a(f"s_add_u32 s{T+1}, s{T+1}, {2*SL - 1024}")
                for m in range(3):
                    a(f"s_add_u32 s{T}, s{HW}, {4*m % 6}"); a(f"s_cmp_ge_u32 s{T}, 6"); a(f"s_cselect_b32 s{T+2}, 6, 0"); a(f"s_sub_u32 s{T}, s{T}, s{T+2}")
                    a(f"s_lshl_b32 s{T}, s{T}, 7"); a(f"s_add_u32 s{T}, s{T}, s{T+1}"); a(f"v_lshl_add_u32 v{t0}, v{vJ}, 3, s{T}")
                    a(f"ds_write_b32 v{t0}, v{HC+m}")
                a("s_waitcnt lgkmcnt(0)")
            a(f"{l}:")
        SP = T + 9
        spos = [OPT.get("sp0", 4)]
        def smem(nit):
            for _ in range(nit):
                if spos[0] >= 12: return
                for u in range(20): a(f"s_buffer_load_dword s{89 + u % 4}, {sr(WS,4)}, s{SP} offset:{spos[0]*SL + 64*u}")
                spos[0] += 1
        a(f"s_lshl_b32 s{HO}, s{HW}, 10")
        a(f"s_lshr_b32 s{SP}, s{IDX}, 3"); a(f"s_lshl_b32 s{SP}, s{SP}, 2"); a(f"s_add_u32 s{SP}, s{SP}, s{HW}"); a(f"s_mul_i32 s{SP}, s{SP}, 1280")
        a(f"s_mul_i32 s{T}, s{NT}, {240*1024}"); a(f"s_add_u32 s{SP}, s{SP}, s{T}"); a(f"s_add_u32 s{SP}, s{SP}, {hx(PK2)}")
        for m in range(3): a(f"v_mov_b32 v{HC+m}, 0")
        a(f"v_mov_b32 v{HC+3}, 0x3f803f80")
        sm = OPT.get("sm", (0, 0, 0, 0, 0))
        a(f"s_and_b32 s{T+1}, s{IDX}, 15"); tilebase(PK1, T+1, 120*1024)
        for n in range(14): lin(n*4096, 5*SL + n*4096, "w1")
        colsum(0, 0, 14)
        smem(sm[0])
        a("s_barrier")
        n12 = OPT.get("n12", 4)
        for n in range(n12): lin(61440 + n*4096, 2*SL + n*4096, "w1")
        a("s_barrier")
        lin(14*4096, 5*SL + 14*4096, "w1")
        for n in range(n12, 15): lin(61440 + n*4096, 2*SL + n*4096, "w1")
        smem(sm[1])
        a(vm.wait("w1"))
        colsum(0, 14, 15); colsum(1, 0, 15)
        tilebase(PK2, NT, 240*1024)
        def w2it(it, pieces=range(5)):
            for i in pieces: lin(it*SL + i*4096, F2S[it]*SL + i*4096, it)
        SG = PB + 40
        def stage(n0, n1):
            for n in range(n0, n1):
                if "s" in OPT.get("x_skip", ()):
                    vm.issue("s"); continue
                src = 8*SL + n*4096
                if OPT.get("x_fake"): src %= SL
                a(f"s_add_u32 s{T}, s{DS}, {src}")
                a(f"buffer_load_dwordx4 {vr(SG+4*n,4)}, v{vL16}, {sr(WS,4)}, s{T} offen sc1"); vm.issue("s")
                if h2 is not None: a(f"s_waitcnt vmcnt({h2})")
        def unstage(it):
            a(f"s_add_u32 s{T}, s{HO}, {F2S[it]*SL}"); a(f"v_add_u32 v{t0}, s{T}, v{vL16}")
            for i in range(5): a(f"ds_write_b128 v{t0}, {vr(SG+20*(it-8)+4*i,4)} offset:{4096*i}")
        nf1, ns1 = OPT.get("nf1", 9), OPT.get("ns1", 0)
        pcs = [(it, i) for it in range(8) for i in range(5)]
        a("s_barrier")
        smem(sm[2])
        for it, i in pcs[:nf1]: w2it(it, (i,))
        stage(0, ns1)
        smem(sm[3])
        a("s_barrier")
        for it, i in pcs[nf1:]: w2it(it, (i,))
        ng = OPT.get("ng", 20)
        stage(ns1, ng)
        a(vm.wait(3)); a("s_barrier")
        stage(ng, 20)
        a(vm.wait(7)); a("s_barrier")
        a(vm.wait("s"))
        for it in (8, 9, 10): unstage(it)
        a("s_waitcnt lgkmcnt(0)"); a("s_barrier")
        unstage(11)
        a("s_waitcnt lgkmcnt(0)"); a("s_barrier")
        a(f"s_cmp_lg_u32 s{LAY}, 0"); a("s_cbranch_scc1 L_h_last")
        a("s_barrier"); a("s_barrier")
        self.unstash()
        self.stamp_dump()
        a(f"s_mov_b32 s{LAY}, 1"); a("s_branch L_qkv1")
        a("L_h_last:")
        a("s_barrier"); a("s_barrier")
        self.stamp_dump()
        a("L_end:")
        a("s_endpgm")

def build(**opt):
    OPT.update(opt)
    g = Gen()
    g.entry(); g.qkv(); g.attention(); g.chain()
    a = g.a
    a.lines += g.tail.lines
    for (l0, l1), pats in OPT.get("x_drop", {}).items():
        i0 = a.lines.index(l0 + ":"); i1 = a.lines.index(l1 + ":")
        a.lines[i0:i1] = [("s_nop 0" if OPT.get("x_nop") else "") if any(l.startswith(p) for p in pats) else l for l in a.lines[i0:i1]]
        a.lines = [l for l in a.lines if l]
    a("L_last:"); a("s_endpgm")
    probs = check_hazards(a.lines)
    if probs and not OPT.get("x_drop"):
        print("\n".join(probs), file=sys.stderr); raise SystemExit("hazards")
    hdr = open("cdna_kernels/" + NAME + ".s.ref").read().split("; Override launch")[0]
    s = hdr + "; @launch grid=(256,1,1) block=(512,1,1) lds=163840\n" + '.amdgcn_target "amdgcn-amd-amdhsa--gfx950"\n.text\n'
    s += f".globl {NAME}_kernel\n.type {NAME}_kernel,@function\n" + a.text()
    s += f""".section .rodata,"a"
.p2align 6
.amdhsa_kernel {NAME}_kernel
  .amdhsa_next_free_vgpr 256
  .amdhsa_next_free_sgpr 102
  .amdhsa_accum_offset 256
  .amdhsa_group_segment_fixed_size 0
  .amdhsa_kernarg_size 88
  .amdhsa_user_sgpr_count 2
  .amdhsa_user_sgpr_kernarg_segment_ptr 1
  .amdhsa_system_sgpr_workgroup_id_x 1
.end_amdhsa_kernel
"""
    return s

if __name__ == "__main__":
    out = sys.argv[1]
    opt = {}
    for x in sys.argv[2:]:
        k, v = x.split("=", 1); opt[k] = eval(v)
    open(out, "w").write(build(**opt))
```

```python
import sys, math, struct
from asmlib import *

NAME = "interleave_layers__softmax_full_mha__dense_activation_gelu__prompt"
OPT = dict(stamp=False, forceslow=False)

XF   = 0x0
HF   = 0x300000
XB   = 21504
HB_  = 50176
OF   = HF
KVF  = lambda l: 0xB00000 + l * 0x500000
FLG  = 0x1520000
PK1  = 0x1600000
PK2  = 0x1800000
PKO  = 0x1A00000
STAMPS = 0x4000000
WS_BYTES = 0x10000000
KA = dict(x=0, wqkv=8, wo=16, w1=32, b1=40, w2=48, b2=56, out=64, dbg=72, ws=80)
SZ = dict(x=2048*640*2, wqkv=640*1920*2, wo=640*640*2, w1=640*1536*2, b1=1536*2, w2=1536*640*2, b2=640*2, out=2048*640*2, ws=WS_BYTES, dbg=256)
SL = 20480

def f2u(x): return struct.unpack("<I", struct.pack("<f", x))[0]
def hx(x): return f"0x{x & 0xffffffff:x}"

class Cnt:
    def __init__(self, name, mx): self.q = []; self.name = name; self.mx = mx; self.done = 0
    def issue(self, tag):
        self.q.append(tag)
        assert self.name == "lgkmcnt" or len(self.q) - self.done <= self.mx, (self.name, "too many outstanding")
    def wait(self, *tags):
        last = max((i for i, t in enumerate(self.q) if t in tags), default=-1)
        assert last >= 0, tags
        if last < self.done: return ""
        n = min(len(self.q) - 1 - last, self.mx)
        self.done = len(self.q) - n
        return f"s_waitcnt {self.name}({n})"

LAY = 3
WS, WQ, WO, W1, W2, B1, B2, XIN, OUT, DBG = 4, 8, 12, 16, 20, 24, 28, 32, 36, 40
G, IDX, WV, FAST, BUD, NT, ODD, WM, WK, HW = range(44, 54)
COL = 54
XA, XS, STO, FXO, RBO = 59, 60, 61, 62, 63
VMK = 64
T = 66
FB = 80
A0, A1, DS, IT, KVS, PASS, OS, FO = 81, 82, 83, 84, 85, 86, 87, 88
KH = 93
vL, vL16, vJ, vG, t0, t1, t2, t3 = 0, 1, 2, 3, 4, 5, 6, 7
RES = 8
CSQ = 28
CS1 = 32
PB = 40
STH = 212

class Proxy:
    def __init__(self, g): self.g = g
    def __call__(self, s): self.g.a(s)
    def extend(self, ls): self.g.a.extend(ls)

class Gen:
    def __init__(self):
        self.a = Asm(); self.tail = Asm(); self.nlab = 0; self.p = Proxy(self)
    def lab(self, s):
        self.nlab += 1; return f"L{self.nlab}_{s}"
    def stamp(self, i):
        if not OPT["stamp"]: return
        a = self.a
        a("s_memrealtime s[96:97]"); a("s_memtime s[98:99]"); a("s_waitcnt lgkmcnt(0)")
        a(f"v_writelane_b32 v254, s96, {i}"); a(f"v_writelane_b32 v255, s98, {i}")
    def stamp_dump(self):
        if not OPT["stamp"]: return
        a = self.a
        a(f"s_lshl_b32 s96, s2, 3"); a(f"s_add_u32 s96, s96, s{WV}"); a("s_lshl_b32 s96, s96, 1"); a(f"s_add_u32 s96, s96, s{LAY}")
        a("s_lshl_b32 s96, s96, 9"); a(f"s_add_u32 s96, s96, {hx(STAMPS)}")
        a(f"v_lshlrev_b32 v253, 3, v{vL}")
        a(f"buffer_store_dwordx2 v[254:255], v253, {sr(WS,4)}, s96 offen")
    def mstore(self, lines, force=None):
        a = self.a
        sc = lambda l: l + " sc1" if l.startswith("buffer_store") else l
        if force == "sc1":
            for l in lines: a(sc(l))
            return
        ls, lb = self.lab("slow"), self.lab("back")
        a(f"s_cmp_eq_u32 s{FAST}, 0"); a(f"s_cbranch_scc1 {ls}")
        for l in lines: a(l + " " + OPT.get("fastmod", "") if l.startswith(("buffer_store_dwordx4", "buffer_store_dwordx2")) else l)
        a(f"{lb}:")
        self.tail(f"{ls}:")
        for l in lines: self.tail(sc(l))
        self.tail(f"s_branch {lb}")
    def flag(self, soff, sval, force=None, shadow=None):
        a = self.a
        if shadow: shadow()
        a(f"v_mov_b32 v{t0}, {sval}"); a(f"v_mov_b32 v{t1}, 0")
        a("s_waitcnt vmcnt(0)")
        a("s_mov_b64 exec, 1")
        self.mstore([f"buffer_store_dword v{t0}, v{t1}, {sr(WS,4)}, {soff} offen"], force)
        a("s_mov_b64 exec, -1")
    def poll(self, srd, vaddr, soff, starget, issued=False):
        a = self.a
        lp, ld, lc = self.lab("poll"), self.lab("seen"), self.lab("chk")
        if issued: a(f"s_branch {lc}")
        a(f"{lp}:")
        a(f"buffer_load_dword v{t3}, v{vaddr}, {sr(srd,4)}, {soff} offen sc1")
        a(f"{lc}:")
        a("s_waitcnt vmcnt(0)")
        a(f"v_cmp_gt_u32 vcc, {starget}, v{t3}")
        a(f"s_cbranch_vccz {ld}")
        a(f"s_sub_u32 s{BUD}, s{BUD}, 1"); a(f"s_cbranch_scc0 {lp}")
        a(f"s_mov_b32 s{BUD}, 0")
        a(f"{ld}:")
    def swap_add(self, vs, tmp, which, op="v_add_f32"):
        a = self.a
        for i, v in enumerate(vs): a(f"v_mov_b32 v{tmp+i}, v{v}")
        a("s_nop 1")
        for i, v in enumerate(vs): a(f"v_permlane{which}_swap_b32 v{v}, v{tmp+i}")
        if len(vs) < 2: a("s_nop 0")
        for i, v in enumerate(vs): a(f"{op} v{v}, v{v}, v{tmp+i}")

    def dma_addr(self, dst, n, kind):
        a = self.a
        upr, mul, sh = (12, 171, 11) if kind == "w1" else (10, 205, 11)
        ld = dict(wq=3840, w1=3072, w80=1280)[kind]
        for i in range(n):
            a(f"v_add_u32 v{t0}, {64*i}, v{vL}")
            a(f"v_mul_u32_u24 v{t1}, {mul}, v{t0}"); a(f"v_lshrrev_b32 v{t1}, {sh}, v{t1}")
            a(f"v_mul_u32_u24 v{t2}, {upr}, v{t1}"); a(f"v_sub_u32 v{t0}, v{t0}, v{t2}")
            a(f"v_mul_u32_u24 v{t1}, {ld}, v{t1}")
            if kind == "wq":
                a(f"v_min_u32 v{t0}, 8, v{t0}")
                a(f"v_mul_u32_u24 v{t2}, 11, v{t0}"); a(f"v_lshrrev_b32 v{t2}, 5, v{t2}"); a(f"v_min_u32 v{t2}, 2, v{t2}")
                a(f"v_mul_u32_u24 v{t2}, 1232, v{t2}"); a(f"v_add_u32 v{t1}, v{t1}, v{t2}")
            elif kind == "w80":
                a(f"v_lshl_add_u32 v{t0}, s{ODD}, 1, v{t0}")
                a(f"v_subrev_u32 v{t2}, 10, v{t0}"); a(f"v_min_u32 v{t0}, v{t0}, v{t2}")
            a(f"v_lshl_add_u32 v{dst+i}, v{t0}, 4, v{t1}")
    def dma(self, vaddr, srd, soff, m0base, m0imm, mods=""):
        return [f"s_add_u32 m0, {m0base}, {m0imm}", "s_nop 0", f"buffer_load_dwordx4 v{vaddr}, {sr(srd,4)}, {soff} offen {mods} lds".replace("  ", " ")]

    def stat_loads(self, ST, soff, vm):
        a = self.p
        a(f"v_lshrrev_b32 v{t1}, 1, v{vG}"); a(f"v_mul_u32_u24 v{t1}, {XB-1024}, v{t1}"); a(f"v_lshl_add_u32 v{t1}, v{vG}, 9, v{t1}"); a(f"v_lshl_add_u32 v{t1}, v{vJ}, 4, v{t1}")
        for u in range(2):
            a(f"buffer_load_dwordx4 {vr(ST+4*u,4)}, v{t1}, {sr(WS,4)}, {soff} offen offset:{256*u} sc1"); vm.issue("st")
    def stat_sum(self, ST, tmp):
        a = self.p
        for u in (2, 4, 6):
            for i in range(2): a(f"v_add_f32 v{ST+i}, v{ST+i}, v{ST+u+i}")
        self.swap_add([ST, ST+1], tmp, 16)
    def stat_math(self, ST, RS, TX, bias, halves=False):
        a = self.p
        s, v, r, u = ST, ST+1, ST+2, ST+3
        x = ST + 4
        a(f"v_mul_f32 v{s}, {hx(f2u(-1.0/640))}, v{s}"); a(f"v_mul_f32 v{v}, {hx(f2u(1.0/640))}, v{v}")
        if halves: a(f"v_cmp_gt_u32 vcc, 2, v{vG}"); a(f"v_cmp_le_u32 {sr(T+2,2)}, 2, v{vG}")
        else: a(f"v_cmp_eq_u32 vcc, 0, v{vG}"); a(f"v_cmp_eq_u32 {sr(T+2,2)}, 2, v{vG}")
        a(f"v_fma_f32 v{v}, -v{s}, v{s}, v{v}")
        a(f"v_max_f32 v{v}, 0, v{v}"); a(f"v_add_f32 v{v}, {hx(f2u(1e-5))}, v{v}")
        a(f"v_rsq_f32 v{r}, v{v}")
        a(f"v_cvt_pk_bf16_f32 v{x}, v{s}, v{s}"); a(f"v_and_b32 v{u}, 0xffff0000, v{x}"); a(f"v_sub_f32 v{u}, v{s}, v{u}")
        a(f"v_mov_b32 v{RS}, v{r}"); a(f"v_mov_b32 v{RS+1}, v{r}")
        if bias:
            a(f"v_mul_f32 v{v}, v{v}, v{r}")
            a(f"v_cvt_pk_bf16_f32 v{x+1}, v{u}, v{v}"); a(f"v_and_b32 v{u}, 0xffff0000, v{x+1}"); a(f"v_sub_f32 v{u}, v{v}, v{u}")
            a(f"v_cvt_pk_bf16_f32 v{x+2}, v{u}, 0")
        else:
            a(f"v_cvt_pk_bf16_f32 v{x+1}, v{u}, 0"); a("s_nop 0")
        a(f"v_permlane32_swap_b32 v{RS}, v{RS+1}")
        for rb in range(2):
            m = "vcc" if rb == 0 else sr(T+2, 2)
            for i in range(3 if bias else 2): a(f"v_cndmask_b32 v{TX+4*rb+i}, 0, v{x+i}, {m}")
            a(f"v_mov_b32 v{TX+4*rb+3}, 0" if bias else f"v_mov_b64 {vr(TX+4*rb+2,2)}, 0")

    def a_loads(self, gs, RD, AR):
        out = []
        for rb in range(2):
            sa = A0 + rb
            ls = [f"buffer_load_dwordx4 {vr(AR + 8*(gs % RD) + 4*rb, 4)}, v{vL16}, {sr(WS,4)}, s{sa} offen offset:{1024*(gs % 4)} sc1"]
            if gs % 4 == 3: ls.append(f"s_add_u32 s{sa}, s{sa}, 4096")
            out.append(ls)
        return out
    def capture(self, fn):
        main, self.a = self.a, Asm()
        fn()
        out, self.a = self.a.lines, main
        return out
    def gemm(self, NS, NB, RD, AR, BR, AC, rdaddr, second, vm, bars={}, std=(), czero=(0, 1), extra={}, wgrp=1, xper=1, init=None, lper=3, cinit=None, areg={}, tail=None):
        a = self.a
        lg = Cnt("lgkmcnt", 15)
        NF = len(BR)
        breg = lambda gs, nb: BR[(gs*NB + nb) % NF]
        def reads(n):
            if n >= NS*NB: return []
            gs, nb = divmod(n, NB)
            v, off = rdaddr(gs, nb)
            return [(f"ds_read_b128 {vr(breg(gs, nb),4)}, v{v} offset:{off}", (gs, nb))]
        def emit_x(l):
            if l == "WAITX": a(lg.wait("x")); return
            if l.startswith("WAITV:"): a(vm.wait(l[6:])); return
            a(l)
            if l.startswith("ds_"): lg.issue("x")
        for n in range(NF):
            for l, tg in reads(n): a(l); lg.issue(tg)
        pr, ex = [], []
        allA = [(ls, ("A", g)) for g in range(NS) if g not in areg for ls in self.a_loads(g, RD, AR)][2*init:]
        lpos = [(i * NB) // lper for i in range(lper)]
        for gs in range(NS):
            if gs in bars:
                while pr:
                    l, tg = pr.pop(0); a(l); lg.issue(tg)
                for l in bars[gs]: a(l)
            if gs not in areg: a(vm.wait(("A", gs)))
            else:
                for l in ex: emit_x(l)
                ex = []
            if tail is not None and gs == NS - 1:
                a(lg.wait(*[(gs, n) for n in range(NB)]))
                tl = list(tail)
                for rb in (1, 0):
                    for nb in range(NB):
                        d = vr(AC + 4*(NB*rb + nb), 4)
                        a(f"v_mfma_f32_16x16x32_bf16 {d}, {vr(breg(gs, nb), 4)}, {vr(AR + 8*(gs % RD) + 4*rb, 4)}, {d}")
                        if rb == 0 and nb >= 3 and tl: a(tl.pop(0))
                for l in tl: a(l)
                break
            ex += list(extra.get(gs, []))
            for nb in range(NB):
                if nb % wgrp == 0:
                    tags = [(gs, n) for n in range(nb, min(nb + wgrp, NB))]
                    while any(tg in tags for _, tg in pr):
                        l, tg = pr.pop(0); a(l); lg.issue(tg)
                    a(lg.wait(*tags))
                for rb in range(2):
                    d = vr(AC + 4*(NB*rb + nb), 4)
                    c = "0" if (gs == 0 and rb in czero) else vr(cinit + 4*nb, 4) if (gs == 0 and cinit is not None) else d
                    w, x = vr(breg(gs, nb), 4), vr((areg[gs] if gs in areg else AR + 8*(gs % RD)) + 4*rb, 4)
                    p, q = (x, w) if nb in std else (w, x)
                    a(f"v_mfma_f32_16x16x32_bf16 {d}, {p}, {q}, {c}")
                    if rb == 1: pr += reads(gs*NB + nb + NF)
                    if pr:
                        l, tg = pr.pop(0); a(l); lg.issue(tg)
                    if rb == 0 and nb in lpos and allA and allA[0][1][1] <= gs + RD - 1:
                        ls, tg = allA.pop(0); a.extend(ls); vm.issue(tg)
                    else:
                        for _ in range(xper):
                            if ex: emit_x(ex.pop(0))
        for l in ex: emit_x(l)
        return lg

    def xstore(self, sval, P, force=None, before_flag=None, packed=False):
        a = self.a
        if not packed:
            for i in range(10): a(f"v_cvt_pk_bf16_f32 v{P+i}, v{RES+2*i}, v{RES+2*i+1}")
        self.mstore([f"buffer_store_dwordx4 {vr(P,4)}, v{vL16}, {sr(WS,4)}, s{XA} offen",
                     f"buffer_store_dwordx4 {vr(P+4,4)}, v{vL16}, {sr(WS,4)}, s{XA} offen offset:1024",
                     f"buffer_store_dwordx2 {vr(P+8,2)}, v{vL16}, {sr(WS,4)}, s{XS} offen"], force)
        a(f"v_mov_b32 v{P+14}, 0x3f803f80")
        for i in range(10):
            u = P + 10 + 2*(i & 1)
            a(f"v_dot2_f32_bf16 v{u+1}, v{P+i}, v{P+i}, {'0' if i < 2 else 'v%d' % (u+1)}")
            a(f"v_dot2_f32_bf16 v{u}, v{P+i}, v{P+14}, {'0' if i < 2 else 'v%d' % u}")
        a(f"v_lshlrev_b32 v{t0}, 2, v{vG}"); a(f"v_lshl_add_u32 v{t0}, v{vJ}, 4, v{t0}"); a("s_nop 0")
        a(f"v_pk_add_f32 {vr(P+10,2)}, {vr(P+10,2)}, {vr(P+12,2)}"); a("s_nop 1")
        a(f"v_permlane16_swap_b32 v{P+10}, v{P+11}"); a("s_nop 0")
        a(f"v_add_f32 v{P+10}, v{P+10}, v{P+11}")
        self.swap_add([P+10], P+11, 32)
        a("s_mov_b32 exec_hi, 0")
        self.mstore([f"buffer_store_dword v{P+10}, v{t0}, {sr(WS,4)}, s{STO} offen"], force)
        a("s_mov_b64 exec, -1")
        self.flag(f"s{FXO}", sval, force, before_flag)

    def entry(self):
        a = self.p
        a(".p2align 8"); a(f"{NAME}_kernel:")
        a("s_cmp_ge_u32 s2, 256"); a("s_cbranch_scc1 L_end")
        srds = [("ws", WS), ("x", XIN), ("wqkv", WQ), ("dbg", DBG), ("wo", WO), ("w1", W1), ("w2", W2), ("b1", B1), ("b2", B2), ("out", OUT)]
        for n, s in srds: a(f"s_load_dwordx2 {sr(s,2)}, s[0:1], {KA[n]}")
        for n, s in srds:
            a(f"s_mov_b32 s{s+2}, {hx(SZ[n])}"); a(f"s_mov_b32 s{s+3}, 0x00020000")
        a(f"v_lshrrev_b32 v{t0}, 6, v0"); a(f"v_and_b32 v{vL}, 63, v0"); a(f"v_readfirstlane_b32 s{WV}, v{t0}")
        a(f"v_lshlrev_b32 v{vL16}, 4, v{vL}"); a(f"v_and_b32 v{vJ}, 15, v{vL}"); a(f"v_lshrrev_b32 v{vG}, 4, v{vL}")
        a(f"v_mov_b32 v{PB+9}, 0")
        if OPT["stamp"]:
            a("v_mov_b32 v254, 0"); a("v_mov_b32 v255, 0")
        a(f"s_and_b32 s{G}, s2, 7"); a(f"s_lshr_b32 s{IDX}, s2, 3")
        a(f"s_mov_b32 s{FAST}, 0"); a(f"s_mov_b32 s{BUD}, 0x80000"); a(f"s_mov_b32 s{LAY}, 0")
        a(f"s_and_b32 s{NT}, s{IDX}, 7"); a(f"s_and_b32 s{ODD}, s{IDX}, 1")
        a(f"s_and_b32 s{WM}, s{WV}, 1"); a(f"s_bfe_u32 s{WK}, s{WV}, 0x10001"); a(f"s_and_b32 s{HW}, s{WV}, 3")
        a(f"s_mov_b32 s{VMK}, 0x000fffff"); a(f"s_mov_b32 s{VMK+1}, 0x000fffff")
        a(f"s_lshl_b32 s{FB}, s{G}, 13"); a(f"s_add_u32 s{FB}, s{FB}, {hx(FLG)}")
        a(f"s_mul_i32 s{T}, s{NT}, 160"); a(f"s_lshl_b32 s{T+1}, s{ODD}, 5"); a(f"s_add_u32 s{COL}, s{T}, s{T+1}")
        for i in range(1, 4): a(f"s_add_u32 s{COL+i}, s{COL}, {32*i}")
        a(f"s_add_u32 s{COL+4}, s{T}, 128"); a(f"s_cmp_eq_u32 s{ODD}, 1"); a(f"s_cmov_b32 s{COL+4}, s{T}")
        a(f"s_bfe_u32 s{KH}, s{IDX}, 0x10003")
        a(f"s_lshr_b32 s{T}, s{IDX}, 4"); a(f"s_lshl_b32 s{T}, s{T}, 2"); a(f"s_add_u32 s{T}, s{T}, s{HW}")
        a(f"s_lshl_b32 s{FXO}, s{T}, 8"); a(f"s_add_u32 s{FXO}, s{FXO}, s{FB}")
        a(f"s_lshl_b32 s{T+1}, s{NT}, 1"); a(f"s_add_u32 s{T+1}, s{T+1}, s{KH}"); a(f"s_lshl_b32 s{T+1}, s{T+1}, 2"); a(f"s_add_u32 s{FXO}, s{FXO}, s{T+1}")
        a(f"s_lshl_b32 s{RBO}, s{G}, 3"); a(f"s_add_u32 s{RBO}, s{RBO}, s{T}"); a(f"s_lshl_b32 s{RBO}, s{RBO}, 1"); a(f"s_add_u32 s{RBO}, s{RBO}, s{KH}")
        a(f"s_lshr_b32 s{T}, s{NT}, 1"); a(f"s_mul_i32 s{T+1}, s{T}, 5120"); a(f"s_mul_i32 s{T+2}, s{RBO}, {XB}"); a(f"s_add_u32 s{T+1}, s{T+1}, s{T+2}")
        a(f"s_mul_i32 s{XA}, s{ODD}, 3072"); a(f"s_add_u32 s{XA}, s{XA}, s{T+1}")
        a(f"s_lshl_b32 s{XS}, s{ODD}, 3"); a(f"s_add_u32 s{XS}, s{XS}, s{T+1}"); a(f"s_add_u32 s{XS}, s{XS}, 2048")
        a(f"s_lshl_b32 s{T}, s{T}, 8"); a(f"s_add_u32 s{STO}, s{T+2}, s{T}")
        a(f"s_lshl_b32 s{T}, s{ODD}, 3"); a(f"s_add_u32 s{STO}, s{STO}, s{T}"); a(f"s_add_u32 s{STO}, s{STO}, 20480")
        a("s_waitcnt lgkmcnt(0)")
        self.stamp(0)

    def unstash(self, which=range(10)):
        a = self.p
        a(f"s_lshl_b32 s{T}, s{WV}, 10"); a(f"v_add_u32 v{t0}, s{T}, v{vL16}"); a(f"v_add_u32 v{t1}, 40960, v{t0}")
        for i in which: a(f"ds_write_b128 v{t0 + i//5}, {vr(STH+4*i,4)} offset:{(i%5)*8192}")

    def att_setup(self):
        a = self.p
        vM, vH, IDXR, AK, AK4, AV, QA, PA, V = PB, PB+1, PB+2, PB+3, PB+4, PB+5, PB+6, PB+9, PB+32
        a(f"v_and_b32 v{vM}, 31, v{vL}"); a(f"v_lshrrev_b32 v{vH}, 5, v{vL}")
        a(f"s_lshl_b32 s{T+4}, s{HW}, 1"); a(f"s_lshr_b32 s{T}, s{WV}, 2"); a(f"s_add_u32 s{T+4}, s{T+4}, s{T}")
        a(f"s_mul_i32 s{T}, s{T}, 10240"); a(f"s_add_u32 s{T}, s{T}, {7*SL}")
        a(f"v_lshl_add_u32 v{AK4}, v{vM}, 3, s{T}"); a(f"v_lshl_add_u32 v{AK}, v{vH}, 8, v{AK4}"); a(f"v_add_u32 v{AK4}, 1024, v{AK4}")
        a(f"v_mul_u32_u24 v{t0}, 20, v{vH}"); a(f"v_add_u32 v{t0}, v{t0}, v{vM}"); a(f"v_lshl_add_u32 v{AV}, v{t0}, 4, s{T}")
        a(f"s_mul_i32 s{T+1}, s{T+4}, 1280"); a(f"s_add_u32 s{T+1}, s{T+1}, {6*SL}")
        a(f"s_xor_b32 s{T}, s{T+4}, 1"); a(f"s_mul_i32 s{T}, s{T}, 1280"); a(f"s_add_u32 s{T}, s{T}, {6*SL}")
        a(f"v_lshlrev_b32 v{t0}, 3, v{vM}"); a(f"v_lshl_add_u32 v{t1}, v{vH}, 8, v{t0}")
        a(f"v_add_u32 v{QA}, s{T}, v{t1}"); a(f"v_add_u32 v{QA+1}, s{T+1}, v{t1}")
        a(f"s_sub_u32 s{T+1}, s{T+1}, s{T}"); a(f"v_mul_lo_u32 v{t1}, v{vH}, s{T+1}"); a(f"v_add3_u32 v{QA+2}, v{t0}, v{t1}, s{T}")
        a(f"v_mov_b32 v{IDXR}, 0xdddddddd")
        a(f"s_and_b32 s{T}, s{IDX}, 7"); a(f"s_lshl_b32 s{T}, s{T}, 13"); a(f"s_lshr_b32 s{T+1}, s{IDX}, 3"); a(f"s_lshl_b32 s{T+1}, s{T+1}, 8"); a(f"s_add_u32 s{T}, s{T}, s{T+1}")
        a(f"s_add_u32 s{T}, s{T}, {hx(FLG+2048)}"); a(f"s_lshl_b32 s{T+1}, s{HW}, 5"); a(f"s_add_u32 s{T+5}, s{T}, s{T+1}")
        a(f"s_lshl_b32 s{T+1}, s{WV}, 3"); a(f"s_add_u32 s{T+1}, s{T+1}, s{G}"); a(f"s_lshl_b32 s{T+1}, s{T+1}, 2"); a(f"s_add_u32 s{FO}, s{T+1}, s{T}"); a(f"s_add_u32 s{T+6}, s{LAY}, 1")
        a(f"v_and_b32 v{PA}, 7, v{vL}"); a(f"v_lshlrev_b32 v{PA}, 2, v{PA}")

    def qkv(self):
        a = self.p
        RD = OPT.get("rd_q", 6); IN = OPT.get("in_q", 3)
        RA = PB + 12
        RT = PB + 16
        AD = PB + 24
        RS = PB + 48
        ST = PB + 60
        BR = PB + 68
        AC = PB + 84
        AR = PB + 116
        TX, TM = AR + 28, AR + 36
        RB = PB + 148
        BRL = ([BR + 4*i for i in range(4)] + [PB + 32 + 4*i for i in range(4)])[:OPT.get('nf_q', 8)]
        assert AR + 8*RD <= STH and IN <= 3
        AQ, AK, A4, AV, AVS, ARB = AD, AD+1, AD+2, AD+3, AD+4, AD+5
        self.RB, self.ARB = RB, ARB
        def adprep():
            a(f"s_mul_i32 s{T}, s{WV}, 1280"); a(f"s_add_u32 s{T}, s{T}, {6*SL}")
            a(f"s_mul_i32 s{T+1}, s{WV}, 2560"); a(f"s_add_u32 s{T+1}, s{T+1}, {7*SL}")
            a(f"v_cmp_eq_u32 vcc, 0, v{vG}")
            a(f"v_lshlrev_b32 v{t0}, 3, v{vJ}"); a(f"v_lshl_add_u32 v{t1}, v{vG}, 8, v{t0}")
            a(f"v_add_u32 v{AQ}, s{T}, v{t1}"); a(f"v_add_u32 v{AK}, s{T+1}, v{t1}")
            a(f"v_add_u32 v{t1}, s{T}, v{t0}"); a(f"v_add_u32 v{t2}, s{T+1}, v{t0}"); a(f"v_cndmask_b32 v{A4}, v{t2}, v{t1}, vcc")
            a(f"v_lshrrev_b32 v{t1}, 1, v{vG}"); a(f"v_mul_u32_u24 v{t1}, 320, v{t1}"); a(f"v_lshl_add_u32 v{t1}, v{vJ}, 4, v{t1}")
            a(f"v_and_b32 v{t2}, 1, v{vG}"); a(f"v_lshl_add_u32 v{t1}, v{t2}, 3, v{t1}"); a(f"v_add_u32 v{AV}, s{T+1}, v{t1}")
            a(f"v_lshrrev_b32 v{t1}, 3, v{vJ}"); a(f"v_mul_u32_u24 v{t1}, 320, v{t1}"); a(f"v_and_b32 v{t2}, 7, v{vJ}")
            a(f"v_lshl_add_u32 v{t1}, v{t2}, 1, v{t1}"); a(f"v_add_u32 v{AVS}, s{T+1}, v{t1}")
            a(f"v_add_u32 v{ARB}, s{T+1}, v{vL16}")
            a(f"s_mul_i32 s{KVS}, s{IDX}, 163840"); a(f"s_mul_i32 s{T}, s{LAY}, {hx(0x500000)}"); a(f"s_add_u32 s{KVS}, s{KVS}, s{T}")
            a(f"s_mul_i32 s{T}, s{HW}, 2560"); a(f"s_add_u32 s{KVS}, s{KVS}, s{T}"); a(f"s_add_u32 s{KVS}, s{KVS}, {hx(KVF(0))}")
            a(f"s_lshl_b32 s{T}, s{G}, 1"); a(f"s_lshr_b32 s{T+1}, s{WV}, 2"); a(f"s_add_u32 s{T}, s{T}, s{T+1}")
            a(f"s_mul_i32 s{OS}, s{T}, 10240"); a(f"s_add_u32 s{OS}, s{OS}, s{KVS}")
        def lnprep(first):
            self.stat_math(ST, RS, TX, False)
            a(f"v_lshlrev_b32 v{t0}, 4, v{vG}")
            for rb in range(2):
                for i in range(4): a(f"ds_bpermute_b32 v{RT+4*rb+i}, v{t0}, v{ST+2} offset:{128*rb+4*i}")
            cq = hx(f2u(20**-0.5 * math.log2(math.e)))
            for nb in range(4):
                x = BR + 4*nb
                a(f"v_cvt_pk_bf16_f32 v{x}, v{CSQ+nb}, v{CSQ+nb}"); a(f"v_and_b32 v{t1}, 0xffff0000, v{x}"); a(f"v_sub_f32 v{t1}, v{CSQ+nb}, v{t1}")
                a(f"v_and_b32 v{x+1}, 0xffff, v{x}"); a(f"v_cvt_pk_bf16_f32 v{x}, v{CSQ+nb}, v{t1}")
                a(f"v_mov_b64 {vr(x+2,2)}, 0")
            for rb in range(2): a(f"v_mul_f32 v{RS+2+rb}, {cq}, v{RS+rb}")
            for rb in range(2): a(f"v_cndmask_b32 v{RS+4+rb}, v{RS+rb}, v{RS+2+rb}, vcc")
            for nb in (1, 2, 3, 0):
                for rb in range(2):
                    d = vr(AC + 4*(4*rb + nb), 4); w, x = vr(BR+4*nb, 4), vr(TX+4*rb, 4)
                    p, q = (x, w) if nb == 2 else (w, x)
                    a(f"v_mfma_f32_16x16x32_bf16 {d}, {p}, {q}, {'0' if first else d}")
            a("s_waitcnt lgkmcnt(0)")

        ONE = RT + 4
        def conv_setup():
            a(f"v_lshrrev_b32 v{t0}, 2, v{vL}"); a(f"v_mul_u32_u24 v{t0}, 160, v{t0}"); a(f"v_lshl_add_u32 v{t0}, s{ODD}, 3, v{t0}")
            a(f"v_and_b32 v{t1}, 3, v{vL}"); a(f"v_lshlrev_b32 v{t2}, 3, v{t1}")
            a(f"v_min_u32 v{t1}, 2, v{t1}"); a(f"v_mul_u32_u24 v{t1}, 48, v{t1}")
            a(f"s_mul_i32 s{T}, s{HW}, 48"); a(f"s_cmp_eq_u32 s{HW}, 3"); a("s_cselect_b64 vcc, -1, 0"); a(f"s_cselect_b32 s{T}, 32, s{T}")
            a(f"s_lshr_b32 s{T+1}, s{WV}, 2"); a(f"s_mul_i32 s{T+1}, s{T+1}, 5120"); a(f"s_add_u32 s{T}, s{T}, s{T+1}"); a(f"s_add_u32 s{T}, s{T}, {3*SL}")
            a(f"v_cndmask_b32 v{t1}, v{t2}, v{t1}, vcc"); a(f"v_add3_u32 v{RT}, v{t0}, v{t1}, s{T}"); a(f"v_add_u32 v{RT+1}, 51200, v{RT}")
            for i in range(4): a(f"v_mov_b32 v{ONE+i}, 0x3f803f80")
        def conv(i0, i1):
            for i in range(i0, i1):
                for u in range(2): a(f"ds_read_b64_tr_b16 {vr(STH+4*i+2*u,2)}, v{RT + i//5} offset:{(i % 5)*10240 + 2560*u}")
            a("s_waitcnt lgkmcnt(0)")
            for i in range(i0, i1):
                a(f"v_mfma_f32_16x16x32_bf16 {vr(CSQ,4)}, {vr(ONE,4)}, {vr(STH+4*i,4)}, {'0' if i == 0 else vr(CSQ,4)}")
            self.unstash(range(i0, i1))
        P = AC
        a(f"s_cmp_ge_u32 s{WV}, 4"); a("s_cbranch_scc1 L_q0_load")
        a(f"s_or_b32 s{T+5}, s{WV}, s{IDX}")
        a(f"s_cmp_eq_u32 s{T+5}, 0"); a("s_cbranch_scc0 L_q0_c1")
        for i in range(4): a(f"v_mov_b32 v{BR+i}, 0")
        for i in range(4): a(f"buffer_store_dwordx4 {vr(BR,4)}, v{vL16}, {sr(WS,4)}, s{FB} offen offset:{1024*i} sc1")
        a("L_q0_c1:")
        a(f"v_mul_u32_u24 v{t2}, 1280, v{vJ}"); a(f"v_lshl_add_u32 v{t2}, v{vG}, 3, v{t2}")
        a(f"s_mul_i32 s{T}, s{RBO}, 20480"); a(f"v_add_u32 v{t2}, s{T}, v{t2}")
        for i in range(5): a(f"buffer_load_dwordx2 {vr(P+2*i,2)}, v{t2}, {sr(XIN,4)}, s{COL+i} offen")
        a(f"s_lshl_b32 s{T+7}, s{IDX}, 2"); a(f"s_add_u32 s{T+7}, s{T+7}, s{WV}"); a(f"s_mul_i32 s{T+7}, s{T+7}, 3840")
        NSC = OPT.get("nsc", 0)
        a(f"s_add_u32 s{T+7}, s{T+7}, {(5-NSC)*128*3840}")
        sq = [c*128*3840 + 64*u for c in range(NSC) for u in range(60)]
        def swarm(n):
            for _ in range(min(n, len(sq))): a(f"s_buffer_load_dword s{89 + len(sq) % 4}, {sr(WQ,4)}, s{T+7} offset:{sq.pop(0)}")
        swarm(14)
        conv_setup()
        swarm(OPT.get("ns0", 10))
        a(f"s_lshl_b32 s{T+6}, s{G}, 2")
        a(f"s_cmp_eq_u32 s{T+5}, 0"); a("s_cbranch_scc0 L_q0_c2")
        a(f"v_mov_b32 v{t0}, 1"); a(f"v_mov_b32 v{t1}, 0")
        a("s_waitcnt vmcnt(5)")
        a("s_mov_b64 exec, 1")
        a(f"buffer_store_dword v{t0}, v{t1}, {sr(DBG,4)}, s{T+6} offen sc1")
        a("s_mov_b64 exec, -1")
        a("s_waitcnt vmcnt(1)")
        a("s_branch L_q0_c3")
        a("L_q0_c2:")
        a("s_waitcnt vmcnt(0)")
        a("L_q0_c3:")
        self.stamp(21)
        def boot():
            for i in range(10):
                a(f"v_lshlrev_b32 v{RES+2*i}, 16, v{P+i}"); a(f"v_and_b32 v{RES+2*i+1}, 0xffff0000, v{P+i}")
            a(f"v_mov_b32 v{t2}, 0")
            swarm(OPT.get("ns1_", 60))
            self.poll(DBG, t2, f"s{T+6}", "1")
        self.xstore("1", P, "sc1", before_flag=boot, packed=True)
        self.stamp(23)
        a(f"v_lshlrev_b32 v{t0}, 7, v{vJ}"); a(f"v_and_b32 v{t1}, 0x380, v{t0}")
        a(f"buffer_load_dword v{BR}, v{t0}, {sr(WS,4)}, s{XA} offen sc1"); a(f"buffer_load_dword v{BR+1}, v{t1}, {sr(WS,4)}, s{XS} offen sc1")
        a(f"s_getreg_b32 s{T}, hwreg(HW_REG_XCC_ID)"); a(f"s_and_b32 s{T}, s{T}, 15"); a(f"s_add_u32 s{T}, s{T}, 16")
        a(f"v_mov_b32 v{t1}, s{T}"); a(f"v_mov_b32 v{t2}, 0")
        a(f"s_lshl_b32 s{T}, s{IDX}, 2"); a(f"s_add_u32 s{T}, s{T}, s{FB}")
        a(f"s_cmp_eq_u32 s{WV}, 0"); a("s_cbranch_scc0 L_q0_c4")
        a("s_mov_b64 exec, 1")
        a(f"buffer_store_dword v{t1}, v{t2}, {sr(WS,4)}, s{T} offen offset:3200 sc1")
        a("s_mov_b64 exec, -1")
        a("L_q0_c4:")
        swarm(999)
        a("s_barrier")
        conv(0, 4)
        a(f"v_and_b32 v{t2}, 7, v{vL}"); a(f"v_lshlrev_b32 v{t2}, 2, v{t2}")
        self.poll(DBG, t2, "0", "1")
        a("s_branch L_q0_conv")
        a("L_q0_load:")
        D = AC
        self.dma_addr(D, 5, "wq")
        a(f"s_mul_i32 s{DS}, s{HW}, {32*3840}"); a(f"s_mul_i32 s{T}, s{IDX}, 40"); a(f"s_and_b32 s{T}, s{T}, -16"); a(f"s_add_u32 s{DS}, s{DS}, s{T}")
        a(f"s_mul_i32 s{T+8}, s{HW}, 5120")
        def gather(c):
            for i in range(5):
                a.extend(self.dma(D+i, WQ, f"s{DS}", f"s{T+8}", (3+c)*SL + 1024*i))
                if OPT.get("ht0", 10): a(f"s_waitcnt vmcnt({OPT.get('ht0', 10)})")
            a(f"s_add_u32 s{DS}, s{DS}, {128*3840}")
        gather(0); gather(1)
        conv_setup(); adprep(); self.att_setup()
        g1 = OPT.get("g1", 3)
        for c in range(2, g1): gather(c)
        a(f"s_waitcnt vmcnt({5*(g1-2)})")
        self.stamp(23)
        a("s_barrier")
        for c in range(g1, 5): gather(c)
        conv(0, 4)
        a("s_waitcnt vmcnt(5)")
        a("L_q0_conv:")
        a("s_barrier")
        conv(4, 8)
        a("s_waitcnt vmcnt(0)"); a("s_barrier")
        a(f"s_cmp_eq_u32 s{WV}, 7"); a("s_cbranch_scc0 L_q0_l3")
        a(f"s_getpc_b64 {sr(T,2)}")
        a("L_pc:")
        a(f"s_lshl_b32 s{T+2}, s{IDX}, 11"); a(f"s_cmp_lt_u32 s{T+2}, L_last-L_pc"); a("s_cbranch_scc0 L_q0_l3")
        a(f"v_lshlrev_b32 v{t0}, 7, v{vJ}"); a(f"v_add_u32 v{t0}, s{T+2}, v{t0}"); a(f"v_min_u32 v{t0}, L_last-L_pc, v{t0}")
        a(f"global_load_dword v{t3}, v{t0}, {sr(T,2)}")
        a("L_q0_l3:")
        conv(8, 10)
        a("s_nop 1")
        a(f"s_lshl_b32 s{T}, s{WV}, 2"); a(f"s_add_u32 s{T}, s{T}, {4*SL}"); a(f"v_lshl_add_u32 v{t2}, v{vJ}, 5, s{T}")
        a(f"ds_write_b32 v{t2}, v{CSQ}")
        self.stamp(1)
        a("s_branch L_q1_a")

        a("L_qkv1:")
        self.stamp(1)
        a(f"s_cmp_lt_u32 s{WV}, 4"); a("s_cbranch_scc1 L_q1_a")
        adprep(); self.att_setup()
        a("L_q1_a:")
        a(f"v_add_u32 v{RA}, 65536, v{vL16}")
        a(f"s_lshl_b32 s{T}, s{G}, 3"); a(f"s_add_u32 s{T}, s{T}, s{WV}")
        a(f"s_mul_i32 s{A0}, s{T}, {2*XB}"); a(f"s_add_u32 s{A1}, s{A0}, {XB}")
        a(f"s_add_u32 s{T+1}, s{A0}, 20480")
        a(f"s_lshl_b32 s{T+2}, s{WV}, 8"); a(f"s_add_u32 s{T+2}, s{T+2}, s{FB}")
        a(f"v_lshlrev_b32 v{t2}, 2, v{vJ}")
        a(f"s_lshl_b32 s{T+3}, s{LAY}, 1"); a(f"s_add_u32 s{T+3}, s{T+3}, 1")
        self.poll(WS, t2, f"s{T+2}", f"s{T+3}")
        self.stamp(2)
        vm = Cnt("vmcnt", 63)
        self.stat_loads(ST, f"s{T+1}", vm)
        for gs in range(IN):
            for ls in self.a_loads(gs, RD, AR): a.extend(ls); vm.issue(("A", gs))
        a("s_waitcnt lgkmcnt(0)"); a("s_barrier")
        a(f"s_cmp_lg_u32 s{LAY}, 0"); a("s_cbranch_scc1 L_q1_b")
        a(f"s_mov_b32 s{T}, {4*SL}"); a(f"v_lshl_add_u32 v{t3}, v{vJ}, 5, s{T}")
        a(f"ds_read_b128 {vr(CSQ,4)}, v{t3}"); a(f"ds_read_b128 {vr(BR,4)}, v{t3} offset:16")
        a("s_waitcnt lgkmcnt(0)")
        for i in range(4): a(f"v_add_f32 v{CSQ+i}, v{CSQ+i}, v{BR+i}")
        a("L_q1_b:")
        a(f"s_cmp_ge_u32 s{WV}, 4"); a("s_cbranch_scc1 L_q1_late")
        a("s_setprio 2")
        for i in range(0, 32, 2): a(f"v_mov_b64 {vr(AC+i,2)}, 0")
        adprep()
        a("s_branch L_q1_loop")
        a("L_q1_late:")
        a(vm.wait("st"))
        self.stat_sum(ST, TM); lnprep(True)
        a("L_q1_loop:")
        self.gemm(20, 4, RD, AR, BRL, AC, lambda gs, nb: (vL16 if gs < 16 else RA, (gs % 16)*4096 + nb*1024), None, vm, std=(2,), czero=(), wgrp=2, init=IN)
        self.stamp(3)
        a(f"s_cmp_ge_u32 s{WV}, 4"); a("s_cbranch_scc1 L_q_epi")
        self.stat_sum(ST, TM)
        a("L_q_prep:")
        lnprep(False)
        a("L_q_epi:")
        PK = BR
        a("s_nop 2")
        for nb in (1, 2, 3, 0):
            for rb in range(2):
                r = AC + 4*(4*rb + nb)
                for i in range(4):
                    m = RT + 4*rb + i if nb == 2 else RS + {0: 2, 1: 0, 3: 4}[nb] + rb
                    a(f"v_mul_f32 v{r+i}, v{r+i}, v{m}")
            for r2 in range(2):
                r = AC + 4*(4*r2 + nb); p = PK + 2*(4*r2 + nb)
                a(f"v_cvt_pk_bf16_f32 v{p}, v{r}, v{r+1}"); a(f"v_cvt_pk_bf16_f32 v{p+1}, v{r+2}, v{r+3}")
                if nb == 0 and r2 == 0: a("s_waitcnt lgkmcnt(8)")
                if nb == 0: a(f"ds_write_b64 v{AQ}, {vr(p,2)} offset:{128*r2}")
                if nb == 1: a(f"ds_write_b64 v{AK}, {vr(p,2)} offset:{128*r2}")
                if nb == 2: a(f"ds_write_b64 v{AV}, {vr(p,2)} offset:{1280+640*r2}")
            if nb == 3:
                a("s_mov_b32 exec_hi, 0")
                for rb in range(2): a(f"ds_write_b64 v{A4}, {vr(PK+2*(4*rb+3),2)} offset:{1024+128*rb}")
                a("s_bfm_b64 exec, 16, 32")
                for rb in range(2):
                    for i in range(4):
                        a(f"ds_write_b16{'_d16_hi' if i & 1 else ''} v{AVS}, v{PK+2*(4*rb+3)+(i>>1)} offset:{1280+640*rb+256+16*i}")
                a("s_mov_b64 exec, -1")
        V = PB + 32
        a(f"v_and_b32 v{t1}, 31, v{vL}"); a(f"v_cmp_eq_u32 vcc, 20, v{t1}"); a(f"v_mov_b32 v{t0}, 0x3f803f80"); a("s_nop 0")
        a(f"v_cndmask_b32 v{V}, 0, v{t0}, vcc"); a(f"v_cndmask_b32 v{V+1}, 0, v{t0}, vcc")
        for i in range(2, 16, 2): a(f"v_mov_b64 {vr(V+i,2)}, {vr(V,2)}")
        a("s_waitcnt lgkmcnt(0)")
        for i in range(3): a(f"ds_read_b128 {vr(RB+4*i,4)}, v{ARB} offset:{1024*i}")
        a(f"s_cmp_ge_u32 s{WV}, 4"); a("s_cbranch_scc1 L_att_late")
        a("s_waitcnt lgkmcnt(0)")
        self.publish()
        self.stamp(22)
        a("s_setprio 0")
        self.att_setup()
        self.flag(f"s{FO}", f"s{T+6}", "sc1")
        self.stamp(5)
        a("L_att_late:")
    def publish(self):
        a = self.p
        for i in range(3):
            if i == 2: a("s_mov_b32 exec_hi, 0")
            a(f"buffer_store_dwordx4 {vr(self.RB+4*i,4)}, v{vL16}, {sr(WS,4)}, s{OS} offen offset:{1024*i} sc1")
        a("s_mov_b64 exec, -1")

    def attention(self):
        a = self.p
        vM, vH, IDXR = PB, PB+1, PB+2
        AK, AK4, AV = PB+3, PB+4, PB+5
        OA = PB+6
        PA = PB+9
        Q = [PB+12, PB+16]; Q4 = PB+20; K4 = PB+22
        KK = [PB+24, PB+28]
        V = PB+32
        O = [PB+48, PB+64]
        S = [PB+80, PB+112]
        NM = S[1]
        PF = PB+144
        PR = PB+148
        EXM, EXF = f"s_mov_b64 exec, {sr(VMK,2)}", "s_mov_b64 exec, -1"
        HALF = "s_mov_b32 exec_hi, 0"
        kvm = OPT.get("kvmod", "sc1")
        base = [0]
        def off(n):
            o = (n // 4) * SL + (n % 4) * 2560 - base[0]
            assert 0 <= o < 65536 - 2560
            return o
        def rdK4(t): return f"ds_read_b64 {vr(K4,2)}, v{AK4} offset:{off(t)}"
        def rdK(t): return f"ds_read2st64_b64 {vr(KK[t&1],4)}, v{AK} offset0:{off(t)//512} offset1:{off(t)//512+1}"
        def rdV(t, i): return f"ds_read_b128 {vr(V+8*(t&1)+4*i,4)}, v{AV} offset:{off(t)+1280+640*i}"
        def m2b(t, c="0"): return f"v_mfma_f32_32x32x4_2b_bf16 {vr(S[t&1],32)}, {vr(K4,2)}, {vr(Q4,2)}, {c}"
        def mk(t, q): return f"v_mfma_f32_32x32x16_bf16 {vr(S[t&1]+16*q,16)}, {vr(KK[t&1],4)}, {vr(Q[q],4)}, {vr(S[t&1]+16*q,16)}"
        def pv(t, i): return f"v_smfmac_f32_32x32x32_bf16 {vr(O[i>>1],16)}, {vr(V+8*(t&1)+4*(i&1),4)}, {vr(S[t&1]+8*i,8)}, v{IDXR}"
        def set_addr(b):
            a(f"s_lshr_b32 s{T}, s{WV}, 2"); a(f"s_mul_i32 s{T}, s{T}, 10240"); a(f"s_add_u32 s{T}, s{T}, {b}")
            a(f"v_lshl_add_u32 v{AK4}, v{vM}, 3, s{T}"); a(f"v_lshl_add_u32 v{AK}, v{vH}, 8, v{AK4}"); a(f"v_add_u32 v{AK4}, 1024, v{AK4}")
            a(f"v_mul_u32_u24 v{t0}, 20, v{vH}"); a(f"v_add_u32 v{t0}, v{t0}, v{vM}"); a(f"v_lshl_add_u32 v{AV}, v{t0}, 4, s{T}")
        def fill(mid=[]):
            mid = list(mid)
            a(rdK4(0)); a(rdK(0)); a(rdK(1)); a(EXM); a(rdV(0, 0)); a(rdV(0, 1)); a(EXF)
            a("s_waitcnt lgkmcnt(4)"); a(m2b(0)); a(rdK4(1))
            a.extend(mid[:16])
            if len(mid) < 16: a(f"s_nop {15 - len(mid)}")
            a("s_waitcnt lgkmcnt(4)")
            a(mk(0, 0)); a(mk(0, 1))
            a.extend(mid[16:])
            if len(mid[16:]) < 11: a(f"s_nop {10 - len(mid[16:])}")
        def step(t, last, first=False, hook={}):
            nqk, nrd = t + 1 <= last, t + 2 <= last
            ins = {1: ([] if first else [pv(t-1, 3)]) + ["s_waitcnt lgkmcnt(0)"],
                   5: ([m2b(t+1)] if nqk else []) + ([rdK4(t+2)] if nrd else []),
                   13: [pv(t, 0)] + ([EXM, rdV(t+1, 0), rdV(t+1, 1), EXF] if nqk else []),
                   17: [pv(t, 1)] + ([rdK(t+2)] if nrd else []),
                   21: [mk(t+1, 0)] if nqk else [], 25: [pv(t, 2)], 29: [mk(t+1, 1)] if nqk else []}
            for e in range(32):
                a(f"v_exp_f32 v{S[t&1]+e}, v{S[t&1]+e}")
                for l in ins.get(e, []): a(l)
                for h in hook.get(e, []): h()
        prio = lambda p: (lambda: a(f"s_setprio {p}") if OPT.get("prio", 1) else None)
        WOFF = T + 10
        def kv_dma1(sblk, slot, i, add=0):
            a(f"s_add_u32 m0, s{WOFF}, {slot*SL + add}")
            a(HALF if i == 2 else "s_nop 0")
            a(f"buffer_load_dwordx4 v{vL16}, {sr(WS,4)}, s{sblk} offen offset:{1024*i} {kvm} lds")
            if i == 2: a(EXF)
        def kv_src(sd, b):
            a(f"s_lshr_b32 s{sd}, s{WV}, 2")
            if b == 4: a(f"s_mul_i32 s{T}, s{sd}, 10240"); a(f"s_lshl_b32 s{sd}, s{sd}, 1")
            a(f"s_add_u32 s{sd}, s{sd}, s{G}"); a(f"s_add_u32 s{sd}, s{sd}, {2*b - 1 + (b > 4)}"); a(f"s_and_b32 s{sd}, s{sd}, 7")
            a(f"s_mul_i32 s{sd}, s{sd}, {SL}"); a(f"s_add_u32 s{sd}, s{sd}, s{KVS}")
            if b == 4: a(f"s_add_u32 s{sd}, s{sd}, s{T}")
            if b > 4: a(f"s_add_u32 s{sd}, s{sd}, 10240")

        a("s_barrier")
        self.stamp(4)
        prio(3)()
        a(f"ds_read_b64 {vr(Q4,2)}, v{OA+2} offset:1024")
        a(f"ds_read2st64_b64 {vr(Q[0],4)}, v{OA} offset0:0 offset1:1"); a(f"ds_read2st64_b64 {vr(Q[1],4)}, v{OA+1} offset0:0 offset1:1")
        def misc0():
            for q in range(2):
                for i in range(0, 16, 2): a(f"v_mov_b64 {vr(O[q]+i,2)}, 0")
            a(f"s_mov_b32 s{PASS}, 0"); a(f"s_mul_i32 s{WOFF}, s{WV}, 2560")
            a(f"s_cmp_ge_u32 s{WV}, 4"); a("s_cbranch_scc1 L_att_pub")
            a(f"buffer_load_dword v{t3}, v{PA}, {sr(WS,4)}, s{T+5} offen sc1")
            a("L_att_pubd:")
            a("s_nop 6")
        fill(self.capture(misc0))
        main, self.a = self.a, self.tail
        a("L_att_pub:"); self.publish(); a("s_branch L_att_pubd")
        self.a = main
        def misc1():
            a(f"s_lshl_b32 s{T}, s{G}, 3"); a(f"s_add_u32 s{T}, s{T}, s{T+4}"); a(f"s_mul_i32 s{OS}, s{T}, {2*HB_}"); a(f"s_add_u32 s{OS}, s{OS}, {hx(OF)}")
            a(f"s_lshl_b32 s{FO}, s{T+4}, 8"); a(f"s_add_u32 s{FO}, s{FO}, s{FB}"); a(f"s_lshl_b32 s{T}, s{IDX}, 2"); a(f"s_add_u32 s{FO}, s{FO}, s{T}"); a(f"s_add_u32 s{FO}, s{FO}, 128")
            a(f"s_mul_i32 s{T}, s{IDX}, 5")
            a(f"v_lshrrev_b32 v{t0}, 4, v{vM}"); a(f"v_mul_u32_u24 v{t0}, {HB_}, v{t0}"); a(f"v_lshl_add_u32 v{t0}, v{vJ}, 4, v{t0}")
            for jj in range(3):
                a(f"v_add_u32 v{t1}, s{T}, v{vH}")
                a(f"v_lshrrev_b32 v{t2}, 3, v{t1}"); a(f"v_lshl_add_u32 v{OA+jj}, v{t2}, 10, v{t0}")
                a(f"v_and_b32 v{t2}, 3, v{t1}"); a(f"v_lshl_add_u32 v{OA+jj}, v{t2}, 8, v{OA+jj}")
                a(f"v_bfe_u32 v{t2}, v{t1}, 2, 1"); a(f"v_lshl_add_u32 v{OA+jj}, v{t2}, 3, v{OA+jj}")
                a(f"s_add_u32 s{T}, s{T}, 2")
        vm0, vm1 = Cnt("vmcnt", 63), Cnt("vmcnt", 63)
        def both(tag): vm0.issue(tag); vm1.issue(tag)
        def kvblock(b, pieces=(0, 1, 2)):
            def f():
                if pieces[0] == 0: kv_src(T+7, b)
                for i in pieces: kv_dma1(T+7, b-1, i); both(("kv", b))
            return f
        def early(b):
            def f():
                l = self.lab("early")
                a(f"s_cmp_ge_u32 s{WV}, 4"); a(f"s_cbranch_scc1 {l}")
                if b == 1:
                    self.poll(WS, PA, f"s{T+5}", f"s{T+6}", issued=True)
                    self.stamp(6)
                for k in range(2):
                    a(f"s_add_u32 s{T+7}, s{G}, {2*b - 1 + k}"); a(f"s_and_b32 s{T+7}, s{T+7}, 7"); a(f"s_mul_i32 s{T+7}, s{T+7}, {SL}"); a(f"s_add_u32 s{T+7}, s{T+7}, s{KVS}")
                    for i in range(3): kv_dma1(T+7, b-1, i, 10240*k); both(("kv", b))
                a(f"{l}:")
            return f
        def lateflag():
            l = self.lab("late")
            a(f"s_cmp_lt_u32 s{WV}, 4"); a(f"s_cbranch_scc1 {l}")
            self.flag(f"s{FO}", f"s{T+6}", "sc1")
            self.stamp(5); self.stamp(6)
            a(f"{l}:")
        hk = {t: {} for t in range(4)}
        def at(h, pos, f): h[pos // 32].setdefault(pos % 32, []).append(f)
        pg, pf, p2 = OPT.get("p1", (8, 63, 72))
        at(hk, pg, early(1)); at(hk, pf, lateflag); at(hk, p2, early(2))
        at(hk, 31, prio(2)); at(hk, 95, prio(1)); at(hk, 96 + OPT.get("plast", 26), prio(0))
        for t in range(4): step(t, 3, first=(t == 0), hook=hk[t])
        set_addr(0)
        a(pv(3, 3))
        a(vm1.wait(("kv", 1))); vm0.wait(("kv", 1)); a("s_barrier")
        self.stamp(7)
        prio(3)()
        fill(self.capture(misc1))
        NSTEP = 28
        hk = {t: {} for t in range(NSTEP)}
        def l0only(fn):
            def g():
                if fn.__name__ in OPT.get("x_nol0", ()):
                    self.capture(fn); return
                l = self.lab("l0")
                a(f"s_cmp_lg_u32 s{LAY}, 0"); a(f"s_cbranch_scc1 {l}")
                fn()
                a(f"{l}:")
            return g
        def late_issue():
            a(f"s_add_u32 s{T+5}, s{T+5}, 128")
            a(f"buffer_load_dword v{t3}, v{PA}, {sr(WS,4)}, s{T+5} offen sc1"); both("lp")
        def late_check():
            lp, ld = self.lab("lpoll"), self.lab("lseen")
            w = vm1.wait("lp"); vm0.wait("lp"); a(w)
            a(f"v_cmp_gt_u32 vcc, s{T+6}, v{t3}"); a(f"s_cbranch_vccnz {lp}")
            a(f"{ld}:")
            main, self.a = self.a, self.tail
            a(f"{lp}:"); self.poll(WS, PA, f"s{T+5}", f"s{T+6}"); a(f"s_branch {ld}")
            self.a = main
        kvs = OPT.get("kvs", {3: 0, 4: 4, 5: 6, 6: 8, 7: 10})
        at(hk, (kvs[4] - 1)*32 + 3, late_issue); at(hk, kvs[4]*32 + 7, late_check)
        for b in range(3, 8):
            for i in range(3): at(hk, kvs[b]*32 + OPT.get('e1', 9) + 16*i, kvblock(b, (i,)))
        PS = T + 11
        def pack_load():
            a(f"v_lshrrev_b32 v{t0}, 1, v{vL}"); a(f"v_and_b32 v{t1}, 1, v{vL}"); a(f"v_lshlrev_b32 v{t1}, 4, v{t1}")
            a(f"v_mul_u32_u24 v{PA+1}, 3072, v{t0}"); a(f"v_add_u32 v{PA+1}, v{PA+1}, v{t1}")
            a(f"v_mul_u32_u24 v{PA+2}, 1280, v{t0}"); a(f"v_add_u32 v{PA+2}, v{PA+2}, v{t1}")
            a(f"s_lshl_b32 s{T}, s{G}, 1"); a(f"s_lshr_b32 s{T+1}, s{IDX}, 4"); a(f"s_add_u32 s{T}, s{T}, s{T+1}"); a(f"s_lshl_b32 s{T}, s{T}, 3"); a(f"s_add_u32 s{T}, s{T}, s{WV}")
            l1 = self.lab("pk1")
            a(f"s_mov_b32 s{PS}, -1"); a(f"s_lshl_b32 s{T+8}, s{WV}, 11")
            a(f"s_cmp_ge_u32 s{T}, 120"); a(f"s_cbranch_scc1 {l1}"); a(f"s_and_b32 s{T+3}, s{IDX}, 15")
            a(f"s_mul_i32 s{PS}, s{T+3}, 120"); a(f"s_add_u32 s{PS}, s{PS}, s{T}"); a(f"s_lshl_b32 s{PS}, s{PS}, 10"); a(f"s_add_u32 s{PS}, s{PS}, {hx(PK1)}")
            a(f"s_mul_i32 s{T+1}, s{T}, 171"); a(f"s_lshr_b32 s{T+1}, s{T+1}, 10")
            a(f"s_mul_i32 s{T+2}, s{T+1}, {32*3072 - 6*32}"); a(f"s_lshl_b32 s{T}, s{T}, 5"); a(f"s_add_u32 s{T}, s{T}, s{T+2}")
            a(f"s_mul_i32 s{T+3}, s{T+3}, 192"); a(f"s_add_u32 s{T}, s{T}, s{T+3}")
            a(f"s_add_u32 m0, s{T+8}, {7*SL}"); a("s_nop 0")
            a(f"buffer_load_dwordx4 v{PA+1}, {sr(W1,4)}, s{T} offen lds")
            a(f"{l1}:")
            a(f"s_lshl_b32 s{T+9}, s{G}, 2"); a(f"s_lshr_b32 s{T+1}, s{IDX}, 3"); a(f"s_add_u32 s{T+9}, s{T+9}, s{T+1}"); a(f"s_lshl_b32 s{T+9}, s{T+9}, 3"); a(f"s_add_u32 s{T+9}, s{T+9}, s{WV}")
            for u, (srd, nfr, half, dst) in enumerate(((W2, 240, 24, PK2), (WO, 100, 10, PKO))):
                l1 = self.lab("pk2")
                a(f"s_mov_b32 s{PS+1+u}, -1"); a(f"s_mov_b32 s{T}, s{T+9}"); a(f"s_cmp_ge_u32 s{T}, {nfr}"); a(f"s_cbranch_scc1 {l1}")
                if u == 0:
                    a(f"s_cmp_ge_u32 s{T}, 120"); a(f"s_cselect_b32 s{T+1}, 7, 0"); a(f"s_add_u32 s{T+1}, s{T+1}, s{NT}"); a(f"s_mul_i32 s{PS+1}, s{T+1}, 120")
                else: a(f"s_mul_i32 s{PS+2}, s{NT}, 100")
                a(f"s_add_u32 s{PS+1+u}, s{PS+1+u}, s{T}"); a(f"s_lshl_b32 s{PS+1+u}, s{PS+1+u}, 10"); a(f"s_add_u32 s{PS+1+u}, s{PS+1+u}, {hx(dst)}")
                a(f"s_mul_i32 s{T+1}, s{T}, 205"); a(f"s_lshr_b32 s{T+1}, s{T+1}, 10")
                a(f"s_mul_i32 s{T+2}, s{T+1}, 5"); a(f"s_sub_u32 s{T}, s{T}, s{T+2}")
                a(f"s_add_u32 s{T}, s{T}, s{ODD}"); a(f"s_cmp_eq_u32 s{T}, 5"); a(f"s_cselect_b32 s{T}, 0, s{T}"); a(f"s_lshl_b32 s{T}, s{T}, 5")
                if u == 0: a(f"s_mov_b32 s{T+2}, s{T+1}")
                else:
                    a(f"s_lshr_b32 s{T+2}, s{T+1}, 2"); a(f"s_lshl_b32 s{T+2}, s{T+2}, 1"); a(f"s_and_b32 s{T+3}, s{T+1}, 1"); a(f"s_add_u32 s{T+2}, s{T+2}, s{T+3}")
                    a(f"s_bfe_u32 s{T+3}, s{T+1}, 0x10001"); a(f"s_mul_i32 s{T+3}, s{T+3}, {half}"); a(f"s_add_u32 s{T+2}, s{T+2}, s{T+3}")
                a(f"s_mul_i32 s{T+2}, s{T+2}, {32*1280}"); a(f"s_add_u32 s{T}, s{T}, s{T+2}"); a(f"s_mul_i32 s{T+2}, s{NT}, 160"); a(f"s_add_u32 s{T}, s{T}, s{T+2}")
                if u == 0: a(f"s_add_u32 m0, s{T+8}, {7*SL+1024}")
                else: a(f"s_lshl_b32 s{T+2}, s{WV}, 10"); a(f"s_add_u32 m0, s{T+2}, {6*SL+10240}")
                a("s_nop 0")
                a(f"buffer_load_dwordx4 v{PA+2}, {sr(srd,4)}, s{T} offen lds")
                a(f"{l1}:")
            vm0.issue("pk")
        def pack_read():
            a(f"s_lshl_b32 s{T}, s{WV}, 11"); a(f"s_add_u32 s{T}, s{T}, {7*SL}"); a(f"v_lshl_add_u32 v{t0}, v{vL}, 3, s{T}")
            a(f"s_lshl_b32 s{T}, s{WV}, 10"); a(f"s_add_u32 s{T}, s{T}, {6*SL+10240}"); a(f"v_lshl_add_u32 v{t1}, v{vL}, 3, s{T}")
            a(vm0.wait("pk"))
            for u in range(3):
                v, o = (t0, 1024*u) if u < 2 else (t1, 0)
                a(f"ds_read_b64_tr_b16 {vr(PR+4*u,2)}, v{v} offset:{o}"); a(f"ds_read_b64_tr_b16 {vr(PR+4*u+2,2)}, v{v} offset:{o+512}")
        def pack_store():
            for u in range(3):
                l1 = self.lab("pks")
                a(f"s_cmp_eq_u32 s{PS+u}, -1"); a(f"s_cbranch_scc1 {l1}")
                a(f"buffer_store_dwordx4 {vr(PR+4*u,4)}, v{vL16}, {sr(WS,4)}, s{PS+u} offen sc1")
                a(f"{l1}:")
            vm0.issue("pks")
        def pack_done(): a(vm0.wait("pks"))
        def pack_flag():
            a(f"s_lshl_b32 s{PS}, s{NT}, 13"); a(f"s_add_u32 s{PS}, s{PS}, {hx(FLG+3072)}")
            a(f"s_lshr_b32 s{T}, s{T+9}, 3"); a(f"s_lshl_b32 s{T}, s{T}, 2"); a(f"s_add_u32 s{T}, s{T}, s{PS}")
            a(f"v_mov_b32 v{t0}, 1"); a(f"v_mov_b32 v{t1}, 0"); a(f"v_lshlrev_b32 v{PA+1}, 2, v{vM}")
            a(f"s_cmp_eq_u32 s{WV}, 0"); a("s_cselect_b64 exec, 1, 0")
            l = self.lab("pkf")
            a(f"s_cbranch_execz {l}")
            a(f"buffer_store_dword v{t0}, v{t1}, {sr(WS,4)}, s{T} offen sc1")
            a(f"{l}:"); a(EXF)
        def pack_ask():
            a(f"buffer_load_dword v{PF}, v{PA+1}, {sr(WS,4)}, s{PS} offen sc1")
            a(f"buffer_load_dword v{t3}, v{PA+1}, {sr(WS,4)}, s{FB} offen offset:3200 sc1"); vm0.issue("ask")
        def pack_wait():
            lp, ld = self.lab("ppoll"), self.lab("pseen")
            a(vm0.wait("ask"))
            a(f"v_min_u32 v{t0}, v{PF}, v{t3}"); a(f"v_cmp_eq_u32 vcc, 0, v{t0}"); a(f"s_cbranch_vccnz {lp}")
            a(f"{ld}:")
            main, self.a = self.a, self.tail
            a(f"{lp}:"); self.poll(WS, PA+1, f"s{PS}", "1")
            a(f"s_add_u32 s{T}, s{FB}, 3200"); self.poll(WS, PA+1, f"s{T}", "16"); a(f"s_branch {ld}")
            self.a = main
            a(f"v_readfirstlane_b32 s{T}, v{t3}"); a("s_nop 1"); a(f"v_cmp_ne_u32 vcc, s{T}, v{t3}")
            a("s_cmp_eq_u64 vcc, 0"); a(f"s_cselect_b32 s{FAST}, {0 if OPT['forceslow'] else 1}, 0")
        pl_, pr_, pd_, pw_ = OPT.get("pk", (0, 3, 6, 12))
        at(hk, pl_*32 + 4, l0only(pack_load))
        at(hk, pr_*32 + 20, l0only(pack_read)); at(hk, (pr_+1)*32 + 3, l0only(pack_store))
        assert pd_ % 4 == 2 and kvs[7] >= pd_ > pr_ + 1
        at(hk, pd_*32 - 1, l0only(pack_done)); at(hk, pd_*32 + 3, l0only(pack_flag))
        at(hk, int((pw_ - OPT.get("pa", 1.5))*32) + 30, l0only(pack_ask)); at(hk, pw_*32 + 30, l0only(pack_wait))
        def wo_piece(n, lds, half=False):
            def f():
                if n == 0:
                    a(f"s_mul_i32 s{DS}, s{NT}, {100*1024}"); a(f"s_add_u32 s{DS}, s{DS}, {hx(PKO)}"); a(f"s_lshl_b32 s{T+8}, s{WV}, 10")
                r = WOFF if lds >= 4*SL else T+8
                a(f"s_add_u32 m0, s{r}, {lds}"); a(f"s_add_u32 s{T}, m0, s{DS}")
                if half: a(HALF)
                a(f"buffer_load_dwordx4 v{vL16}, {sr(WS,4)}, s{T} offen sc1 lds"); both("wo")
                if half: a(EXF)
            return f
        wst = OPT.get("wst", [13, 13.5, 14, 14.5, 15, 15.5, 16, 18, 18.5, 19, 22, 22.5, 23])
        wpos = [int(x*32) + OPT.get('e1', 9) for x in wst]
        for n in range(13):
            last = (n*8192 + 8191) // SL if n < 10 else 4
            assert wst[n] >= 4*last + 6 and wst[n] > pw_
        for n in range(0 if OPT.get("x_nowo") else 10): at(hk, wpos[n], wo_piece(n, n*8192))
        for i in range(0 if OPT.get("x_nowo") else 3): at(hk, wpos[10+i], wo_piece(10+i, 4*SL + 1024*i, i == 2))
        TB = T + 1
        def touch(setup, nlines, stride, k):
            def f():
                if setup:
                    setup()
                    a(f"v_min_u32 v{PA+2}, {nlines-1}, v{vL}"); a(f"v_lshlrev_b32 v{PA+2}, 7, v{PA+2}")
                else: a(f"s_add_u32 s{TB}, s{TB}, {stride}")
                a(f"buffer_load_dword v{PF+1+(k&1)}, v{PA+2}, {sr(WS,4)}, s{TB} offen sc1"); both("pf")
            return f
        def share(buf, per_wave):
            def f():
                a(f"s_lshl_b32 s{TB}, s{G}, 5"); a(f"s_add_u32 s{TB}, s{TB}, s{IDX}"); a(f"s_lshl_b32 s{TB}, s{TB}, 3"); a(f"s_add_u32 s{TB}, s{TB}, s{WV}")
                a(f"s_mul_i32 s{TB}, s{TB}, {per_wave}"); a(f"s_add_u32 s{TB}, s{TB}, {hx(buf)}")
            return f
        def tile(buf, mask, sh, tbytes, nl):
            def f():
                a(f"s_and_b32 s{T}, s{IDX}, {mask}"); a(f"s_mul_i32 s{T}, s{T}, {tbytes}")
                a(f"s_lshr_b32 s{TB}, s{IDX}, {sh}"); a(f"s_lshl_b32 s{TB}, s{TB}, 3"); a(f"s_add_u32 s{TB}, s{TB}, s{WV}"); a(f"s_mul_i32 s{TB}, s{TB}, {nl*128}")
                a(f"s_add_u32 s{TB}, s{TB}, s{T}"); a(f"s_add_u32 s{TB}, s{TB}, {hx(buf)}")
            return f
        tl = dict(x=(share(XF, XB//16), 11, 0), h=(share(HF, HB_//16), 13, 12*128),
                  a=(tile(PK1 + 32768, 15, 4, 120*1024, 6), 6, 61440 + 16384), c=(tile(PK2, 15, 4, 120*1024, 10), 10, SL))
        def code_touch(l0, l1):
            def f():
                l, pc = self.lab("ct"), self.lab("pc")
                a(f"s_cmp_eq_u32 s{WV}, 7"); a(f"s_cbranch_scc0 {l}")
                a(f"s_getpc_b64 {sr(T+2,2)}"); a(f"{pc}:")
                a(f"s_lshl_b32 s{T}, s{IDX}, 10"); a(f"s_add_u32 s{T}, s{T}, {l0}-{pc}")
                a(f"v_and_b32 v{t0}, 7, v{vL}"); a(f"v_lshl_add_u32 v{t0}, v{t0}, 7, s{T}"); a(f"v_min_u32 v{t0}, {l1}-{pc}, v{t0}")
                a(f"global_load_dword v{PF+3}, v{t0}, {sr(T+2,2)}")
                a(f"{l}:")
            return f
        def bias_touch():
            l = self.lab("bt")
            a(f"s_cmp_eq_u32 s{WV}, 6"); a(f"s_cbranch_scc0 {l}")
            a(f"v_lshlrev_b32 v{t0}, 7, v{vM}")
            a(f"buffer_load_dword v{PF+3}, v{t0}, {sr(B1,4)}, 0 offen"); a(f"buffer_load_dword v{PF+3}, v{t0}, {sr(B2,4)}, 0 offen")
            a(f"{l}:")
        def out_touch():
            l = self.lab("ot")
            a(f"s_cmp_eq_u32 s{LAY}, 1"); a(f"s_cbranch_scc0 {l}")
            a(f"s_lshl_b32 s{T}, s{G}, 5"); a(f"s_add_u32 s{T}, s{T}, s{IDX}"); a(f"s_lshl_b32 s{T}, s{T}, 3"); a(f"s_add_u32 s{T}, s{T}, s{WV}"); a(f"s_mul_i32 s{T}, s{T}, 1280")
            a(f"v_min_u32 v{t0}, 9, v{vL}"); a(f"v_lshlrev_b32 v{t0}, 7, v{t0}")
            a(f"buffer_load_dword v{PF+3}, v{t0}, {sr(OUT,4)}, s{T} offen")
            a(f"{l}:")
        if OPT.get("ct", 24) is not None: at(hk, OPT.get("ct", 24)*32 + 11, l0only(code_touch("L_att_fin", "L_last")))
        if OPT.get("bt", 25) is not None: at(hk, OPT.get("bt", 25)*32 + 11, bias_touch)
        if OPT.get("ot") is not None: at(hk, OPT["ot"]*32 + 19, out_touch)
        EA = KK[0]
        def ex_addr():
            for u in range(2):
                if u: a(f"s_xor_b32 s{T}, s{WV}, 4")
                w = T if u else WV
                a(f"s_lshl_b32 s{T+2}, s{w}, 11"); a(f"s_add_u32 s{T+2}, s{T+2}, {5*SL}"); a(f"v_add_u32 v{EA+2*u}, s{T+2}, v{vL16}")
                a(f"s_lshr_b32 s{T+2}, s{w}, 2"); a(f"s_mul_i32 s{T+2}, s{T+2}, {2*SL - 16384}"); a(f"s_lshl_b32 s{T+3}, s{HW}, 10"); a(f"s_add_u32 s{T+2}, s{T+2}, s{T+3}")
                a(f"s_add_u32 s{T+2}, s{T+2}, {5*SL + 16384}"); a(f"v_add_u32 v{EA+2*u+1}, s{T+2}, v{vL16}")
        def ex_write():
            for i in range(3): a(f"ds_write_b128 v{EA + (i == 2)}, {vr(O[0]+4*i,4)} offset:{1024*(i & 1)}")
        at(hk, (NSTEP-1)*32 + 5, ex_addr); at(hk, (NSTEP-1)*32 + 29, ex_write)
        PL = T + 12
        self.PLC = [188 + 4*i for i in range(6)] + [CS1 + 4, CS1]
        self.PLH = [188 + 4*i for i in range(6)] + [CS1 + 4] + [RES + 4*i for i in range(5)]
        def pl_load(reg, i): a(f"s_add_u32 s{T}, s{PL}, {4096*i}"); a(f"buffer_load_dwordx4 {vr(reg,4)}, v{vL16}, {sr(WS,4)}, s{T} offen sc1")
        def pl_piece(i):
            def f():
                if i == 0:
                    a(f"s_and_b32 s{T}, s{IDX}, 15"); a(f"s_lshl_b32 s{T}, s{T}, 1"); a(f"s_lshr_b32 s{PL}, s{WV}, 2"); a(f"s_add_u32 s{T}, s{T}, s{PL}")
                    a(f"s_mul_i32 s{T}, s{T}, 61440"); a(f"s_lshl_b32 s{PL}, s{HW}, 10"); a(f"s_add_u32 s{PL}, s{PL}, s{T}"); a(f"s_add_u32 s{PL}, s{PL}, {hx(PK1)}")
                if i < 7:
                    pl_load(self.PLC[i], i); both("pl")
                else:
                    l, l2 = self.lab("plh"), self.lab("pld")
                    a(f"s_cmp_ge_u32 s{WV}, 4"); a(f"s_cbranch_scc1 {l}")
                    if i == 7: pl_load(self.PLC[7], 7)
                    else:
                        a(f"s_lshl_b32 s{T}, s{HW}, 10"); a(f"s_add_u32 m0, s{T}, {5*SL + 4096*(i+3)}"); a(f"s_add_u32 s{T}, s{PL}, {4096*(i+3)}")
                        a(f"buffer_load_dwordx4 v{vL16}, {sr(WS,4)}, s{T} offen sc1 lds")
                    a(f"{l2}:"); both("pl")
                    main, self.a = self.a, self.tail
                    a(f"{l}:"); pl_load(self.PLH[i], i); a(f"s_branch {l2}")
                    self.a = main
            return f
        plst = OPT.get("plst", [13 + 0.5*i for i in range(12)])
        for i in range(0 if OPT.get("x_nopl") else 12):
            assert plst[i] > pw_
            at(hk, int(plst[i]*32) + OPT.get('e2', 3), pl_piece(i))
        k = 0
        for name, sts in OPT.get("touch", dict(c=[18.5, 19.5, 20.5, 21.5, 22.5, 23.5], a=[24, 24.5], h=[25, 25.5], x=[26])).items():
            for i, st in enumerate(sts):
                assert name in "xh" or st > pw_
                at(hk, int(st*32) + OPT.get('e3', 11), touch(tl[name][0] if i == 0 else None, tl[name][1], tl[name][2], k)); k += 1
        for t in range(NSTEP):
            if t % 4 == 2:
                b = t // 4 + 2
                if b <= 7:
                    a(vm1.wait(("kv", b))); vm0.wait(("kv", b))
                if t not in OPT.get("nobar", ()): a("s_barrier")
                prio(3)()
                if t + 3 < NSTEP:
                    at(hk, (t+1)*32 + 31, prio(2)); at(hk, (t+2)*32 + 31, prio(1)); at(hk, (t+3)*32 + OPT.get("plast", 26), prio(0))
            if t == 0:
                at(hk, 31, prio(1)); at(hk, 32 + OPT.get("plast", 26), prio(0))
            if t == NSTEP - 1:
                at(hk, t*32 + 0, prio(1)); at(hk, t*32 + OPT.get("plast", 26), prio(0))
            if t % 8 == 0 and t > 0:
                for r in (AK, AK4, AV): a(f"v_add_u32 v{r}, {2*SL}, v{r}")
                base[0] += 2*SL
            step(t, NSTEP - 1, first=(t == 0), hook=hk[t])
        a("s_nop 1")
        a(pv(NSTEP - 1, 3))
        base[0] = 0
        self.stamp(8)
        FL = 7*SL - 32
        a("L_att_fin:")
        a("s_waitcnt vmcnt(0) lgkmcnt(0)"); a("s_barrier")
        for i in range(3): a(f"ds_read_b128 {vr(S[0]+4*i,4)}, v{EA + 2 + (i == 2)} offset:{1024*(i & 1)}")
        a(f"s_lshl_b32 s{T}, s{WV}, 2"); a(f"s_add_u32 s{T}, s{T}, {FL}"); a(f"v_mov_b32 v{t2}, s{T}")
        a(f"v_and_b32 v{t3}, 7, v{vL}"); a(f"v_lshlrev_b32 v{t3}, 2, v{t3}"); a(f"v_add_u32 v{t3}, {FL}, v{t3}")
        a(f"s_mov_b32 s{T}, {hx(f2u(2.0**-24))}"); a(f"s_mov_b32 s{T+1}, {hx(f2u(2.0**48))}")
        a("s_waitcnt lgkmcnt(0)")
        Oo = O[1]
        a(f"v_add_f32 v{t0}, v{Oo+8}, v{S[0]+8}"); a(f"v_add_f32 v{t1}, v{Oo+8}, v{S[0]+8}")
        for i in (0, 2): a(f"v_pk_add_f32 {vr(Oo+i,2)}, {vr(Oo+i,2)}, {vr(S[0]+i,2)}")
        a(f"v_permlane32_swap_b32 v{t1}, v{t0}")
        for i in (4, 6): a(f"v_pk_add_f32 {vr(Oo+i,2)}, {vr(Oo+i,2)}, {vr(S[0]+i,2)}")
        a(f"v_rcp_f32 v{S[0]+12}, v{t0}")
        for i in (8, 10): a(f"v_pk_add_f32 {vr(Oo+i,2)}, {vr(Oo+i,2)}, {vr(S[0]+i,2)}")
        a(f"v_mov_b32 v{S[0]+13}, v{S[0]+12}")
        for i in range(0, 12, 2): a(f"v_pk_mul_f32 {vr(Oo+i,2)}, {vr(Oo+i,2)}, {vr(S[0]+12,2)}")
        for i in range(6): a(f"v_cvt_pk_bf16_f32 v{S[0]+i}, v{Oo+2*i}, v{Oo+2*i+1}")
        self.mstore([f"buffer_store_dwordx2 {vr(S[0],2)}, v{OA}, {sr(WS,4)}, s{OS} offen",
                     f"buffer_store_dwordx2 {vr(S[0]+2,2)}, v{OA+1}, {sr(WS,4)}, s{OS} offen",
                     "s_mov_b32 exec_hi, 0",
                     f"buffer_store_dwordx2 {vr(S[0]+4,2)}, v{OA+2}, {sr(WS,4)}, s{OS} offen",
                     EXF])
        Z = S[0] + 14
        a(f"v_mov_b64 {vr(Z,2)}, 0"); a(f"v_mov_b64 {vr(Z+2,2)}, 0")
        a(f"v_cmp_nle_f32 vcc, s{T}, v{t0}"); a(f"v_cmp_nge_f32 {sr(T+2,2)}, s{T+1}, v{t0}")
        for i in range(0, 12, 2): a(f"v_pk_fma_f32 {vr(Z,2)}, {vr(Oo+i,2)}, {vr(Z+2,2)}, {vr(Z,2)}")
        a(f"s_or_b64 vcc, vcc, {sr(T+2,2)}")
        a(f"v_cmp_u_f32 {sr(T+4,2)}, v{Z}, v{Z+1}")
        a(f"s_or_b64 vcc, vcc, {sr(T+4,2)}")
        a(f"s_cselect_b32 s{T}, 1, 0"); a(f"v_mov_b32 v{t1}, s{T}")
        a(f"ds_write_b32 v{t2}, v{t1}")
        a("s_waitcnt lgkmcnt(0)"); a("s_barrier")
        a(f"ds_read_b32 v{t1}, v{t3}")
        a(f"s_add_u32 s{T+6}, s{LAY}, 1")
        a("s_waitcnt lgkmcnt(0)")
        a(f"v_cmp_lt_u32 vcc, s{PASS}, v{t1}")
        if not OPT.get("x_nofb"): a("s_cbranch_vccnz L_att_redo")
        self.flag(f"s{FO}", f"s{T+6}")
        self.stamp(9)
        main, self.a = self.a, self.tail
        a("L_att_redo:")
        for i in range(32): a(f"v_mov_b32 v{NM+i}, 0")
        a(f"v_mov_b32 v{PF}, 0xff800000"); a(f"v_mov_b32 v{PF+1}, 0xff800000")
        for q in range(2):
            for i in range(16): a(f"v_mov_b32 v{O[q]+i}, 0")
        a("L_fb_pass:")
        a(f"s_mov_b32 s{IT}, 0")
        a("L_fb_blk:")
        a("s_waitcnt vmcnt(0) lgkmcnt(0)"); a("s_barrier")
        a(f"s_lshl_b32 s{T+7}, s{IT}, 1"); a(f"s_lshr_b32 s{T}, s{WV}, 2"); a(f"s_add_u32 s{T+7}, s{T+7}, s{T}")
        a(f"s_mul_i32 s{T+7}, s{T+7}, 10240"); a(f"s_add_u32 s{T+7}, s{T+7}, s{KVS}")
        for i in range(3): kv_dma1(T+7, 6, i)
        set_addr(6*SL)
        a(f"s_mov_b32 s{T+9}, 0")
        a("s_waitcnt vmcnt(0)"); a("s_barrier")
        a("L_fb_step:")
        a(rdK4(0)); a(rdK(0)); a(EXM); a(rdV(0, 0)); a(rdV(0, 1)); a(EXF)
        a("s_waitcnt lgkmcnt(0)")
        a(m2b(0, vr(NM, 32))); a("s_nop 15"); a("s_nop 1"); a(mk(0, 0)); a(mk(0, 1)); a("s_nop 11")
        a(f"s_cmp_eq_u32 s{PASS}, 0"); a("s_cbranch_scc0 L_fb_sum")
        for q in range(2):
            for i in range(0, 16, 2): a(f"v_max3_f32 v{PF+q}, v{PF+q}, v{S[0]+16*q+i}, v{S[0]+16*q+i+1}")
        a("s_branch L_fb_next")
        a("L_fb_sum:")
        for e in range(32): a(f"v_exp_f32 v{S[0]+e}, v{S[0]+e}")
        a("s_nop 1")
        for i in range(4): a(pv(0, i))
        a("L_fb_next:")
        for r in (AK, AK4, AV): a(f"v_add_u32 v{r}, 2560, v{r}")
        a(f"s_add_u32 s{T+9}, s{T+9}, 1"); a(f"s_cmp_lt_u32 s{T+9}, 4"); a("s_cbranch_scc1 L_fb_step")
        a(f"s_add_u32 s{IT}, s{IT}, 1"); a(f"s_cmp_lt_u32 s{IT}, 8"); a("s_cbranch_scc1 L_fb_blk")
        a("s_nop 15")
        a(f"s_cmp_eq_u32 s{PASS}, 0"); a("s_cbranch_scc1 L_fb_max")
        ex_addr(); ex_write()
        a("s_branch L_att_fin")
        a("L_fb_max:")
        self.swap_add([PF, PF+1], t0, 32, "v_max_f32")
        a(f"s_lshl_b32 s{T}, s{WV}, 9"); a(f"s_add_u32 s{T}, s{T}, {5*SL}"); a(f"v_lshl_add_u32 v{t0}, v{vL}, 3, s{T}")
        a(f"s_xor_b32 s{T}, s{WV}, 4"); a(f"s_lshl_b32 s{T}, s{T}, 9"); a(f"s_add_u32 s{T}, s{T}, {5*SL}"); a(f"v_lshl_add_u32 v{t1}, v{vL}, 3, s{T}")
        a(f"ds_write_b64 v{t0}, {vr(PF,2)}")
        a("s_waitcnt lgkmcnt(0)"); a("s_barrier")
        a(f"ds_read_b64 {vr(t2,2)}, v{t1}")
        a("s_waitcnt lgkmcnt(0)")
        a(f"v_max_f32 v{PF}, v{PF}, v{t3}"); a(f"v_max_f32 v{PF+1}, v{PF+1}, v{t2}")
        for i in range(32): a(f"v_sub_f32 v{NM+i}, 0, v{PF+(i>>4)}")
        a(f"s_mov_b32 s{PASS}, 1"); a("s_branch L_fb_pass")
        self.a = main

    def chain(self):
        a = self.p
        a(f"s_cmp_ge_u32 s{WV}, 4"); a("s_cbranch_scc1 L_ch_h")
        RA = PB
        BI = PB + 4
        BR = PB + 16
        AC = PB + 48
        P  = PB + 88
        AR = PB + 104
        WXL = 2*SL - 4096
        ring = lambda b, n: [b + 4*i for i in range(n)]
        NF5, NF6 = OPT.get("nf5", 8), OPT.get("nf6", 8)
        def abase(buf, ks, sk, other):
            a(f"s_mul_i32 s{T}, s{sk}, {ks//2*1024}"); a(f"s_add_u32 s{T}, s{T}, {hx(buf)}")
            a(f"s_mul_i32 s{A0}, s{RBO}, {HB_}"); a(f"s_add_u32 s{A0}, s{A0}, s{T}")
            a(f"s_xor_b32 s{A1}, s{RBO}, {other}"); a(f"s_mul_i32 s{A1}, s{A1}, {HB_}"); a(f"s_add_u32 s{A1}, s{A1}, s{T}")
        def first(vm, RD, AR):
            for gs in range(IN):
                for ls in self.a_loads(gs, RD, AR): a.extend(ls); vm.issue(("A", gs))
        IN = OPT.get("in_c", 3)
        B_ = ["s_barrier"]
        RD = OPT.get("rd_o", 6)
        a("s_setprio 1")
        a(f"s_and_b32 s{T+2}, s{FXO}, {hx(~0x2ff)}"); a(f"s_lshl_b32 s{T}, s{WK}, 6"); a(f"s_add_u32 s{T+2}, s{T+2}, s{T}"); a(f"s_add_u32 s{T+2}, s{T+2}, 128")
        a(f"v_and_b32 v{t2}, 1, v{vG}"); a(f"v_lshlrev_b32 v{t2}, 9, v{t2}"); a(f"v_lshl_add_u32 v{t2}, v{vJ}, 2, v{t2}")
        a(f"s_lshl_b32 s{T}, s{WV}, 10"); a(f"s_add_u32 s{T}, s{T}, {5*SL}"); a(f"v_add_u32 v{t0}, s{T}, v{vL16}")
        for i, r in enumerate(self.PLC): a(f"ds_write_b128 v{t0}, {vr(r,4)} offset:{4096*i}")
        abase(OF, 20, WK, 4)
        self.poll(WS, t2, f"s{T+2}", f"s{T+6}")
        self.stamp(10)
        vm = Cnt("vmcnt", 63)
        first(vm, RD, AR)
        a(f"s_mul_i32 s{T}, s{WK}, 10240"); a(f"v_add_u32 v{RA}, s{T}, v{vL16}"); a(f"v_add_u32 v{RA+1}, {3*SL}, v{RA}")
        a(f"s_mul_i32 s{T}, s{WV}, 5120"); a(f"v_add_u32 v{RA+2}, s{T}, v{vL16}")
        a(f"s_xor_b32 s{T}, s{WV}, 2"); a(f"s_mul_i32 s{T}, s{T}, 5120"); a(f"v_add_u32 v{RA+3}, s{T}, v{vL16}")
        a(f"v_lshlrev_b32 v{t1}, 3, v{vG}")
        self.gemm(10, 5, RD, AR, ring(BR, NF5), AC, lambda gs, nb: (RA + gs // 6, (gs // 2 % 3)*SL + (gs & 1)*5120 + nb*1024), None, vm,
                  bars={OPT.get("ob", 4): B_}, czero=(1,), cinit=RES, wgrp=OPT.get("wg5", 2), init=IN,
                  tail=[f"ds_write_b128 v{RA+2}, {vr(AC+20+4*nb,4)} offset:{1024*nb}" for nb in range(5)])
        self.stamp(11)
        for nb in range(5): a(f"buffer_load_dwordx2 {vr(BI+2*nb,2)}, v{t1}, {sr(B2,4)}, s{COL+nb} offen")
        a("s_waitcnt lgkmcnt(0)"); a("s_barrier")
        for nb in range(5): a(f"ds_read_b128 {vr(BR+4*nb,4)}, v{RA+3} offset:{1024*nb}")
        a(f"s_lshl_b32 s{T+3}, s{LAY}, 1"); a(f"s_add_u32 s{T+3}, s{T+3}, 2")
        for nb in range(5):
            a(f"s_waitcnt lgkmcnt({4-nb})")
            for i in (0, 2): a(f"v_pk_add_f32 {vr(RES+4*nb+i,2)}, {vr(AC+4*nb+i,2)}, {vr(BR+4*nb+i,2)}")
            for i in (0, 1): a(f"v_cvt_pk_bf16_f32 v{P+2*nb+i}, v{RES+4*nb+2*i}, v{RES+4*nb+2*i+1}")
        def f1_setup():
            a(f"s_and_b32 s{T+2}, s{FXO}, -256"); a(f"s_and_b32 s{T+4}, s{IDX}, 15")
            a(f"s_lshl_b32 s{FO}, s{T+4}, 2"); a(f"s_add_u32 s{FO}, s{FO}, s{T+2}"); a(f"s_add_u32 s{FO}, s{FO}, 64")
            a(f"s_and_b32 s{T}, s{RBO}, -2")
            a(f"s_mul_i32 s{A0}, s{T}, {XB}"); a(f"s_add_u32 s{A1}, s{A0}, {XB}"); a(f"s_add_u32 s{T+1}, s{A0}, 20480")
            a(f"s_mul_i32 s{OS}, s{T}, {HB_}"); a(f"s_mul_i32 s{T}, s{T+4}, 3072"); a(f"s_add_u32 s{OS}, s{OS}, s{T}"); a(f"s_add_u32 s{OS}, s{OS}, {hx(HF)}")
            a(f"v_add_u32 v{RA}, {5*SL}, v{vL16}"); a(f"v_add_u32 v{RA+1}, {2*SL}, v{vL16}")
            a(f"v_and_b32 v{RA+2}, 511, v{vL16}")
            a("s_waitcnt vmcnt(4)")
            for i in range(10):
                a(f"v_lshlrev_b32 v{t2}, 16, v{BI+i}"); a(f"v_and_b32 v{t3}, 0xffff0000, v{BI+i}")
                a(f"v_pk_add_f32 {vr(RES+2*i,2)}, {vr(RES+2*i,2)}, {vr(t2,2)}")
            a(f"v_lshlrev_b32 v{t2}, 2, v{vJ}")
        self.xstore(f"s{T+3}", P, before_flag=f1_setup, packed=True)
        self.stamp(12)
        RD = OPT.get("rd_1", 6)
        ST = PB + 96; RS = PB + 104; TX = PB + 108; TM = PB + 116; AR1 = PB + 120
        assert AR1 + 8*RD <= STH
        self.poll(WS, t2, f"s{T+2}", f"s{T+3}")
        self.stamp(13)
        vm = Cnt("vmcnt", 63)
        first(vm, RD, AR1)
        self.stat_loads(ST, f"s{T+1}", vm)
        a("s_barrier")
        self.stamp(14)
        c1 = 2*math.sqrt(2/math.pi)*math.log2(math.e)
        def prep():
            a("WAITV:st")
            self.stat_sum(ST, TM); self.stat_math(ST, RS, TX, True, halves=True)
            for rb in range(2):
                a(f"v_mul_f32 v{ST+4*rb}, {hx(f2u(-c1))}, v{RS+rb}"); a(f"v_mul_f32 v{TM}, v{RS+rb}, v{RS+rb}")
                a(f"v_mul_f32 v{TM}, {hx(f2u(0.044715))}, v{TM}"); a(f"v_mul_f32 v{ST+4*rb+2}, v{TM}, v{ST+4*rb}")
                a(f"v_mov_b32 v{ST+4*rb+1}, v{ST+4*rb}"); a(f"v_mov_b32 v{ST+4*rb+3}, v{ST+4*rb+2}")
            a(f"v_rcp_f32 v{RS+2}, v{RS+1}"); a(f"v_rcp_f32 v{RS}, v{RS}"); a(f"s_add_u32 s{T+2}, s{OS}, {HB_}")
            a(f"v_mov_b32 v{RS+3}, v{RS+2}"); a(f"v_mov_b32 v{RS+1}, v{RS}")
        pl = self.capture(prep)
        xs = OPT.get("xs", 5)
        self.gemm(21, 6, RD, AR1, ring(BR, NF6), AC, lambda gs, nb: (RA + gs // 10, (gs % 10)*6144 + nb*1024 if gs < 20 else WXL + nb*512), None, vm,
                  bars={OPT.get("fb", 16): B_}, extra={IN + 1 + i: pl[i*xs:(i+1)*xs] for i in range((len(pl) + xs - 1)//xs)},
                  wgrp=OPT.get("wg6", 2), init=IN, areg={20: TX})
        a("s_barrier")
        self.stamp(15)
        TM = AR1
        for kp in range(3):
            for rb in range(2):
                r = AC + 4*(6*rb + 2*kp); p = BR + 4*(2*kp + rb)
                for i in range(4): a(f"v_pk_mul_f32 {vr(TM+2*i,2)}, {vr(r+2*i,2)}, {vr(r+2*i,2)}")
                for i in range(4): a(f"v_pk_fma_f32 {vr(TM+2*i,2)}, {vr(TM+2*i,2)}, {vr(ST+4*rb+2,2)}, {vr(ST+4*rb,2)}")
                for i in range(4): a(f"v_pk_mul_f32 {vr(TM+2*i,2)}, {vr(TM+2*i,2)}, {vr(r+2*i,2)}")
                for i in range(8): a(f"v_exp_f32 v{TM+i}, v{TM+i}")
                for i in range(4): a(f"v_pk_fma_f32 {vr(TM+2*i,2)}, {vr(TM+2*i,2)}, {vr(RS+2*rb,2)}, {vr(RS+2*rb,2)}")
                for i in range(8): a(f"v_rcp_f32 v{TM+i}, v{TM+i}")
                for i in range(4): a(f"v_pk_mul_f32 {vr(r+2*i,2)}, {vr(r+2*i,2)}, {vr(TM+2*i,2)}")
                for i in range(4): a(f"v_cvt_pk_bf16_f32 v{p+i}, v{r+2*i}, v{r+2*i+1}")
                self.mstore([f"buffer_store_dwordx4 {vr(p,4)}, v{vL16}, {sr(WS,4)}, s{OS if rb == 0 else T+2} offen offset:{1024*kp}"])
        def f2_setup():
            a(f"s_add_u32 s{T+3}, s{LAY}, 1")
            abase(HF, 48, KH, 1)
            a(f"v_add_u32 v{RA}, 61440, v{vL16}")
            a(f"s_mul_i32 s{T}, s{KH}, {2*XB}"); a(f"s_sub_u32 s{T}, {XB}, s{T}"); a(f"s_add_u32 s{T+4}, s{XA}, s{T}"); a(f"s_add_u32 s{T+5}, s{XS}, s{T}")
            a(f"s_bfe_u32 s{T}, s{FXO}, 0x30008"); a(f"s_lshl_b32 s{T}, s{T}, 6"); a(f"s_and_b32 s{T+1}, s{FXO}, 63"); a(f"s_add_u32 s{T}, s{T}, s{T+1}")
            a(f"s_add_u32 s{T}, s{T}, s{FB}"); a(f"s_add_u32 s{T+6}, s{T}, 3328"); a(f"s_xor_b32 s{T+7}, s{T+6}, 4")
            a(f"s_and_b32 s{T+8}, s{FXO}, -256"); a(f"s_add_u32 s{T+8}, s{T+8}, 64")
            a(f"v_lshlrev_b32 v{t2}, 2, v{vJ}")
        self.flag(f"s{FO}", f"s{T+3}", shadow=f2_setup)
        self.stamp(16)
        RD = OPT.get("rd_2", 8)
        self.poll(WS, t2, f"s{T+8}", f"s{T+3}")
        self.stamp(17)
        vm = Cnt("vmcnt", 63)
        first(vm, RD, AR)
        a("s_barrier")
        self.stamp(18)
        self.gemm(24, 5, RD, AR, ring(BR, NF5), AC, lambda gs, nb: (vL16 if gs < 12 else RA, (gs % 12)*5120 + nb*1024), None, vm,
                  czero=(1,), cinit=RES, wgrp=OPT.get("wg5", 2), init=IN,
                  tail=[f"v_cvt_pk_bf16_f32 v{P+i}, v{AC+20+2*i}, v{AC+21+2*i}" for i in range(10)])
        self.stamp(19)
        self.mstore([f"buffer_store_dwordx4 {vr(P,4)}, v{vL16}, {sr(WS,4)}, s{T+4} offen",
                     f"buffer_store_dwordx4 {vr(P+4,4)}, v{vL16}, {sr(WS,4)}, s{T+4} offen offset:1024",
                     f"buffer_store_dwordx2 {vr(P+8,2)}, v{vL16}, {sr(WS,4)}, s{T+5} offen"])
        a("s_barrier")
        def half_unstash(which):
            def f():
                l = self.lab("us")
                a(f"s_cmp_lg_u32 s{LAY}, 0"); a(f"s_cbranch_scc1 {l}")
                self.unstash(which)
                a(f"{l}:")
            return f
        us = OPT.get("us", 4)
        self.flag(f"s{T+6}", f"s{T+3}", shadow=half_unstash(range(us)) if us else None)
        a(f"v_mov_b32 v{t2}, 0")
        self.poll(WS, t2, f"s{T+7}", f"s{T+3}")
        Q = BR
        a(f"buffer_load_dwordx4 {vr(Q,4)}, v{vL16}, {sr(WS,4)}, s{XA} offen sc1")
        a(f"buffer_load_dwordx4 {vr(Q+4,4)}, v{vL16}, {sr(WS,4)}, s{XA} offen offset:1024 sc1")
        a(f"buffer_load_dwordx2 {vr(Q+8,2)}, v{vL16}, {sr(WS,4)}, s{XS} offen sc1")
        a(f"v_mul_u32_u24 v{RA}, 1280, v{vJ}"); a(f"v_lshl_add_u32 v{RA}, v{vG}, 3, v{RA}")
        a(f"s_mul_i32 s{T}, s{RBO}, 20480"); a(f"v_add_u32 v{RA}, s{T}, v{RA}")
        for i in range(10):
            if i % 4 == 0: a(f"s_waitcnt vmcnt({2 - i//4})")
            u = t0 + 2*(i & 1)
            a(f"v_lshlrev_b32 v{u}, 16, v{Q+i}"); a(f"v_and_b32 v{u+1}, 0xffff0000, v{Q+i}")
            a(f"v_pk_add_f32 {vr(RES+2*i,2)}, {vr(AC+2*i,2)}, {vr(u,2)}")
            a(f"v_cvt_pk_bf16_f32 v{P+i}, v{RES+2*i}, v{RES+2*i+1}")
        a(f"s_cmp_lg_u32 s{LAY}, 0"); a("s_cbranch_scc1 L_out")
        self.xstore("3", P, before_flag=lambda: self.unstash(range(us, 10)), packed=True)
        a("s_setprio 0")
        self.stamp(20); self.stamp_dump()
        a(f"s_mov_b32 s{LAY}, 1"); a("s_branch L_qkv1")
        a("L_out:")
        for nb in range(5):
            a(f"buffer_store_dwordx2 {vr(P+2*nb,2)}, v{RA}, {sr(OUT,4)}, s{COL+nb} offen")
        if OPT["stamp"]: a("s_waitcnt vmcnt(0)")
        self.stamp(20); self.stamp_dump()
        a("s_endpgm")

        a("L_ch_h:")
        HB = PB + 8
        HX = PB + 48
        ONE = PB + 60
        HO = T + 8
        vm = Cnt("vmcnt", 63)
        h0, h1, hg = OPT.get("ht", (6, 1, 3))
        HT = {"w1": h0, 0: h1, 2: hg}
        def lin(src, lds, tag):
            if tag in OPT.get("x_skip", ()):
                vm.issue(tag); return
            if OPT.get("x_fake"): src %= SL
            a(f"s_add_u32 m0, s{HO}, {lds}"); a(f"s_add_u32 s{T}, s{DS}, {src}")
            a(f"buffer_load_dwordx4 v{vL16}, {sr(WS,4)}, s{T} offen sc1 lds"); vm.issue(tag)
            if HT[tag] is not None: a(f"s_waitcnt vmcnt({HT[tag]})")
        def tilebase(buf):
            a(f"s_and_b32 s{DS}, s{IDX}, 15"); a(f"s_mul_i32 s{DS}, s{DS}, {120*1024}"); a(f"s_add_u32 s{DS}, s{DS}, s{HO}"); a(f"s_add_u32 s{DS}, s{DS}, {hx(buf)}")
        a(f"s_lshl_b32 s{HO}, s{HW}, 10")
        tilebase(PK1)
        a(f"s_and_b32 s{T}, s{IDX}, 15"); a(f"s_mul_i32 s{T}, s{T}, 192"); a(f"s_lshl_b32 s{T+1}, s{WM}, 5"); a(f"s_add_u32 s{T}, s{T}, s{T+1}")
        a(f"v_lshlrev_b32 v{t1}, 1, v{vJ}")
        for m in range(3):
            a(f"buffer_load_ushort v{PB+m}, v{t1}, {sr(B1,4)}, s{T} offen offset:{64*m}"); vm.issue("w1")
        for n in (8, 10): lin(n*4096, 5*SL + n*4096, "w1")
        a("s_barrier")
        lin(9*4096, 5*SL + 9*4096, "w1")
        a(f"s_add_u32 s{T}, s{HO}, {2*SL}"); a(f"v_add_u32 v{t0}, s{T}, v{vL16}")
        a("s_barrier")
        for n in (12, 13, 14): lin(61440 + n*4096, 2*SL + n*4096, "w1")
        for i, r in enumerate(self.PLH): a(f"ds_write_b128 v{t0}, {vr(r,4)} offset:{4096*i}")
        tilebase(PK2)
        a(vm.wait("w1")); a("s_waitcnt lgkmcnt(0)")
        a("s_barrier")
        a(f"s_cmp_lg_u32 s{LAY}, 0"); a("s_cbranch_scc1 L_h_cs")
        a(f"s_mul_i32 s{T}, s{WK}, {3*SL}"); a(f"s_sub_u32 s{T}, {5*SL}, s{T}"); a(f"s_lshl_b32 s{T+1}, s{WM}, 10"); a(f"s_add_u32 s{T}, s{T}, s{T+1}")
        a(f"v_add_u32 v{t0}, s{T}, v{vL16}")
        for i in range(4): a(f"v_mov_b32 v{ONE+i}, 0x3f803f80")
        for m in range(3):
            for ks in range(10): a(f"ds_read_b128 {vr(HB+4*ks,4)}, v{t0} offset:{ks*6144 + m*2048}")
            for ks in range(10):
                a(f"s_waitcnt lgkmcnt({9-ks})")
                a(f"v_mfma_f32_16x16x32_bf16 {vr(HX+4*m,4)}, {vr(ONE,4)}, {vr(HB+4*ks,4)}, {'0' if ks == 0 else vr(HX+4*m,4)}")
        a("s_nop 7")
        for m in range(3): a(f"v_mov_b32 v{CS1+m}, v{HX+4*m}")
        a("L_h_cs:")
        a(f"s_cmp_eq_u32 s{WK}, 0"); a("s_cselect_b64 vcc, -1, 0")
        a(f"s_lshl_b32 s{T}, s{WM}, 9"); a(f"s_lshl_b32 s{T+1}, s{WK}, 8"); a(f"s_add_u32 s{T}, s{T}, s{T+1}"); a(f"s_add_u32 s{T}, s{T}, {WXL}")
        a(f"v_lshl_add_u32 v{t0}, v{vJ}, 4, s{T}")
        for m in range(3):
            c = CS1 + m; x = HX + 4*m
            a(f"v_cndmask_b32 v{x+2}, 0, v{PB+m}, vcc")
            a(f"v_cvt_pk_bf16_f32 v{x}, v{c}, v{c}"); a(f"v_and_b32 v{t1}, 0xffff0000, v{x}"); a(f"v_sub_f32 v{t1}, v{c}, v{t1}")
            a(f"v_and_b32 v{x+1}, 0xffff, v{x}"); a(f"v_cvt_pk_bf16_f32 v{x}, v{c}, v{t1}")
            a(f"v_lshl_or_b32 v{x+1}, v{x+2}, 16, v{x+1}"); a(f"v_mov_b32 v{x+3}, 0")
        a("s_mov_b64 exec, 0xffff")
        for m in range(3): a(f"ds_write_b128 v{t0}, {vr(HX+4*m,4)} offset:{1024*m}")
        a("s_mov_b64 exec, -1")
        nf0, nf1 = OPT.get("nf0", 3), OPT.get("nf1", 9)
        for n in range(nf0): lin(n*4096, n*4096, 0)
        a("s_waitcnt lgkmcnt(0)"); a("s_barrier")
        for n in range(nf0, nf1): lin(n*4096, n*4096, 0)
        a("s_barrier")
        for n in range(nf1, 30): lin(n*4096, n*4096, 2)
        a(vm.wait(2)); a("s_barrier")
        a("s_barrier")
        a(f"s_cmp_lg_u32 s{LAY}, 0"); a("s_cbranch_scc1 L_h_last")
        self.unstash()
        self.stamp_dump()
        a(f"s_mov_b32 s{LAY}, 1"); a("s_branch L_qkv1")
        a("L_h_last:")
        self.stamp_dump()
        a("L_end:")
        a("s_endpgm")

def build(**opt):
    OPT.update(opt)
    g = Gen()
    g.entry(); g.qkv(); g.attention(); g.chain()
    a = g.a
    a.lines += g.tail.lines
    for (l0, l1), pats in OPT.get("x_drop", {}).items():
        i0 = a.lines.index(l0 + ":"); i1 = a.lines.index(l1 + ":")
        a.lines[i0:i1] = [("s_nop 0" if OPT.get("x_nop") else "") if any(l.startswith(p) for p in pats) else l for l in a.lines[i0:i1]]
        a.lines = [l for l in a.lines if l]
    a("L_last:"); a("s_endpgm")
    probs = check_hazards(a.lines)
    if probs and not OPT.get("x_drop"):
        print("\n".join(probs), file=sys.stderr); raise SystemExit("hazards")
    hdr = open("cdna_kernels/" + NAME + ".s.ref").read().split("; Override launch")[0]
    s = hdr + "; @launch grid=(256,1,1) block=(512,1,1) lds=163840\n" + '.amdgcn_target "amdgcn-amd-amdhsa--gfx950"\n.text\n'
    s += f".globl {NAME}_kernel\n.type {NAME}_kernel,@function\n" + a.text()
    s += f""".section .rodata,"a"
.p2align 6
.amdhsa_kernel {NAME}_kernel
  .amdhsa_next_free_vgpr 256
  .amdhsa_next_free_sgpr 102
  .amdhsa_accum_offset 256
  .amdhsa_group_segment_fixed_size 0
  .amdhsa_kernarg_size 88
  .amdhsa_user_sgpr_count 2
  .amdhsa_user_sgpr_kernarg_segment_ptr 1
  .amdhsa_system_sgpr_workgroup_id_x 1
.end_amdhsa_kernel
"""
    return s

if __name__ == "__main__":
    out = sys.argv[1]
    opt = {}
    for x in sys.argv[2:]:
        k, v = x.split("=", 1); opt[k] = eval(v)
    open(out, "w").write(build(**opt))
```

```python
import sys, math, struct, copy
from asmlib import *

NAME = "interleave_layers__softmax_full_mha__dense_activation_gelu__prompt"
OPT = dict(stamp=False, forceslow=False)

XF   = 0x0
HF   = 0x300000
XB   = 21504
HB_  = 50176
OF   = HF
KVF  = lambda l: 0xB00000 + l * 0x500000
FLG  = 0x1520000
PK1  = 0x1600000
PK2  = 0x1800000
PKO  = 0x1A00000
STAMPS = 0x4000000
WS_BYTES = 0x10000000
KA = dict(x=0, wqkv=8, wo=16, w1=32, b1=40, w2=48, b2=56, out=64, dbg=72, ws=80)
SZ = dict(x=2048*640*2, wqkv=640*1920*2, wo=640*640*2, w1=640*1536*2, b1=1536*2, w2=1536*640*2, b2=640*2, out=2048*640*2, ws=WS_BYTES, dbg=256)
SL = 20480

def f2u(x): return struct.unpack("<I", struct.pack("<f", x))[0]
def hx(x): return f"0x{x & 0xffffffff:x}"

class Cnt:
    def __init__(self, name, mx): self.q = []; self.name = name; self.mx = mx; self.done = 0
    def issue(self, tag):
        self.q.append(tag)
        assert self.name == "lgkmcnt" or len(self.q) - self.done <= self.mx, (self.name, "too many outstanding")
    def wait(self, *tags):
        last = max((i for i, t in enumerate(self.q) if t in tags), default=-1)
        assert last >= 0, tags
        if last < self.done: return ""
        n = min(len(self.q) - 1 - last, self.mx)
        self.done = len(self.q) - n
        return f"s_waitcnt {self.name}({n})"

LAY = 3
WS, WQ, WO, W1, W2, B1, B2, XIN, OUT, DBG = 4, 8, 12, 16, 20, 24, 28, 32, 36, 40
G, IDX, WV, FAST, BUD, NT, ODD, WM, WK, HW = range(44, 54)
COL = 54
XA, XS, STO, FXO, RBO = 59, 60, 61, 62, 63
VMK = 64
T = 66
FB = 80
A0, A1, DS, IT, KVS, PASS, OS, FO = 81, 82, 83, 84, 85, 86, 87, 88
KH = 93
ROT = 100
PSRC, PDST = (89, 90, 91), (92, 94, 95)
vL, vL16, vJ, vG, t0, t1, t2, t3 = 0, 1, 2, 3, 4, 5, 6, 7
RES = 8
CSQ = 28
CS1 = 32
PB = 40
STH = 212

class Proxy:
    def __init__(self, g): self.g = g
    def __call__(self, s): self.g.a(s)
    def extend(self, ls): self.g.a.extend(ls)

class Gen:
    def __init__(self):
        self.a = Asm(); self.tail = Asm(); self.nlab = 0; self.p = Proxy(self)
    def lab(self, s):
        self.nlab += 1; return f"L{self.nlab}_{s}"
    def stamp(self, i):
        if not OPT["stamp"]: return
        a = self.a
        a("s_memrealtime s[96:97]"); a("s_memtime s[98:99]"); a("s_waitcnt lgkmcnt(0)")
        a(f"v_writelane_b32 v254, s96, {i}"); a(f"v_writelane_b32 v255, s98, {i}")
    def stamp_dump(self):
        if not OPT["stamp"]: return
        a = self.a
        a(f"s_lshl_b32 s96, s2, 3"); a(f"s_add_u32 s96, s96, s{WV}"); a("s_lshl_b32 s96, s96, 1"); a(f"s_add_u32 s96, s96, s{LAY}")
        a("s_lshl_b32 s96, s96, 9"); a(f"s_add_u32 s96, s96, {hx(STAMPS)}")
        a(f"v_lshlrev_b32 v253, 3, v{vL}")
        a(f"buffer_store_dwordx2 v[254:255], v253, {sr(WS,4)}, s96 offen")
    def mstore(self, lines, force=None):
        a = self.a
        sc = lambda l: l + " sc1" if l.startswith("buffer_store") else l
        if force == "sc1":
            for l in lines: a(sc(l))
            return
        ls, lb = self.lab("slow"), self.lab("back")
        a(f"s_cmp_eq_u32 s{FAST}, 0"); a(f"s_cbranch_scc1 {ls}")
        for l in lines: a(l + " " + OPT.get("fastmod", "nt") if l.startswith(("buffer_store_dwordx4", "buffer_store_dwordx2")) else l)
        a(f"{lb}:")
        self.tail(f"{ls}:")
        for l in lines: self.tail(sc(l))
        self.tail(f"s_branch {lb}")
    def flag(self, soff, sval, force=None, shadow=None):
        a = self.a
        if shadow: shadow()
        a(f"v_mov_b32 v{t0}, {sval}"); a(f"v_mov_b32 v{t1}, 0")
        a("s_waitcnt vmcnt(0)")
        a("s_mov_b64 exec, 1")
        self.mstore([f"buffer_store_dword v{t0}, v{t1}, {sr(WS,4)}, {soff} offen"], force)
        a("s_mov_b64 exec, -1")
    def poll(self, srd, vaddr, soff, starget, issued=False):
        a = self.a
        lp, ld = self.lab("poll"), self.lab("seen")
        ask = lambda r: f"buffer_load_dword v{r}, v{vaddr}, {sr(srd,4)}, {soff} offen sc1"
        if not issued: a(ask(t3))
        a("s_waitcnt vmcnt(0)")
        a(f"v_cmp_gt_u32 vcc, {starget}, v{t3}")
        if a is self.tail:
            a(f"s_cbranch_vccz {ld}")
        else:
            a(f"s_cbranch_vccnz {lp}"); a(f"{ld}:")
        b = self.tail
        b(f"{lp}:")
        if True:
            b(ask(t3)); b("s_waitcnt vmcnt(0)"); b(f"v_cmp_gt_u32 vcc, {starget}, v{t3}"); b(f"s_cbranch_vccz {ld}")
            b(f"s_sub_u32 s{BUD}, s{BUD}, 1"); b(f"s_cbranch_scc0 {lp}")
            b(f"s_mov_b32 s{BUD}, 0")
            if a is not self.tail: b(f"s_branch {ld}")
        if a is self.tail: a(f"{ld}:")
    def swap_add(self, vs, tmp, which, op="v_add_f32"):
        a = self.a
        for i, v in enumerate(vs): a(f"v_mov_b32 v{tmp+i}, v{v}")
        a("s_nop 1")
        for i, v in enumerate(vs): a(f"v_permlane{which}_swap_b32 v{v}, v{tmp+i}")
        if len(vs) < 2: a("s_nop 0")
        for i, v in enumerate(vs): a(f"{op} v{v}, v{v}, v{tmp+i}")

    def dma_addr(self, dst, n, kind):
        a = self.a
        upr, mul, sh = (12, 171, 11) if kind == "w1" else (10, 205, 11)
        ld = dict(wq=3840, w1=3072, w80=1280)[kind]
        for i in range(n):
            a(f"v_add_u32 v{t0}, {64*i}, v{vL}")
            a(f"v_mul_u32_u24 v{t1}, {mul}, v{t0}"); a(f"v_lshrrev_b32 v{t1}, {sh}, v{t1}")
            a(f"v_mul_u32_u24 v{t2}, {upr}, v{t1}"); a(f"v_sub_u32 v{t0}, v{t0}, v{t2}")
            a(f"v_mul_u32_u24 v{t1}, {ld}, v{t1}")
            if kind == "wq":
                a(f"v_min_u32 v{t0}, 8, v{t0}")
                a(f"v_mul_u32_u24 v{t2}, 11, v{t0}"); a(f"v_lshrrev_b32 v{t2}, 5, v{t2}"); a(f"v_min_u32 v{t2}, 2, v{t2}")
                a(f"v_mul_u32_u24 v{t2}, 1232, v{t2}"); a(f"v_add_u32 v{t1}, v{t1}, v{t2}")
            elif kind == "w80":
                a(f"v_lshl_add_u32 v{t0}, s{ODD}, 1, v{t0}")
                a(f"v_subrev_u32 v{t2}, 10, v{t0}"); a(f"v_min_u32 v{t0}, v{t0}, v{t2}")
            a(f"v_lshl_add_u32 v{dst+i}, v{t0}, 4, v{t1}")
    def dma(self, vaddr, srd, soff, m0base, m0imm, mods=""):
        return [f"s_add_u32 m0, {m0base}, {m0imm}", "s_nop 0", f"buffer_load_dwordx4 v{vaddr}, {sr(srd,4)}, {soff} offen {mods} lds".replace("  ", " ")]

    def stat_loads(self, ST, soff, vm, swap=None):
        a = self.p
        g = vG
        if swap is not None:
            a(f"s_lshl_b32 s{T}, s{swap}, 1"); a(f"v_xor_b32 v{t0}, s{T}, v{vG}"); g = t0
        a(f"v_lshrrev_b32 v{t1}, 1, v{g}"); a(f"v_mul_u32_u24 v{t1}, {XB-1024}, v{t1}"); a(f"v_lshl_add_u32 v{t1}, v{g}, 9, v{t1}"); a(f"v_lshl_add_u32 v{t1}, v{vJ}, 4, v{t1}")
        for u in range(2):
            a(f"buffer_load_dwordx4 {vr(ST+4*u,4)}, v{t1}, {sr(WS,4)}, {soff} offen offset:{256*u} sc1"); vm.issue("st")
    def stat_sum(self, ST, tmp):
        a = self.p
        for u in (2, 4, 6):
            for i in range(2): a(f"v_add_f32 v{ST+i}, v{ST+i}, v{ST+u+i}")
        self.swap_add([ST, ST+1], tmp, 16)
    def stat_math(self, ST, RS, TX, bias, halves=False):
        a = self.p
        s, v, r, u = ST, ST+1, ST+2, ST+3
        x = ST + 4
        a(f"v_mul_f32 v{s}, {hx(f2u(-1.0/640))}, v{s}"); a(f"v_mul_f32 v{v}, {hx(f2u(1.0/640))}, v{v}")
        if halves: a(f"v_cmp_gt_u32 vcc, 2, v{vG}"); a(f"v_cmp_le_u32 {sr(T+2,2)}, 2, v{vG}")
        else: a(f"v_cmp_eq_u32 vcc, 0, v{vG}"); a(f"v_cmp_eq_u32 {sr(T+2,2)}, 2, v{vG}")
        a(f"v_fma_f32 v{v}, -v{s}, v{s}, v{v}")
        a(f"v_max_f32 v{v}, 0, v{v}"); a(f"v_add_f32 v{v}, {hx(f2u(1e-5))}, v{v}")
        a(f"v_rsq_f32 v{r}, v{v}")
        a(f"v_cvt_pk_bf16_f32 v{x}, v{s}, v{s}"); a(f"v_and_b32 v{u}, 0xffff0000, v{x}"); a(f"v_sub_f32 v{u}, v{s}, v{u}")
        a(f"v_mov_b32 v{RS}, v{r}"); a(f"v_mov_b32 v{RS+1}, v{r}")
        if bias:
            a(f"v_mul_f32 v{v}, v{v}, v{r}")
            a(f"v_cvt_pk_bf16_f32 v{x+1}, v{u}, v{v}"); a(f"v_and_b32 v{u}, 0xffff0000, v{x+1}"); a(f"v_sub_f32 v{u}, v{v}, v{u}")
            a(f"v_cvt_pk_bf16_f32 v{x+2}, v{u}, 0")
        else:
            a(f"v_cvt_pk_bf16_f32 v{x+1}, v{u}, 0"); a("s_nop 0")
        a(f"v_permlane32_swap_b32 v{RS}, v{RS+1}")
        for rb in range(2):
            m = "vcc" if rb == 0 else sr(T+2, 2)
            for i in range(3 if bias else 2): a(f"v_cndmask_b32 v{TX+4*rb+i}, 0, v{x+i}, {m}")
            a(f"v_mov_b32 v{TX+4*rb+3}, 0" if bias else f"v_mov_b64 {vr(TX+4*rb+2,2)}, 0")

    def a_loads(self, gs, RD, AR, rot=False):
        out = []
        for rb in range(2):
            sa = A0 + rb
            ls = [f"buffer_load_dwordx4 {vr(AR + 8*(gs % RD) + 4*rb, 4)}, v{vL16}, {sr(WS,4)}, s{sa} offen offset:{1024*(gs % 4)} sc1"]
            if gs % 4 == 3 and not rot: ls.append(f"s_add_u32 s{sa}, s{sa}, 4096")
            if gs % 4 == 3 and rot:
                if rb == 0: ls += [f"s_mov_b32 s{ROT+1}, 4096", f"s_cmp_eq_u32 s{ROT}, {4 - gs//4}", f"s_cmov_b32 s{ROT+1}, {4096 - 20480}"]
                ls.append(f"s_add_u32 s{sa}, s{sa}, s{ROT+1}")
            out.append(ls)
        return out
    def capture(self, fn):
        main, self.a = self.a, Asm()
        fn()
        out, self.a = self.a.lines, main
        return out
    def gemm(self, NS, NB, RD, AR, BR, AC, rdaddr, second, vm, bars={}, std=(), czero=(0, 1), extra={}, wgrp=1, xper=1, init=None, lper=3, cinit=None, areg={}, tail=None, rot=False, aload=None, aoff=0, hooks={}, gate={}):
        a = self.a
        lg = Cnt("lgkmcnt", 15)
        NF = len(BR)
        breg = lambda gs, nb: BR[(gs*NB + nb) % NF]
        def reads(n):
            if n >= NS*NB: return []
            gs, nb = divmod(n, NB)
            v, off = rdaddr(gs, nb)
            return [(f"ds_read_b128 {vr(breg(gs, nb),4)}, v{v} offset:{off}", (gs, nb))]
        def emit_x(l):
            if l == "WAITX": a(lg.wait("x")); return
            if l.startswith("WAITV:"): a(vm.wait(l[6:])); return
            a(l)
            if l.startswith("ds_"): lg.issue("x")
        for n in range(NF):
            for l, tg in reads(n): a(l); lg.issue(tg)
        pr, ex = [], []
        aload = aload or (lambda g: self.a_loads(g, RD, AR, rot))
        allA = [(ls, ("A", g)) for g in range(NS) if g not in areg for ls in aload(g)][2*init:]
        def burst(n):
            for _ in range(n):
                ls, tg = allA.pop(0); a.extend(ls); vm.issue(tg)
        lpos = [(i * NB) // lper for i in range(lper)]
        for gs in range(NS):
            if gs in bars:
                while pr:
                    l, tg = pr.pop(0); a(l); lg.issue(tg)
                for l in bars[gs]: a(l)
            if gs in hooks: hooks[gs](burst)
            if gs not in areg: a(vm.wait(("A", gs)))
            elif areg[gs] is not None:
                for l in ex: emit_x(l)
                ex = []
            if tail is not None and gs == NS - 1:
                a(lg.wait(*[(gs, n) for n in range(NB)]))
                tl = list(tail)
                for rb in (1, 0):
                    for nb in range(NB):
                        d = vr(AC + 4*(NB*rb + nb), 4)
                        a(f"v_mfma_f32_16x16x32_bf16 {d}, {vr(breg(gs, nb), 4)}, {vr(AR + 8*((gs + aoff) % RD) + 4*rb, 4)}, {d}")
                        if rb == 0 and nb >= 3 and tl: a(tl.pop(0))
                for l in tl: a(l)
                break
            ex += list(extra.get(gs, []))
            for nb in range(NB):
                if nb % wgrp == 0:
                    tags = [(gs, n) for n in range(nb, min(nb + wgrp, NB))]
                    while any(tg in tags for _, tg in pr):
                        l, tg = pr.pop(0); a(l); lg.issue(tg)
                    a(lg.wait(*tags))
                for rb in range(2):
                    d = vr(AC + 4*(NB*rb + nb), 4)
                    c = "0" if (gs == 0 and rb in czero) else vr(cinit + 4*nb, 4) if (gs == 0 and cinit is not None) else d
                    w, x = vr(breg(gs, nb), 4), vr((areg.get(gs) or AR + 8*((gs + aoff) % RD)) + 4*rb, 4)
                    p, q = (x, w) if nb in std else (w, x)
                    a(f"v_mfma_f32_16x16x32_bf16 {d}, {p}, {q}, {c}")
                    if rb == 1: pr += reads(gs*NB + nb + NF)
                    if pr:
                        l, tg = pr.pop(0); a(l); lg.issue(tg)
                    if rb == 0 and nb in lpos and allA and allA[0][1][1] <= gs + RD - 1 and all(gs >= g0 for g1, g0 in gate.items() if allA[0][1][1] >= g1):
                        ls, tg = allA.pop(0); a.extend(ls); vm.issue(tg)
                    else:
                        for _ in range(xper):
                            if ex: emit_x(ex.pop(0))
        for l in ex: emit_x(l)
        return lg

    def xstore(self, sval, P, force=None, before_flag=None, packed=False):
        a = self.a
        if not packed:
            for i in range(10): a(f"v_cvt_pk_bf16_f32 v{P+i}, v{RES+2*i}, v{RES+2*i+1}")
        self.mstore([f"buffer_store_dwordx4 {vr(P,4)}, v{vL16}, {sr(WS,4)}, s{XA} offen",
                     f"buffer_store_dwordx4 {vr(P+4,4)}, v{vL16}, {sr(WS,4)}, s{XA} offen offset:1024",
                     f"buffer_store_dwordx2 {vr(P+8,2)}, v{vL16}, {sr(WS,4)}, s{XS} offen"], force)
        a(f"v_mov_b32 v{P+14}, 0x3f803f80")
        for i in range(10):
            u = P + 10 + 2*(i & 1)
            a(f"v_dot2_f32_bf16 v{u+1}, v{P+i}, v{P+i}, {'0' if i < 2 else 'v%d' % (u+1)}")
            a(f"v_dot2_f32_bf16 v{u}, v{P+i}, v{P+14}, {'0' if i < 2 else 'v%d' % u}")
        a(f"v_lshlrev_b32 v{t0}, 2, v{vG}"); a(f"v_lshl_add_u32 v{t0}, v{vJ}, 4, v{t0}"); a("s_nop 0")
        a(f"v_pk_add_f32 {vr(P+10,2)}, {vr(P+10,2)}, {vr(P+12,2)}"); a("s_nop 1")
        a(f"v_permlane16_swap_b32 v{P+10}, v{P+11}"); a("s_nop 0")
        a(f"v_add_f32 v{P+10}, v{P+10}, v{P+11}")
        self.swap_add([P+10], P+11, 32)
        a("s_mov_b32 exec_hi, 0")
        self.mstore([f"buffer_store_dword v{P+10}, v{t0}, {sr(WS,4)}, s{STO} offen"], force)
        a("s_mov_b64 exec, -1")
        self.flag(f"s{FXO}", sval, force, before_flag)

    def entry(self):
        a = self.p
        a(".p2align 8"); a(f"{NAME}_kernel:")
        a("s_cmp_ge_u32 s2, 256"); a("s_cbranch_scc1 L_end")
        srds = [("ws", WS), ("x", XIN), ("wqkv", WQ), ("dbg", DBG), ("wo", WO), ("w1", W1), ("w2", W2), ("b1", B1), ("b2", B2), ("out", OUT)]
        for n, s in srds: a(f"s_load_dwordx2 {sr(s,2)}, s[0:1], {KA[n]}")
        for n, s in srds:
            a(f"s_mov_b32 s{s+2}, {hx(SZ[n])}"); a(f"s_mov_b32 s{s+3}, 0x00020000")
        a(f"v_lshrrev_b32 v{t0}, 6, v0"); a(f"v_and_b32 v{vL}, 63, v0"); a(f"v_readfirstlane_b32 s{WV}, v{t0}")
        a(f"v_lshlrev_b32 v{vL16}, 4, v{vL}"); a(f"v_and_b32 v{vJ}, 15, v{vL}"); a(f"v_lshrrev_b32 v{vG}, 4, v{vL}")
        a(f"v_mov_b32 v{PB+9}, 0")
        if OPT["stamp"]:
            a("v_mov_b32 v254, 0"); a("v_mov_b32 v255, 0")
        a(f"s_and_b32 s{G}, s2, 7"); a(f"s_lshr_b32 s{IDX}, s2, 3")
        a(f"s_mov_b32 s{FAST}, 0"); a(f"s_mov_b32 s{BUD}, 0x80000"); a(f"s_mov_b32 s{LAY}, 0")
        a(f"s_and_b32 s{NT}, s{IDX}, 7"); a(f"s_and_b32 s{ODD}, s{IDX}, 1")
        a(f"s_and_b32 s{WM}, s{WV}, 1"); a(f"s_bfe_u32 s{WK}, s{WV}, 0x10001"); a(f"s_and_b32 s{HW}, s{WV}, 3")
        a(f"s_mov_b32 s{VMK}, 0x000fffff"); a(f"s_mov_b32 s{VMK+1}, 0x000fffff")
        a(f"s_lshl_b32 s{FB}, s{G}, 13"); a(f"s_add_u32 s{FB}, s{FB}, {hx(FLG)}")
        if not OPT.get("rot"): return
        ri, rg = OPT["rot"]
        a(f"s_mul_i32 s{T}, s{IDX}, {ri}"); a(f"s_mul_i32 s{T+1}, s{G}, {rg}"); a(f"s_add_u32 s{T}, s{T}, s{T+1}")
        a(f"s_mul_i32 s{T+1}, s{T}, 205"); a(f"s_lshr_b32 s{T+1}, s{T+1}, 10"); a(f"s_mul_i32 s{T+1}, s{T+1}, 5"); a(f"s_sub_u32 s{ROT}, s{T}, s{T+1}")
    def entry_tile(self):
        a = self.p
        a(f"s_mul_i32 s{T}, s{NT}, 160"); a(f"s_lshl_b32 s{T+1}, s{ODD}, 5"); a(f"s_add_u32 s{COL}, s{T}, s{T+1}")
        for i in range(1, 4): a(f"s_add_u32 s{COL+i}, s{COL}, {32*i}")
        a(f"s_add_u32 s{COL+4}, s{T}, 128"); a(f"s_cmp_eq_u32 s{ODD}, 1"); a(f"s_cmov_b32 s{COL+4}, s{T}")
        a(f"s_bfe_u32 s{KH}, s{IDX}, 0x10003")
        a(f"s_lshr_b32 s{T}, s{IDX}, 4"); a(f"s_lshl_b32 s{T}, s{T}, 2"); a(f"s_add_u32 s{T}, s{T}, s{HW}")
        a(f"s_lshl_b32 s{FXO}, s{T}, 8"); a(f"s_add_u32 s{FXO}, s{FXO}, s{FB}")
        a(f"s_lshl_b32 s{T+1}, s{NT}, 1"); a(f"s_add_u32 s{T+1}, s{T+1}, s{KH}"); a(f"s_lshl_b32 s{T+1}, s{T+1}, 2"); a(f"s_add_u32 s{FXO}, s{FXO}, s{T+1}")
        a(f"s_lshl_b32 s{RBO}, s{G}, 3"); a(f"s_add_u32 s{RBO}, s{RBO}, s{T}"); a(f"s_lshl_b32 s{RBO}, s{RBO}, 1"); a(f"s_add_u32 s{RBO}, s{RBO}, s{KH}")
        a(f"s_lshr_b32 s{T}, s{NT}, 1"); a(f"s_mul_i32 s{T+1}, s{T}, 5120"); a(f"s_mul_i32 s{T+2}, s{RBO}, {XB}"); a(f"s_add_u32 s{T+1}, s{T+1}, s{T+2}")
        a(f"s_mul_i32 s{XA}, s{ODD}, 3072"); a(f"s_add_u32 s{XA}, s{XA}, s{T+1}")
        a(f"s_lshl_b32 s{XS}, s{ODD}, 3"); a(f"s_add_u32 s{XS}, s{XS}, s{T+1}"); a(f"s_add_u32 s{XS}, s{XS}, 2048")
        a(f"s_lshl_b32 s{T}, s{T}, 8"); a(f"s_add_u32 s{STO}, s{T+2}, s{T}")
        a(f"s_lshl_b32 s{T}, s{ODD}, 3"); a(f"s_add_u32 s{STO}, s{STO}, s{T}"); a(f"s_add_u32 s{STO}, s{STO}, 20480")

    def pack_setup(self):
        a = self.p
        a(f"s_lshl_b32 s{T}, s{G}, 1"); a(f"s_lshr_b32 s{T+1}, s{IDX}, 4"); a(f"s_add_u32 s{T}, s{T}, s{T+1}"); a(f"s_lshl_b32 s{T}, s{T}, 3"); a(f"s_add_u32 s{T}, s{T}, s{WV}")
        d, o = PDST[0], PSRC[0]
        a(f"s_and_b32 s{T+3}, s{IDX}, 15")
        a(f"s_mul_i32 s{d}, s{T+3}, 120"); a(f"s_add_u32 s{d}, s{d}, s{T}"); a(f"s_lshl_b32 s{d}, s{d}, 10"); a(f"s_add_u32 s{d}, s{d}, {hx(PK1)}")
        a(f"s_cmp_ge_u32 s{T}, 120"); a(f"s_cmov_b32 s{d}, -1")
        a(f"s_mul_i32 s{T+1}, s{T}, 171"); a(f"s_lshr_b32 s{T+1}, s{T+1}, 10")
        a(f"s_mul_i32 s{T+2}, s{T+1}, {32*3072 - 6*32}"); a(f"s_lshl_b32 s{T}, s{T}, 5"); a(f"s_add_u32 s{T}, s{T}, s{T+2}")
        a(f"s_mul_i32 s{T+3}, s{T+3}, 192"); a(f"s_add_u32 s{o}, s{T}, s{T+3}")
        for u, (nfr, dst) in enumerate(((240, PK2), (100, PKO))):
            d, o = PDST[1+u], PSRC[1+u]
            a(f"s_lshl_b32 s{T}, s{G}, 2"); a(f"s_lshr_b32 s{T+1}, s{IDX}, 3"); a(f"s_add_u32 s{T}, s{T}, s{T+1}"); a(f"s_lshl_b32 s{T}, s{T}, 3"); a(f"s_add_u32 s{T}, s{T}, s{WV}")
            if u == 0:
                a(f"s_cmp_ge_u32 s{T}, 120"); a(f"s_cselect_b32 s{T+1}, 7, 0"); a(f"s_add_u32 s{T+1}, s{T+1}, s{NT}"); a(f"s_mul_i32 s{d}, s{T+1}, 120")
            else: a(f"s_mul_i32 s{d}, s{NT}, 100")
            a(f"s_add_u32 s{d}, s{d}, s{T}"); a(f"s_lshl_b32 s{d}, s{d}, 10"); a(f"s_add_u32 s{d}, s{d}, {hx(dst)}")
            a(f"s_cmp_ge_u32 s{T}, {nfr}"); a(f"s_cmov_b32 s{d}, -1")
            a(f"s_mul_i32 s{T+1}, s{T}, 205"); a(f"s_lshr_b32 s{T+1}, s{T+1}, 10")
            a(f"s_mul_i32 s{T+2}, s{T+1}, 5"); a(f"s_sub_u32 s{T}, s{T}, s{T+2}")
            a(f"s_add_u32 s{T}, s{T}, s{ODD}"); a(f"s_cmp_eq_u32 s{T}, 5"); a(f"s_cselect_b32 s{T}, 0, s{T}"); a(f"s_lshl_b32 s{T}, s{T}, 5")
            if u == 0:
                a(f"s_cmp_ge_u32 s{T+1}, 24"); a(f"s_cselect_b32 s{o}, 24, 0"); a(f"s_sub_u32 s{T+1}, s{T+1}, s{o}")
                a(f"s_sub_u32 s{T+2}, s{T+1}, 1"); a(f"s_and_b32 s{T+3}, s{T+2}, 1"); a(f"s_lshr_b32 s{T+2}, s{T+2}, 1")
                a(f"s_cmp_lt_u32 s{T+1}, 3"); a(f"s_cmov_b32 s{T+2}, 0"); a(f"s_cmov_b32 s{T+3}, s{T+1}")
                a(f"s_cmp_ge_u32 s{T+1}, 17"); a(f"s_cmov_b32 s{T+2}, s{T+1}"); a(f"s_cmov_b32 s{T+3}, 2")
                a(f"s_add_u32 s{T+2}, s{T+2}, s{NT}"); a(f"s_and_b32 s{T+2}, s{T+2}, 7"); a(f"s_mul_i32 s{T+2}, s{T+2}, 3")
                a(f"s_add_u32 s{T+1}, s{T+2}, s{T+3}"); a(f"s_add_u32 s{T+1}, s{T+1}, s{o}")
            if u == 1:
                a(f"s_lshr_b32 s{T+2}, s{T+1}, 2"); a(f"s_lshl_b32 s{T+2}, s{T+2}, 1"); a(f"s_and_b32 s{T+3}, s{T+1}, 1"); a(f"s_add_u32 s{T+2}, s{T+2}, s{T+3}")
                a(f"s_bfe_u32 s{T+3}, s{T+1}, 0x10001"); a(f"s_mul_i32 s{T+3}, s{T+3}, 10"); a(f"s_add_u32 s{T+1}, s{T+2}, s{T+3}")
            a(f"s_mul_i32 s{T+1}, s{T+1}, {32*1280}"); a(f"s_add_u32 s{T}, s{T}, s{T+1}"); a(f"s_mul_i32 s{T+2}, s{NT}, 160"); a(f"s_add_u32 s{o}, s{T}, s{T+2}")

    def unstash(self, which=range(10)):
        a = self.p
        a(f"s_lshl_b32 s{T}, s{WV}, 10"); a(f"v_add_u32 v{t0}, s{T}, v{vL16}"); a(f"v_add_u32 v{t1}, 40960, v{t0}")
        for i in which: a(f"ds_write_b128 v{t0 + i//5}, {vr(STH+4*i,4)} offset:{(i%5)*8192}")

    def att_setup(self):
        a = self.p
        vM, vH, IDXR, AK, AK4, AV, QA, PA, V = PB, PB+1, PB+2, PB+3, PB+4, PB+5, PB+6, PB+9, PB+32
        a(f"v_and_b32 v{vM}, 31, v{vL}"); a(f"v_lshrrev_b32 v{vH}, 5, v{vL}")
        a(f"s_lshl_b32 s{T+4}, s{HW}, 1"); a(f"s_lshr_b32 s{T}, s{WV}, 2"); a(f"s_add_u32 s{T+4}, s{T+4}, s{T}")
        a(f"s_mul_i32 s{T}, s{T}, 10240"); a(f"s_add_u32 s{T}, s{T}, {7*SL}")
        a(f"v_lshl_add_u32 v{AK4}, v{vM}, 3, s{T}"); a(f"v_lshl_add_u32 v{AK}, v{vH}, 8, v{AK4}"); a(f"v_add_u32 v{AK4}, 1024, v{AK4}")
        a(f"v_mul_u32_u24 v{t0}, 20, v{vH}"); a(f"v_add_u32 v{t0}, v{t0}, v{vM}"); a(f"v_lshl_add_u32 v{AV}, v{t0}, 4, s{T}")
        a(f"s_mul_i32 s{T+1}, s{T+4}, 1280"); a(f"s_add_u32 s{T+1}, s{T+1}, {6*SL}")
        a(f"s_xor_b32 s{T}, s{T+4}, 1"); a(f"s_mul_i32 s{T}, s{T}, 1280"); a(f"s_add_u32 s{T}, s{T}, {6*SL}")
        a(f"v_lshlrev_b32 v{t0}, 3, v{vM}"); a(f"v_lshl_add_u32 v{t1}, v{vH}, 8, v{t0}")
        a(f"v_add_u32 v{QA}, s{T}, v{t1}"); a(f"v_add_u32 v{QA+1}, s{T+1}, v{t1}")
        a(f"s_sub_u32 s{T+1}, s{T+1}, s{T}"); a(f"v_mul_lo_u32 v{t1}, v{vH}, s{T+1}"); a(f"v_add3_u32 v{QA+2}, v{t0}, v{t1}, s{T}")
        a(f"v_mov_b32 v{IDXR}, 0xdddddddd")
        a(f"s_and_b32 s{T}, s{IDX}, 7"); a(f"s_lshl_b32 s{T}, s{T}, 13"); a(f"s_lshr_b32 s{T+1}, s{IDX}, 3"); a(f"s_lshl_b32 s{T+1}, s{T+1}, 8"); a(f"s_add_u32 s{T}, s{T}, s{T+1}")
        a(f"s_add_u32 s{T}, s{T}, {hx(FLG+2048)}"); a(f"s_lshl_b32 s{T+1}, s{HW}, 5"); a(f"s_add_u32 s{T+5}, s{T}, s{T+1}")
        a(f"s_lshl_b32 s{T+1}, s{WV}, 3"); a(f"s_add_u32 s{T+1}, s{T+1}, s{G}"); a(f"s_lshl_b32 s{T+1}, s{T+1}, 2"); a(f"s_add_u32 s{FO}, s{T+1}, s{T}"); a(f"s_add_u32 s{T+6}, s{LAY}, 1")
        a(f"v_and_b32 v{PA}, 7, v{vL}"); a(f"v_lshlrev_b32 v{PA}, 2, v{PA}")

    def qkv(self):
        a = self.p
        RD = OPT.get("rd_q", 6); IN = OPT.get("in_q", 3)
        RA = PB + 12
        RT = PB + 16
        AD = PB + 24
        RS = PB + 48
        ST = PB + 60
        BR = PB + 68
        AC = PB + 84
        AR = PB + 116
        TX, TM = AR + 28, AR + 36
        RB = PB + 148
        BRL = ([BR + 4*i for i in range(4)] + [PB + 32 + 4*i for i in range(4)])[:OPT.get('nf_q', 8)]
        assert AR + 8*RD <= STH and IN <= 3
        AQ, AK, A4, AV, AVS, ARB = AD, AD+1, AD+2, AD+3, AD+4, AD+5
        self.RB, self.ARB = RB, ARB
        def adprep():
            a(f"s_mul_i32 s{T}, s{WV}, 1280"); a(f"s_add_u32 s{T}, s{T}, {6*SL}")
            a(f"s_mul_i32 s{T+1}, s{WV}, 2560"); a(f"s_add_u32 s{T+1}, s{T+1}, {7*SL}")
            a(f"v_cmp_eq_u32 vcc, 0, v{vG}")
            a(f"v_lshlrev_b32 v{t0}, 3, v{vJ}"); a(f"v_lshl_add_u32 v{t1}, v{vG}, 8, v{t0}")
            a(f"v_add_u32 v{AQ}, s{T}, v{t1}"); a(f"v_add_u32 v{AK}, s{T+1}, v{t1}")
            a(f"v_add_u32 v{t1}, s{T}, v{t0}"); a(f"v_add_u32 v{t2}, s{T+1}, v{t0}"); a(f"v_cndmask_b32 v{A4}, v{t2}, v{t1}, vcc")
            a(f"v_lshrrev_b32 v{t1}, 1, v{vG}"); a(f"v_mul_u32_u24 v{t1}, 320, v{t1}"); a(f"v_lshl_add_u32 v{t1}, v{vJ}, 4, v{t1}")
            a(f"v_and_b32 v{t2}, 1, v{vG}"); a(f"v_lshl_add_u32 v{t1}, v{t2}, 3, v{t1}"); a(f"v_add_u32 v{AV}, s{T+1}, v{t1}")
            a(f"v_lshrrev_b32 v{t1}, 3, v{vJ}"); a(f"v_mul_u32_u24 v{t1}, 320, v{t1}"); a(f"v_and_b32 v{t2}, 7, v{vJ}")
            a(f"v_lshl_add_u32 v{t1}, v{t2}, 1, v{t1}"); a(f"v_add_u32 v{AVS}, s{T+1}, v{t1}")
            a(f"v_add_u32 v{ARB}, s{T+1}, v{vL16}")
            a(f"s_mul_i32 s{KVS}, s{IDX}, 163840"); a(f"s_mul_i32 s{T}, s{LAY}, {hx(0x500000)}"); a(f"s_add_u32 s{KVS}, s{KVS}, s{T}")
            a(f"s_mul_i32 s{T}, s{HW}, 2560"); a(f"s_add_u32 s{KVS}, s{KVS}, s{T}"); a(f"s_add_u32 s{KVS}, s{KVS}, {hx(KVF(0))}")
            a(f"s_lshl_b32 s{T}, s{G}, 1"); a(f"s_lshr_b32 s{T+1}, s{WV}, 2"); a(f"s_add_u32 s{T}, s{T}, s{T+1}")
            a(f"s_mul_i32 s{OS}, s{T}, 10240"); a(f"s_add_u32 s{OS}, s{OS}, s{KVS}")
        def qsetup():
            a(f"v_add_u32 v{RA}, 65536, v{vL16}")
            a(f"s_lshl_b32 s{T}, s{G}, 3"); a(f"s_add_u32 s{T}, s{T}, s{WV}")
            a(f"s_mul_i32 s{A0}, s{T}, {2*XB}"); a(f"s_add_u32 s{T+1}, s{A0}, 20480")
            if OPT.get("rot"): a(f"s_lshl_b32 s{T}, s{ROT}, 12"); a(f"s_add_u32 s{A0}, s{A0}, s{T}")
            a(f"s_add_u32 s{A1}, s{A0}, {XB}")
            a(f"s_lshl_b32 s{T+2}, s{WV}, 8"); a(f"s_add_u32 s{T+2}, s{T+2}, s{FB}")
            a(f"v_lshlrev_b32 v{t2}, 2, v{vJ}")
            a(f"s_lshl_b32 s{T+3}, s{LAY}, 1"); a(f"s_add_u32 s{T+3}, s{T+3}, 1")
        self.qsetup = qsetup
        def lnprep(first):
            self.stat_math(ST, RS, TX, False)
            a(f"v_lshlrev_b32 v{t0}, 4, v{vG}")
            for rb in range(2):
                for i in range(4): a(f"ds_bpermute_b32 v{RT+4*rb+i}, v{t0}, v{ST+2} offset:{128*rb+4*i}")
            cq = hx(f2u(20**-0.5 * math.log2(math.e)))
            for nb in range(4):
                x = BR + 4*nb
                a(f"v_cvt_pk_bf16_f32 v{x}, v{CSQ+nb}, v{CSQ+nb}"); a(f"v_and_b32 v{t1}, 0xffff0000, v{x}"); a(f"v_sub_f32 v{t1}, v{CSQ+nb}, v{t1}")
                a(f"v_and_b32 v{x+1}, 0xffff, v{x}"); a(f"v_cvt_pk_bf16_f32 v{x}, v{CSQ+nb}, v{t1}")
                a(f"v_mov_b64 {vr(x+2,2)}, 0")
            for rb in range(2): a(f"v_mul_f32 v{RS+2+rb}, {cq}, v{RS+rb}")
            for rb in range(2): a(f"v_cndmask_b32 v{RS+4+rb}, v{RS+rb}, v{RS+2+rb}, vcc")
            for nb in (1, 2, 3, 0):
                for rb in range(2):
                    d = vr(AC + 4*(4*rb + nb), 4); w, x = vr(BR+4*nb, 4), vr(TX+4*rb, 4)
                    p, q = (x, w) if nb == 2 else (w, x)
                    a(f"v_mfma_f32_16x16x32_bf16 {d}, {p}, {q}, {'0' if first else d}")
            a("s_waitcnt lgkmcnt(0)")

        ONE = RT + 4
        def conv_setup():
            a(f"v_lshrrev_b32 v{t0}, 2, v{vL}"); a(f"v_mul_u32_u24 v{t0}, 160, v{t0}"); a(f"v_lshl_add_u32 v{t0}, s{ODD}, 3, v{t0}")
            a(f"v_and_b32 v{t1}, 3, v{vL}"); a(f"v_lshlrev_b32 v{t2}, 3, v{t1}")
            a(f"v_min_u32 v{t1}, 2, v{t1}"); a(f"v_mul_u32_u24 v{t1}, 48, v{t1}")
            a(f"s_mul_i32 s{T}, s{HW}, 48"); a(f"s_cmp_eq_u32 s{HW}, 3"); a("s_cselect_b64 vcc, -1, 0"); a(f"s_cselect_b32 s{T}, 32, s{T}")
            a(f"s_lshr_b32 s{T+1}, s{WV}, 2"); a(f"s_mul_i32 s{T+1}, s{T+1}, 5120"); a(f"s_add_u32 s{T}, s{T}, s{T+1}"); a(f"s_add_u32 s{T}, s{T}, {3*SL}")
            a(f"v_cndmask_b32 v{t1}, v{t2}, v{t1}, vcc"); a(f"v_add3_u32 v{RT}, v{t0}, v{t1}, s{T}"); a(f"v_add_u32 v{RT+1}, 51200, v{RT}")
            for i in range(4): a(f"v_mov_b32 v{ONE+i}, 0x3f803f80")
        def conv(i0, i1):
            for i in range(i0, i1):
                for u in range(2): a(f"ds_read_b64_tr_b16 {vr(STH+4*i+2*u,2)}, v{RT + i//5} offset:{(i % 5)*10240 + 2560*u}")
            a("s_waitcnt lgkmcnt(0)")
            for i in range(i0, i1):
                a(f"v_mfma_f32_16x16x32_bf16 {vr(CSQ,4)}, {vr(ONE,4)}, {vr(STH+4*i,4)}, {'0' if i == 0 else vr(CSQ,4)}")
            self.unstash(range(i0, i1))
        P = AC
        a(f"s_cmp_ge_u32 s{WV}, 4"); a("s_cbranch_scc1 L_q0_load")
        self.entry_tile()
        a(f"v_mul_u32_u24 v{t2}, 1280, v{vJ}"); a(f"v_lshl_add_u32 v{t2}, v{vG}, 3, v{t2}")
        a(f"s_mul_i32 s{T}, s{RBO}, 20480"); a(f"v_add_u32 v{t2}, s{T}, v{t2}")
        a("s_waitcnt lgkmcnt(0)")
        self.stamp(0)
        a(f"s_or_b32 s{T+5}, s{WV}, s{IDX}")
        a(f"s_cmp_eq_u32 s{T+5}, 0"); a("s_cbranch_scc0 L_q0_c1")
        for i in range(4): a(f"v_mov_b32 v{BR+i}, 0")
        for i in range(4): a(f"buffer_store_dwordx4 {vr(BR,4)}, v{vL16}, {sr(WS,4)}, s{FB} offen offset:{1024*i} sc1")
        a("L_q0_c1:")
        for i in range(5): a(f"buffer_load_dwordx2 {vr(P+2*i,2)}, v{t2}, {sr(XIN,4)}, s{COL+i} offen")
        conv_setup(); self.pack_setup()
        a(f"s_lshl_b32 s{T+6}, s{G}, 2")
        a(f"s_cmp_eq_u32 s{T+5}, 0"); a("s_cbranch_scc0 L_q0_c2")
        a(f"v_mov_b32 v{t0}, 1"); a(f"v_mov_b32 v{t1}, 0")
        a("s_waitcnt vmcnt(5)")
        a("s_mov_b64 exec, 1")
        a(f"buffer_store_dword v{t0}, v{t1}, {sr(DBG,4)}, s{T+6} offen sc1")
        a("s_mov_b64 exec, -1")
        a("s_waitcnt vmcnt(1)")
        a("s_branch L_q0_c3")
        a("L_q0_c2:")
        a("s_waitcnt vmcnt(0)")
        a("L_q0_c3:")
        self.stamp(21)
        def boot():
            for i in range(10):
                a(f"v_lshlrev_b32 v{RES+2*i}, 16, v{P+i}"); a(f"v_and_b32 v{RES+2*i+1}, 0xffff0000, v{P+i}")
            a(f"v_and_b32 v{t2}, 7, v{vL}"); a(f"v_lshlrev_b32 v{t2}, 2, v{t2}")
            if OPT.get("sboot", 1):
                a("s_waitcnt vmcnt(0)")
                a(f"s_buffer_load_dwordx8 {sr(T+6,8)}, {sr(DBG,4)}, 0"); a("s_waitcnt lgkmcnt(0)")
                for i in range(1, 4): a(f"s_and_b64 {sr(T+6,2)}, {sr(T+6,2)}, {sr(T+6+2*i,2)}")
                a(f"s_and_b32 s{T+6}, s{T+6}, s{T+7}"); a("s_cbranch_scc1 L_q0_boot")
            self.poll(DBG, t2, "0", "1")
            a("L_q0_boot:")
        self.xstore("1", P, "sc1", before_flag=boot, packed=True)
        self.stamp(23)
        a(f"v_lshlrev_b32 v{t0}, 7, v{vJ}"); a(f"v_and_b32 v{t1}, 0x380, v{t0}")
        a(f"buffer_load_dword v{BR}, v{t0}, {sr(WS,4)}, s{XA} offen sc1"); a(f"buffer_load_dword v{BR+1}, v{t1}, {sr(WS,4)}, s{XS} offen sc1")
        a(f"s_getreg_b32 s{T}, hwreg(HW_REG_XCC_ID)"); a(f"s_and_b32 s{T}, s{T}, 15"); a(f"s_add_u32 s{T}, s{T}, 16")
        a(f"v_mov_b32 v{t1}, s{T}"); a(f"v_mov_b32 v{t2}, 0")
        a(f"s_lshl_b32 s{T}, s{IDX}, 2"); a(f"s_add_u32 s{T}, s{T}, s{FB}")
        a(f"s_cmp_eq_u32 s{WV}, 0"); a("s_cbranch_scc0 L_q0_c4")
        a("s_mov_b64 exec, 1")
        a(f"buffer_store_dword v{t1}, v{t2}, {sr(WS,4)}, s{T} offen offset:3200 sc1")
        a("s_mov_b64 exec, -1")
        a("L_q0_c4:")
        a("s_barrier")
        conv(0, 4)
        a("s_branch L_q0_conv")
        a("L_q0_load:")
        D = AC
        self.dma_addr(D, 5, "wq")
        a(f"s_mul_i32 s{DS}, s{HW}, {32*3840}"); a(f"s_mul_i32 s{T}, s{IDX}, 40"); a(f"s_and_b32 s{T}, s{T}, -16"); a(f"s_add_u32 s{DS}, s{DS}, s{T}")
        a(f"s_mul_i32 s{T+8}, s{HW}, 5120")
        if OPT.get("rot"): a(f"s_mul_i32 s{T}, s{ROT}, {128*3840}"); a(f"s_add_u32 s{DS}, s{DS}, s{T}")
        a("s_waitcnt lgkmcnt(0)")
        self.stamp(0)
        def gather(c):
            for i in range(5):
                a.extend(self.dma(D+i, WQ, f"s{DS}", f"s{T+8}", (3+c)*SL + 1024*i, OPT.get("wqmod", "")))
                if OPT.get("ht0", 10): a(f"s_waitcnt vmcnt({OPT.get('ht0', 10)})")
            if OPT.get("rot"):
                a(f"s_mov_b32 s{ROT+1}, {128*3840}"); a(f"s_cmp_eq_u32 s{ROT}, {4 - c}"); a(f"s_cmov_b32 s{ROT+1}, {-4*128*3840}")
                a(f"s_add_u32 s{DS}, s{DS}, s{ROT+1}")
            else: a(f"s_add_u32 s{DS}, s{DS}, {128*3840}")
            self.stamp(24 + c)
        g1 = OPT.get("g1", 3); g0 = OPT.get("g0", 3)
        for c in range(g0): gather(c)
        conv_setup(); adprep(); self.att_setup(); self.pack_setup()
        for c in range(g0, g1): gather(c)
        a(f"s_waitcnt vmcnt({5*(g1-2)})")
        self.stamp(23)
        a("s_barrier")
        g2 = OPT.get("g2", 4)
        for c in range(g1, g2): gather(c)
        conv(0, 4)
        for c in range(max(g1, g2), 5): gather(c)
        a("s_waitcnt vmcnt(5)")
        a("L_q0_conv:")
        a("s_barrier")
        conv(4, 8)
        self.stamp(1)
        qsetup()
        a("s_branch L_q1_a")
        def last_chunk():
            a("s_barrier")
            (a(f"s_cmp_eq_u32 s{WV}, 7"), a("s_cbranch_scc0 L_q0_l3"))
            a(f"s_getpc_b64 {sr(T,2)}")
            a("L_pc:")
            a(f"s_lshl_b32 s{T+2}, s{IDX}, 11"); a(f"s_cmp_lt_u32 s{T+2}, L_last-L_pc"); a("s_cbranch_scc0 L_q0_l3")
            a(f"v_lshlrev_b32 v{t0}, 7, v{vJ}"); a(f"v_add_u32 v{t0}, s{T+2}, v{t0}"); a(f"v_min_u32 v{t0}, L_last-L_pc, v{t0}")
            a(f"global_load_dword v{PB+59}, v{t0}, {sr(T,2)}")
            a("L_q0_l3:")
            conv(8, 10)
            a(f"s_lshl_b32 s{T}, s{WV}, 2"); a(f"s_add_u32 s{T}, s{T}, {4*SL}"); a(f"v_lshl_add_u32 v{t2}, v{vJ}, 5, s{T}")
            a(f"s_mov_b32 s{T}, {4*SL}"); a(f"v_lshl_add_u32 v{t3}, v{vJ}, 5, s{T}")
            a(f"ds_write_b32 v{t2}, v{CSQ}")
            a("s_waitcnt lgkmcnt(0)"); a("s_barrier")
            a(f"ds_read_b128 {vr(CSQ,4)}, v{t3}"); a(f"ds_read_b128 {vr(BR,4)}, v{t3} offset:16")
            a("s_waitcnt lgkmcnt(0)")
            for i in range(4): a(f"v_add_f32 v{CSQ+i}, v{CSQ+i}, v{BR+i}")

        a("L_qkv1:")
        self.stamp(1)
        adprep(); self.att_setup(); qsetup()
        a("L_q1_a:")
        self.poll(WS, t2, f"s{T+2}", f"s{T+3}")
        self.stamp(2)
        vm = Cnt("vmcnt", 63)
        for ls in self.a_loads(0, RD, AR): a.extend(ls); vm.issue(("A", 0))
        self.stat_loads(ST, f"s{T+1}", vm)
        for gs in range(1, IN):
            for ls in self.a_loads(gs, RD, AR): a.extend(ls); vm.issue(("A", gs))
        a(f"s_cmp_ge_u32 s{WV}, 4"); a("s_cbranch_scc1 L_q1_c")
        a("s_setprio 2")
        for i in range(0, 32, 2): a(f"v_mov_b64 {vr(AC+i,2)}, 0")
        adprep()
        a("L_q1_c:")
        a(f"s_cmp_lg_u32 s{LAY}, 0"); a("s_cbranch_scc1 L_q1_d")
        last_chunk()
        a("s_branch L_q1_b")
        a("L_q1_d:")
        a("s_waitcnt lgkmcnt(0)"); a("s_barrier")
        a("L_q1_b:")
        a(f"s_cmp_lt_u32 s{WV}, 4"); a("s_cbranch_scc1 L_q1_loop")
        a("L_q1_late:")
        a(copy.deepcopy(vm).wait("st"))
        self.stat_sum(ST, TM); lnprep(True)
        a("L_q1_loop:")
        self.gemm(20, 4, RD, AR, BRL, AC, lambda gs, nb: (vL16 if gs < 16 else RA, (gs % 16)*4096 + nb*1024), None, vm, std=(2,), czero=(), wgrp=2, init=IN, rot=bool(OPT.get('rot')))
        self.stamp(3)
        a(f"s_cmp_ge_u32 s{WV}, 4"); a("s_cbranch_scc1 L_q_epi")
        self.stat_sum(ST, TM)
        a("L_q_prep:")
        lnprep(False)
        a("L_q_epi:")
        PK = BR
        a("s_nop 2")
        for nb in (1, 2, 3, 0):
            for rb in range(2):
                r = AC + 4*(4*rb + nb)
                for i in range(4):
                    m = RT + 4*rb + i if nb == 2 else RS + {0: 2, 1: 0, 3: 4}[nb] + rb
                    a(f"v_mul_f32 v{r+i}, v{r+i}, v{m}")
            for r2 in range(2):
                r = AC + 4*(4*r2 + nb); p = PK + 2*(4*r2 + nb)
                a(f"v_cvt_pk_bf16_f32 v{p}, v{r}, v{r+1}"); a(f"v_cvt_pk_bf16_f32 v{p+1}, v{r+2}, v{r+3}")
                if nb == 0 and r2 == 0: a("s_waitcnt lgkmcnt(8)")
                if nb == 0: a(f"ds_write_b64 v{AQ}, {vr(p,2)} offset:{128*r2}")
                if nb == 1: a(f"ds_write_b64 v{AK}, {vr(p,2)} offset:{128*r2}")
                if nb == 2: a(f"ds_write_b64 v{AV}, {vr(p,2)} offset:{1280+640*r2}")
            if nb == 3:
                a("s_mov_b32 exec_hi, 0")
                for rb in range(2): a(f"ds_write_b64 v{A4}, {vr(PK+2*(4*rb+3),2)} offset:{1024+128*rb}")
                a("s_bfm_b64 exec, 16, 32")
                for rb in range(2):
                    for i in range(4):
                        a(f"ds_write_b16{'_d16_hi' if i & 1 else ''} v{AVS}, v{PK+2*(4*rb+3)+(i>>1)} offset:{1280+640*rb+256+16*i}")
                a("s_mov_b64 exec, -1")
        V = PB + 32
        a(f"v_and_b32 v{t1}, 31, v{vL}"); a(f"v_cmp_eq_u32 vcc, 20, v{t1}"); a(f"v_mov_b32 v{t0}, 0x3f803f80"); a("s_nop 0")
        a(f"v_cndmask_b32 v{V}, 0, v{t0}, vcc"); a(f"v_cndmask_b32 v{V+1}, 0, v{t0}, vcc")
        for i in range(2, 16, 2): a(f"v_mov_b64 {vr(V+i,2)}, {vr(V,2)}")
        a("s_waitcnt lgkmcnt(0)")
        for i in range(3): a(f"ds_read_b128 {vr(RB+4*i,4)}, v{ARB} offset:{1024*i}")
        a(f"s_cmp_ge_u32 s{WV}, 4"); a("s_cbranch_scc1 L_att_late")
        a("s_waitcnt lgkmcnt(0)")
        self.publish()
        self.stamp(22)
        a("s_setprio 0")
        self.att_setup()
        self.flag(f"s{FO}", f"s{T+6}", "sc1")
        self.stamp(5)
        a("L_att_late:")
    def publish(self):
        a = self.p
        for i in range(3):
            if i == 2: a("s_mov_b32 exec_hi, 0")
            a(f"buffer_store_dwordx4 {vr(self.RB+4*i,4)}, v{vL16}, {sr(WS,4)}, s{OS} offen offset:{1024*i} sc1")
        a("s_mov_b64 exec, -1")

    def attention(self):
        a = self.p
        vM, vH, IDXR = PB, PB+1, PB+2
        AK, AK4, AV = PB+3, PB+4, PB+5
        OA = PB+6
        PA = PB+9
        Q = [PB+12, PB+16]; Q4 = PB+20; K4 = PB+22
        KK = [PB+24, PB+28]
        V = PB+32
        O = [PB+48, PB+64]
        S = [PB+80, PB+112]
        NM = S[1]
        PF = PB+144
        PR = PB+148
        EXM, EXF = f"s_mov_b64 exec, {sr(VMK,2)}", "s_mov_b64 exec, -1"
        HALF = "s_mov_b32 exec_hi, 0"
        kvm = OPT.get("kvmod", "sc1")
        base = [0]
        def off(n):
            o = (n // 4) * SL + (n % 4) * 2560 - base[0]
            assert 0 <= o < 65536 - 2560
            return o
        def rdK4(t): return f"ds_read_b64 {vr(K4,2)}, v{AK4} offset:{off(t)}"
        def rdK(t): return f"ds_read2st64_b64 {vr(KK[t&1],4)}, v{AK} offset0:{off(t)//512} offset1:{off(t)//512+1}"
        def rdV(t, i): return f"ds_read_b128 {vr(V+8*(t&1)+4*i,4)}, v{AV} offset:{off(t)+1280+640*i}"
        def m2b(t, c="0"): return f"v_mfma_f32_32x32x4_2b_bf16 {vr(S[t&1],32)}, {vr(K4,2)}, {vr(Q4,2)}, {c}"
        def mk(t, q): return f"v_mfma_f32_32x32x16_bf16 {vr(S[t&1]+16*q,16)}, {vr(KK[t&1],4)}, {vr(Q[q],4)}, {vr(S[t&1]+16*q,16)}"
        def pv(t, i): return f"v_smfmac_f32_32x32x32_bf16 {vr(O[i>>1],16)}, {vr(V+8*(t&1)+4*(i&1),4)}, {vr(S[t&1]+8*i,8)}, v{IDXR}"
        def set_addr(b):
            a(f"s_lshr_b32 s{T}, s{WV}, 2"); a(f"s_mul_i32 s{T}, s{T}, 10240"); a(f"s_add_u32 s{T}, s{T}, {b}")
            a(f"v_lshl_add_u32 v{AK4}, v{vM}, 3, s{T}"); a(f"v_lshl_add_u32 v{AK}, v{vH}, 8, v{AK4}"); a(f"v_add_u32 v{AK4}, 1024, v{AK4}")
            a(f"v_mul_u32_u24 v{t0}, 20, v{vH}"); a(f"v_add_u32 v{t0}, v{t0}, v{vM}"); a(f"v_lshl_add_u32 v{AV}, v{t0}, 4, s{T}")
        def fill(mid=[]):
            mid = list(mid)
            a(rdK4(0)); a(rdK(0)); a(rdK(1)); a(EXM); a(rdV(0, 0)); a(rdV(0, 1)); a(EXF)
            a("s_waitcnt lgkmcnt(4)"); a(m2b(0)); a(rdK4(1))
            a.extend(mid[:16])
            if len(mid) < 16: a(f"s_nop {15 - len(mid)}")
            a("s_waitcnt lgkmcnt(4)")
            a(mk(0, 0)); a(mk(0, 1))
            a.extend(mid[16:])
            if len(mid[16:]) < 11: a(f"s_nop {10 - len(mid[16:])}")
        def step(t, last, first=False, hook={}):
            nqk, nrd = t + 1 <= last, t + 2 <= last
            ins = {1: ([] if first else [pv(t-1, 3)]) + ["s_waitcnt lgkmcnt(0)"],
                   5: ([m2b(t+1)] if nqk else []) + ([rdK4(t+2)] if nrd else []),
                   13: [pv(t, 0)] + ([EXM, rdV(t+1, 0), rdV(t+1, 1), EXF] if nqk else []),
                   17: [pv(t, 1)] + ([rdK(t+2)] if nrd else []),
                   21: [mk(t+1, 0)] if nqk else [], 25: [pv(t, 2)], 29: [mk(t+1, 1)] if nqk else []}
            for e in range(32):
                a(f"v_exp_f32 v{S[t&1]+e}, v{S[t&1]+e}")
                for l in ins.get(e, []): a(l)
                for h in hook.get(e, []): h()
        prio = lambda p: (lambda: a(f"s_setprio {p}") if OPT.get("prio", 1) else None)
        WOFF = T + 10
        def kv_dma1(sblk, slot, i, add=0):
            a(f"s_add_u32 m0, s{WOFF}, {slot*SL + add}")
            a(HALF if i == 2 else "s_nop 0")
            a(f"buffer_load_dwordx4 v{vL16}, {sr(WS,4)}, s{sblk} offen offset:{1024*i} {kvm} lds")
            if i == 2: a(EXF)
        def kv_src(sd, b):
            a(f"s_lshr_b32 s{sd}, s{WV}, 2")
            if b == 4: a(f"s_mul_i32 s{T}, s{sd}, 10240"); a(f"s_lshl_b32 s{sd}, s{sd}, 1")
            a(f"s_add_u32 s{sd}, s{sd}, s{G}"); a(f"s_add_u32 s{sd}, s{sd}, {2*b - 1 + (b > 4)}"); a(f"s_and_b32 s{sd}, s{sd}, 7")
            a(f"s_mul_i32 s{sd}, s{sd}, {SL}"); a(f"s_add_u32 s{sd}, s{sd}, s{KVS}")
            if b == 4: a(f"s_add_u32 s{sd}, s{sd}, s{T}")
            if b > 4: a(f"s_add_u32 s{sd}, s{sd}, 10240")

        a("s_barrier")
        self.stamp(4)
        prio(3)()
        a(f"ds_read_b64 {vr(Q4,2)}, v{OA+2} offset:1024")
        a(f"ds_read2st64_b64 {vr(Q[0],4)}, v{OA} offset0:0 offset1:1"); a(f"ds_read2st64_b64 {vr(Q[1],4)}, v{OA+1} offset0:0 offset1:1")
        def misc0():
            for q in range(2):
                for i in range(0, 16, 2): a(f"v_mov_b64 {vr(O[q]+i,2)}, 0")
            a(f"s_mov_b32 s{PASS}, 0"); a(f"s_mul_i32 s{WOFF}, s{WV}, 2560")
            a(f"s_cmp_ge_u32 s{WV}, 4"); a("s_cbranch_scc1 L_att_pub")
            a(f"buffer_load_dword v{t3}, v{PA}, {sr(WS,4)}, s{T+5} offen sc1")
            a("L_att_pubd:")
            a("s_nop 6")
        fill(self.capture(misc0))
        main, self.a = self.a, self.tail
        a("L_att_pub:"); self.publish(); a("s_branch L_att_pubd")
        self.a = main
        def misc1():
            a(f"s_lshl_b32 s{T}, s{G}, 3"); a(f"s_add_u32 s{T}, s{T}, s{T+4}"); a(f"s_mul_i32 s{OS}, s{T}, {2*HB_}"); a(f"s_add_u32 s{OS}, s{OS}, {hx(OF)}")
            a(f"s_lshl_b32 s{FO}, s{T+4}, 8"); a(f"s_add_u32 s{FO}, s{FO}, s{FB}"); a(f"s_lshl_b32 s{T}, s{IDX}, 2"); a(f"s_add_u32 s{FO}, s{FO}, s{T}"); a(f"s_add_u32 s{FO}, s{FO}, 128")
            a(f"s_mul_i32 s{T}, s{IDX}, 5")
            a(f"v_lshrrev_b32 v{t0}, 4, v{vM}"); a(f"v_mul_u32_u24 v{t0}, {HB_}, v{t0}"); a(f"v_lshl_add_u32 v{t0}, v{vJ}, 4, v{t0}")
            for jj in range(3):
                a(f"v_add_u32 v{t1}, s{T}, v{vH}")
                a(f"v_lshrrev_b32 v{t2}, 3, v{t1}"); a(f"v_lshl_add_u32 v{OA+jj}, v{t2}, 10, v{t0}")
                a(f"v_and_b32 v{t2}, 3, v{t1}"); a(f"v_lshl_add_u32 v{OA+jj}, v{t2}, 8, v{OA+jj}")
                a(f"v_bfe_u32 v{t2}, v{t1}, 2, 1"); a(f"v_lshl_add_u32 v{OA+jj}, v{t2}, 3, v{OA+jj}")
                a(f"s_add_u32 s{T}, s{T}, 2")
        vm0, vm1 = Cnt("vmcnt", 63), Cnt("vmcnt", 63)
        def both(tag): vm0.issue(tag); vm1.issue(tag)
        def kvblock(b, pieces=(0, 1, 2)):
            def f():
                if pieces[0] == 0: kv_src(T+7, b)
                for i in pieces: kv_dma1(T+7, b-1, i); both(("kv", b))
            return f
        def early(b):
            def f():
                l = self.lab("early")
                a(f"s_cmp_ge_u32 s{WV}, 4"); a(f"s_cbranch_scc1 {l}")
                if b == 1:
                    self.poll(WS, PA, f"s{T+5}", f"s{T+6}", issued=True)
                    self.stamp(6)
                for k in range(2):
                    a(f"s_add_u32 s{T+7}, s{G}, {2*b - 1 + k}"); a(f"s_and_b32 s{T+7}, s{T+7}, 7"); a(f"s_mul_i32 s{T+7}, s{T+7}, {SL}"); a(f"s_add_u32 s{T+7}, s{T+7}, s{KVS}")
                    for i in range(3): kv_dma1(T+7, b-1, i, 10240*k); both(("kv", b))
                a(f"{l}:")
            return f
        def lateflag():
            l = self.lab("late")
            a(f"s_cmp_lt_u32 s{WV}, 4"); a(f"s_cbranch_scc1 {l}")
            self.flag(f"s{FO}", f"s{T+6}", "sc1")
            self.stamp(5); self.stamp(6)
            a(f"{l}:")
        hk = {t: {} for t in range(4)}
        def at(h, pos, f): h[pos // 32].setdefault(pos % 32, []).append(f)
        pg, pf, p2 = OPT.get("p1", (8, 63, 72))
        at(hk, pg, early(1)); at(hk, pf, lateflag); at(hk, p2, early(2))
        at(hk, 31, prio(2)); at(hk, 95, prio(1)); at(hk, 96 + OPT.get("plast", 26), prio(0))
        for t in range(4): step(t, 3, first=(t == 0), hook=hk[t])
        set_addr(0)
        a(pv(3, 3))
        a(vm1.wait(("kv", 1))); vm0.wait(("kv", 1)); a("s_barrier")
        self.stamp(7)
        prio(3)()
        fill(self.capture(misc1))
        NSTEP = 28
        hk = {t: {} for t in range(NSTEP)}
        def l0only(fn):
            def g():
                if fn.__name__ in OPT.get("x_nol0", ()):
                    self.capture(fn); return
                l = self.lab("l0")
                a(f"s_cmp_lg_u32 s{LAY}, 0"); a(f"s_cbranch_scc1 {l}")
                fn()
                a(f"{l}:")
            return g
        def late_issue():
            a(f"s_add_u32 s{T+5}, s{T+5}, 128")
            a(f"buffer_load_dword v{t3}, v{PA}, {sr(WS,4)}, s{T+5} offen sc1"); both("lp")
        def late_check():
            lp, ld = self.lab("lpoll"), self.lab("lseen")
            w = vm1.wait("lp"); vm0.wait("lp"); a(w)
            a(f"v_cmp_gt_u32 vcc, s{T+6}, v{t3}"); a(f"s_cbranch_vccnz {lp}")
            a(f"{ld}:")
            main, self.a = self.a, self.tail
            a(f"{lp}:"); self.poll(WS, PA, f"s{T+5}", f"s{T+6}"); a(f"s_branch {ld}")
            self.a = main
        kvs = OPT.get("kvs", {3: 0, 4: 5, 5: 7, 6: 9, 7: 11})
        at(hk, (kvs[4] - 1)*32 + 3, late_issue); at(hk, kvs[4]*32 + 7, late_check)
        for b in range(3, 8):
            for i in range(3): at(hk, kvs[b]*32 + OPT.get('e1', 9) + 16*i, kvblock(b, (i,)))
        PS = T + 11
        def pack_load(u):
            def pack_load():
                if u == 0:
                    a(f"v_lshrrev_b32 v{t0}, 1, v{vL}"); a(f"v_and_b32 v{t1}, 1, v{vL}"); a(f"v_lshlrev_b32 v{t1}, 4, v{t1}")
                    a(f"v_mul_u32_u24 v{PA+1}, 3072, v{t0}"); a(f"v_add_u32 v{PA+1}, v{PA+1}, v{t1}")
                    a(f"v_mul_u32_u24 v{PA+2}, 1280, v{t0}"); a(f"v_add_u32 v{PA+2}, v{PA+2}, v{t1}")
                l1 = self.lab("pk")
                a(f"s_lshl_b32 s{T}, s{WV}, {10 if u == 2 else 11}"); a(f"s_add_u32 m0, s{T}, {(7*SL, 7*SL+1024, 6*SL+10240)[u]}")
                a(f"s_cmp_eq_u32 s{PDST[u]}, -1"); a(f"s_cbranch_scc1 {l1}")
                a(f"buffer_load_dwordx4 v{PA+1+(u > 0)}, {sr((W1, W2, WO)[u],4)}, s{PSRC[u]} offen lds")
                a(f"{l1}:")
                if u == 2: vm0.issue("pk")
            return pack_load
        def pack_read():
            a(f"s_lshl_b32 s{T}, s{WV}, 11"); a(f"s_add_u32 s{T}, s{T}, {7*SL}"); a(f"v_lshl_add_u32 v{t0}, v{vL}, 3, s{T}")
            a(f"s_lshl_b32 s{T}, s{WV}, 10"); a(f"s_add_u32 s{T}, s{T}, {6*SL+10240}"); a(f"v_lshl_add_u32 v{t1}, v{vL}, 3, s{T}")
            a(vm0.wait("pk"))
            for u in range(3):
                v, o = (t0, 1024*u) if u < 2 else (t1, 0)
                a(f"ds_read_b64_tr_b16 {vr(PR+4*u,2)}, v{v} offset:{o}"); a(f"ds_read_b64_tr_b16 {vr(PR+4*u+2,2)}, v{v} offset:{o+512}")
        def pack_store():
            for u in range(3):
                l1 = self.lab("pks")
                a(f"s_cmp_eq_u32 s{PDST[u]}, -1"); a(f"s_cbranch_scc1 {l1}")
                a(f"buffer_store_dwordx4 {vr(PR+4*u,4)}, v{vL16}, {sr(WS,4)}, s{PDST[u]} offen sc1")
                a(f"{l1}:")
            vm0.issue("pks")
        def pack_done(): a(vm0.wait("pks"))
        def pack_flag():
            a(f"s_lshl_b32 s{PS}, s{NT}, 13"); a(f"s_add_u32 s{PS}, s{PS}, {hx(FLG+3072)}")
            a(f"s_lshl_b32 s{T}, s{G}, 2"); a(f"s_lshr_b32 s{T+2}, s{IDX}, 3"); a(f"s_add_u32 s{T}, s{T}, s{T+2}"); a(f"s_lshl_b32 s{T}, s{T}, 2"); a(f"s_add_u32 s{T}, s{T}, s{PS}")
            a(f"v_mov_b32 v{t0}, 1"); a(f"v_mov_b32 v{t1}, 0"); a(f"v_lshlrev_b32 v{PA+1}, 2, v{vM}")
            a(f"s_cmp_eq_u32 s{WV}, 0"); a("s_cselect_b64 exec, 1, 0")
            l = self.lab("pkf")
            a(f"s_cbranch_execz {l}")
            a(f"buffer_store_dword v{t0}, v{t1}, {sr(WS,4)}, s{T} offen sc1")
            a(f"{l}:"); a(EXF)
        def pack_ask():
            a(f"buffer_load_dword v{PF}, v{PA+1}, {sr(WS,4)}, s{PS} offen sc1")
            a(f"buffer_load_dword v{t3}, v{PA+1}, {sr(WS,4)}, s{FB} offen offset:3200 sc1"); vm0.issue("ask")
        def pack_wait():
            lp, ld = self.lab("ppoll"), self.lab("pseen")
            a(vm0.wait("ask"))
            a(f"v_min_u32 v{t0}, v{PF}, v{t3}"); a(f"v_cmp_eq_u32 vcc, 0, v{t0}"); a(f"s_cbranch_vccnz {lp}")
            a(f"{ld}:")
            main, self.a = self.a, self.tail
            a(f"{lp}:"); self.poll(WS, PA+1, f"s{PS}", "1")
            a(f"s_add_u32 s{T}, s{FB}, 3200"); self.poll(WS, PA+1, f"s{T}", "16"); a(f"s_branch {ld}")
            self.a = main
            a(f"v_readfirstlane_b32 s{T}, v{t3}"); a("s_nop 1"); a(f"v_cmp_ne_u32 vcc, s{T}, v{t3}")
            a("s_cmp_eq_u64 vcc, 0"); a(f"s_cselect_b32 s{FAST}, {0 if OPT['forceslow'] else 1}, 0")
        pl_, pr_, pd_, pw_ = OPT.get("pk", (0, 3, 6, 12))
        if OPT.get("pspread", 0):
            for u in range(3): at(hk, pl_*32 + 4 + OPT["pspread"]*u, l0only(pack_load(u)))
        else:
            def pack_load_all():
                for u in range(3): pack_load(u)()
            at(hk, pl_*32 + 4, l0only(pack_load_all))
        at(hk, pr_*32 + 20, l0only(pack_read)); at(hk, (pr_+1)*32 + 3, l0only(pack_store))
        assert pd_ % 4 == 2 and kvs[7] >= pd_ > pr_ + 1
        at(hk, pd_*32 - 1, l0only(pack_done)); at(hk, pd_*32 + 3, l0only(pack_flag))
        at(hk, int((pw_ - OPT.get("pa", 1.5))*32) + 30, l0only(pack_ask)); at(hk, pw_*32 + 30, l0only(pack_wait))
        def wo_piece(n, lds, half=False):
            def f():
                if n == 0:
                    a(f"s_mul_i32 s{DS}, s{NT}, {100*1024}"); a(f"s_add_u32 s{DS}, s{DS}, {hx(PKO)}"); a(f"s_lshl_b32 s{T+8}, s{WV}, 10")
                r = WOFF if lds >= 4*SL else T+8
                a(f"s_add_u32 m0, s{r}, {lds}"); a(f"s_add_u32 s{T}, m0, s{DS}")
                if half: a(HALF)
                a(f"buffer_load_dwordx4 v{vL16}, {sr(WS,4)}, s{T} offen sc1 lds"); both("wo")
                if half: a(EXF)
            return f
        wst = OPT.get("wst", [13, 13.5, 14, 14.5, 15, 15.5, 16, 18, 18.5, 19, 22, 22.5, 23])
        wpos = [int(x*32) + OPT.get('e1', 9) for x in wst]
        for n in range(13):
            last = (n*8192 + 8191) // SL if n < 10 else 4
            assert wst[n] >= 4*last + 6 and wst[n] > pw_
        for n in range(0 if OPT.get("x_nowo") else 10): at(hk, wpos[n], wo_piece(n, n*8192))
        for i in range(0 if OPT.get("x_nowo") else 3): at(hk, wpos[10+i], wo_piece(10+i, 4*SL + 1024*i, i == 2))
        TB = T + 1
        def touch(setup, nlines, stride, k):
            def f():
                if setup:
                    setup()
                    a(f"v_min_u32 v{PA+2}, {nlines-1}, v{vL}"); a(f"v_lshlrev_b32 v{PA+2}, 7, v{PA+2}")
                else: a(f"s_add_u32 s{TB}, s{TB}, {stride}")
                a(f"buffer_load_dword v{PF+1+(k&1)}, v{PA+2}, {sr(WS,4)}, s{TB} offen sc1"); both("pf")
            return f
        def share(buf, per_wave):
            def f():
                a(f"s_lshl_b32 s{TB}, s{G}, 5"); a(f"s_add_u32 s{TB}, s{TB}, s{IDX}"); a(f"s_lshl_b32 s{TB}, s{TB}, 3"); a(f"s_add_u32 s{TB}, s{TB}, s{WV}")
                a(f"s_mul_i32 s{TB}, s{TB}, {per_wave}"); a(f"s_add_u32 s{TB}, s{TB}, {hx(buf)}")
            return f
        def tile(buf, mask, sh, tbytes, nl):
            def f():
                a(f"s_and_b32 s{T}, s{IDX}, {mask}"); a(f"s_mul_i32 s{T}, s{T}, {tbytes}")
                a(f"s_lshr_b32 s{TB}, s{IDX}, {sh}"); a(f"s_lshl_b32 s{TB}, s{TB}, 3"); a(f"s_add_u32 s{TB}, s{TB}, s{WV}"); a(f"s_mul_i32 s{TB}, s{TB}, {nl*128}")
                a(f"s_add_u32 s{TB}, s{TB}, s{T}"); a(f"s_add_u32 s{TB}, s{TB}, {hx(buf)}")
            return f
        tl = dict(x=(share(XF, XB//16), 11, 0), h=(share(HF, HB_//16), 13, 12*128),
                  a=(tile(PK1 + 32768, 15, 4, 120*1024, 6), 6, 61440 + 16384), c=(tile(PK2, 15, 4, 120*1024, 10), 10, SL))
        def code_touch(l0, l1):
            def f():
                l, pc = self.lab("ct"), self.lab("pc")
                a(f"s_cmp_eq_u32 s{WV}, 7"); a(f"s_cbranch_scc0 {l}")
                a(f"s_getpc_b64 {sr(T+2,2)}"); a(f"{pc}:")
                a(f"s_lshl_b32 s{T}, s{IDX}, 10"); a(f"s_add_u32 s{T}, s{T}, {l0}-{pc}")
                a(f"v_and_b32 v{t0}, 7, v{vL}"); a(f"v_lshl_add_u32 v{t0}, v{t0}, 7, s{T}"); a(f"v_min_u32 v{t0}, {l1}-{pc}, v{t0}")
                a(f"global_load_dword v{PF+3}, v{t0}, {sr(T+2,2)}")
                a(f"{l}:")
            return f
        def bias_touch():
            l = self.lab("bt")
            a(f"s_cmp_eq_u32 s{WV}, 6"); a(f"s_cbranch_scc0 {l}")
            a(f"v_lshlrev_b32 v{t0}, 7, v{vM}")
            a(f"buffer_load_dword v{PF+3}, v{t0}, {sr(B1,4)}, 0 offen"); a(f"buffer_load_dword v{PF+3}, v{t0}, {sr(B2,4)}, 0 offen")
            a(f"{l}:")
        def out_touch():
            l = self.lab("ot")
            a(f"s_cmp_eq_u32 s{LAY}, 1"); a(f"s_cbranch_scc0 {l}")
            a(f"s_lshl_b32 s{T}, s{G}, 5"); a(f"s_add_u32 s{T}, s{T}, s{IDX}"); a(f"s_lshl_b32 s{T}, s{T}, 3"); a(f"s_add_u32 s{T}, s{T}, s{WV}"); a(f"s_mul_i32 s{T}, s{T}, 1280")
            a(f"v_min_u32 v{t0}, 9, v{vL}"); a(f"v_lshlrev_b32 v{t0}, 7, v{t0}")
            a(f"buffer_load_dword v{PF+3}, v{t0}, {sr(OUT,4)}, s{T} offen")
            a(f"{l}:")
        if OPT.get("ct", 24) is not None: at(hk, OPT.get("ct", 24)*32 + 11, l0only(code_touch("L_att_fin", "L_last")))
        if OPT.get("bt", 25) is not None: at(hk, OPT.get("bt", 25)*32 + 11, bias_touch)
        if OPT.get("ot") is not None: at(hk, OPT["ot"]*32 + 19, out_touch)
        EA = KK[0]
        def ex_addr():
            for u in range(2):
                if u: a(f"s_xor_b32 s{T}, s{WV}, 4")
                w = T if u else WV
                a(f"s_lshl_b32 s{T+2}, s{w}, 11"); a(f"s_add_u32 s{T+2}, s{T+2}, {5*SL}"); a(f"v_add_u32 v{EA+2*u}, s{T+2}, v{vL16}")
                a(f"s_lshr_b32 s{T+2}, s{w}, 2"); a(f"s_mul_i32 s{T+2}, s{T+2}, {2*SL - 16384}"); a(f"s_lshl_b32 s{T+3}, s{HW}, 10"); a(f"s_add_u32 s{T+2}, s{T+2}, s{T+3}")
                a(f"s_add_u32 s{T+2}, s{T+2}, {5*SL + 16384}"); a(f"v_add_u32 v{EA+2*u+1}, s{T+2}, v{vL16}")
        def ex_write():
            for i in range(3): a(f"ds_write_b128 v{EA + (i == 2)}, {vr(O[0]+4*i,4)} offset:{1024*(i & 1)}")
        at(hk, (NSTEP-1)*32 + 5, ex_addr); at(hk, (NSTEP-1)*32 + 29, ex_write)
        PL = T + 12
        self.PLC = [188 + 4*i for i in range(6)] + [CS1 + 4, CS1]
        self.PLH = [188 + 4*i for i in range(6)] + [CS1 + 4] + [RES + 4*i for i in range(5)]
        def pl_load(reg, i): a(f"s_add_u32 s{T}, s{PL}, {4096*i}"); a(f"buffer_load_dwordx4 {vr(reg,4)}, v{vL16}, {sr(WS,4)}, s{T} offen sc1")
        def pl_piece(i):
            def f():
                if i == 0:
                    a(f"s_and_b32 s{T}, s{IDX}, 15"); a(f"s_lshl_b32 s{T}, s{T}, 1"); a(f"s_lshr_b32 s{PL}, s{WV}, 2"); a(f"s_add_u32 s{T}, s{T}, s{PL}")
                    a(f"s_mul_i32 s{T}, s{T}, 61440"); a(f"s_lshl_b32 s{PL}, s{HW}, 10"); a(f"s_add_u32 s{PL}, s{PL}, s{T}"); a(f"s_add_u32 s{PL}, s{PL}, {hx(PK1)}")
                if i < 7:
                    pl_load(self.PLC[i], i); both("pl")
                else:
                    l, l2 = self.lab("plh"), self.lab("pld")
                    a(f"s_cmp_ge_u32 s{WV}, 4"); a(f"s_cbranch_scc1 {l}")
                    if i == 7: pl_load(self.PLC[7], 7)
                    else:
                        a(f"s_lshl_b32 s{T}, s{HW}, 10"); a(f"s_add_u32 m0, s{T}, {5*SL + 4096*(i+3)}"); a(f"s_add_u32 s{T}, s{PL}, {4096*(i+3)}")
                        a(f"buffer_load_dwordx4 v{vL16}, {sr(WS,4)}, s{T} offen sc1 lds")
                    a(f"{l2}:"); both("pl")
                    main, self.a = self.a, self.tail
                    a(f"{l}:"); pl_load(self.PLH[i], i); a(f"s_branch {l2}")
                    self.a = main
            return f
        plst = OPT.get("plst", [13 + 0.5*i for i in range(12)])
        for i in range(0 if OPT.get("x_nopl") else 12):
            assert plst[i] > pw_
            at(hk, int(plst[i]*32) + OPT.get('e2', 3), pl_piece(i))
        k = 0
        for name, sts in OPT.get("touch", dict(c=[18.5, 19.5, 20.5, 21.5, 22.5, 23.5], a=[24, 24.5], h=[25, 25.5], x=[26])).items():
            for i, st in enumerate(sts):
                assert name in "xh" or st > pw_
                at(hk, int(st*32) + OPT.get('e3', 11), touch(tl[name][0] if i == 0 else None, tl[name][1], tl[name][2], k)); k += 1
        for t in range(NSTEP):
            if t % 4 == 2:
                b = t // 4 + 2
                if b <= 7:
                    a(vm1.wait(("kv", b))); vm0.wait(("kv", b))
                if t not in OPT.get("nobar", ()): a("s_barrier")
                prio(3)()
                if t + 3 < NSTEP:
                    at(hk, (t+1)*32 + 31, prio(2)); at(hk, (t+2)*32 + 31, prio(1)); at(hk, (t+3)*32 + OPT.get("plast", 26), prio(0))
            if t == 0:
                at(hk, 31, prio(1)); at(hk, 32 + OPT.get("plast", 26), prio(0))
            if t == NSTEP - 1:
                at(hk, t*32 + 0, prio(1)); at(hk, t*32 + OPT.get("plast", 26), prio(0))
            if t % 8 == 0 and t > 0:
                for r in (AK, AK4, AV): a(f"v_add_u32 v{r}, {2*SL}, v{r}")
                base[0] += 2*SL
            step(t, NSTEP - 1, first=(t == 0), hook=hk[t])
        a("s_nop 1")
        a(pv(NSTEP - 1, 3))
        base[0] = 0
        self.stamp(8)
        FL = 7*SL - 32
        a("L_att_fin:")
        a("s_waitcnt vmcnt(0) lgkmcnt(0)"); a("s_barrier")
        for i in range(3): a(f"ds_read_b128 {vr(S[0]+4*i,4)}, v{EA + 2 + (i == 2)} offset:{1024*(i & 1)}")
        a(f"s_lshl_b32 s{T}, s{WV}, 2"); a(f"s_add_u32 s{T}, s{T}, {FL}"); a(f"v_mov_b32 v{t2}, s{T}")
        a(f"v_and_b32 v{t3}, 7, v{vL}"); a(f"v_lshlrev_b32 v{t3}, 2, v{t3}"); a(f"v_add_u32 v{t3}, {FL}, v{t3}")
        a(f"s_mov_b32 s{T}, {hx(f2u(2.0**-24))}"); a(f"s_mov_b32 s{T+1}, {hx(f2u(2.0**48))}")
        a("s_waitcnt lgkmcnt(0)")
        Oo = O[1]
        a(f"v_add_f32 v{t0}, v{Oo+8}, v{S[0]+8}"); a(f"v_add_f32 v{t1}, v{Oo+8}, v{S[0]+8}")
        for i in (0, 2): a(f"v_pk_add_f32 {vr(Oo+i,2)}, {vr(Oo+i,2)}, {vr(S[0]+i,2)}")
        a(f"v_permlane32_swap_b32 v{t1}, v{t0}")
        for i in (4, 6): a(f"v_pk_add_f32 {vr(Oo+i,2)}, {vr(Oo+i,2)}, {vr(S[0]+i,2)}")
        a(f"v_rcp_f32 v{S[0]+12}, v{t0}")
        for i in (8, 10): a(f"v_pk_add_f32 {vr(Oo+i,2)}, {vr(Oo+i,2)}, {vr(S[0]+i,2)}")
        a(f"v_mov_b32 v{S[0]+13}, v{S[0]+12}")
        for i in range(0, 12, 2): a(f"v_pk_mul_f32 {vr(Oo+i,2)}, {vr(Oo+i,2)}, {vr(S[0]+12,2)}")
        for i in range(6): a(f"v_cvt_pk_bf16_f32 v{S[0]+i}, v{Oo+2*i}, v{Oo+2*i+1}")
        self.mstore([f"buffer_store_dwordx2 {vr(S[0],2)}, v{OA}, {sr(WS,4)}, s{OS} offen",
                     f"buffer_store_dwordx2 {vr(S[0]+2,2)}, v{OA+1}, {sr(WS,4)}, s{OS} offen",
                     "s_mov_b32 exec_hi, 0",
                     f"buffer_store_dwordx2 {vr(S[0]+4,2)}, v{OA+2}, {sr(WS,4)}, s{OS} offen",
                     EXF])
        Z = S[0] + 14
        a(f"v_mov_b64 {vr(Z,2)}, 0"); a(f"v_mov_b64 {vr(Z+2,2)}, 0")
        a(f"v_cmp_nle_f32 vcc, s{T}, v{t0}"); a(f"v_cmp_nge_f32 {sr(T+2,2)}, s{T+1}, v{t0}")
        for i in range(0, 12, 2): a(f"v_pk_fma_f32 {vr(Z,2)}, {vr(Oo+i,2)}, {vr(Z+2,2)}, {vr(Z,2)}")
        a(f"s_or_b64 vcc, vcc, {sr(T+2,2)}")
        a(f"v_cmp_u_f32 {sr(T+4,2)}, v{Z}, v{Z+1}")
        a(f"s_or_b64 vcc, vcc, {sr(T+4,2)}")
        a(f"s_cselect_b32 s{T}, 1, 0"); a(f"v_mov_b32 v{t1}, s{T}")
        a(f"ds_write_b32 v{t2}, v{t1}")
        a("s_waitcnt lgkmcnt(0)"); a("s_barrier")
        a(f"ds_read_b32 v{t1}, v{t3}")
        a(f"s_add_u32 s{T+6}, s{LAY}, 1")
        a("s_waitcnt lgkmcnt(0)")
        a(f"v_cmp_lt_u32 vcc, s{PASS}, v{t1}")
        if not OPT.get("x_nofb"): a("s_cbranch_vccnz L_att_redo")
        self.flag(f"s{FO}", f"s{T+6}")
        self.stamp(9)
        main, self.a = self.a, self.tail
        a("L_att_redo:")
        for i in range(32): a(f"v_mov_b32 v{NM+i}, 0")
        a(f"v_mov_b32 v{PF}, 0xff800000"); a(f"v_mov_b32 v{PF+1}, 0xff800000")
        for q in range(2):
            for i in range(16): a(f"v_mov_b32 v{O[q]+i}, 0")
        a("L_fb_pass:")
        a(f"s_mov_b32 s{IT}, 0")
        a("L_fb_blk:")
        a("s_waitcnt vmcnt(0) lgkmcnt(0)"); a("s_barrier")
        a(f"s_lshl_b32 s{T+7}, s{IT}, 1"); a(f"s_lshr_b32 s{T}, s{WV}, 2"); a(f"s_add_u32 s{T+7}, s{T+7}, s{T}")
        a(f"s_mul_i32 s{T+7}, s{T+7}, 10240"); a(f"s_add_u32 s{T+7}, s{T+7}, s{KVS}")
        for i in range(3): kv_dma1(T+7, 6, i)
        set_addr(6*SL)
        a(f"s_mov_b32 s{T+9}, 0")
        a("s_waitcnt vmcnt(0)"); a("s_barrier")
        a("L_fb_step:")
        a(rdK4(0)); a(rdK(0)); a(EXM); a(rdV(0, 0)); a(rdV(0, 1)); a(EXF)
        a("s_waitcnt lgkmcnt(0)")
        a(m2b(0, vr(NM, 32))); a("s_nop 15"); a("s_nop 1"); a(mk(0, 0)); a(mk(0, 1)); a("s_nop 11")
        a(f"s_cmp_eq_u32 s{PASS}, 0"); a("s_cbranch_scc0 L_fb_sum")
        for q in range(2):
            for i in range(0, 16, 2): a(f"v_max3_f32 v{PF+q}, v{PF+q}, v{S[0]+16*q+i}, v{S[0]+16*q+i+1}")
        a("s_branch L_fb_next")
        a("L_fb_sum:")
        for e in range(32): a(f"v_exp_f32 v{S[0]+e}, v{S[0]+e}")
        a("s_nop 1")
        for i in range(4): a(pv(0, i))
        a("L_fb_next:")
        for r in (AK, AK4, AV): a(f"v_add_u32 v{r}, 2560, v{r}")
        a(f"s_add_u32 s{T+9}, s{T+9}, 1"); a(f"s_cmp_lt_u32 s{T+9}, 4"); a("s_cbranch_scc1 L_fb_step")
        a(f"s_add_u32 s{IT}, s{IT}, 1"); a(f"s_cmp_lt_u32 s{IT}, 8"); a("s_cbranch_scc1 L_fb_blk")
        a("s_nop 15")
        a(f"s_cmp_eq_u32 s{PASS}, 0"); a("s_cbranch_scc1 L_fb_max")
        ex_addr(); ex_write()
        a("s_branch L_att_fin")
        a("L_fb_max:")
        self.swap_add([PF, PF+1], t0, 32, "v_max_f32")
        a(f"s_lshl_b32 s{T}, s{WV}, 9"); a(f"s_add_u32 s{T}, s{T}, {5*SL}"); a(f"v_lshl_add_u32 v{t0}, v{vL}, 3, s{T}")
        a(f"s_xor_b32 s{T}, s{WV}, 4"); a(f"s_lshl_b32 s{T}, s{T}, 9"); a(f"s_add_u32 s{T}, s{T}, {5*SL}"); a(f"v_lshl_add_u32 v{t1}, v{vL}, 3, s{T}")
        a(f"ds_write_b64 v{t0}, {vr(PF,2)}")
        a("s_waitcnt lgkmcnt(0)"); a("s_barrier")
        a(f"ds_read_b64 {vr(t2,2)}, v{t1}")
        a("s_waitcnt lgkmcnt(0)")
        a(f"v_max_f32 v{PF}, v{PF}, v{t3}"); a(f"v_max_f32 v{PF+1}, v{PF+1}, v{t2}")
        for i in range(32): a(f"v_sub_f32 v{NM+i}, 0, v{PF+(i>>4)}")
        a(f"s_mov_b32 s{PASS}, 1"); a("s_branch L_fb_pass")
        self.a = main

    def chain(self):
        a = self.p
        a(f"s_cmp_ge_u32 s{WV}, 4"); a("s_cbranch_scc1 L_ch_h")
        RA = PB
        BI = PB + 4
        BR = PB + 16
        AC = PB + 48
        P  = PB + 88
        AR = PB + 104
        WXL = 2*SL - 4096
        ring = lambda b, n: [b + 4*i for i in range(n)]
        NF5, NF6 = OPT.get("nf5", 8), OPT.get("nf6", 8)
        def abase(buf, ks, sk, other):
            a(f"s_mul_i32 s{T}, s{sk}, {ks//2*1024}"); a(f"s_add_u32 s{T}, s{T}, {hx(buf)}")
            a(f"s_mul_i32 s{A0}, s{RBO}, {HB_}"); a(f"s_add_u32 s{A0}, s{A0}, s{T}")
            a(f"s_xor_b32 s{A1}, s{RBO}, {other}"); a(f"s_mul_i32 s{A1}, s{A1}, {HB_}"); a(f"s_add_u32 s{A1}, s{A1}, s{T}")
        def first(vm, RD, AR):
            for gs in range(IN):
                for ls in self.a_loads(gs, RD, AR): a.extend(ls); vm.issue(("A", gs))
        IN = OPT.get("in_c", 3)
        B_ = ["s_barrier"]
        RD = OPT.get("rd_o", 6)
        a("s_setprio 1")
        a(f"s_and_b32 s{T+2}, s{FXO}, {hx(~0x2ff)}"); a(f"s_lshl_b32 s{T}, s{WK}, 6"); a(f"s_add_u32 s{T+2}, s{T+2}, s{T}"); a(f"s_add_u32 s{T+2}, s{T+2}, 128")
        a(f"v_and_b32 v{t2}, 1, v{vG}"); a(f"v_lshlrev_b32 v{t2}, 9, v{t2}"); a(f"v_lshl_add_u32 v{t2}, v{vJ}, 2, v{t2}")
        a(f"s_lshl_b32 s{T}, s{WV}, 10"); a(f"s_add_u32 s{T}, s{T}, {5*SL}"); a(f"v_add_u32 v{t0}, s{T}, v{vL16}")
        abase(OF, 20, WK, 4)
        for i, r in enumerate(self.PLC):
            if i == OPT.get("pi", 3): a(f"buffer_load_dword v{t3}, v{t2}, {sr(WS,4)}, s{T+2} offen sc1")
            a(f"ds_write_b128 v{t0}, {vr(r,4)} offset:{4096*i}")
        self.poll(WS, t2, f"s{T+2}", f"s{T+6}", issued=OPT.get("pi", 3) < 8)
        self.stamp(10)
        vm = Cnt("vmcnt", 63)
        first(vm, RD, AR)
        a(f"s_mul_i32 s{T}, s{WK}, 10240"); a(f"v_add_u32 v{RA}, s{T}, v{vL16}"); a(f"v_add_u32 v{RA+1}, {3*SL}, v{RA}")
        a(f"s_mul_i32 s{T}, s{WV}, 5120"); a(f"v_add_u32 v{RA+2}, s{T}, v{vL16}")
        a(f"s_xor_b32 s{T}, s{WV}, 2"); a(f"s_mul_i32 s{T}, s{T}, 5120"); a(f"v_add_u32 v{RA+3}, s{T}, v{vL16}")
        a(f"v_lshlrev_b32 v{t1}, 3, v{vG}")
        self.gemm(10, 5, RD, AR, ring(BR, NF5), AC, lambda gs, nb: (RA + gs // 6, (gs // 2 % 3)*SL + (gs & 1)*5120 + nb*1024), None, vm,
                  bars={OPT.get("ob", 4): B_}, czero=(1,), cinit=RES, wgrp=OPT.get("wg5", 2), init=IN,
                  tail=[f"ds_write_b128 v{RA+2}, {vr(AC+20+4*nb,4)} offset:{1024*nb}" for nb in range(5)])
        self.stamp(11)
        for nb in range(5): a(f"buffer_load_dwordx2 {vr(BI+2*nb,2)}, v{t1}, {sr(B2,4)}, s{COL+nb} offen")
        a("s_waitcnt lgkmcnt(0)"); a("s_barrier")
        for nb in range(5): a(f"ds_read_b128 {vr(BR+4*nb,4)}, v{RA+3} offset:{1024*nb}")
        a(f"s_lshl_b32 s{T+3}, s{LAY}, 1"); a(f"s_add_u32 s{T+3}, s{T+3}, 2")
        for nb in range(5):
            a(f"s_waitcnt lgkmcnt({4-nb})")
            for i in (0, 2): a(f"v_pk_add_f32 {vr(RES+4*nb+i,2)}, {vr(AC+4*nb+i,2)}, {vr(BR+4*nb+i,2)}")
            for i in (0, 1): a(f"v_cvt_pk_bf16_f32 v{P+2*nb+i}, v{RES+4*nb+2*i}, v{RES+4*nb+2*i+1}")
        def f1_setup():
            a(f"s_and_b32 s{T+2}, s{FXO}, -256"); a(f"s_and_b32 s{T+4}, s{IDX}, 15")
            a(f"s_lshl_b32 s{FO}, s{T+4}, 2"); a(f"s_add_u32 s{FO}, s{FO}, s{T+2}"); a(f"s_add_u32 s{FO}, s{FO}, 64")
            a(f"s_xor_b32 s{T}, s{RBO}, 1")
            a(f"s_mul_i32 s{A0}, s{RBO}, {XB}"); a(f"s_mul_i32 s{A1}, s{T}, {XB}"); a(f"s_min_u32 s{T+1}, s{A0}, s{A1}"); a(f"s_add_u32 s{T+1}, s{T+1}, 20480")
            a(f"s_mul_i32 s{IT}, s{T}, {HB_}"); a(f"s_mul_i32 s{OS}, s{RBO}, {HB_}"); a(f"s_mul_i32 s{T}, s{T+4}, 3072"); a(f"s_add_u32 s{T}, s{T}, {hx(HF)}")
            a(f"s_add_u32 s{OS}, s{OS}, s{T}"); a(f"s_add_u32 s{IT}, s{IT}, s{T}")
            a(f"v_add_u32 v{RA}, {5*SL}, v{vL16}"); a(f"v_add_u32 v{RA+1}, {2*SL}, v{vL16}")
            a(f"v_and_b32 v{RA+2}, 511, v{vL16}")
            a("s_waitcnt vmcnt(4)")
            for i in range(10):
                a(f"v_lshlrev_b32 v{t2}, 16, v{BI+i}"); a(f"v_and_b32 v{t3}, 0xffff0000, v{BI+i}")
                a(f"v_pk_add_f32 {vr(RES+2*i,2)}, {vr(RES+2*i,2)}, {vr(t2,2)}")
            a(f"v_lshlrev_b32 v{t2}, 2, v{vJ}")
        self.xstore(f"s{T+3}", P, before_flag=f1_setup, packed=True)
        self.stamp(12)
        RD = OPT.get("rd_1", 6)
        ST = PB + 96; RS = PB + 104; TX = PB + 108; TM = PB + 116; AR1 = PB + 120
        assert AR1 + 8*RD <= STH
        self.poll(WS, t2, f"s{T+2}", f"s{T+3}")
        self.stamp(13)
        vm = Cnt("vmcnt", 63)
        first(vm, RD, AR1)
        self.stat_loads(ST, f"s{T+1}", vm, KH)
        a("s_barrier")
        self.stamp(14)
        c1 = 2*math.sqrt(2/math.pi)*math.log2(math.e)
        def prep():
            a("WAITV:st")
            self.stat_sum(ST, TM); self.stat_math(ST, RS, TX, True, halves=True)
            for rb in range(2):
                a(f"v_mul_f32 v{ST+4*rb}, {hx(f2u(-c1))}, v{RS+rb}"); a(f"v_mul_f32 v{TM}, v{RS+rb}, v{RS+rb}")
                a(f"v_mul_f32 v{TM}, {hx(f2u(0.044715))}, v{TM}"); a(f"v_mul_f32 v{ST+4*rb+2}, v{TM}, v{ST+4*rb}")
                a(f"v_mov_b32 v{ST+4*rb+1}, v{ST+4*rb}"); a(f"v_mov_b32 v{ST+4*rb+3}, v{ST+4*rb+2}")
            a(f"v_rcp_f32 v{RS+2}, v{RS+1}"); a(f"v_rcp_f32 v{RS}, v{RS}"); a("s_nop 0")
            a(f"v_mov_b32 v{RS+3}, v{RS+2}"); a(f"v_mov_b32 v{RS+1}, v{RS}")
            f2_setup()
        HO_ = [89, 90, 91, 92, 94, 95, 100]
        VA = BI
        def f2_setup():
            for j in range(1, 8):
                a(f"s_add_u32 s{T}, s{NT}, {j}"); a(f"s_and_b32 s{T}, s{T}, 7"); a(f"s_mul_i32 s{HO_[j-1]}, s{T}, 3072")
            a(f"s_mul_i32 s{T}, s{NT}, 3072")
            a(f"s_sub_u32 s{T+1}, s{OS}, s{T}"); a(f"v_add_u32 v{VA}, s{T+1}, v{vL16}")
            a(f"s_sub_u32 s{T+1}, s{IT}, s{T}"); a(f"v_add_u32 v{VA+1}, s{T+1}, v{vL16}")
            a(f"v_add_u32 v{RA+3}, 61440, v{vL16}")
            a(f"s_mul_i32 s{T}, s{KH}, {2*XB}"); a(f"s_sub_u32 s{T}, {XB}, s{T}"); a(f"s_add_u32 s{T+4}, s{XA}, s{T}"); a(f"s_add_u32 s{T+5}, s{XS}, s{T}")
            a(f"s_bfe_u32 s{T}, s{FXO}, 0x30008"); a(f"s_lshl_b32 s{T}, s{T}, 6"); a(f"s_and_b32 s{T+1}, s{FXO}, 63"); a(f"s_add_u32 s{T}, s{T}, s{T+1}")
            a(f"s_add_u32 s{T}, s{T}, s{FB}"); a(f"s_add_u32 s{T+6}, s{T}, 3328"); a(f"s_xor_b32 s{T+7}, s{T+6}, 4")
            a(f"s_and_b32 s{T+8}, s{FXO}, -256"); a(f"s_add_u32 s{T+8}, s{T+8}, 64")
            a(f"s_lshl_b32 s{T}, s{KH}, 5"); a(f"s_add_u32 s{T+9}, s{T+8}, s{T}")
            a(f"s_lshl_b32 s{T+10}, s{LAY}, 1"); a(f"s_add_u32 s{T+10}, s{T+10}, 1"); a(f"s_add_u32 s{T+11}, s{T+10}, 1")
            a(f"v_lshlrev_b32 v{VA+2}, 2, v{vJ}"); a(f"v_and_b32 v{VA+3}, 28, v{VA+2}")
            a(f"v_mov_b32 v{VA+4}, s{T+10}"); a(f"v_mov_b32 v{VA+5}, s{T+11}"); a(f"v_mov_b32 v{VA+6}, 0")
        pl = self.capture(prep)
        xs = OPT.get("xs", 8)
        self.gemm(21, 6, RD, AR1, ring(BR, NF6), AC, lambda gs, nb: (RA + gs // 10, (gs % 10)*6144 + nb*1024 if gs < 20 else WXL + nb*512), None, vm,
                  bars={OPT.get("fb", 12): B_}, extra={IN + 1 + i: pl[i*xs:(i+1)*xs] for i in range((len(pl) + xs - 1)//xs)},
                  wgrp=OPT.get("wg6", 2), init=IN, areg={20: TX})
        a("s_barrier")
        self.stamp(15)
        TM = AR1
        RD = 8
        def hflag(v):
            a("s_mov_b64 exec, 1")
            self.mstore([f"buffer_store_dword v{v}, v{VA+6}, {sr(WS,4)}, s{FO} offen"])
            a("s_mov_b64 exec, -1")
        TM = BR
        groups = [[(kp, 0), (kp, 1)] for kp in range(3)] if OPT.get("gw", 2) == 2 else [[(kp, rb)] for kp in range(3) for rb in range(2)]
        for gi, grp in enumerate(groups):
            E = [(AC + 4*(6*rb + 2*kp) + 2*i, TM + 8*rb + 2*i, rb, AR + 24 + 4*(2*kp + rb) + i) for kp, rb in grp for i in range(4)]
            for r, t, rb, p in E: a(f"v_pk_mul_f32 {vr(t,2)}, {vr(r,2)}, {vr(r,2)}")
            for r, t, rb, p in E: a(f"v_pk_fma_f32 {vr(t,2)}, {vr(t,2)}, {vr(ST+4*rb+2,2)}, {vr(ST+4*rb,2)}")
            for r, t, rb, p in E: a(f"v_pk_mul_f32 {vr(t,2)}, {vr(t,2)}, {vr(r,2)}")
            for r, t, rb, p in E: a(f"v_exp_f32 v{t}, v{t}"); a(f"v_exp_f32 v{t+1}, v{t+1}")
            for r, t, rb, p in E: a(f"v_pk_fma_f32 {vr(t,2)}, {vr(t,2)}, {vr(RS+2*rb,2)}, {vr(RS+2*rb,2)}")
            for n, (r, t, rb, p) in enumerate(E):
                if gi == len(groups) - 1 and OPT.get("fa", 1) and n == OPT.get("fap", 4) % len(E):
                    a(f"s_waitcnt vmcnt({2 - len(grp)})"); hflag(VA+4)
                a(f"v_rcp_f32 v{t}, v{t}"); a(f"v_rcp_f32 v{t+1}, v{t+1}")
            for r, t, rb, p in E: a(f"v_pk_mul_f32 {vr(r,2)}, {vr(r,2)}, {vr(t,2)}")
            for r, t, rb, p in E: a(f"v_cvt_pk_bf16_f32 v{p}, v{r}, v{r+1}")
            self.mstore([f"buffer_store_dwordx4 {vr(AR + 24 + 4*(2*kp + rb),4)}, v{vL16}, {sr(WS,4)}, s{OS if rb == 0 else IT} offen offset:{1024*kp}" for kp, rb in grp])
        if not OPT.get("fa", 1):
            a("s_waitcnt vmcnt(2)"); hflag(VA+4)
        self.stamp(16)
        vm = Cnt("vmcnt", 63)
        def hload(gs):
            j, kp = (1 + (gs - 3)//2, (gs - 3) & 1) if gs < 17 else (gs - 16, 2)
            return [[f"buffer_load_dwordx4 {vr(AR + 8*((gs + 3) % RD) + 4*rb, 4)}, v{VA+rb}, {sr(WS,4)}, s{HO_[j-1]} offen offset:{1024*kp} sc1"] for rb in range(2)]
        def ask_a(burst): a(f"buffer_load_dword v{t3}, v{VA+3}, {sr(WS,4)}, s{T+9} offen sc1")
        def got_a(burst):
            a("s_waitcnt vmcnt(0)"); hflag(VA+5)
            lp, ld = self.lab("ha"), self.lab("had")
            a(f"v_cmp_gt_u32 vcc, s{T+10}, v{t3}"); a(f"s_cbranch_vccnz {lp}"); a(f"{ld}:")
            main, self.a = self.a, self.tail
            a(f"{lp}:"); self.poll(WS, VA+3, f"s{T+9}", f"s{T+10}"); a(f"s_branch {ld}")
            self.a = main
            self.stamp(17); self.stamp(18)
            burst(OPT.get("hb", 4))
        def ask_b(burst):
            a(f"buffer_load_dword v{t3}, v{VA+2}, {sr(WS,4)}, s{T+8} offen sc1"); vm.issue("hb")
        def got_b(burst):
            lp, ld = self.lab("hb"), self.lab("hbd")
            a(vm.wait("hb"))
            a(f"v_cmp_gt_u32 vcc, s{T+11}, v{t3}"); a(f"s_cbranch_vccnz {lp}"); a(f"{ld}:")
            main, self.a = self.a, self.tail
            a(f"{lp}:"); self.poll(WS, VA+2, f"s{T+8}", f"s{T+11}"); a(f"s_branch {ld}")
            self.a = main
        ha = OPT.get("ha", 1)
        g1_, g2_ = OPT.get("gb", (5, 14))
        self.gemm(24, 5, RD, AR, ring(BR, NF5), AC, lambda gs, nb: (vL16 if gs < 12 else RA+3, (gs % 12)*5120 + nb*1024), None, vm,
                  bars={g1_: B_, g2_: B_}, czero=(1,), cinit=RES, wgrp=OPT.get("wg5", 2), init=0, aload=hload, aoff=3, areg={0: None, 1: None, 2: None},
                  hooks={ha - 1: ask_a, ha: got_a, 6: ask_b, 11: got_b}, gate={3: ha, 17: 11},
                  tail=[f"v_cvt_pk_bf16_f32 v{P+i}, v{AC+20+2*i}, v{AC+21+2*i}" for i in range(10)])
        a(f"s_add_u32 s{T+3}, s{LAY}, 1")
        self.stamp(19)
        self.mstore([f"buffer_store_dwordx4 {vr(P,4)}, v{vL16}, {sr(WS,4)}, s{T+4} offen",
                     f"buffer_store_dwordx4 {vr(P+4,4)}, v{vL16}, {sr(WS,4)}, s{T+4} offen offset:1024",
                     f"buffer_store_dwordx2 {vr(P+8,2)}, v{vL16}, {sr(WS,4)}, s{T+5} offen"])
        a("s_barrier")
        def half_unstash(which):
            def f():
                l = self.lab("us")
                a(f"s_cmp_lg_u32 s{LAY}, 0"); a(f"s_cbranch_scc1 {l}")
                self.unstash(which)
                a(f"{l}:")
            return f
        us = OPT.get("us", 4)
        self.flag(f"s{T+6}", f"s{T+3}", shadow=half_unstash(range(us)) if us else None)
        a(f"v_mov_b32 v{t2}, 0")
        self.poll(WS, t2, f"s{T+7}", f"s{T+3}")
        Q = BR
        a(f"buffer_load_dwordx4 {vr(Q,4)}, v{vL16}, {sr(WS,4)}, s{XA} offen sc1")
        a(f"buffer_load_dwordx4 {vr(Q+4,4)}, v{vL16}, {sr(WS,4)}, s{XA} offen offset:1024 sc1")
        a(f"buffer_load_dwordx2 {vr(Q+8,2)}, v{vL16}, {sr(WS,4)}, s{XS} offen sc1")
        lo = self.lab("oa")
        a(f"s_cmp_eq_u32 s{LAY}, 0"); a(f"s_cbranch_scc1 {lo}")
        self.dma_addr(RA, 3, "w80")
        a(f"s_mul_i32 s{T}, s{WV}, 3072"); a(f"v_mul_u32_u24 v{RA+3}, 160, v{vJ}"); a(f"v_lshl_add_u32 v{RA+3}, v{vG}, 3, v{RA+3}")
        a(f"v_add_u32 v{RA+3}, s{T}, v{RA+3}"); a(f"v_add_u32 v{BI}, s{T}, v{vL16}")
        a(f"s_mul_i32 s{T}, s{RBO}, 20480"); a(f"s_mul_i32 s{T+1}, s{NT}, 160"); a(f"s_add_u32 s{T}, s{T}, s{T+1}")
        a(f"{lo}:")
        for i in range(10):
            if i % 4 == 0: a(f"s_waitcnt vmcnt({2 - i//4})")
            u = t0 + 2*(i & 1)
            a(f"v_lshlrev_b32 v{u}, 16, v{Q+i}"); a(f"v_and_b32 v{u+1}, 0xffff0000, v{Q+i}")
            a(f"v_pk_add_f32 {vr(RES+2*i,2)}, {vr(AC+2*i,2)}, {vr(u,2)}")
            a(f"v_cvt_pk_bf16_f32 v{P+i}, v{RES+2*i}, v{RES+2*i+1}")
        a(f"s_cmp_lg_u32 s{LAY}, 0"); a("s_cbranch_scc1 L_out")
        def next_layer():
            self.unstash(range(us, 10))
            if OPT["stamp"]: return
            a(f"s_mov_b32 s{LAY}, 1"); self.qsetup()
        self.xstore("3", P, before_flag=next_layer, packed=True)
        if OPT["stamp"]:
            self.stamp(20); self.stamp_dump()
            a(f"s_mov_b32 s{LAY}, 1"); self.stamp(1); self.qsetup()
        a("s_branch L_q1_a")
        a("L_out:")
        for nb in range(5): a(f"ds_write_b64 v{RA+3}, {vr(P+2*nb,2)} offset:{32*nb}")
        a("s_waitcnt lgkmcnt(0)")
        for i in range(3): a(f"ds_read_b128 {vr(Q+4*i,4)}, v{BI} offset:{1024*i}")
        for i in range(3):
            a(f"s_waitcnt lgkmcnt({2-i})")
            if i == 2: a("s_mov_b32 exec_hi, 0")
            a(f"buffer_store_dwordx4 {vr(Q+4*i,4)}, v{RA+i}, {sr(OUT,4)}, s{T} offen {OPT.get('outmod', 'nt')}")
        a("s_mov_b64 exec, -1")
        if OPT["stamp"]: a("s_waitcnt vmcnt(0)")
        self.stamp(20); self.stamp_dump()
        a("s_endpgm")

        a("L_ch_h:")
        HB = PB + 8
        HX = PB + 48
        ONE = PB + 60
        HO = T + 8
        vm = Cnt("vmcnt", 63)
        h0, h1, hg = OPT.get("ht", (6, 1, 3))
        HT = {"w1": h0, 0: h1, 2: hg, 3: hg}
        def lin(src, lds, tag):
            if tag in OPT.get("x_skip", ()):
                vm.issue(tag); return
            if OPT.get("x_fake"): src %= SL
            a(f"s_add_u32 m0, s{HO}, {lds}"); a(f"s_add_u32 s{T}, s{DS}, {src}")
            a(f"buffer_load_dwordx4 v{vL16}, {sr(WS,4)}, s{T} offen sc1 lds"); vm.issue(tag)
            if HT[tag] is not None: a(f"s_waitcnt vmcnt({HT[tag]})")
        def tilebase(buf):
            a(f"s_and_b32 s{DS}, s{IDX}, 15"); a(f"s_mul_i32 s{DS}, s{DS}, {120*1024}"); a(f"s_add_u32 s{DS}, s{DS}, s{HO}"); a(f"s_add_u32 s{DS}, s{DS}, {hx(buf)}")
        a(f"s_lshl_b32 s{HO}, s{HW}, 10")
        tilebase(PK1)
        a(f"s_and_b32 s{T}, s{IDX}, 15"); a(f"s_mul_i32 s{T}, s{T}, 192"); a(f"s_lshl_b32 s{T+1}, s{WM}, 5"); a(f"s_add_u32 s{T}, s{T}, s{T+1}")
        a(f"v_lshlrev_b32 v{t1}, 1, v{vJ}")
        for m in range(3):
            a(f"buffer_load_ushort v{PB+m}, v{t1}, {sr(B1,4)}, s{T} offen offset:{64*m}"); vm.issue("w1")
        for n in (8, 10): lin(n*4096, 5*SL + n*4096, "w1")
        a("s_barrier")
        lin(9*4096, 5*SL + 9*4096, "w1")
        a(f"s_add_u32 s{T}, s{HO}, {2*SL}"); a(f"v_add_u32 v{t0}, s{T}, v{vL16}")
        a("s_barrier")
        for n in (12, 13, 14): lin(61440 + n*4096, 2*SL + n*4096, "w1")
        for i, r in enumerate(self.PLH): a(f"ds_write_b128 v{t0}, {vr(r,4)} offset:{4096*i}")
        tilebase(PK2)
        a(vm.wait("w1")); a("s_waitcnt lgkmcnt(0)")
        a("s_barrier")
        a(f"s_cmp_lg_u32 s{LAY}, 0"); a("s_cbranch_scc1 L_h_cs")
        a(f"s_mul_i32 s{T}, s{WK}, {3*SL}"); a(f"s_sub_u32 s{T}, {5*SL}, s{T}"); a(f"s_lshl_b32 s{T+1}, s{WM}, 10"); a(f"s_add_u32 s{T}, s{T}, s{T+1}")
        a(f"v_add_u32 v{t0}, s{T}, v{vL16}")
        for i in range(4): a(f"v_mov_b32 v{ONE+i}, 0x3f803f80")
        for m in range(3):
            for ks in range(10): a(f"ds_read_b128 {vr(HB+4*ks,4)}, v{t0} offset:{ks*6144 + m*2048}")
            for ks in range(10):
                a(f"s_waitcnt lgkmcnt({9-ks})")
                a(f"v_mfma_f32_16x16x32_bf16 {vr(HX+4*m,4)}, {vr(ONE,4)}, {vr(HB+4*ks,4)}, {'0' if ks == 0 else vr(HX+4*m,4)}")
        a("s_nop 7")
        for m in range(3): a(f"v_mov_b32 v{CS1+m}, v{HX+4*m}")
        a("L_h_cs:")
        a(f"s_cmp_eq_u32 s{WK}, 0"); a("s_cselect_b64 vcc, -1, 0")
        a(f"s_lshl_b32 s{T}, s{WM}, 9"); a(f"s_lshl_b32 s{T+1}, s{WK}, 8"); a(f"s_add_u32 s{T}, s{T}, s{T+1}"); a(f"s_add_u32 s{T}, s{T}, {WXL}")
        a(f"v_lshl_add_u32 v{t0}, v{vJ}, 4, s{T}")
        for m in range(3):
            c = CS1 + m; x = HX + 4*m
            a(f"v_cndmask_b32 v{x+2}, 0, v{PB+m}, vcc")
            a(f"v_cvt_pk_bf16_f32 v{x}, v{c}, v{c}"); a(f"v_and_b32 v{t1}, 0xffff0000, v{x}"); a(f"v_sub_f32 v{t1}, v{c}, v{t1}")
            a(f"v_and_b32 v{x+1}, 0xffff, v{x}"); a(f"v_cvt_pk_bf16_f32 v{x}, v{c}, v{t1}")
            a(f"v_lshl_or_b32 v{x+1}, v{x+2}, 16, v{x+1}"); a(f"v_mov_b32 v{x+3}, 0")
        a("s_mov_b64 exec, 0xffff")
        for m in range(3): a(f"ds_write_b128 v{t0}, {vr(HX+4*m,4)} offset:{1024*m}")
        a("s_mov_b64 exec, -1")
        nf0, nf1 = OPT.get("nf0", 2), OPT.get("nf1", 9)
        for n in range(nf0): lin(n*4096, n*4096, 0)
        a("s_waitcnt lgkmcnt(0)"); a("s_barrier")
        for n in range(nf0, nf1): lin(n*4096, n*4096, 0)
        assert nf1*4096 >= (g1_*5 + NF5)*1024
        a(vm.wait(0)); a("s_barrier")
        n1 = ((g2_*5 + NF5)*1024 + 4095) // 4096
        ng = max(n1, OPT.get("ng", 30))
        for n in range(nf1, ng): lin(n*4096, n*4096, 2 if n < n1 else 3)
        a(vm.wait(2)); a("s_barrier")
        for n in range(ng, 30): lin(n*4096, n*4096, 3)
        a(vm.wait(3)); a("s_barrier")
        a("s_barrier")
        a(f"s_cmp_lg_u32 s{LAY}, 0"); a("s_cbranch_scc1 L_h_last")
        self.unstash()
        self.stamp_dump()
        a(f"s_mov_b32 s{LAY}, 1"); a("s_branch L_qkv1")
        a("L_h_last:")
        self.stamp_dump()
        a("L_end:")
        a("s_endpgm")

def build(**opt):
    OPT.update(opt)
    g = Gen()
    g.entry(); g.qkv(); g.attention(); g.chain()
    a = g.a
    a.lines += g.tail.lines
    for (l0, l1), pats in OPT.get("x_drop", {}).items():
        i0 = a.lines.index(l0 + ":"); i1 = a.lines.index(l1 + ":")
        a.lines[i0:i1] = [("s_nop 0" if OPT.get("x_nop") else "") if any(l.startswith(p) for p in pats) else l for l in a.lines[i0:i1]]
        a.lines = [l for l in a.lines if l]
    a("L_last:"); a("s_endpgm")
    probs = check_hazards(a.lines)
    if probs and not OPT.get("x_drop"):
        print("\n".join(probs), file=sys.stderr); raise SystemExit("hazards")
    hdr = open("cdna_kernels/" + NAME + ".s.ref").read().split("; Override launch")[0]
    s = hdr + "; @launch grid=(256,1,1) block=(512,1,1) lds=163840\n" + '.amdgcn_target "amdgcn-amd-amdhsa--gfx950"\n.text\n'
    s += f".globl {NAME}_kernel\n.type {NAME}_kernel,@function\n" + a.text()
    s += f""".section .rodata,"a"
.p2align 6
.amdhsa_kernel {NAME}_kernel
  .amdhsa_next_free_vgpr 256
  .amdhsa_next_free_sgpr 102
  .amdhsa_accum_offset 256
  .amdhsa_group_segment_fixed_size 0
  .amdhsa_kernarg_size 88
  .amdhsa_user_sgpr_count 2
  .amdhsa_user_sgpr_kernarg_segment_ptr 1
  .amdhsa_system_sgpr_workgroup_id_x 1
.end_amdhsa_kernel
"""
    return s

if __name__ == "__main__":
    out = sys.argv[1]
    opt = {}
    for x in sys.argv[2:]:
        k, v = x.split("=", 1); opt[k] = eval(v)
    open(out, "w").write(build(**opt))
```

```python
import sys, math, struct, copy
from asmlib import *

NAME = "interleave_layers__softmax_full_mha__dense_activation_gelu__prompt"
OPT = dict(stamp=False, forceslow=False)

XF   = 0x0
HF   = 0x300000
XB   = 21504
HB_  = 50176
OF   = HF
KVF  = lambda l: 0xB00000 + l * 0x500000
FLG  = 0x1520000
PK1  = 0x1600000
PK2  = 0x1800000
PKO  = 0x1A00000
STAMPS = 0x4000000
WS_BYTES = 0x10000000
KA = dict(x=0, wqkv=8, wo=16, w1=32, b1=40, w2=48, b2=56, out=64, dbg=72, ws=80)
SZ = dict(x=2048*640*2, wqkv=640*1920*2, wo=640*640*2, w1=640*1536*2, b1=1536*2, w2=1536*640*2, b2=640*2, out=2048*640*2, ws=WS_BYTES, dbg=256)
SL = 20480

def f2u(x): return struct.unpack("<I", struct.pack("<f", x))[0]
def hx(x): return f"0x{x & 0xffffffff:x}"

class Cnt:
    def __init__(self, name, mx): self.q = []; self.name = name; self.mx = mx; self.done = 0
    def issue(self, tag):
        self.q.append(tag)
        assert self.name == "lgkmcnt" or len(self.q) - self.done <= self.mx, (self.name, "too many outstanding")
    def wait(self, *tags):
        last = max((i for i, t in enumerate(self.q) if t in tags), default=-1)
        assert last >= 0, tags
        if last < self.done: return ""
        n = min(len(self.q) - 1 - last, self.mx)
        self.done = len(self.q) - n
        return f"s_waitcnt {self.name}({n})"

LAY = 3
WS, WQ, WO, W1, W2, B1, B2, XIN, OUT, DBG = 4, 8, 12, 16, 20, 24, 28, 32, 36, 40
G, IDX, WV, FAST, BUD, NT, ODD, WM, WK, HW = range(44, 54)
COL = 54
XA, XS, STO, FXO, RBO = 59, 60, 61, 62, 63
VMK = 64
T = 66
FB = 80
A0, A1, DS, IT, KVS, PASS, OS, FO = 81, 82, 83, 84, 85, 86, 87, 88
KH = 93
ROT = 100
PSRC, PDST = (89, 90, 91), (92, 94, 95)
vL, vL16, vJ, vG, t0, t1, t2, t3 = 0, 1, 2, 3, 4, 5, 6, 7
RES = 8
CSQ = 28
CS1 = 32
PB = 40
STH = 212

class Proxy:
    def __init__(self, g): self.g = g
    def __call__(self, s): self.g.a(s)
    def extend(self, ls): self.g.a.extend(ls)

class Gen:
    def __init__(self):
        self.a = Asm(); self.tail = Asm(); self.nlab = 0; self.p = Proxy(self)
    def lab(self, s):
        self.nlab += 1; return f"L{self.nlab}_{s}"
    def stamp(self, i):
        if not OPT["stamp"]: return
        a = self.a
        a("s_memrealtime s[96:97]"); a("s_memtime s[98:99]"); a("s_waitcnt lgkmcnt(0)")
        a(f"v_writelane_b32 v254, s96, {i}"); a(f"v_writelane_b32 v255, s98, {i}")
    def stamp_dump(self):
        if not OPT["stamp"]: return
        a = self.a
        a(f"s_lshl_b32 s96, s2, 3"); a(f"s_add_u32 s96, s96, s{WV}"); a("s_lshl_b32 s96, s96, 1"); a(f"s_add_u32 s96, s96, s{LAY}")
        a("s_lshl_b32 s96, s96, 9"); a(f"s_add_u32 s96, s96, {hx(STAMPS)}")
        a(f"v_lshlrev_b32 v253, 3, v{vL}")
        a(f"buffer_store_dwordx2 v[254:255], v253, {sr(WS,4)}, s96 offen")
    def mstore(self, lines, force=None):
        a = self.a
        sc = lambda l: l + " sc1" if l.startswith("buffer_store") else l
        if force == "sc1":
            for l in lines: a(sc(l))
            return
        ls, lb = self.lab("slow"), self.lab("back")
        a(f"s_cmp_eq_u32 s{FAST}, 0"); a(f"s_cbranch_scc1 {ls}")
        for l in lines: a(l + " " + OPT.get("fastmod", "nt") if l.startswith(("buffer_store_dwordx4", "buffer_store_dwordx2")) else l)
        a(f"{lb}:")
        self.tail(f"{ls}:")
        for l in lines: self.tail(sc(l))
        self.tail(f"s_branch {lb}")
    def flag(self, soff, sval, force=None, shadow=None):
        a = self.a
        if shadow: shadow()
        a(f"v_mov_b32 v{t0}, {sval}"); a(f"v_mov_b32 v{t1}, 0")
        a("s_waitcnt vmcnt(0)")
        a("s_mov_b64 exec, 1")
        self.mstore([f"buffer_store_dword v{t0}, v{t1}, {sr(WS,4)}, {soff} offen"], force)
        a("s_mov_b64 exec, -1")
    def poll(self, srd, vaddr, soff, starget, issued=False):
        a = self.a
        lp, ld = self.lab("poll"), self.lab("seen")
        ask = lambda r: f"buffer_load_dword v{r}, v{vaddr}, {sr(srd,4)}, {soff} offen sc1"
        if not issued: a(ask(t3))
        a("s_waitcnt vmcnt(0)")
        a(f"v_cmp_gt_u32 vcc, {starget}, v{t3}")
        if a is self.tail:
            a(f"s_cbranch_vccz {ld}")
        else:
            a(f"s_cbranch_vccnz {lp}"); a(f"{ld}:")
        b = self.tail
        b(f"{lp}:")
        if True:
            b(ask(t3)); b("s_waitcnt vmcnt(0)"); b(f"v_cmp_gt_u32 vcc, {starget}, v{t3}"); b(f"s_cbranch_vccz {ld}")
            b(f"s_sub_u32 s{BUD}, s{BUD}, 1"); b(f"s_cbranch_scc0 {lp}")
            b(f"s_mov_b32 s{BUD}, 0")
            if a is not self.tail: b(f"s_branch {ld}")
        if a is self.tail: a(f"{ld}:")
    def swap_add(self, vs, tmp, which, op="v_add_f32"):
        a = self.a
        for i, v in enumerate(vs): a(f"v_mov_b32 v{tmp+i}, v{v}")
        a("s_nop 1")
        for i, v in enumerate(vs): a(f"v_permlane{which}_swap_b32 v{v}, v{tmp+i}")
        if len(vs) < 2: a("s_nop 0")
        for i, v in enumerate(vs): a(f"{op} v{v}, v{v}, v{tmp+i}")

    def dma_addr(self, dst, n, kind):
        a = self.a
        upr, mul, sh = (12, 171, 11) if kind == "w1" else (10, 205, 11)
        ld = dict(wq=3840, w1=3072, w80=1280)[kind]
        for i in range(n):
            a(f"v_add_u32 v{t0}, {64*i}, v{vL}")
            a(f"v_mul_u32_u24 v{t1}, {mul}, v{t0}"); a(f"v_lshrrev_b32 v{t1}, {sh}, v{t1}")
            a(f"v_mul_u32_u24 v{t2}, {upr}, v{t1}"); a(f"v_sub_u32 v{t0}, v{t0}, v{t2}")
            a(f"v_mul_u32_u24 v{t1}, {ld}, v{t1}")
            if kind == "wq":
                a(f"v_min_u32 v{t0}, 8, v{t0}")
                a(f"v_mul_u32_u24 v{t2}, 11, v{t0}"); a(f"v_lshrrev_b32 v{t2}, 5, v{t2}"); a(f"v_min_u32 v{t2}, 2, v{t2}")
                a(f"v_mul_u32_u24 v{t2}, 1232, v{t2}"); a(f"v_add_u32 v{t1}, v{t1}, v{t2}")
            elif kind == "w80":
                a(f"v_lshl_add_u32 v{t0}, s{ODD}, 1, v{t0}")
                a(f"v_subrev_u32 v{t2}, 10, v{t0}"); a(f"v_min_u32 v{t0}, v{t0}, v{t2}")
            a(f"v_lshl_add_u32 v{dst+i}, v{t0}, 4, v{t1}")
    def dma(self, vaddr, srd, soff, m0base, m0imm, mods=""):
        return [f"s_add_u32 m0, {m0base}, {m0imm}", "s_nop 0", f"buffer_load_dwordx4 v{vaddr}, {sr(srd,4)}, {soff} offen {mods} lds".replace("  ", " ")]

    def stat_loads(self, ST, soff, vm, swap=None):
        a = self.p
        g = vG
        if swap is not None:
            a(f"s_lshl_b32 s{T}, s{swap}, 1"); a(f"v_xor_b32 v{t0}, s{T}, v{vG}"); g = t0
        a(f"v_lshrrev_b32 v{t1}, 1, v{g}"); a(f"v_mul_u32_u24 v{t1}, {XB-1024}, v{t1}"); a(f"v_lshl_add_u32 v{t1}, v{g}, 9, v{t1}"); a(f"v_lshl_add_u32 v{t1}, v{vJ}, 4, v{t1}")
        for u in range(2):
            a(f"buffer_load_dwordx4 {vr(ST+4*u,4)}, v{t1}, {sr(WS,4)}, {soff} offen offset:{256*u} sc1"); vm.issue("st")
    def stat_sum(self, ST, tmp):
        a = self.p
        for u in (2, 4, 6):
            for i in range(2): a(f"v_add_f32 v{ST+i}, v{ST+i}, v{ST+u+i}")
        self.swap_add([ST, ST+1], tmp, 16)
    def stat_math(self, ST, RS, TX, bias, halves=False):
        a = self.p
        s, v, r, u = ST, ST+1, ST+2, ST+3
        x = ST + 4
        a(f"v_mul_f32 v{s}, {hx(f2u(-1.0/640))}, v{s}"); a(f"v_mul_f32 v{v}, {hx(f2u(1.0/640))}, v{v}")
        if halves: a(f"v_cmp_gt_u32 vcc, 2, v{vG}"); a(f"v_cmp_le_u32 {sr(T+2,2)}, 2, v{vG}")
        else: a(f"v_cmp_eq_u32 vcc, 0, v{vG}"); a(f"v_cmp_eq_u32 {sr(T+2,2)}, 2, v{vG}")
        a(f"v_fma_f32 v{v}, -v{s}, v{s}, v{v}")
        a(f"v_max_f32 v{v}, 0, v{v}"); a(f"v_add_f32 v{v}, {hx(f2u(1e-5))}, v{v}")
        a(f"v_rsq_f32 v{r}, v{v}")
        a(f"v_cvt_pk_bf16_f32 v{x}, v{s}, v{s}"); a(f"v_and_b32 v{u}, 0xffff0000, v{x}"); a(f"v_sub_f32 v{u}, v{s}, v{u}")
        a(f"v_mov_b32 v{RS}, v{r}"); a(f"v_mov_b32 v{RS+1}, v{r}")
        if bias:
            a(f"v_mul_f32 v{v}, v{v}, v{r}")
            a(f"v_cvt_pk_bf16_f32 v{x+1}, v{u}, v{v}"); a(f"v_and_b32 v{u}, 0xffff0000, v{x+1}"); a(f"v_sub_f32 v{u}, v{v}, v{u}")
            a(f"v_cvt_pk_bf16_f32 v{x+2}, v{u}, 0")
        else:
            a(f"v_cvt_pk_bf16_f32 v{x+1}, v{u}, 0"); a("s_nop 0")
        a(f"v_permlane32_swap_b32 v{RS}, v{RS+1}")
        for rb in range(2):
            m = "vcc" if rb == 0 else sr(T+2, 2)
            for i in range(3 if bias else 2): a(f"v_cndmask_b32 v{TX+4*rb+i}, 0, v{x+i}, {m}")
            a(f"v_mov_b32 v{TX+4*rb+3}, 0" if bias else f"v_mov_b64 {vr(TX+4*rb+2,2)}, 0")

    def a_loads(self, gs, RD, AR, rot=False):
        out = []
        for rb in range(2):
            sa = A0 + rb
            ls = [f"buffer_load_dwordx4 {vr(AR + 8*(gs % RD) + 4*rb, 4)}, v{vL16}, {sr(WS,4)}, s{sa} offen offset:{1024*(gs % 4)} sc1"]
            if gs % 4 == 3 and not rot: ls.append(f"s_add_u32 s{sa}, s{sa}, 4096")
            if gs % 4 == 3 and rot:
                if rb == 0: ls += [f"s_mov_b32 s{ROT+1}, 4096", f"s_cmp_eq_u32 s{ROT}, {4 - gs//4}", f"s_cmov_b32 s{ROT+1}, {4096 - 20480}"]
                ls.append(f"s_add_u32 s{sa}, s{sa}, s{ROT+1}")
            out.append(ls)
        return out
    def capture(self, fn):
        main, self.a = self.a, Asm()
        fn()
        out, self.a = self.a.lines, main
        return out
    def gemm(self, NS, NB, RD, AR, BR, AC, rdaddr, second, vm, bars={}, std=(), czero=(0, 1), extra={}, wgrp=1, xper=1, init=None, lper=None, cinit=None, areg={}, tail=None, rot=False, aload=None, aoff=0, hooks={}, gate={}):
        a = self.a
        lg = Cnt("lgkmcnt", 15)
        NF = len(BR)
        breg = lambda gs, nb: BR[(gs*NB + nb) % NF]
        def reads(n):
            if n >= NS*NB: return []
            gs, nb = divmod(n, NB)
            v, off = rdaddr(gs, nb)
            return [(f"ds_read_b128 {vr(breg(gs, nb),4)}, v{v} offset:{off}", (gs, nb))]
        merge = lambda x, y: x + y[9:] if x and y else x or y
        cost = lambda l: 2 if l.startswith(TRANS) else int(l.split()[1]) + 1 if l.startswith("s_nop") else 1
        def emit_x(l):
            if l == "WAITX": a(lg.wait("x")); return
            if l.startswith("WAITV:"): a(vm.wait(l[6:])); return
            a(l)
            if l.startswith("ds_"): lg.issue("x")
        for n in range(NF):
            for l, tg in reads(n): a(l); lg.issue(tg)
        pr, ex = [], []
        aload = aload or (lambda g: self.a_loads(g, RD, AR, rot))
        allA = [(ls, ("A", g)) for g in range(NS) if g not in areg for ls in aload(g)][2*init:]
        def burst(n):
            for _ in range(n):
                ls, tg = allA.pop(0); a.extend(ls); vm.issue(tg)
        lper = lper or OPT.get('lper', 3)
        lpos = [(i * NB) // lper for i in range(lper)]
        for gs in range(NS):
            if gs in bars:
                while pr:
                    l, tg = pr.pop(0); a(l); lg.issue(tg)
                for l in bars[gs]: a(l)
            if gs in hooks: hooks[gs](burst)
            wv = ""
            if gs not in areg: wv = vm.wait(("A", gs))
            elif areg[gs] is not None:
                for l in ex: emit_x(l)
                ex = []
            if tail is not None and gs == NS - 1:
                a(merge(wv, lg.wait(*[(gs, n) for n in range(NB)])))
                tl = list(tail)
                for rb in (1, 0):
                    for nb in range(NB):
                        d = vr(AC + 4*(NB*rb + nb), 4)
                        a(f"v_mfma_f32_16x16x32_bf16 {d}, {vr(breg(gs, nb), 4)}, {vr(AR + 8*((gs + aoff) % RD) + 4*rb, 4)}, {d}")
                        if rb == 0 and nb >= 3 and tl: a(tl.pop(0))
                for l in tl: a(l)
                break
            ex += list(extra.get(gs, []))
            for nb in range(NB):
                if nb % wgrp == 0:
                    tags = [(gs, n) for n in range(nb, min(nb + wgrp, NB))]
                    while any(tg in tags for _, tg in pr):
                        l, tg = pr.pop(0); a(l); lg.issue(tg)
                    a(merge(wv, lg.wait(*tags))); wv = ""
                for rb in range(2):
                    d = vr(AC + 4*(NB*rb + nb), 4)
                    c = "0" if (gs == 0 and rb in czero) else vr(cinit + 4*nb, 4) if (gs == 0 and cinit is not None) else d
                    w, x = vr(breg(gs, nb), 4), vr((areg.get(gs) or AR + 8*((gs + aoff) % RD)) + 4*rb, 4)
                    p, q = (x, w) if nb in std else (w, x)
                    a(f"v_mfma_f32_16x16x32_bf16 {d}, {p}, {q}, {c}")
                    room = 2
                    if rb == 1:
                        pr += reads(gs*NB + nb + NF)
                        if (nb + 1) % wgrp == 0 or nb == NB - 1: room -= 1
                    if pr:
                        l, tg = pr.pop(0); a(l); lg.issue(tg); room -= 1
                    if rb == 0 and nb in lpos and allA and allA[0][1][1] <= gs + RD - 1 and all(gs >= g0 for g1, g0 in gate.items() if allA[0][1][1] >= g1):
                        ls, tg = allA.pop(0); a.extend(ls); vm.issue(tg); room = 0
                    while ex and cost(ex[0]) <= room:
                        room -= cost(ex[0]); emit_x(ex.pop(0))
        for l in ex: emit_x(l)
        return lg

    def xstore(self, sval, P, force=None, before_flag=None, packed=False):
        a = self.a
        if not packed:
            for i in range(10): a(f"v_cvt_pk_bf16_f32 v{P+i}, v{RES+2*i}, v{RES+2*i+1}")
        self.mstore([f"buffer_store_dwordx4 {vr(P,4)}, v{vL16}, {sr(WS,4)}, s{XA} offen",
                     f"buffer_store_dwordx4 {vr(P+4,4)}, v{vL16}, {sr(WS,4)}, s{XA} offen offset:1024",
                     f"buffer_store_dwordx2 {vr(P+8,2)}, v{vL16}, {sr(WS,4)}, s{XS} offen"], force)
        a(f"v_mov_b32 v{P+14}, 0x3f803f80")
        for i in range(10):
            u = P + 10 + 2*(i & 1)
            a(f"v_dot2_f32_bf16 v{u+1}, v{P+i}, v{P+i}, {'0' if i < 2 else 'v%d' % (u+1)}")
            a(f"v_dot2_f32_bf16 v{u}, v{P+i}, v{P+14}, {'0' if i < 2 else 'v%d' % u}")
        a(f"v_lshlrev_b32 v{t0}, 2, v{vG}"); a(f"v_lshl_add_u32 v{t0}, v{vJ}, 4, v{t0}"); a("s_nop 0")
        a(f"v_pk_add_f32 {vr(P+10,2)}, {vr(P+10,2)}, {vr(P+12,2)}"); a("s_nop 1")
        a(f"v_permlane16_swap_b32 v{P+10}, v{P+11}"); a("s_nop 0")
        a(f"v_add_f32 v{P+10}, v{P+10}, v{P+11}")
        self.swap_add([P+10], P+11, 32)
        a("s_mov_b32 exec_hi, 0")
        self.mstore([f"buffer_store_dword v{P+10}, v{t0}, {sr(WS,4)}, s{STO} offen"], force)
        a("s_mov_b64 exec, -1")
        self.flag(f"s{FXO}", sval, force, before_flag)

    def entry(self):
        a = self.p
        a(".p2align 8"); a(f"{NAME}_kernel:")
        a("s_cmp_ge_u32 s2, 256"); a("s_cbranch_scc1 L_end")
        srds = [("ws", WS), ("x", XIN), ("wqkv", WQ), ("dbg", DBG), ("wo", WO), ("w1", W1), ("w2", W2), ("b1", B1), ("b2", B2), ("out", OUT)]
        for n, s in srds: a(f"s_load_dwordx2 {sr(s,2)}, s[0:1], {KA[n]}")
        a(f"v_lshrrev_b32 v{t0}, 6, v0"); a(f"v_and_b32 v{vL}, 63, v0"); a(f"v_readfirstlane_b32 s{WV}, v{t0}")
        a(f"v_and_b32 v{vJ}, 15, v{vL}"); a(f"s_lshr_b32 s{IDX}, s2, 3")
        if OPT.get("cp", 2) != 1: self.code_pull(OPT.get("cw", 3), "a")
        for n, s in srds:
            a(f"s_mov_b32 s{s+2}, {hx(SZ[n])}"); a(f"s_mov_b32 s{s+3}, 0x00020000")
        a(f"v_lshlrev_b32 v{vL16}, 4, v{vL}"); a(f"v_lshrrev_b32 v{vG}, 4, v{vL}")
        a(f"v_mov_b32 v{PB+9}, 0")
        if OPT["stamp"]:
            a("v_mov_b32 v254, 0"); a("v_mov_b32 v255, 0")
        a(f"s_and_b32 s{G}, s2, 7")
        a(f"s_mov_b32 s{FAST}, 0"); a(f"s_mov_b32 s{BUD}, 0x80000"); a(f"s_mov_b32 s{LAY}, 0")
        a(f"s_and_b32 s{NT}, s{IDX}, 7"); a(f"s_and_b32 s{ODD}, s{IDX}, 1")
        a(f"s_and_b32 s{WM}, s{WV}, 1"); a(f"s_bfe_u32 s{WK}, s{WV}, 0x10001"); a(f"s_and_b32 s{HW}, s{WV}, 3")
        a(f"s_mov_b32 s{VMK}, 0x000fffff"); a(f"s_mov_b32 s{VMK+1}, 0x000fffff")
        a(f"s_lshl_b32 s{FB}, s{G}, 13"); a(f"s_add_u32 s{FB}, s{FB}, {hx(FLG)}")
        if not OPT.get("rot"): return
        ri, rg = OPT["rot"]
        a(f"s_mul_i32 s{T}, s{IDX}, {ri}"); a(f"s_mul_i32 s{T+1}, s{G}, {rg}"); a(f"s_add_u32 s{T}, s{T}, s{T+1}")
        a(f"s_mul_i32 s{T+1}, s{T}, 205"); a(f"s_lshr_b32 s{T+1}, s{T+1}, 10"); a(f"s_mul_i32 s{T+1}, s{T+1}, 5"); a(f"s_sub_u32 s{ROT}, s{T}, s{T+1}")
    def code_pull(self, wave, tag):
        a = self.p
        a(f"s_cmp_eq_u32 s{WV}, {wave}"); a(f"s_cbranch_scc0 L_cp{tag}")
        a(f"s_getpc_b64 {sr(T,2)}")
        a(f"L_pc{tag}:")
        a(f"s_lshl_b32 s{T+2}, s{IDX}, 11"); a(f"s_cmp_lt_u32 s{T+2}, L_last-L_pc{tag}"); a(f"s_cbranch_scc0 L_cp{tag}")
        a(f"v_lshlrev_b32 v{t0}, 7, v{vJ}"); a(f"v_add_u32 v{t0}, s{T+2}, v{t0}"); a(f"v_min_u32 v{t0}, L_last-L_pc{tag}, v{t0}")
        a(f"global_load_dword v{PB+59}, v{t0}, {sr(T,2)}")
        a(f"L_cp{tag}:")

    def entry_tile(self):
        a = self.p
        a(f"s_mul_i32 s{T}, s{NT}, 160"); a(f"s_lshl_b32 s{T+1}, s{ODD}, 5"); a(f"s_add_u32 s{COL}, s{T}, s{T+1}")
        for i in range(1, 4): a(f"s_add_u32 s{COL+i}, s{COL}, {32*i}")
        a(f"s_add_u32 s{COL+4}, s{T}, 128"); a(f"s_cmp_eq_u32 s{ODD}, 1"); a(f"s_cmov_b32 s{COL+4}, s{T}")
        a(f"s_bfe_u32 s{KH}, s{IDX}, 0x10003")
        a(f"s_lshr_b32 s{T}, s{IDX}, 4"); a(f"s_lshl_b32 s{T}, s{T}, 2"); a(f"s_add_u32 s{T}, s{T}, s{HW}")
        a(f"s_lshl_b32 s{FXO}, s{T}, 8"); a(f"s_add_u32 s{FXO}, s{FXO}, s{FB}")
        a(f"s_lshl_b32 s{T+1}, s{NT}, 1"); a(f"s_add_u32 s{T+1}, s{T+1}, s{KH}"); a(f"s_lshl_b32 s{T+1}, s{T+1}, 2"); a(f"s_add_u32 s{FXO}, s{FXO}, s{T+1}")
        a(f"s_lshl_b32 s{RBO}, s{G}, 3"); a(f"s_add_u32 s{RBO}, s{RBO}, s{T}"); a(f"s_lshl_b32 s{RBO}, s{RBO}, 1"); a(f"s_add_u32 s{RBO}, s{RBO}, s{KH}")
        a(f"s_lshr_b32 s{T}, s{NT}, 1"); a(f"s_mul_i32 s{T+1}, s{T}, 5120"); a(f"s_mul_i32 s{T+2}, s{RBO}, {XB}"); a(f"s_add_u32 s{T+1}, s{T+1}, s{T+2}")
        a(f"s_mul_i32 s{XA}, s{ODD}, 3072"); a(f"s_add_u32 s{XA}, s{XA}, s{T+1}")
        a(f"s_lshl_b32 s{XS}, s{ODD}, 3"); a(f"s_add_u32 s{XS}, s{XS}, s{T+1}"); a(f"s_add_u32 s{XS}, s{XS}, 2048")
        a(f"s_lshl_b32 s{T}, s{T}, 8"); a(f"s_add_u32 s{STO}, s{T+2}, s{T}")
        a(f"s_lshl_b32 s{T}, s{ODD}, 3"); a(f"s_add_u32 s{STO}, s{STO}, s{T}"); a(f"s_add_u32 s{STO}, s{STO}, 20480")

    def pack_setup(self):
        a = self.p
        a(f"s_lshl_b32 s{T}, s{G}, 1"); a(f"s_lshr_b32 s{T+1}, s{IDX}, 4"); a(f"s_add_u32 s{T}, s{T}, s{T+1}"); a(f"s_lshl_b32 s{T}, s{T}, 3"); a(f"s_add_u32 s{T}, s{T}, s{WV}")
        d, o = PDST[0], PSRC[0]
        a(f"s_and_b32 s{T+3}, s{IDX}, 15")
        a(f"s_mul_i32 s{d}, s{T+3}, 120"); a(f"s_add_u32 s{d}, s{d}, s{T}"); a(f"s_lshl_b32 s{d}, s{d}, 10"); a(f"s_add_u32 s{d}, s{d}, {hx(PK1)}")
        a(f"s_cmp_ge_u32 s{T}, 120"); a(f"s_cmov_b32 s{d}, -1")
        a(f"s_mul_i32 s{T+1}, s{T}, 171"); a(f"s_lshr_b32 s{T+1}, s{T+1}, 10")
        a(f"s_mul_i32 s{T+2}, s{T+1}, {32*3072 - 6*32}"); a(f"s_lshl_b32 s{T}, s{T}, 5"); a(f"s_add_u32 s{T}, s{T}, s{T+2}")
        a(f"s_mul_i32 s{T+3}, s{T+3}, 192"); a(f"s_add_u32 s{o}, s{T}, s{T+3}")
        for u, (nfr, dst) in enumerate(((240, PK2), (100, PKO))):
            d, o = PDST[1+u], PSRC[1+u]
            a(f"s_lshl_b32 s{T}, s{G}, 2"); a(f"s_lshr_b32 s{T+1}, s{IDX}, 3"); a(f"s_add_u32 s{T}, s{T}, s{T+1}"); a(f"s_lshl_b32 s{T}, s{T}, 3"); a(f"s_add_u32 s{T}, s{T}, s{WV}")
            if u == 0:
                a(f"s_cmp_ge_u32 s{T}, 120"); a(f"s_cselect_b32 s{T+1}, 7, 0"); a(f"s_add_u32 s{T+1}, s{T+1}, s{NT}"); a(f"s_mul_i32 s{d}, s{T+1}, 120")
            else: a(f"s_mul_i32 s{d}, s{NT}, 100")
            a(f"s_add_u32 s{d}, s{d}, s{T}"); a(f"s_lshl_b32 s{d}, s{d}, 10"); a(f"s_add_u32 s{d}, s{d}, {hx(dst)}")
            a(f"s_cmp_ge_u32 s{T}, {nfr}"); a(f"s_cmov_b32 s{d}, -1")
            a(f"s_mul_i32 s{T+1}, s{T}, 205"); a(f"s_lshr_b32 s{T+1}, s{T+1}, 10")
            a(f"s_mul_i32 s{T+2}, s{T+1}, 5"); a(f"s_sub_u32 s{T}, s{T}, s{T+2}")
            a(f"s_add_u32 s{T}, s{T}, s{ODD}"); a(f"s_cmp_eq_u32 s{T}, 5"); a(f"s_cselect_b32 s{T}, 0, s{T}"); a(f"s_lshl_b32 s{T}, s{T}, 5")
            if u == 0:
                a(f"s_cmp_ge_u32 s{T+1}, 24"); a(f"s_cselect_b32 s{o}, 24, 0"); a(f"s_sub_u32 s{T+1}, s{T+1}, s{o}")
                a(f"s_sub_u32 s{T+2}, s{T+1}, 1"); a(f"s_and_b32 s{T+3}, s{T+2}, 1"); a(f"s_lshr_b32 s{T+2}, s{T+2}, 1")
                a(f"s_cmp_lt_u32 s{T+1}, 3"); a(f"s_cmov_b32 s{T+2}, 0"); a(f"s_cmov_b32 s{T+3}, s{T+1}")
                a(f"s_cmp_ge_u32 s{T+1}, 17"); a(f"s_cmov_b32 s{T+2}, s{T+1}"); a(f"s_cmov_b32 s{T+3}, 2")
                a(f"s_add_u32 s{T+2}, s{T+2}, s{NT}"); a(f"s_and_b32 s{T+2}, s{T+2}, 7"); a(f"s_mul_i32 s{T+2}, s{T+2}, 3")
                a(f"s_add_u32 s{T+1}, s{T+2}, s{T+3}"); a(f"s_add_u32 s{T+1}, s{T+1}, s{o}")
            if u == 1:
                a(f"s_lshr_b32 s{T+2}, s{T+1}, 2"); a(f"s_lshl_b32 s{T+2}, s{T+2}, 1"); a(f"s_and_b32 s{T+3}, s{T+1}, 1"); a(f"s_add_u32 s{T+2}, s{T+2}, s{T+3}")
                a(f"s_bfe_u32 s{T+3}, s{T+1}, 0x10001"); a(f"s_mul_i32 s{T+3}, s{T+3}, 10"); a(f"s_add_u32 s{T+1}, s{T+2}, s{T+3}")
            a(f"s_mul_i32 s{T+1}, s{T+1}, {32*1280}"); a(f"s_add_u32 s{T}, s{T}, s{T+1}"); a(f"s_mul_i32 s{T+2}, s{NT}, 160"); a(f"s_add_u32 s{o}, s{T}, s{T+2}")

    def unstash(self, which=range(10)):
        a = self.p
        a(f"s_lshl_b32 s{T}, s{WV}, 10"); a(f"v_add_u32 v{t0}, s{T}, v{vL16}"); a(f"v_add_u32 v{t1}, 40960, v{t0}")
        for i in which: a(f"ds_write_b128 v{t0 + i//5}, {vr(STH+4*i,4)} offset:{(i%5)*8192}")

    def att_setup(self):
        a = self.p
        vM, vH, IDXR, AK, AK4, AV, QA, PA, V = PB, PB+1, PB+2, PB+3, PB+4, PB+5, PB+6, PB+9, PB+32
        a(f"v_and_b32 v{vM}, 31, v{vL}"); a(f"v_lshrrev_b32 v{vH}, 5, v{vL}")
        a(f"s_lshl_b32 s{T+4}, s{HW}, 1"); a(f"s_lshr_b32 s{T}, s{WV}, 2"); a(f"s_add_u32 s{T+4}, s{T+4}, s{T}")
        a(f"s_mul_i32 s{T}, s{T}, 10240"); a(f"s_add_u32 s{T}, s{T}, {7*SL}")
        a(f"v_lshl_add_u32 v{AK4}, v{vM}, 3, s{T}"); a(f"v_lshl_add_u32 v{AK}, v{vH}, 8, v{AK4}"); a(f"v_add_u32 v{AK4}, 1024, v{AK4}")
        a(f"v_mul_u32_u24 v{t0}, 20, v{vH}"); a(f"v_add_u32 v{t0}, v{t0}, v{vM}"); a(f"v_lshl_add_u32 v{AV}, v{t0}, 4, s{T}")
        a(f"s_mul_i32 s{T+1}, s{T+4}, 1280"); a(f"s_add_u32 s{T+1}, s{T+1}, {6*SL}")
        a(f"s_xor_b32 s{T}, s{T+4}, 1"); a(f"s_mul_i32 s{T}, s{T}, 1280"); a(f"s_add_u32 s{T}, s{T}, {6*SL}")
        a(f"v_lshlrev_b32 v{t0}, 3, v{vM}"); a(f"v_lshl_add_u32 v{t1}, v{vH}, 8, v{t0}")
        a(f"v_add_u32 v{QA}, s{T}, v{t1}"); a(f"v_add_u32 v{QA+1}, s{T+1}, v{t1}")
        a(f"s_sub_u32 s{T+1}, s{T+1}, s{T}"); a(f"v_mul_lo_u32 v{t1}, v{vH}, s{T+1}"); a(f"v_add3_u32 v{QA+2}, v{t0}, v{t1}, s{T}")
        a(f"v_mov_b32 v{IDXR}, 0xdddddddd")
        KS = OPT.get("ks", 0)
        a(f"s_and_b32 s{T}, s{IDX}, 7"); a(f"s_lshl_b32 s{T}, s{T}, 13"); a(f"s_lshr_b32 s{T+1}, s{IDX}, 3"); a(f"s_lshl_b32 s{T+1}, s{T+1}, {8+KS}"); a(f"s_add_u32 s{T}, s{T}, s{T+1}")
        a(f"s_add_u32 s{T}, s{T}, {hx(FLG+4096)}"); a(f"s_lshl_b32 s{T+1}, s{HW}, {5+KS}"); a(f"s_add_u32 s{T+5}, s{T}, s{T+1}")
        a(f"s_lshl_b32 s{T+1}, s{WV}, {3+KS}"); a(f"s_add_u32 s{T+1}, s{T+1}, s{G}"); a(f"s_lshl_b32 s{T+1}, s{T+1}, 2"); a(f"s_add_u32 s{FO}, s{T+1}, s{T}"); a(f"s_add_u32 s{T+6}, s{LAY}, 1")
        a(f"v_and_b32 v{PA}, 7, v{vL}"); a(f"v_lshlrev_b32 v{PA}, 2, v{PA}")

    def qkv(self):
        a = self.p
        RD = OPT.get("rd_q", 6); IN = OPT.get("in_q", 3)
        RA = PB + 12
        RT = PB + 16
        AD = PB + 24
        RS = PB + 48
        ST = PB + 60
        BR = PB + 68
        AC = PB + 84
        AR = PB + 116
        TX, TM = AR + 28, AR + 36
        RB = PB + 148
        BRL = ([BR + 4*i for i in range(4)] + [PB + 32 + 4*i for i in range(4)])[:OPT.get('nf_q', 8)]
        assert AR + 8*RD <= STH and IN <= 3
        AQ, AK, A4, AV, AVS, ARB = AD, AD+1, AD+2, AD+3, AD+4, AD+5
        self.RB, self.ARB = RB, ARB
        def adprep():
            a(f"s_mul_i32 s{T}, s{WV}, 1280"); a(f"s_add_u32 s{T}, s{T}, {6*SL}")
            a(f"s_mul_i32 s{T+1}, s{WV}, 2560"); a(f"s_add_u32 s{T+1}, s{T+1}, {7*SL}")
            a(f"v_cmp_eq_u32 vcc, 0, v{vG}")
            a(f"v_lshlrev_b32 v{t0}, 3, v{vJ}"); a(f"v_lshl_add_u32 v{t1}, v{vG}, 8, v{t0}")
            a(f"v_add_u32 v{AQ}, s{T}, v{t1}"); a(f"v_add_u32 v{AK}, s{T+1}, v{t1}")
            a(f"v_add_u32 v{t1}, s{T}, v{t0}"); a(f"v_add_u32 v{t2}, s{T+1}, v{t0}"); a(f"v_cndmask_b32 v{A4}, v{t2}, v{t1}, vcc")
            a(f"v_lshrrev_b32 v{t1}, 1, v{vG}"); a(f"v_mul_u32_u24 v{t1}, 320, v{t1}"); a(f"v_lshl_add_u32 v{t1}, v{vJ}, 4, v{t1}")
            a(f"v_and_b32 v{t2}, 1, v{vG}"); a(f"v_lshl_add_u32 v{t1}, v{t2}, 3, v{t1}"); a(f"v_add_u32 v{AV}, s{T+1}, v{t1}")
            a(f"v_lshrrev_b32 v{t1}, 3, v{vJ}"); a(f"v_mul_u32_u24 v{t1}, 320, v{t1}"); a(f"v_and_b32 v{t2}, 7, v{vJ}")
            a(f"v_lshl_add_u32 v{t1}, v{t2}, 1, v{t1}"); a(f"v_add_u32 v{AVS}, s{T+1}, v{t1}")
            a(f"v_add_u32 v{ARB}, s{T+1}, v{vL16}")
            a(f"s_mul_i32 s{KVS}, s{IDX}, 163840"); a(f"s_mul_i32 s{T}, s{LAY}, {hx(0x500000)}"); a(f"s_add_u32 s{KVS}, s{KVS}, s{T}")
            a(f"s_mul_i32 s{T}, s{HW}, 2560"); a(f"s_add_u32 s{KVS}, s{KVS}, s{T}"); a(f"s_add_u32 s{KVS}, s{KVS}, {hx(KVF(0))}")
            a(f"s_lshl_b32 s{T}, s{G}, 1"); a(f"s_lshr_b32 s{T+1}, s{WV}, 2"); a(f"s_add_u32 s{T}, s{T}, s{T+1}")
            a(f"s_mul_i32 s{OS}, s{T}, 10240"); a(f"s_add_u32 s{OS}, s{OS}, s{KVS}")
        def qsetup():
            a(f"v_add_u32 v{RA}, 65536, v{vL16}")
            a(f"s_lshl_b32 s{T}, s{G}, 3"); a(f"s_add_u32 s{T}, s{T}, s{WV}")
            a(f"s_mul_i32 s{A0}, s{T}, {2*XB}"); a(f"s_add_u32 s{T+1}, s{A0}, 20480")
            if OPT.get("rot"): a(f"s_lshl_b32 s{T}, s{ROT}, 12"); a(f"s_add_u32 s{A0}, s{A0}, s{T}")
            a(f"s_add_u32 s{A1}, s{A0}, {XB}")
            a(f"s_lshl_b32 s{T+2}, s{WV}, 8"); a(f"s_add_u32 s{T+2}, s{T+2}, s{FB}")
            a(f"v_lshlrev_b32 v{t2}, 2, v{vJ}")
            a(f"s_lshl_b32 s{T+3}, s{LAY}, 1"); a(f"s_add_u32 s{T+3}, s{T+3}, 1")
        self.qsetup = qsetup
        def lnprep(first):
            self.stat_math(ST, RS, TX, False)
            a(f"v_lshlrev_b32 v{t0}, 4, v{vG}")
            for rb in range(2):
                for i in range(4): a(f"ds_bpermute_b32 v{RT+4*rb+i}, v{t0}, v{ST+2} offset:{128*rb+4*i}")
            cq = hx(f2u(20**-0.5 * math.log2(math.e)))
            for nb in range(4):
                x = BR + 4*nb
                a(f"v_cvt_pk_bf16_f32 v{x}, v{CSQ+nb}, v{CSQ+nb}"); a(f"v_and_b32 v{t1}, 0xffff0000, v{x}"); a(f"v_sub_f32 v{t1}, v{CSQ+nb}, v{t1}")
                a(f"v_and_b32 v{x+1}, 0xffff, v{x}"); a(f"v_cvt_pk_bf16_f32 v{x}, v{CSQ+nb}, v{t1}")
                a(f"v_mov_b64 {vr(x+2,2)}, 0")
            for rb in range(2): a(f"v_mul_f32 v{RS+2+rb}, {cq}, v{RS+rb}")
            for rb in range(2): a(f"v_cndmask_b32 v{RS+4+rb}, v{RS+rb}, v{RS+2+rb}, vcc")
            for nb in (1, 2, 3, 0):
                for rb in range(2):
                    d = vr(AC + 4*(4*rb + nb), 4); w, x = vr(BR+4*nb, 4), vr(TX+4*rb, 4)
                    p, q = (x, w) if nb == 2 else (w, x)
                    a(f"v_mfma_f32_16x16x32_bf16 {d}, {p}, {q}, {'0' if first else d}")
            a("s_waitcnt lgkmcnt(0)")

        ONE = RT + 4
        def conv_setup():
            a(f"v_lshrrev_b32 v{t0}, 2, v{vL}"); a(f"v_mul_u32_u24 v{t0}, 160, v{t0}"); a(f"v_lshl_add_u32 v{t0}, s{ODD}, 3, v{t0}")
            a(f"v_and_b32 v{t1}, 3, v{vL}"); a(f"v_lshlrev_b32 v{t2}, 3, v{t1}")
            a(f"v_min_u32 v{t1}, 2, v{t1}"); a(f"v_mul_u32_u24 v{t1}, 48, v{t1}")
            a(f"s_mul_i32 s{T}, s{HW}, 48"); a(f"s_cmp_eq_u32 s{HW}, 3"); a("s_cselect_b64 vcc, -1, 0"); a(f"s_cselect_b32 s{T}, 32, s{T}")
            a(f"s_lshr_b32 s{T+1}, s{WV}, 2"); a(f"s_mul_i32 s{T+1}, s{T+1}, 5120"); a(f"s_add_u32 s{T}, s{T}, s{T+1}"); a(f"s_add_u32 s{T}, s{T}, {3*SL}")
            a(f"v_cndmask_b32 v{t1}, v{t2}, v{t1}, vcc"); a(f"v_add3_u32 v{RT}, v{t0}, v{t1}, s{T}"); a(f"v_add_u32 v{RT+1}, 51200, v{RT}")
            for i in range(4): a(f"v_mov_b32 v{ONE+i}, 0x3f803f80")
        def conv(i0, i1):
            for i in range(i0, i1):
                for u in range(2): a(f"ds_read_b64_tr_b16 {vr(STH+4*i+2*u,2)}, v{RT + i//5} offset:{(i % 5)*10240 + 2560*u}")
            a("s_waitcnt lgkmcnt(0)")
            for i in range(i0, i1):
                a(f"v_mfma_f32_16x16x32_bf16 {vr(CSQ,4)}, {vr(ONE,4)}, {vr(STH+4*i,4)}, {'0' if i == 0 else vr(CSQ,4)}")
            self.unstash(range(i0, i1))
        P = AC
        a(f"s_cmp_ge_u32 s{WV}, 4"); a("s_cbranch_scc1 L_q0_load")
        self.entry_tile()
        a(f"v_mul_u32_u24 v{t2}, 1280, v{vJ}"); a(f"v_lshl_add_u32 v{t2}, v{vG}, 3, v{t2}")
        a(f"s_mul_i32 s{T}, s{RBO}, 20480"); a(f"v_add_u32 v{t2}, s{T}, v{t2}")
        a("s_waitcnt lgkmcnt(0)")
        self.stamp(0)
        a(f"s_or_b32 s{T+5}, s{WV}, s{IDX}")
        a(f"s_cmp_eq_u32 s{T+5}, 0"); a("s_cbranch_scc0 L_q0_c1")
        for i in range(4): a(f"v_mov_b32 v{BR+i}, 0")
        a(f"s_add_u32 s{T}, s{FB}, 4096")
        for i in (0, 1, 3): a(f"buffer_store_dwordx4 {vr(BR,4)}, v{vL16}, {sr(WS,4)}, s{FB} offen offset:{1024*i} sc1")
        for i in range(1 << OPT.get("ks", 0)): a(f"buffer_store_dwordx4 {vr(BR,4)}, v{vL16}, {sr(WS,4)}, s{T} offen offset:{1024*i} sc1")
        a("L_q0_c1:")
        for i in range(5): a(f"buffer_load_dwordx2 {vr(P+2*i,2)}, v{t2}, {sr(XIN,4)}, s{COL+i} offen")
        conv_setup(); self.pack_setup()
        a(f"s_lshl_b32 s{T+6}, s{G}, 2")
        a(f"s_cmp_eq_u32 s{T+5}, 0"); a("s_cbranch_scc0 L_q0_c2")
        a(f"v_mov_b32 v{t0}, 1"); a(f"v_mov_b32 v{t1}, 0")
        a("s_waitcnt vmcnt(5)")
        a("s_mov_b64 exec, 1")
        a(f"buffer_store_dword v{t0}, v{t1}, {sr(DBG,4)}, s{T+6} offen sc1")
        a("s_mov_b64 exec, -1")
        a("s_waitcnt vmcnt(1)")
        a("s_branch L_q0_c3")
        a("L_q0_c2:")
        a("s_waitcnt vmcnt(0)")
        a("L_q0_c3:")
        self.stamp(21)
        def boot():
            for i in range(10):
                a(f"v_lshlrev_b32 v{RES+2*i}, 16, v{P+i}"); a(f"v_and_b32 v{RES+2*i+1}, 0xffff0000, v{P+i}")
            a(f"v_and_b32 v{t2}, 7, v{vL}"); a(f"v_lshlrev_b32 v{t2}, 2, v{t2}")
            if OPT.get("sboot", 1):
                a("s_waitcnt vmcnt(0)")
                a(f"s_buffer_load_dwordx8 {sr(T+6,8)}, {sr(DBG,4)}, 0"); a("s_waitcnt lgkmcnt(0)")
                for i in range(1, 4): a(f"s_and_b64 {sr(T+6,2)}, {sr(T+6,2)}, {sr(T+6+2*i,2)}")
                a(f"s_and_b32 s{T+6}, s{T+6}, s{T+7}"); a("s_cbranch_scc1 L_q0_boot")
            self.poll(DBG, t2, "0", "1")
            a("L_q0_boot:")
        self.xstore("1", P, "sc1", before_flag=boot, packed=True)
        self.stamp(23)
        a(f"v_lshlrev_b32 v{t0}, 7, v{vJ}"); a(f"v_and_b32 v{t1}, 0x380, v{t0}")
        a(f"buffer_load_dword v{BR}, v{t0}, {sr(WS,4)}, s{XA} offen sc1"); a(f"buffer_load_dword v{BR+1}, v{t1}, {sr(WS,4)}, s{XS} offen sc1")
        a(f"s_getreg_b32 s{T}, hwreg(HW_REG_XCC_ID)"); a(f"s_and_b32 s{T}, s{T}, 15"); a(f"s_add_u32 s{T}, s{T}, 16")
        a(f"v_mov_b32 v{t1}, s{T}"); a(f"v_mov_b32 v{t2}, 0")
        a(f"s_lshl_b32 s{T}, s{IDX}, 2"); a(f"s_add_u32 s{T}, s{T}, s{FB}")
        a(f"s_cmp_eq_u32 s{WV}, 0"); a("s_cbranch_scc0 L_q0_c4")
        a("s_mov_b64 exec, 1")
        a(f"buffer_store_dword v{t1}, v{t2}, {sr(WS,4)}, s{T} offen offset:3200 sc1")
        a("s_mov_b64 exec, -1")
        a("L_q0_c4:")
        a("s_barrier")
        conv(0, 4)
        a("s_branch L_q0_conv")
        a("L_q0_load:")
        D = AC
        self.dma_addr(D, 5, "wq")
        a(f"s_mul_i32 s{DS}, s{HW}, {32*3840}"); a(f"s_mul_i32 s{T}, s{IDX}, 40"); a(f"s_and_b32 s{T}, s{T}, -16"); a(f"s_add_u32 s{DS}, s{DS}, s{T}")
        a(f"s_mul_i32 s{T+8}, s{HW}, 5120")
        if OPT.get("rot"): a(f"s_mul_i32 s{T}, s{ROT}, {128*3840}"); a(f"s_add_u32 s{DS}, s{DS}, s{T}")
        a("s_waitcnt lgkmcnt(0)")
        self.stamp(0)
        def gather(c):
            for i in range(5):
                a.extend(self.dma(D+i, WQ, f"s{DS}", f"s{T+8}", (3+c)*SL + 1024*i, OPT.get("wqmod", "")))
                if OPT.get("ht0", 10): a(f"s_waitcnt vmcnt({OPT.get('ht0', 10)})")
            if OPT.get("rot"):
                a(f"s_mov_b32 s{ROT+1}, {128*3840}"); a(f"s_cmp_eq_u32 s{ROT}, {4 - c}"); a(f"s_cmov_b32 s{ROT+1}, {-4*128*3840}")
                a(f"s_add_u32 s{DS}, s{DS}, s{ROT+1}")
            else: a(f"s_add_u32 s{DS}, s{DS}, {128*3840}")
            self.stamp(24 + c)
        g1 = OPT.get("g1", 3); g0 = OPT.get("g0", 3)
        for c in range(g0): gather(c)
        conv_setup(); adprep(); self.att_setup(); self.pack_setup()
        for c in range(g0, g1): gather(c)
        a(f"s_waitcnt vmcnt({5*(g1-2)})")
        self.stamp(23)
        a("s_barrier")
        g2 = OPT.get("g2", 4)
        for c in range(g1, g2): gather(c)
        conv(0, 4)
        for c in range(max(g1, g2), 5): gather(c)
        a("s_waitcnt vmcnt(5)")
        a("L_q0_conv:")
        a("s_barrier")
        conv(4, 8)
        self.stamp(1)
        qsetup()
        a("s_branch L_q1_a")
        def last_chunk():
            a("s_barrier")
            if OPT.get("cp", 2) != 0: self.code_pull(7, "b")
            conv(8, 10)
            a(f"s_lshl_b32 s{T}, s{WV}, 2"); a(f"s_add_u32 s{T}, s{T}, {4*SL}"); a(f"v_lshl_add_u32 v{t2}, v{vJ}, 5, s{T}")
            a(f"s_mov_b32 s{T}, {4*SL}"); a(f"v_lshl_add_u32 v{t3}, v{vJ}, 5, s{T}")
            a(f"ds_write_b32 v{t2}, v{CSQ}")
            a("s_waitcnt lgkmcnt(0)"); a("s_barrier")
            a(f"ds_read_b128 {vr(CSQ,4)}, v{t3}"); a(f"ds_read_b128 {vr(BR,4)}, v{t3} offset:16")
            a("s_waitcnt lgkmcnt(0)")
            for i in range(4): a(f"v_add_f32 v{CSQ+i}, v{CSQ+i}, v{BR+i}")

        a("L_qkv1:")
        self.stamp(1)
        adprep(); self.att_setup(); qsetup()
        a("L_q1_a:")
        self.poll(WS, t2, f"s{T+2}", f"s{T+3}")
        self.stamp(2)
        vm = Cnt("vmcnt", 63)
        for ls in self.a_loads(0, RD, AR): a.extend(ls); vm.issue(("A", 0))
        self.stat_loads(ST, f"s{T+1}", vm)
        for gs in range(1, IN):
            for ls in self.a_loads(gs, RD, AR): a.extend(ls); vm.issue(("A", gs))
        a(f"s_cmp_ge_u32 s{WV}, 4"); a("s_cbranch_scc1 L_q1_c")
        a("s_setprio 2")
        for i in range(0, 32, 2): a(f"v_mov_b64 {vr(AC+i,2)}, 0")
        adprep()
        a("L_q1_c:")
        a(f"s_cmp_lg_u32 s{LAY}, 0"); a("s_cbranch_scc1 L_q1_d")
        last_chunk()
        a("s_branch L_q1_b")
        a("L_q1_d:")
        a("s_waitcnt lgkmcnt(0)"); a("s_barrier")
        a("L_q1_b:")
        a(f"s_cmp_lt_u32 s{WV}, 4"); a("s_cbranch_scc1 L_q1_loop")
        a("L_q1_late:")
        a(copy.deepcopy(vm).wait("st"))
        self.stat_sum(ST, TM); lnprep(True)
        a("L_q1_loop:")
        self.gemm(20, 4, RD, AR, BRL, AC, lambda gs, nb: (vL16 if gs < 16 else RA, (gs % 16)*4096 + nb*1024), None, vm, std=(2,), czero=(), wgrp=2, init=IN, rot=bool(OPT.get('rot')))
        self.stamp(3)
        a(f"s_cmp_ge_u32 s{WV}, 4"); a("s_cbranch_scc1 L_q_epi")
        self.stat_sum(ST, TM)
        a("L_q_prep:")
        lnprep(False)
        a("L_q_epi:")
        PK = BR
        a("s_nop 2")
        for nb in (1, 2, 3, 0):
            for rb in range(2):
                r = AC + 4*(4*rb + nb)
                for i in range(4):
                    m = RT + 4*rb + i if nb == 2 else RS + {0: 2, 1: 0, 3: 4}[nb] + rb
                    a(f"v_mul_f32 v{r+i}, v{r+i}, v{m}")
            for r2 in range(2):
                r = AC + 4*(4*r2 + nb); p = PK + 2*(4*r2 + nb)
                a(f"v_cvt_pk_bf16_f32 v{p}, v{r}, v{r+1}"); a(f"v_cvt_pk_bf16_f32 v{p+1}, v{r+2}, v{r+3}")
                if nb == 0 and r2 == 0: a("s_waitcnt lgkmcnt(8)")
                if nb == 0: a(f"ds_write_b64 v{AQ}, {vr(p,2)} offset:{128*r2}")
                if nb == 1: a(f"ds_write_b64 v{AK}, {vr(p,2)} offset:{128*r2}")
                if nb == 2: a(f"ds_write_b64 v{AV}, {vr(p,2)} offset:{1280+640*r2}")
            if nb == 3:
                a("s_mov_b32 exec_hi, 0")
                for rb in range(2): a(f"ds_write_b64 v{A4}, {vr(PK+2*(4*rb+3),2)} offset:{1024+128*rb}")
                a("s_bfm_b64 exec, 16, 32")
                for rb in range(2):
                    for i in range(4):
                        a(f"ds_write_b16{'_d16_hi' if i & 1 else ''} v{AVS}, v{PK+2*(4*rb+3)+(i>>1)} offset:{1280+640*rb+256+16*i}")
                a("s_mov_b64 exec, -1")
        V = PB + 32
        a(f"v_and_b32 v{t1}, 31, v{vL}"); a(f"v_cmp_eq_u32 vcc, 20, v{t1}"); a(f"v_mov_b32 v{t0}, 0x3f803f80"); a("s_nop 0")
        a(f"v_cndmask_b32 v{V}, 0, v{t0}, vcc"); a(f"v_cndmask_b32 v{V+1}, 0, v{t0}, vcc")
        for i in range(2, 16, 2): a(f"v_mov_b64 {vr(V+i,2)}, {vr(V,2)}")
        a("s_waitcnt lgkmcnt(0)")
        for i in range(3): a(f"ds_read_b128 {vr(RB+4*i,4)}, v{ARB} offset:{1024*i}")
        a(f"s_cmp_ge_u32 s{WV}, 4"); a("s_cbranch_scc1 L_att_late")
        a("s_waitcnt lgkmcnt(0)")
        self.publish()
        self.stamp(22)
        a("s_setprio 0")
        self.att_setup()
        self.flag(f"s{FO}", f"s{T+6}", "sc1")
        self.stamp(5)
        a("L_att_late:")
    def publish(self):
        a = self.p
        for i in range(3):
            if i == 2: a("s_mov_b32 exec_hi, 0")
            a(f"buffer_store_dwordx4 {vr(self.RB+4*i,4)}, v{vL16}, {sr(WS,4)}, s{OS} offen offset:{1024*i} sc1")
        a("s_mov_b64 exec, -1")

    def attention(self):
        a = self.p
        vM, vH, IDXR = PB, PB+1, PB+2
        AK, AK4, AV = PB+3, PB+4, PB+5
        OA = PB+6
        PA = PB+9
        Q = [PB+12, PB+16]; Q4 = PB+20; K4 = PB+22
        KK = [PB+24, PB+28]
        V = PB+32
        O = [PB+48, PB+64]
        S = [PB+80, PB+112]
        NM = S[1]
        PF = PB+144
        PR = PB+148
        EXM, EXF = f"s_mov_b64 exec, {sr(VMK,2)}", "s_mov_b64 exec, -1"
        HALF = "s_mov_b32 exec_hi, 0"
        kvm = OPT.get("kvmod", "sc1")
        base = [0]
        def off(n):
            o = (n // 4) * SL + (n % 4) * 2560 - base[0]
            assert 0 <= o < 65536 - 2560
            return o
        def rdK4(t): return f"ds_read_b64 {vr(K4,2)}, v{AK4} offset:{off(t)}"
        def rdK(t): return f"ds_read2st64_b64 {vr(KK[t&1],4)}, v{AK} offset0:{off(t)//512} offset1:{off(t)//512+1}"
        def rdV(t, i): return f"ds_read_b128 {vr(V+8*(t&1)+4*i,4)}, v{AV} offset:{off(t)+1280+640*i}"
        def m2b(t, c="0"): return f"v_mfma_f32_32x32x4_2b_bf16 {vr(S[t&1],32)}, {vr(K4,2)}, {vr(Q4,2)}, {c}"
        def mk(t, q): return f"v_mfma_f32_32x32x16_bf16 {vr(S[t&1]+16*q,16)}, {vr(KK[t&1],4)}, {vr(Q[q],4)}, {vr(S[t&1]+16*q,16)}"
        def pv(t, i): return f"v_smfmac_f32_32x32x32_bf16 {vr(O[i>>1],16)}, {vr(V+8*(t&1)+4*(i&1),4)}, {vr(S[t&1]+8*i,8)}, v{IDXR}"
        def set_addr(b):
            a(f"s_lshr_b32 s{T}, s{WV}, 2"); a(f"s_mul_i32 s{T}, s{T}, 10240"); a(f"s_add_u32 s{T}, s{T}, {b}")
            a(f"v_lshl_add_u32 v{AK4}, v{vM}, 3, s{T}"); a(f"v_lshl_add_u32 v{AK}, v{vH}, 8, v{AK4}"); a(f"v_add_u32 v{AK4}, 1024, v{AK4}")
            a(f"v_mul_u32_u24 v{t0}, 20, v{vH}"); a(f"v_add_u32 v{t0}, v{t0}, v{vM}"); a(f"v_lshl_add_u32 v{AV}, v{t0}, 4, s{T}")
        def fill(mid=[]):
            mid = list(mid)
            a(rdK4(0)); a(rdK(0)); a(rdK(1)); a(EXM); a(rdV(0, 0)); a(rdV(0, 1)); a(EXF)
            a("s_waitcnt lgkmcnt(4)"); a(m2b(0)); a(rdK4(1))
            a.extend(mid[:16])
            if len(mid) < 16: a(f"s_nop {15 - len(mid)}")
            a("s_waitcnt lgkmcnt(4)")
            a(mk(0, 0)); a(mk(0, 1))
            a.extend(mid[16:])
            if len(mid[16:]) < 11: a(f"s_nop {10 - len(mid[16:])}")
        def step(t, last, first=False, hook={}):
            nqk, nrd = t + 1 <= last, t + 2 <= last
            ins = {1: ([] if first else [pv(t-1, 3)]) + ["s_waitcnt lgkmcnt(0)"],
                   5: ([m2b(t+1)] if nqk else []) + ([rdK4(t+2)] if nrd else []),
                   13: [pv(t, 0)] + ([EXM, rdV(t+1, 0), rdV(t+1, 1), EXF] if nqk else []),
                   17: [pv(t, 1)] + ([rdK(t+2)] if nrd else []),
                   21: [mk(t+1, 0)] if nqk else [], 25: [pv(t, 2)], 29: [mk(t+1, 1)] if nqk else []}
            for e in range(32):
                a(f"v_exp_f32 v{S[t&1]+e}, v{S[t&1]+e}")
                for l in ins.get(e, []): a(l)
                for h in hook.get(e, []): h()
        prio = lambda p: (lambda: a(f"s_setprio {p}") if OPT.get("prio", 1) else None)
        WOFF = T + 10
        def kv_dma1(sblk, slot, i, add=0):
            a(f"s_add_u32 m0, s{WOFF}, {slot*SL + add}")
            a(HALF if i == 2 else "s_nop 0")
            a(f"buffer_load_dwordx4 v{vL16}, {sr(WS,4)}, s{sblk} offen offset:{1024*i} {kvm} lds")
            if i == 2: a(EXF)
        def kv_src(sd, b):
            a(f"s_lshr_b32 s{sd}, s{WV}, 2")
            if b == 4: a(f"s_mul_i32 s{T}, s{sd}, 10240"); a(f"s_lshl_b32 s{sd}, s{sd}, 1")
            a(f"s_add_u32 s{sd}, s{sd}, s{G}"); a(f"s_add_u32 s{sd}, s{sd}, {2*b - 1 + (b > 4)}"); a(f"s_and_b32 s{sd}, s{sd}, 7")
            a(f"s_mul_i32 s{sd}, s{sd}, {SL}"); a(f"s_add_u32 s{sd}, s{sd}, s{KVS}")
            if b == 4: a(f"s_add_u32 s{sd}, s{sd}, s{T}")
            if b > 4: a(f"s_add_u32 s{sd}, s{sd}, 10240")

        a("s_barrier")
        self.stamp(4)
        prio(3)()
        a(f"ds_read_b64 {vr(Q4,2)}, v{OA+2} offset:1024")
        a(f"ds_read2st64_b64 {vr(Q[0],4)}, v{OA} offset0:0 offset1:1"); a(f"ds_read2st64_b64 {vr(Q[1],4)}, v{OA+1} offset0:0 offset1:1")
        def misc0():
            for q in range(2):
                for i in range(0, 16, 2): a(f"v_mov_b64 {vr(O[q]+i,2)}, 0")
            a(f"s_mov_b32 s{PASS}, 0"); a(f"s_mul_i32 s{WOFF}, s{WV}, 2560")
            a(f"s_cmp_ge_u32 s{WV}, 4"); a("s_cbranch_scc1 L_att_pub")
            a(f"buffer_load_dword v{t3}, v{PA}, {sr(WS,4)}, s{T+5} offen sc1")
            a("L_att_pubd:")
            a("s_nop 6")
        fill(self.capture(misc0))
        main, self.a = self.a, self.tail
        a("L_att_pub:"); self.publish(); a("s_branch L_att_pubd")
        self.a = main
        def misc1():
            a(f"s_lshl_b32 s{T}, s{G}, 3"); a(f"s_add_u32 s{T}, s{T}, s{T+4}"); a(f"s_mul_i32 s{OS}, s{T}, {2*HB_}"); a(f"s_add_u32 s{OS}, s{OS}, {hx(OF)}")
            a(f"s_lshl_b32 s{FO}, s{T+4}, 8"); a(f"s_add_u32 s{FO}, s{FO}, s{FB}"); a(f"s_lshl_b32 s{T}, s{IDX}, 2"); a(f"s_add_u32 s{FO}, s{FO}, s{T}"); a(f"s_add_u32 s{FO}, s{FO}, 128")
            a(f"s_mul_i32 s{T}, s{IDX}, 5")
            a(f"v_lshrrev_b32 v{t0}, 4, v{vM}"); a(f"v_mul_u32_u24 v{t0}, {HB_}, v{t0}"); a(f"v_lshl_add_u32 v{t0}, v{vJ}, 4, v{t0}")
            for jj in range(3):
                a(f"v_add_u32 v{t1}, s{T}, v{vH}")
                a(f"v_lshrrev_b32 v{t2}, 3, v{t1}"); a(f"v_lshl_add_u32 v{OA+jj}, v{t2}, 10, v{t0}")
                a(f"v_and_b32 v{t2}, 3, v{t1}"); a(f"v_lshl_add_u32 v{OA+jj}, v{t2}, 8, v{OA+jj}")
                a(f"v_bfe_u32 v{t2}, v{t1}, 2, 1"); a(f"v_lshl_add_u32 v{OA+jj}, v{t2}, 3, v{OA+jj}")
                a(f"s_add_u32 s{T}, s{T}, 2")
        vm0, vm1 = Cnt("vmcnt", 63), Cnt("vmcnt", 63)
        def both(tag): vm0.issue(tag); vm1.issue(tag)
        def kvblock(b, pieces=(0, 1, 2)):
            def f():
                if pieces[0] == 0: kv_src(T+7, b)
                for i in pieces: kv_dma1(T+7, b-1, i); both(("kv", b))
            return f
        def early(b):
            def f():
                l = self.lab("early")
                a(f"s_cmp_ge_u32 s{WV}, 4"); a(f"s_cbranch_scc1 {l}")
                if b == 1:
                    self.poll(WS, PA, f"s{T+5}", f"s{T+6}", issued=True)
                    self.stamp(6)
                for k in range(2):
                    a(f"s_add_u32 s{T+7}, s{G}, {2*b - 1 + k}"); a(f"s_and_b32 s{T+7}, s{T+7}, 7"); a(f"s_mul_i32 s{T+7}, s{T+7}, {SL}"); a(f"s_add_u32 s{T+7}, s{T+7}, s{KVS}")
                    for i in range(3): kv_dma1(T+7, b-1, i, 10240*k); both(("kv", b))
                a(f"{l}:")
            return f
        def lateflag():
            l = self.lab("late")
            a(f"s_cmp_lt_u32 s{WV}, 4"); a(f"s_cbranch_scc1 {l}")
            self.flag(f"s{FO}", f"s{T+6}", "sc1")
            self.stamp(5); self.stamp(6)
            a(f"{l}:")
        hk = {t: {} for t in range(4)}
        def at(h, pos, f): h[pos // 32].setdefault(pos % 32, []).append(f)
        pg, pf, p2 = OPT.get("p1", (8, 63, 72))
        at(hk, pg, early(1)); at(hk, pf, lateflag); at(hk, p2, early(2))
        at(hk, 31, prio(2)); at(hk, 95, prio(1)); at(hk, 96 + OPT.get("plast", 26), prio(0))
        for t in range(4): step(t, 3, first=(t == 0), hook=hk[t])
        set_addr(0)
        a(pv(3, 3))
        a(vm1.wait(("kv", 1))); vm0.wait(("kv", 1)); a("s_barrier")
        self.stamp(7)
        prio(3)()
        fill(self.capture(misc1))
        NSTEP = 28
        hk = {t: {} for t in range(NSTEP)}
        def l0only(fn):
            def g():
                if fn.__name__ in OPT.get("x_nol0", ()):
                    self.capture(fn); return
                l = self.lab("l0")
                a(f"s_cmp_lg_u32 s{LAY}, 0"); a(f"s_cbranch_scc1 {l}")
                fn()
                a(f"{l}:")
            return g
        def late_issue():
            a(f"s_add_u32 s{T+5}, s{T+5}, {128 << OPT.get("ks", 0)}")
            a(f"buffer_load_dword v{t3}, v{PA}, {sr(WS,4)}, s{T+5} offen sc1"); both("lp")
        def late_check():
            lp, ld = self.lab("lpoll"), self.lab("lseen")
            w = vm1.wait("lp"); vm0.wait("lp"); a(w)
            a(f"v_cmp_gt_u32 vcc, s{T+6}, v{t3}"); a(f"s_cbranch_vccnz {lp}")
            a(f"{ld}:")
            main, self.a = self.a, self.tail
            a(f"{lp}:"); self.poll(WS, PA, f"s{T+5}", f"s{T+6}"); a(f"s_branch {ld}")
            self.a = main
        kvs = OPT.get("kvs", {3: 0, 4: 5, 5: 7, 6: 9, 7: 11})
        at(hk, (kvs[4] - 1)*32 + 3, late_issue); at(hk, kvs[4]*32 + 7, late_check)
        for b in range(3, 8):
            for i in range(3): at(hk, kvs[b]*32 + OPT.get('e1', 9) + 16*i, kvblock(b, (i,)))
        PS = T + 11
        def pack_load(u):
            def pack_load():
                if u == 0:
                    a(f"v_lshrrev_b32 v{t0}, 1, v{vL}"); a(f"v_and_b32 v{t1}, 1, v{vL}"); a(f"v_lshlrev_b32 v{t1}, 4, v{t1}")
                    a(f"v_mul_u32_u24 v{PA+1}, 3072, v{t0}"); a(f"v_add_u32 v{PA+1}, v{PA+1}, v{t1}")
                    a(f"v_mul_u32_u24 v{PA+2}, 1280, v{t0}"); a(f"v_add_u32 v{PA+2}, v{PA+2}, v{t1}")
                l1 = self.lab("pk")
                a(f"s_lshl_b32 s{T}, s{WV}, {10 if u == 2 else 11}"); a(f"s_add_u32 m0, s{T}, {(7*SL, 7*SL+1024, 6*SL+10240)[u]}")
                a(f"s_cmp_eq_u32 s{PDST[u]}, -1"); a(f"s_cbranch_scc1 {l1}")
                a(f"buffer_load_dwordx4 v{PA+1+(u > 0)}, {sr((W1, W2, WO)[u],4)}, s{PSRC[u]} offen lds")
                a(f"{l1}:")
                if u == 2: vm0.issue("pk")
            return pack_load
        def pack_read():
            a(f"s_lshl_b32 s{T}, s{WV}, 11"); a(f"s_add_u32 s{T}, s{T}, {7*SL}"); a(f"v_lshl_add_u32 v{t0}, v{vL}, 3, s{T}")
            a(f"s_lshl_b32 s{T}, s{WV}, 10"); a(f"s_add_u32 s{T}, s{T}, {6*SL+10240}"); a(f"v_lshl_add_u32 v{t1}, v{vL}, 3, s{T}")
            a(vm0.wait("pk"))
            for u in range(3):
                v, o = (t0, 1024*u) if u < 2 else (t1, 0)
                a(f"ds_read_b64_tr_b16 {vr(PR+4*u,2)}, v{v} offset:{o}"); a(f"ds_read_b64_tr_b16 {vr(PR+4*u+2,2)}, v{v} offset:{o+512}")
        def pack_store():
            for u in range(3):
                l1 = self.lab("pks")
                a(f"s_cmp_eq_u32 s{PDST[u]}, -1"); a(f"s_cbranch_scc1 {l1}")
                a(f"buffer_store_dwordx4 {vr(PR+4*u,4)}, v{vL16}, {sr(WS,4)}, s{PDST[u]} offen sc1")
                a(f"{l1}:")
            vm0.issue("pks")
        def pack_done(): a(vm0.wait("pks"))
        def pack_flag():
            a(f"s_lshl_b32 s{PS}, s{NT}, 13"); a(f"s_add_u32 s{PS}, s{PS}, {hx(FLG+3072)}")
            a(f"s_lshl_b32 s{T}, s{G}, 2"); a(f"s_lshr_b32 s{T+2}, s{IDX}, 3"); a(f"s_add_u32 s{T}, s{T}, s{T+2}"); a(f"s_lshl_b32 s{T}, s{T}, 2"); a(f"s_add_u32 s{T}, s{T}, s{PS}")
            a(f"v_mov_b32 v{t0}, 1"); a(f"v_mov_b32 v{t1}, 0"); a(f"v_lshlrev_b32 v{PA+1}, 2, v{vM}")
            a(f"s_cmp_eq_u32 s{WV}, 0"); a("s_cselect_b64 exec, 1, 0")
            l = self.lab("pkf")
            a(f"s_cbranch_execz {l}")
            a(f"buffer_store_dword v{t0}, v{t1}, {sr(WS,4)}, s{T} offen sc1")
            a(f"{l}:"); a(EXF)
        def pack_ask():
            a(f"buffer_load_dword v{PF}, v{PA+1}, {sr(WS,4)}, s{PS} offen sc1")
            a(f"buffer_load_dword v{t3}, v{PA+1}, {sr(WS,4)}, s{FB} offen offset:3200 sc1"); vm0.issue("ask")
        def pack_wait():
            lp, ld = self.lab("ppoll"), self.lab("pseen")
            a(vm0.wait("ask"))
            a(f"v_min_u32 v{t0}, v{PF}, v{t3}"); a(f"v_cmp_eq_u32 vcc, 0, v{t0}"); a(f"s_cbranch_vccnz {lp}")
            a(f"{ld}:")
            main, self.a = self.a, self.tail
            a(f"{lp}:"); self.poll(WS, PA+1, f"s{PS}", "1")
            a(f"s_add_u32 s{T}, s{FB}, 3200"); self.poll(WS, PA+1, f"s{T}", "16"); a(f"s_branch {ld}")
            self.a = main
            a(f"v_readfirstlane_b32 s{T}, v{t3}"); a("s_nop 1"); a(f"v_cmp_ne_u32 vcc, s{T}, v{t3}")
            a("s_cmp_eq_u64 vcc, 0"); a(f"s_cselect_b32 s{FAST}, {0 if OPT['forceslow'] else 1}, 0")
        pl_, pr_, pd_, pw_ = OPT.get("pk", (0, 3, 6, 12))
        if OPT.get("pspread", 0):
            for u in range(3): at(hk, pl_*32 + 4 + OPT["pspread"]*u, l0only(pack_load(u)))
        else:
            def pack_load_all():
                for u in range(3): pack_load(u)()
            at(hk, pl_*32 + 4, l0only(pack_load_all))
        at(hk, pr_*32 + 20, l0only(pack_read)); at(hk, (pr_+1)*32 + 3, l0only(pack_store))
        assert pd_ % 4 == 2 and kvs[7] >= pd_ > pr_ + 1
        at(hk, pd_*32 - 1, l0only(pack_done)); at(hk, pd_*32 + 3, l0only(pack_flag))
        at(hk, int((pw_ - OPT.get("pa", 1.5))*32) + 30, l0only(pack_ask)); at(hk, pw_*32 + 30, l0only(pack_wait))
        def wo_piece(n, lds, half=False):
            def f():
                if n == 0:
                    a(f"s_mul_i32 s{DS}, s{NT}, {100*1024}"); a(f"s_add_u32 s{DS}, s{DS}, {hx(PKO)}"); a(f"s_lshl_b32 s{T+8}, s{WV}, 10")
                r = WOFF if lds >= 4*SL else T+8
                a(f"s_add_u32 m0, s{r}, {lds}"); a(f"s_add_u32 s{T}, m0, s{DS}")
                if half: a(HALF)
                a(f"buffer_load_dwordx4 v{vL16}, {sr(WS,4)}, s{T} offen sc1 lds"); both("wo")
                if half: a(EXF)
            return f
        wst = OPT.get("wst", [13, 13.5, 14, 14.5, 15, 15.5, 16, 18, 18.5, 19, 22, 22.5, 23])
        wpos = [int(x*32) + OPT.get('e1', 9) for x in wst]
        for n in range(13):
            last = (n*8192 + 8191) // SL if n < 10 else 4
            assert wst[n] >= 4*last + 6 and wst[n] > pw_
        for n in range(0 if OPT.get("x_nowo") else 10): at(hk, wpos[n], wo_piece(n, n*8192))
        for i in range(0 if OPT.get("x_nowo") else 3): at(hk, wpos[10+i], wo_piece(10+i, 4*SL + 1024*i, i == 2))
        TB = T + 1
        def touch(setup, nlines, stride, k):
            def f():
                if setup:
                    setup()
                    a(f"v_min_u32 v{PA+2}, {nlines-1}, v{vL}"); a(f"v_lshlrev_b32 v{PA+2}, 7, v{PA+2}")
                else: a(f"s_add_u32 s{TB}, s{TB}, {stride}")
                a(f"buffer_load_dword v{PF+1+(k&1)}, v{PA+2}, {sr(WS,4)}, s{TB} offen sc1"); both("pf")
            return f
        def share(buf, per_wave):
            def f():
                a(f"s_lshl_b32 s{TB}, s{G}, 5"); a(f"s_add_u32 s{TB}, s{TB}, s{IDX}"); a(f"s_lshl_b32 s{TB}, s{TB}, 3"); a(f"s_add_u32 s{TB}, s{TB}, s{WV}")
                a(f"s_mul_i32 s{TB}, s{TB}, {per_wave}"); a(f"s_add_u32 s{TB}, s{TB}, {hx(buf)}")
            return f
        def tile(buf, mask, sh, tbytes, nl):
            def f():
                a(f"s_and_b32 s{T}, s{IDX}, {mask}"); a(f"s_mul_i32 s{T}, s{T}, {tbytes}")
                a(f"s_lshr_b32 s{TB}, s{IDX}, {sh}"); a(f"s_lshl_b32 s{TB}, s{TB}, 3"); a(f"s_add_u32 s{TB}, s{TB}, s{WV}"); a(f"s_mul_i32 s{TB}, s{TB}, {nl*128}")
                a(f"s_add_u32 s{TB}, s{TB}, s{T}"); a(f"s_add_u32 s{TB}, s{TB}, {hx(buf)}")
            return f
        tl = dict(x=(share(XF, XB//16), 11, 0), h=(share(HF, HB_//16), 13, 12*128),
                  a=(tile(PK1 + 32768, 15, 4, 120*1024, 6), 6, 61440 + 16384), c=(tile(PK2, 15, 4, 120*1024, 10), 10, SL))
        def code_touch(l0, l1):
            def f():
                l, pc = self.lab("ct"), self.lab("pc")
                a(f"s_cmp_eq_u32 s{WV}, 7"); a(f"s_cbranch_scc0 {l}")
                a(f"s_getpc_b64 {sr(T+2,2)}"); a(f"{pc}:")
                a(f"s_lshl_b32 s{T}, s{IDX}, 10"); a(f"s_add_u32 s{T}, s{T}, {l0}-{pc}")
                a(f"v_and_b32 v{t0}, 7, v{vL}"); a(f"v_lshl_add_u32 v{t0}, v{t0}, 7, s{T}"); a(f"v_min_u32 v{t0}, {l1}-{pc}, v{t0}")
                a(f"global_load_dword v{PF+3}, v{t0}, {sr(T+2,2)}")
                a(f"{l}:")
            return f
        def bias_touch():
            l = self.lab("bt")
            a(f"s_cmp_eq_u32 s{WV}, 6"); a(f"s_cbranch_scc0 {l}")
            a(f"v_lshlrev_b32 v{t0}, 7, v{vM}")
            a(f"buffer_load_dword v{PF+3}, v{t0}, {sr(B1,4)}, 0 offen"); a(f"buffer_load_dword v{PF+3}, v{t0}, {sr(B2,4)}, 0 offen")
            a(f"{l}:")
        def out_touch():
            l = self.lab("ot")
            a(f"s_cmp_eq_u32 s{LAY}, 1"); a(f"s_cbranch_scc0 {l}")
            a(f"s_lshl_b32 s{T}, s{G}, 5"); a(f"s_add_u32 s{T}, s{T}, s{IDX}"); a(f"s_lshl_b32 s{T}, s{T}, 3"); a(f"s_add_u32 s{T}, s{T}, s{WV}"); a(f"s_mul_i32 s{T}, s{T}, 1280")
            a(f"v_min_u32 v{t0}, 9, v{vL}"); a(f"v_lshlrev_b32 v{t0}, 7, v{t0}")
            a(f"buffer_load_dword v{PF+3}, v{t0}, {sr(OUT,4)}, s{T} offen")
            a(f"{l}:")
        if OPT.get("ct", 24) is not None: at(hk, OPT.get("ct", 24)*32 + 11, l0only(code_touch("L_att_fin", "L_last")))
        if OPT.get("bt", 25) is not None: at(hk, OPT.get("bt", 25)*32 + 11, bias_touch)
        if OPT.get("ot") is not None: at(hk, OPT["ot"]*32 + 19, out_touch)
        EA = KK[0]
        def ex_addr():
            for u in range(2):
                if u: a(f"s_xor_b32 s{T}, s{WV}, 4")
                w = T if u else WV
                a(f"s_lshl_b32 s{T+2}, s{w}, 11"); a(f"s_add_u32 s{T+2}, s{T+2}, {5*SL}"); a(f"v_add_u32 v{EA+2*u}, s{T+2}, v{vL16}")
                a(f"s_lshr_b32 s{T+2}, s{w}, 2"); a(f"s_mul_i32 s{T+2}, s{T+2}, {2*SL - 16384}"); a(f"s_lshl_b32 s{T+3}, s{HW}, 10"); a(f"s_add_u32 s{T+2}, s{T+2}, s{T+3}")
                a(f"s_add_u32 s{T+2}, s{T+2}, {5*SL + 16384}"); a(f"v_add_u32 v{EA+2*u+1}, s{T+2}, v{vL16}")
        def ex_write():
            for i in range(3): a(f"ds_write_b128 v{EA + (i == 2)}, {vr(O[0]+4*i,4)} offset:{1024*(i & 1)}")
        at(hk, (NSTEP-1)*32 + 5, ex_addr); at(hk, (NSTEP-1)*32 + 29, ex_write)
        PL = T + 12
        self.PLC = [188 + 4*i for i in range(6)] + [CS1 + 4, CS1]
        self.PLH = [188 + 4*i for i in range(6)] + [CS1 + 4] + [RES + 4*i for i in range(5)]
        def pl_load(reg, i): a(f"s_add_u32 s{T}, s{PL}, {4096*i}"); a(f"buffer_load_dwordx4 {vr(reg,4)}, v{vL16}, {sr(WS,4)}, s{T} offen sc1")
        def pl_piece(i):
            def f():
                if i == 0:
                    a(f"s_and_b32 s{T}, s{IDX}, 15"); a(f"s_lshl_b32 s{T}, s{T}, 1"); a(f"s_lshr_b32 s{PL}, s{WV}, 2"); a(f"s_add_u32 s{T}, s{T}, s{PL}")
                    a(f"s_mul_i32 s{T}, s{T}, 61440"); a(f"s_lshl_b32 s{PL}, s{HW}, 10"); a(f"s_add_u32 s{PL}, s{PL}, s{T}"); a(f"s_add_u32 s{PL}, s{PL}, {hx(PK1)}")
                if i < 7:
                    pl_load(self.PLC[i], i); both("pl")
                else:
                    l, l2 = self.lab("plh"), self.lab("pld")
                    a(f"s_cmp_ge_u32 s{WV}, 4"); a(f"s_cbranch_scc1 {l}")
                    if i == 7: pl_load(self.PLC[7], 7)
                    else:
                        a(f"s_lshl_b32 s{T}, s{HW}, 10"); a(f"s_add_u32 m0, s{T}, {5*SL + 4096*(i+3)}"); a(f"s_add_u32 s{T}, s{PL}, {4096*(i+3)}")
                        a(f"buffer_load_dwordx4 v{vL16}, {sr(WS,4)}, s{T} offen sc1 lds")
                    a(f"{l2}:"); both("pl")
                    main, self.a = self.a, self.tail
                    a(f"{l}:"); pl_load(self.PLH[i], i); a(f"s_branch {l2}")
                    self.a = main
            return f
        plst = OPT.get("plst", [13 + 0.5*i for i in range(12)])
        for i in range(0 if OPT.get("x_nopl") else 12):
            assert plst[i] > pw_
            at(hk, int(plst[i]*32) + OPT.get('e2', 3), pl_piece(i))
        k = 0
        for name, sts in OPT.get("touch", dict(c=[18.5, 19.5, 20.5, 21.5, 22.5, 23.5], a=[24, 24.5], h=[25, 25.5], x=[26])).items():
            for i, st in enumerate(sts):
                assert name in "xh" or st > pw_
                at(hk, int(st*32) + OPT.get('e3', 11), touch(tl[name][0] if i == 0 else None, tl[name][1], tl[name][2], k)); k += 1
        for t in range(NSTEP):
            if t % 4 == 2:
                b = t // 4 + 2
                if b <= 7:
                    a(vm1.wait(("kv", b))); vm0.wait(("kv", b))
                if t not in OPT.get("nobar", ()): a("s_barrier")
                prio(3)()
                if t + 3 < NSTEP:
                    at(hk, (t+1)*32 + 31, prio(2)); at(hk, (t+2)*32 + 31, prio(1)); at(hk, (t+3)*32 + OPT.get("plast", 26), prio(0))
            if t == 0:
                at(hk, 31, prio(1)); at(hk, 32 + OPT.get("plast", 26), prio(0))
            if t == NSTEP - 1:
                at(hk, t*32 + 0, prio(1)); at(hk, t*32 + OPT.get("plast", 26), prio(0))
            if t % 8 == 0 and t > 0:
                for r in (AK, AK4, AV): a(f"v_add_u32 v{r}, {2*SL}, v{r}")
                base[0] += 2*SL
            step(t, NSTEP - 1, first=(t == 0), hook=hk[t])
        a("s_nop 1")
        a(pv(NSTEP - 1, 3))
        base[0] = 0
        self.stamp(8)
        FL = 7*SL - 32
        a("L_att_fin:")
        a("s_waitcnt vmcnt(0) lgkmcnt(0)"); a("s_barrier")
        for i in range(3): a(f"ds_read_b128 {vr(S[0]+4*i,4)}, v{EA + 2 + (i == 2)} offset:{1024*(i & 1)}")
        a(f"s_lshl_b32 s{T}, s{WV}, 2"); a(f"s_add_u32 s{T}, s{T}, {FL}"); a(f"v_mov_b32 v{t2}, s{T}")
        a(f"v_and_b32 v{t3}, 7, v{vL}"); a(f"v_lshlrev_b32 v{t3}, 2, v{t3}"); a(f"v_add_u32 v{t3}, {FL}, v{t3}")
        a(f"s_mov_b32 s{T}, {hx(f2u(2.0**-24))}"); a(f"s_mov_b32 s{T+1}, {hx(f2u(2.0**48))}")
        a("s_waitcnt lgkmcnt(0)")
        Oo = O[1]
        a(f"v_add_f32 v{t0}, v{Oo+8}, v{S[0]+8}"); a(f"v_add_f32 v{t1}, v{Oo+8}, v{S[0]+8}")
        for i in (0, 2): a(f"v_pk_add_f32 {vr(Oo+i,2)}, {vr(Oo+i,2)}, {vr(S[0]+i,2)}")
        a(f"v_permlane32_swap_b32 v{t1}, v{t0}")
        for i in (4, 6): a(f"v_pk_add_f32 {vr(Oo+i,2)}, {vr(Oo+i,2)}, {vr(S[0]+i,2)}")
        a(f"v_rcp_f32 v{S[0]+12}, v{t0}")
        for i in (8, 10): a(f"v_pk_add_f32 {vr(Oo+i,2)}, {vr(Oo+i,2)}, {vr(S[0]+i,2)}")
        a(f"v_mov_b32 v{S[0]+13}, v{S[0]+12}")
        for i in range(0, 12, 2): a(f"v_pk_mul_f32 {vr(Oo+i,2)}, {vr(Oo+i,2)}, {vr(S[0]+12,2)}")
        for i in range(6): a(f"v_cvt_pk_bf16_f32 v{S[0]+i}, v{Oo+2*i}, v{Oo+2*i+1}")
        self.mstore([f"buffer_store_dwordx2 {vr(S[0],2)}, v{OA}, {sr(WS,4)}, s{OS} offen",
                     f"buffer_store_dwordx2 {vr(S[0]+2,2)}, v{OA+1}, {sr(WS,4)}, s{OS} offen",
                     "s_mov_b32 exec_hi, 0",
                     f"buffer_store_dwordx2 {vr(S[0]+4,2)}, v{OA+2}, {sr(WS,4)}, s{OS} offen",
                     EXF])
        Z = S[0] + 14
        a(f"v_mov_b64 {vr(Z,2)}, 0"); a(f"v_mov_b64 {vr(Z+2,2)}, 0")
        a(f"v_cmp_nle_f32 vcc, s{T}, v{t0}"); a(f"v_cmp_nge_f32 {sr(T+2,2)}, s{T+1}, v{t0}")
        for i in range(0, 12, 2): a(f"v_pk_fma_f32 {vr(Z,2)}, {vr(Oo+i,2)}, {vr(Z+2,2)}, {vr(Z,2)}")
        a(f"s_or_b64 vcc, vcc, {sr(T+2,2)}")
        a(f"v_cmp_u_f32 {sr(T+4,2)}, v{Z}, v{Z+1}")
        a(f"s_or_b64 vcc, vcc, {sr(T+4,2)}")
        a(f"s_cselect_b32 s{T}, 1, 0"); a(f"v_mov_b32 v{t1}, s{T}")
        a(f"ds_write_b32 v{t2}, v{t1}")
        a("s_waitcnt lgkmcnt(0)"); a("s_barrier")
        a(f"ds_read_b32 v{t1}, v{t3}")
        a(f"s_add_u32 s{T+6}, s{LAY}, 1")
        a("s_waitcnt lgkmcnt(0)")
        a(f"v_cmp_lt_u32 vcc, s{PASS}, v{t1}")
        if not OPT.get("x_nofb"): a("s_cbranch_vccnz L_att_redo")
        self.flag(f"s{FO}", f"s{T+6}")
        self.stamp(9)
        main, self.a = self.a, self.tail
        a("L_att_redo:")
        for i in range(32): a(f"v_mov_b32 v{NM+i}, 0")
        a(f"v_mov_b32 v{PF}, 0xff800000"); a(f"v_mov_b32 v{PF+1}, 0xff800000")
        for q in range(2):
            for i in range(16): a(f"v_mov_b32 v{O[q]+i}, 0")
        a("L_fb_pass:")
        a(f"s_mov_b32 s{IT}, 0")
        a("L_fb_blk:")
        a("s_waitcnt vmcnt(0) lgkmcnt(0)"); a("s_barrier")
        a(f"s_lshl_b32 s{T+7}, s{IT}, 1"); a(f"s_lshr_b32 s{T}, s{WV}, 2"); a(f"s_add_u32 s{T+7}, s{T+7}, s{T}")
        a(f"s_mul_i32 s{T+7}, s{T+7}, 10240"); a(f"s_add_u32 s{T+7}, s{T+7}, s{KVS}")
        for i in range(3): kv_dma1(T+7, 6, i)
        set_addr(6*SL)
        a(f"s_mov_b32 s{T+9}, 0")
        a("s_waitcnt vmcnt(0)"); a("s_barrier")
        a("L_fb_step:")
        a(rdK4(0)); a(rdK(0)); a(EXM); a(rdV(0, 0)); a(rdV(0, 1)); a(EXF)
        a("s_waitcnt lgkmcnt(0)")
        a(m2b(0, vr(NM, 32))); a("s_nop 15"); a("s_nop 1"); a(mk(0, 0)); a(mk(0, 1)); a("s_nop 11")
        a(f"s_cmp_eq_u32 s{PASS}, 0"); a("s_cbranch_scc0 L_fb_sum")
        for q in range(2):
            for i in range(0, 16, 2): a(f"v_max3_f32 v{PF+q}, v{PF+q}, v{S[0]+16*q+i}, v{S[0]+16*q+i+1}")
        a("s_branch L_fb_next")
        a("L_fb_sum:")
        for e in range(32): a(f"v_exp_f32 v{S[0]+e}, v{S[0]+e}")
        a("s_nop 1")
        for i in range(4): a(pv(0, i))
        a("L_fb_next:")
        for r in (AK, AK4, AV): a(f"v_add_u32 v{r}, 2560, v{r}")
        a(f"s_add_u32 s{T+9}, s{T+9}, 1"); a(f"s_cmp_lt_u32 s{T+9}, 4"); a("s_cbranch_scc1 L_fb_step")
        a(f"s_add_u32 s{IT}, s{IT}, 1"); a(f"s_cmp_lt_u32 s{IT}, 8"); a("s_cbranch_scc1 L_fb_blk")
        a("s_nop 15")
        a(f"s_cmp_eq_u32 s{PASS}, 0"); a("s_cbranch_scc1 L_fb_max")
        ex_addr(); ex_write()
        a("s_branch L_att_fin")
        a("L_fb_max:")
        self.swap_add([PF, PF+1], t0, 32, "v_max_f32")
        a(f"s_lshl_b32 s{T}, s{WV}, 9"); a(f"s_add_u32 s{T}, s{T}, {5*SL}"); a(f"v_lshl_add_u32 v{t0}, v{vL}, 3, s{T}")
        a(f"s_xor_b32 s{T}, s{WV}, 4"); a(f"s_lshl_b32 s{T}, s{T}, 9"); a(f"s_add_u32 s{T}, s{T}, {5*SL}"); a(f"v_lshl_add_u32 v{t1}, v{vL}, 3, s{T}")
        a(f"ds_write_b64 v{t0}, {vr(PF,2)}")
        a("s_waitcnt lgkmcnt(0)"); a("s_barrier")
        a(f"ds_read_b64 {vr(t2,2)}, v{t1}")
        a("s_waitcnt lgkmcnt(0)")
        a(f"v_max_f32 v{PF}, v{PF}, v{t3}"); a(f"v_max_f32 v{PF+1}, v{PF+1}, v{t2}")
        for i in range(32): a(f"v_sub_f32 v{NM+i}, 0, v{PF+(i>>4)}")
        a(f"s_mov_b32 s{PASS}, 1"); a("s_branch L_fb_pass")
        self.a = main

    def chain(self):
        a = self.p
        a(f"s_cmp_ge_u32 s{WV}, 4"); a("s_cbranch_scc1 L_ch_h")
        RA = PB
        BI = PB + 4
        BR = PB + 16
        AC = PB + 48
        P  = PB + 88
        AR = PB + 104
        WXL = 2*SL - 4096
        ring = lambda b, n: [b + 4*i for i in range(n)]
        NF5, NF6 = OPT.get("nf5", 8), OPT.get("nf6", 8)
        def abase(buf, ks, sk, other):
            a(f"s_mul_i32 s{T}, s{sk}, {ks//2*1024}"); a(f"s_add_u32 s{T}, s{T}, {hx(buf)}")
            a(f"s_mul_i32 s{A0}, s{RBO}, {HB_}"); a(f"s_add_u32 s{A0}, s{A0}, s{T}")
            a(f"s_xor_b32 s{A1}, s{RBO}, {other}"); a(f"s_mul_i32 s{A1}, s{A1}, {HB_}"); a(f"s_add_u32 s{A1}, s{A1}, s{T}")
        def first(vm, RD, AR):
            for gs in range(IN):
                for ls in self.a_loads(gs, RD, AR): a.extend(ls); vm.issue(("A", gs))
        IN = OPT.get("in_c", 2)
        B_ = ["s_barrier"]
        RD = OPT.get("rd_o", 6)
        a("s_setprio 1")
        a(f"s_and_b32 s{T+2}, s{FXO}, {hx(~0x2ff)}"); a(f"s_lshl_b32 s{T}, s{WK}, 6"); a(f"s_add_u32 s{T+2}, s{T+2}, s{T}"); a(f"s_add_u32 s{T+2}, s{T+2}, 128")
        a(f"v_and_b32 v{t2}, 1, v{vG}"); a(f"v_lshlrev_b32 v{t2}, 9, v{t2}"); a(f"v_lshl_add_u32 v{t2}, v{vJ}, 2, v{t2}")
        a(f"s_lshl_b32 s{T}, s{WV}, 10"); a(f"s_add_u32 s{T}, s{T}, {5*SL}"); a(f"v_add_u32 v{t0}, s{T}, v{vL16}")
        abase(OF, 20, WK, 4)
        for i, r in enumerate(self.PLC):
            if i == OPT.get("pi", 3): a(f"buffer_load_dword v{t3}, v{t2}, {sr(WS,4)}, s{T+2} offen sc1")
            a(f"ds_write_b128 v{t0}, {vr(r,4)} offset:{4096*i}")
        self.poll(WS, t2, f"s{T+2}", f"s{T+6}", issued=OPT.get("pi", 3) < 8)
        self.stamp(10)
        vm = Cnt("vmcnt", 63)
        first(vm, RD, AR)
        a(f"s_mul_i32 s{T}, s{WK}, 10240"); a(f"v_add_u32 v{RA}, s{T}, v{vL16}"); a(f"v_add_u32 v{RA+1}, {3*SL}, v{RA}")
        a(f"s_mul_i32 s{T}, s{WV}, 5120"); a(f"v_add_u32 v{RA+2}, s{T}, v{vL16}")
        a(f"s_xor_b32 s{T}, s{WV}, 2"); a(f"s_mul_i32 s{T}, s{T}, 5120"); a(f"v_add_u32 v{RA+3}, s{T}, v{vL16}")
        a(f"v_lshlrev_b32 v{t1}, 3, v{vG}")
        self.gemm(10, 5, RD, AR, ring(BR, NF5), AC, lambda gs, nb: (RA + gs // 6, (gs // 2 % 3)*SL + (gs & 1)*5120 + nb*1024), None, vm,
                  bars={OPT.get("ob", 2): B_}, czero=(1,), cinit=RES, wgrp=OPT.get("wg5", 2), init=IN,
                  tail=[f"ds_write_b128 v{RA+2}, {vr(AC+20+4*nb,4)} offset:{1024*nb}" for nb in range(5)])
        self.stamp(11)
        for nb in range(5): a(f"buffer_load_dwordx2 {vr(BI+2*nb,2)}, v{t1}, {sr(B2,4)}, s{COL+nb} offen")
        a("s_waitcnt lgkmcnt(0)"); a("s_barrier")
        for nb in range(5): a(f"ds_read_b128 {vr(BR+4*nb,4)}, v{RA+3} offset:{1024*nb}")
        a(f"s_lshl_b32 s{T+3}, s{LAY}, 1"); a(f"s_add_u32 s{T+3}, s{T+3}, 2")
        for nb in range(5):
            a(f"s_waitcnt lgkmcnt({4-nb})")
            for i in (0, 2): a(f"v_pk_add_f32 {vr(RES+4*nb+i,2)}, {vr(AC+4*nb+i,2)}, {vr(BR+4*nb+i,2)}")
            for i in (0, 1): a(f"v_cvt_pk_bf16_f32 v{P+2*nb+i}, v{RES+4*nb+2*i}, v{RES+4*nb+2*i+1}")
        def f1_setup():
            a(f"s_and_b32 s{T+2}, s{FXO}, -256"); a(f"s_and_b32 s{T+4}, s{IDX}, 15")
            a(f"s_lshl_b32 s{FO}, s{T+4}, 2"); a(f"s_add_u32 s{FO}, s{FO}, s{T+2}"); a(f"s_add_u32 s{FO}, s{FO}, 64")
            a(f"s_xor_b32 s{T}, s{RBO}, 1")
            a(f"s_mul_i32 s{A0}, s{RBO}, {XB}"); a(f"s_mul_i32 s{A1}, s{T}, {XB}"); a(f"s_min_u32 s{T+1}, s{A0}, s{A1}"); a(f"s_add_u32 s{T+1}, s{T+1}, 20480")
            a(f"s_mul_i32 s{IT}, s{T}, {HB_}"); a(f"s_mul_i32 s{OS}, s{RBO}, {HB_}"); a(f"s_mul_i32 s{T}, s{T+4}, 3072"); a(f"s_add_u32 s{T}, s{T}, {hx(HF)}")
            a(f"s_add_u32 s{OS}, s{OS}, s{T}"); a(f"s_add_u32 s{IT}, s{IT}, s{T}")
            a(f"v_add_u32 v{RA}, {5*SL}, v{vL16}"); a(f"v_add_u32 v{RA+1}, {2*SL}, v{vL16}")
            a(f"v_and_b32 v{RA+2}, 511, v{vL16}")
            a("s_waitcnt vmcnt(4)")
            for i in range(10):
                a(f"v_lshlrev_b32 v{t2}, 16, v{BI+i}"); a(f"v_and_b32 v{t3}, 0xffff0000, v{BI+i}")
                a(f"v_pk_add_f32 {vr(RES+2*i,2)}, {vr(RES+2*i,2)}, {vr(t2,2)}")
            a(f"v_lshlrev_b32 v{t2}, 2, v{vJ}")
        self.xstore(f"s{T+3}", P, before_flag=f1_setup, packed=True)
        self.stamp(12)
        RD = OPT.get("rd_1", 6)
        ST = PB + 96; RS = PB + 104; TX = PB + 108; TM = PB + 116; AR1 = PB + 120
        assert AR1 + 8*RD <= STH
        self.poll(WS, t2, f"s{T+2}", f"s{T+3}")
        self.stamp(13)
        vm = Cnt("vmcnt", 63)
        first(vm, RD, AR1)
        self.stat_loads(ST, f"s{T+1}", vm, KH)
        a("s_barrier")
        self.stamp(14)
        c1 = 2*math.sqrt(2/math.pi)*math.log2(math.e)
        def prep():
            a("WAITV:st")
            self.stat_sum(ST, TM); self.stat_math(ST, RS, TX, True, halves=True)
            for rb in range(2):
                a(f"v_mul_f32 v{ST+4*rb}, {hx(f2u(-c1))}, v{RS+rb}"); a(f"v_mul_f32 v{TM}, v{RS+rb}, v{RS+rb}")
                a(f"v_mul_f32 v{TM}, {hx(f2u(0.044715))}, v{TM}"); a(f"v_mul_f32 v{ST+4*rb+2}, v{TM}, v{ST+4*rb}")
                a(f"v_mov_b32 v{ST+4*rb+1}, v{ST+4*rb}"); a(f"v_mov_b32 v{ST+4*rb+3}, v{ST+4*rb+2}")
            a(f"v_rcp_f32 v{RS+2}, v{RS+1}"); a(f"v_rcp_f32 v{RS}, v{RS}"); a("s_nop 0")
            a(f"v_mov_b32 v{RS+3}, v{RS+2}"); a(f"v_mov_b32 v{RS+1}, v{RS}")
            f2_setup()
        HO_ = [89, 90, 91, 92, 94, 95, 101]
        VA = BI
        def f2_setup():
            for j in range(1, 8):
                a(f"s_add_u32 s{T}, s{NT}, {j}"); a(f"s_and_b32 s{T}, s{T}, 7"); a(f"s_mul_i32 s{HO_[j-1]}, s{T}, 3072")
            a(f"s_mul_i32 s{T}, s{NT}, 3072")
            a(f"s_sub_u32 s{T+1}, s{OS}, s{T}"); a(f"v_add_u32 v{VA}, s{T+1}, v{vL16}")
            a(f"s_sub_u32 s{T+1}, s{IT}, s{T}"); a(f"v_add_u32 v{VA+1}, s{T+1}, v{vL16}")
            a(f"v_add_u32 v{RA+3}, 61440, v{vL16}")
            a(f"s_mul_i32 s{T}, s{KH}, {2*XB}"); a(f"s_sub_u32 s{T}, {XB}, s{T}"); a(f"s_add_u32 s{T+4}, s{XA}, s{T}"); a(f"s_add_u32 s{T+5}, s{XS}, s{T}")
            a(f"s_bfe_u32 s{T}, s{FXO}, 0x30008"); a(f"s_lshl_b32 s{T}, s{T}, 6"); a(f"s_and_b32 s{T+1}, s{FXO}, 63"); a(f"s_add_u32 s{T}, s{T}, s{T+1}")
            a(f"s_add_u32 s{T}, s{T}, s{FB}"); a(f"s_add_u32 s{T+6}, s{T}, 3328"); a(f"s_xor_b32 s{T+7}, s{T+6}, 4")
            a(f"s_and_b32 s{T+8}, s{FXO}, -256"); a(f"s_add_u32 s{T+8}, s{T+8}, 64")
            a(f"s_lshl_b32 s{T}, s{KH}, 5"); a(f"s_add_u32 s{T+9}, s{T+8}, s{T}")
            a(f"s_lshl_b32 s{T+10}, s{LAY}, 1"); a(f"s_add_u32 s{T+10}, s{T+10}, 1"); a(f"s_add_u32 s{T+11}, s{T+10}, 1")
            a(f"v_lshlrev_b32 v{VA+2}, 2, v{vJ}"); a(f"v_and_b32 v{VA+3}, 28, v{VA+2}")
            a(f"v_mov_b32 v{VA+4}, s{T+10}"); a(f"v_mov_b32 v{VA+5}, s{T+11}"); a(f"v_mov_b32 v{VA+6}, 0")
        pl = self.capture(prep)
        xs = OPT.get("xs", 20)
        self.gemm(21, 6, RD, AR1, ring(BR, NF6), AC, lambda gs, nb: (RA + gs // 10, (gs % 10)*6144 + nb*1024 if gs < 20 else WXL + nb*512), None, vm,
                  extra={IN + 1 + i: pl[i*xs:(i+1)*xs] for i in range((len(pl) + xs - 1)//xs)},
                  wgrp=OPT.get("wg6", 2), init=IN, areg={20: TX})
        a("s_barrier")
        self.stamp(15)
        TM = AR1
        RD = 8
        def hflag(v):
            a("s_mov_b64 exec, 1")
            self.mstore([f"buffer_store_dword v{v}, v{VA+6}, {sr(WS,4)}, s{FO} offen"])
            a("s_mov_b64 exec, -1")
        TM = BR
        groups = [[(kp, 0), (kp, 1)] for kp in range(3)] if OPT.get("gw", 2) == 2 else [[(kp, rb)] for kp in range(3) for rb in range(2)]
        for gi, grp in enumerate(groups):
            E = [(AC + 4*(6*rb + 2*kp) + 2*i, TM + 8*rb + 2*i, rb, AR + 24 + 4*(2*kp + rb) + i) for kp, rb in grp for i in range(4)]
            for r, t, rb, p in E: a(f"v_pk_mul_f32 {vr(t,2)}, {vr(r,2)}, {vr(r,2)}")
            for r, t, rb, p in E: a(f"v_pk_fma_f32 {vr(t,2)}, {vr(t,2)}, {vr(ST+4*rb+2,2)}, {vr(ST+4*rb,2)}")
            for r, t, rb, p in E: a(f"v_pk_mul_f32 {vr(t,2)}, {vr(t,2)}, {vr(r,2)}")
            for r, t, rb, p in E: a(f"v_exp_f32 v{t}, v{t}"); a(f"v_exp_f32 v{t+1}, v{t+1}")
            for r, t, rb, p in E: a(f"v_pk_fma_f32 {vr(t,2)}, {vr(t,2)}, {vr(RS+2*rb,2)}, {vr(RS+2*rb,2)}")
            for n, (r, t, rb, p) in enumerate(E):
                if gi == len(groups) - 1 and OPT.get("fa", 1) and n == OPT.get("fap", 4) % len(E):
                    a(f"s_waitcnt vmcnt({2 - len(grp)})"); hflag(VA+4)
                a(f"v_rcp_f32 v{t}, v{t}"); a(f"v_rcp_f32 v{t+1}, v{t+1}")
            for r, t, rb, p in E: a(f"v_pk_mul_f32 {vr(r,2)}, {vr(r,2)}, {vr(t,2)}")
            for r, t, rb, p in E: a(f"v_cvt_pk_bf16_f32 v{p}, v{r}, v{r+1}")
            self.mstore([f"buffer_store_dwordx4 {vr(AR + 24 + 4*(2*kp + rb),4)}, v{vL16}, {sr(WS,4)}, s{OS if rb == 0 else IT} offen offset:{1024*kp}" for kp, rb in grp])
        if not OPT.get("fa", 1):
            a("s_waitcnt vmcnt(2)"); hflag(VA+4)
        self.stamp(16)
        vm = Cnt("vmcnt", 63)
        def hload(gs):
            j, kp = (1 + (gs - 3)//2, (gs - 3) & 1) if gs < 17 else (gs - 16, 2)
            return [[f"buffer_load_dwordx4 {vr(AR + 8*((gs + 3) % RD) + 4*rb, 4)}, v{VA+rb}, {sr(WS,4)}, s{HO_[j-1]} offen offset:{1024*kp} sc1"] for rb in range(2)]
        def ask_a(burst): a(f"buffer_load_dword v{t3}, v{VA+3}, {sr(WS,4)}, s{T+9} offen sc1")
        def got_a(burst):
            a("s_waitcnt vmcnt(0)"); hflag(VA+5)
            lp, ld = self.lab("ha"), self.lab("had")
            a(f"v_cmp_gt_u32 vcc, s{T+10}, v{t3}"); a(f"s_cbranch_vccnz {lp}"); a(f"{ld}:")
            main, self.a = self.a, self.tail
            a(f"{lp}:"); self.poll(WS, VA+3, f"s{T+9}", f"s{T+10}"); a(f"s_branch {ld}")
            self.a = main
            self.stamp(17); self.stamp(18)
            burst(OPT.get("hb", 4))
        def ask_b(burst):
            a(f"buffer_load_dword v{t3}, v{VA+2}, {sr(WS,4)}, s{T+8} offen sc1"); vm.issue("hb")
        def got_b(burst):
            lp, ld = self.lab("hb"), self.lab("hbd")
            a(vm.wait("hb"))
            a(f"v_cmp_gt_u32 vcc, s{T+11}, v{t3}"); a(f"s_cbranch_vccnz {lp}"); a(f"{ld}:")
            main, self.a = self.a, self.tail
            a(f"{lp}:"); self.poll(WS, VA+2, f"s{T+8}", f"s{T+11}"); a(f"s_branch {ld}")
            self.a = main
        ha = OPT.get("ha", 1)
        g1_, g2_ = OPT.get("gb", (5, 14))
        self.gemm(24, 5, RD, AR, ring(BR, NF5), AC, lambda gs, nb: (vL16 if gs < 12 else RA+3, (gs % 12)*5120 + nb*1024), None, vm,
                  bars={g1_: B_, g2_: B_}, czero=(1,), cinit=RES, wgrp=OPT.get("wg5", 2), init=0, aload=hload, aoff=3, areg={0: None, 1: None, 2: None},
                  hooks={ha - 1: ask_a, ha: got_a, 6: ask_b, 11: got_b}, gate={3: ha, 17: 11}, lper=OPT.get("lp2", 2),
                  tail=[f"v_cvt_pk_bf16_f32 v{P+i}, v{AC+20+2*i}, v{AC+21+2*i}" for i in range(10)])
        a(f"s_add_u32 s{T+3}, s{LAY}, 1")
        self.stamp(19)
        self.mstore([f"buffer_store_dwordx4 {vr(P,4)}, v{vL16}, {sr(WS,4)}, s{T+4} offen",
                     f"buffer_store_dwordx4 {vr(P+4,4)}, v{vL16}, {sr(WS,4)}, s{T+4} offen offset:1024",
                     f"buffer_store_dwordx2 {vr(P+8,2)}, v{vL16}, {sr(WS,4)}, s{T+5} offen"])
        a("s_barrier")
        def half_unstash(which):
            def f():
                l = self.lab("us")
                a(f"s_cmp_lg_u32 s{LAY}, 0"); a(f"s_cbranch_scc1 {l}")
                self.unstash(which)
                a(f"{l}:")
            return f
        us = OPT.get("us", 4)
        self.flag(f"s{T+6}", f"s{T+3}", shadow=half_unstash(range(us)) if us else None)
        a(f"v_mov_b32 v{t2}, 0")
        self.poll(WS, t2, f"s{T+7}", f"s{T+3}")
        Q = BR
        a(f"buffer_load_dwordx4 {vr(Q,4)}, v{vL16}, {sr(WS,4)}, s{XA} offen sc1")
        a(f"buffer_load_dwordx4 {vr(Q+4,4)}, v{vL16}, {sr(WS,4)}, s{XA} offen offset:1024 sc1")
        a(f"buffer_load_dwordx2 {vr(Q+8,2)}, v{vL16}, {sr(WS,4)}, s{XS} offen sc1")
        lo = self.lab("oa")
        a(f"s_cmp_eq_u32 s{LAY}, 0"); a(f"s_cbranch_scc1 {lo}")
        self.dma_addr(RA, 3, "w80")
        a(f"s_mul_i32 s{T}, s{WV}, 3072"); a(f"v_mul_u32_u24 v{RA+3}, 160, v{vJ}"); a(f"v_lshl_add_u32 v{RA+3}, v{vG}, 3, v{RA+3}")
        a(f"v_add_u32 v{RA+3}, s{T}, v{RA+3}"); a(f"v_add_u32 v{BI}, s{T}, v{vL16}")
        a(f"s_mul_i32 s{T}, s{RBO}, 20480"); a(f"s_mul_i32 s{T+1}, s{NT}, 160"); a(f"s_add_u32 s{T}, s{T}, s{T+1}")
        a(f"{lo}:")
        for i in range(10):
            if i % 4 == 0: a(f"s_waitcnt vmcnt({2 - i//4})")
            u = t0 + 2*(i & 1)
            a(f"v_lshlrev_b32 v{u}, 16, v{Q+i}"); a(f"v_and_b32 v{u+1}, 0xffff0000, v{Q+i}")
            a(f"v_pk_add_f32 {vr(RES+2*i,2)}, {vr(AC+2*i,2)}, {vr(u,2)}")
            a(f"v_cvt_pk_bf16_f32 v{P+i}, v{RES+2*i}, v{RES+2*i+1}")
        a(f"s_cmp_lg_u32 s{LAY}, 0"); a("s_cbranch_scc1 L_out")
        def next_layer():
            self.unstash(range(us, 10))
            if OPT["stamp"]: return
            a(f"s_mov_b32 s{LAY}, 1"); self.qsetup()
        self.xstore("3", P, before_flag=next_layer, packed=True)
        if OPT["stamp"]:
            self.stamp(20); self.stamp_dump()
            a(f"s_mov_b32 s{LAY}, 1"); self.stamp(1); self.qsetup()
        a("s_branch L_q1_a")
        a("L_out:")
        for nb in range(5): a(f"ds_write_b64 v{RA+3}, {vr(P+2*nb,2)} offset:{32*nb}")
        a("s_waitcnt lgkmcnt(0)")
        for i in range(3): a(f"ds_read_b128 {vr(Q+4*i,4)}, v{BI} offset:{1024*i}")
        for i in range(3):
            a(f"s_waitcnt lgkmcnt({2-i})")
            if i == 2: a("s_mov_b32 exec_hi, 0")
            a(f"buffer_store_dwordx4 {vr(Q+4*i,4)}, v{RA+i}, {sr(OUT,4)}, s{T} offen {OPT.get('outmod', 'nt')}")
        a("s_mov_b64 exec, -1")
        if OPT["stamp"]: a("s_waitcnt vmcnt(0)")
        self.stamp(20); self.stamp_dump()
        a("s_endpgm")

        a("L_ch_h:")
        HB = PB + 8
        HX = PB + 48
        ONE = PB + 60
        HO = T + 8
        vm = Cnt("vmcnt", 63)
        h0, h1, hg = OPT.get("ht", (6, 0, 3))
        HT = {"w1": h0, 0: h1, 2: hg, 3: hg}
        def lin(src, lds, tag):
            if tag in OPT.get("x_skip", ()):
                vm.issue(tag); return
            if OPT.get("x_fake"): src %= SL
            a(f"s_add_u32 m0, s{HO}, {lds}"); a(f"s_add_u32 s{T}, s{DS}, {src}")
            a(f"buffer_load_dwordx4 v{vL16}, {sr(WS,4)}, s{T} offen sc1 lds"); vm.issue(tag)
            if HT[tag] is not None: a(f"s_waitcnt vmcnt({HT[tag]})")
        def tilebase(buf):
            a(f"s_and_b32 s{DS}, s{IDX}, 15"); a(f"s_mul_i32 s{DS}, s{DS}, {120*1024}"); a(f"s_add_u32 s{DS}, s{DS}, s{HO}"); a(f"s_add_u32 s{DS}, s{DS}, {hx(buf)}")
        a(f"s_lshl_b32 s{HO}, s{HW}, 10")
        tilebase(PK1)
        a(f"s_and_b32 s{T}, s{IDX}, 15"); a(f"s_mul_i32 s{T}, s{T}, 192"); a(f"s_lshl_b32 s{T+1}, s{WM}, 5"); a(f"s_add_u32 s{T}, s{T}, s{T+1}")
        a(f"v_lshlrev_b32 v{t1}, 1, v{vJ}")
        for m in range(3):
            a(f"buffer_load_ushort v{PB+m}, v{t1}, {sr(B1,4)}, s{T} offen offset:{64*(2*m % 3)}"); vm.issue("w1")
        for n in (8, 10): lin(n*4096, 5*SL + n*4096, "w1")
        def l0(fn):
            l = self.lab("hl0")
            a(f"s_cmp_lg_u32 s{LAY}, 0"); a(f"s_cbranch_scc1 {l}"); fn(); a(f"{l}:")
        csum = lambda r, n, first=False: a(f"v_mfma_f32_16x16x32_bf16 {vr(HX+4*(n%3),4)}, {vr(ONE,4)}, {vr(r,4)}, {'0' if first else vr(HX+4*(n%3),4)}")
        def cs_regs():
            for i in range(4): a(f"v_mov_b32 v{ONE+i}, 0x3f803f80")
            a("s_nop 1")
            for i, r in enumerate(self.PLH): csum(r, i, i < 3)
        l0(cs_regs)
        a("s_barrier")
        lin(9*4096, 5*SL + 9*4096, "w1")
        a(f"s_add_u32 s{T}, s{HO}, {2*SL}"); a(f"v_add_u32 v{t0}, s{T}, v{vL16}"); a(f"v_add_u32 v{t2}, {3*SL}, v{t0}")
        a(vm.wait("w1")); a("s_barrier")
        for n in (12, 13, 14): lin(61440 + n*4096, 2*SL + n*4096, "w1")
        for i, r in enumerate(self.PLH): a(f"ds_write_b128 v{t0}, {vr(r,4)} offset:{4096*i}")
        tilebase(PK2)
        a(vm.wait("w1")); a("s_waitcnt lgkmcnt(0)")
        def cs_lds():
            jobs = [(t2, n) for n in range(15)] + [(t0, n) for n in (12, 13, 14)]
            for b in (0, 9):
                for u, (v, n) in enumerate(jobs[b:b+9]): a(f"ds_read_b128 {vr(HB+4*u,4)}, v{v} offset:{4096*n}")
                for u, (v, n) in enumerate(jobs[b:b+9]):
                    a(f"s_waitcnt lgkmcnt({8-u})"); csum(HB+4*u, n)
            a("s_nop 7")
            for m in range(3): a(f"v_mov_b32 v{CS1+m}, v{HX+4*m}")
        l0(cs_lds)
        a(f"s_cmp_eq_u32 s{WK}, 0"); a("s_cselect_b64 vcc, -1, 0")
        a(f"s_lshl_b32 s{T}, s{WM}, 9"); a(f"s_lshl_b32 s{T+1}, s{WK}, 8"); a(f"s_add_u32 s{T}, s{T}, s{T+1}"); a(f"s_add_u32 s{T}, s{T}, {WXL}")
        for m in range(3):
            c = CS1 + m; x = HX + 4*m
            a(f"s_mul_i32 s{T+1}, s{WK}, {1024*((2*m + 1) % 3 - (2*m) % 3)}"); a(f"s_add_u32 s{T+1}, s{T+1}, s{T}"); a(f"v_lshl_add_u32 v{HB+m}, v{vJ}, 4, s{T+1}")
            a(f"v_cndmask_b32 v{x+2}, 0, v{PB+m}, vcc")
            a(f"v_cvt_pk_bf16_f32 v{x}, v{c}, v{c}"); a(f"v_and_b32 v{t1}, 0xffff0000, v{x}"); a(f"v_sub_f32 v{t1}, v{c}, v{t1}")
            a(f"v_and_b32 v{x+1}, 0xffff, v{x}"); a(f"v_cvt_pk_bf16_f32 v{x}, v{c}, v{t1}")
            a(f"v_lshl_or_b32 v{x+1}, v{x+2}, 16, v{x+1}"); a(f"v_mov_b32 v{x+3}, 0")
        a("s_mov_b64 exec, 0xffff")
        for m in range(3): a(f"ds_write_b128 v{HB+m}, {vr(HX+4*m,4)} offset:{1024*(2*m % 3)}")
        a("s_mov_b64 exec, -1")
        nf1 = OPT.get("nf1", 9)
        pre = [5, 6, 7, 8][:OPT.get("nf0", 0)]
        for n in pre: lin(n*4096, n*4096, 2)
        a("s_waitcnt lgkmcnt(0)"); a("s_barrier")
        for n in range(nf1):
            if n not in pre: lin(n*4096, n*4096, 0)
        assert nf1*4096 >= (g1_*5 + NF5)*1024
        a(vm.wait(0)); a("s_barrier")
        n1 = ((g2_*5 + NF5)*1024 + 4095) // 4096
        ng = max(n1, OPT.get("ng", 30))
        for n in range(nf1, ng): lin(n*4096, n*4096, 2 if n < n1 else 3)
        a(vm.wait(2)); a("s_barrier")
        for n in range(ng, 30): lin(n*4096, n*4096, 3)
        a(vm.wait(3)); a("s_barrier")
        a("s_barrier")
        a(f"s_cmp_lg_u32 s{LAY}, 0"); a("s_cbranch_scc1 L_h_last")
        self.unstash()
        self.stamp_dump()
        a(f"s_mov_b32 s{LAY}, 1"); a("s_branch L_qkv1")
        a("L_h_last:")
        self.stamp_dump()
        a("L_end:")
        a("s_endpgm")

def build(**opt):
    OPT.update(opt)
    g = Gen()
    g.entry(); g.qkv(); g.attention(); g.chain()
    a = g.a
    a.lines += g.tail.lines
    for (l0, l1), pats in OPT.get("x_drop", {}).items():
        i0 = a.lines.index(l0 + ":"); i1 = a.lines.index(l1 + ":")
        a.lines[i0:i1] = [("s_nop 0" if OPT.get("x_nop") else "") if any(l.startswith(p) for p in pats) else l for l in a.lines[i0:i1]]
        a.lines = [l for l in a.lines if l]
    a("L_last:"); a("s_endpgm")
    probs = check_hazards(a.lines)
    if probs and not OPT.get("x_drop"):
        print("\n".join(probs), file=sys.stderr); raise SystemExit("hazards")
    hdr = open("cdna_kernels/" + NAME + ".s.ref").read().split("; Override launch")[0]
    s = hdr + "; @launch grid=(256,1,1) block=(512,1,1) lds=163840\n" + '.amdgcn_target "amdgcn-amd-amdhsa--gfx950"\n.text\n'
    s += f".globl {NAME}_kernel\n.type {NAME}_kernel,@function\n" + a.text()
    s += f""".section .rodata,"a"
.p2align 6
.amdhsa_kernel {NAME}_kernel
  .amdhsa_next_free_vgpr 256
  .amdhsa_next_free_sgpr 102
  .amdhsa_accum_offset 256
  .amdhsa_group_segment_fixed_size 0
  .amdhsa_kernarg_size 88
  .amdhsa_user_sgpr_count 2
  .amdhsa_user_sgpr_kernarg_segment_ptr 1
  .amdhsa_system_sgpr_workgroup_id_x 1
.end_amdhsa_kernel
"""
    return s

if __name__ == "__main__":
    out = sys.argv[1]
    opt = {}
    for x in sys.argv[2:]:
        k, v = x.split("=", 1); opt[k] = eval(v)
    open(out, "w").write(build(**opt))
```

```python
import sys, math, struct, copy
from asmlib import *

NAME = "interleave_layers__softmax_full_mha__dense_activation_gelu__prompt"
OPT = dict(stamp=False, forceslow=False)

XF   = 0x0
HF   = 0x300000
XB   = 21504
HB_  = 50176
OF   = HF
KVF  = lambda l: 0xB00000 + l * 0x500000
FLG  = 0x1520000
PK1  = 0x1600000
PK2  = 0x1800000
PKO  = 0x1A00000
STAMPS = 0x4000000
WS_BYTES = 0x10000000
KA = dict(x=0, wqkv=8, wo=16, w1=32, b1=40, w2=48, b2=56, out=64, dbg=72, ws=80)
SZ = dict(x=2048*640*2, wqkv=640*1920*2, wo=640*640*2, w1=640*1536*2, b1=1536*2, w2=1536*640*2, b2=640*2, out=2048*640*2, ws=WS_BYTES, dbg=256)
SL = 20480

def f2u(x): return struct.unpack("<I", struct.pack("<f", x))[0]
def hx(x): return f"0x{x & 0xffffffff:x}"

class Cnt:
    def __init__(self, name, mx): self.q = []; self.name = name; self.mx = mx; self.done = 0
    def issue(self, tag):
        self.q.append(tag)
        assert self.name == "lgkmcnt" or len(self.q) - self.done <= self.mx, (self.name, "too many outstanding")
    def wait(self, *tags):
        last = max((i for i, t in enumerate(self.q) if t in tags), default=-1)
        assert last >= 0, tags
        if last < self.done: return ""
        n = min(len(self.q) - 1 - last, self.mx)
        self.done = len(self.q) - n
        return f"s_waitcnt {self.name}({n})"

LAY = 3
WS, WQ, WO, W1, W2, B1, B2, XIN, OUT, DBG = 4, 8, 12, 16, 20, 24, 28, 32, 36, 40
G, IDX, WV, FAST, BUD, NT, ODD, WM, WK, HW = range(44, 54)
COL = 54
XA, XS, STO, FXO, RBO = 59, 60, 61, 62, 63
VMK = 64
T = 66
FB = 80
A0, A1, DS, IT, KVS, PASS, OS, FO = 81, 82, 83, 84, 85, 86, 87, 88
KH = 93
ROT = 100
PSRC, PDST = (89, 90, 91), (92, 94, 95)
vL, vL16, vJ, vG, t0, t1, t2, t3 = 0, 1, 2, 3, 4, 5, 6, 7
RES = 8
CSQ = 28
CS1 = 32
PB = 40
STH = 212

class Proxy:
    def __init__(self, g): self.g = g
    def __call__(self, s): self.g.a(s)
    def extend(self, ls): self.g.a.extend(ls)

class Gen:
    def __init__(self):
        self.a = Asm(); self.tail = Asm(); self.nlab = 0; self.p = Proxy(self)
    def lab(self, s):
        self.nlab += 1; return f"L{self.nlab}_{s}"
    def stamp(self, i):
        if not OPT["stamp"]: return
        a = self.a
        a("s_memrealtime s[96:97]"); a("s_memtime s[98:99]"); a("s_waitcnt lgkmcnt(0)")
        a(f"v_writelane_b32 v254, s96, {i}"); a(f"v_writelane_b32 v255, s98, {i}")
    def stamp_dump(self):
        if not OPT["stamp"]: return
        a = self.a
        a(f"s_lshl_b32 s96, s2, 3"); a(f"s_add_u32 s96, s96, s{WV}"); a("s_lshl_b32 s96, s96, 1"); a(f"s_add_u32 s96, s96, s{LAY}")
        a("s_lshl_b32 s96, s96, 9"); a(f"s_add_u32 s96, s96, {hx(STAMPS)}")
        a(f"v_lshlrev_b32 v253, 3, v{vL}")
        a(f"buffer_store_dwordx2 v[254:255], v253, {sr(WS,4)}, s96 offen")
    def mstore(self, lines, force=None):
        a = self.a
        sc = lambda l: l + " sc1" if l.startswith("buffer_store") else l
        if force == "sc1":
            for l in lines: a(sc(l))
            return
        ls, lb = self.lab("slow"), self.lab("back")
        a(f"s_cmp_eq_u32 s{FAST}, 0"); a(f"s_cbranch_scc1 {ls}")
        for l in lines: a(l + " " + OPT.get("fastmod", "nt") if l.startswith(("buffer_store_dwordx4", "buffer_store_dwordx2")) else l)
        a(f"{lb}:")
        self.tail(f"{ls}:")
        for l in lines: self.tail(sc(l))
        self.tail(f"s_branch {lb}")
    def flag(self, soff, sval, force=None, shadow=None):
        a = self.a
        if shadow: shadow()
        a(f"v_mov_b32 v{t0}, {sval}"); a(f"v_mov_b32 v{t1}, 0")
        a("s_waitcnt vmcnt(0)")
        a("s_mov_b64 exec, 1")
        self.mstore([f"buffer_store_dword v{t0}, v{t1}, {sr(WS,4)}, {soff} offen"], force)
        a("s_mov_b64 exec, -1")
    def poll(self, srd, vaddr, soff, starget, issued=False):
        a = self.a
        lp, ld = self.lab("poll"), self.lab("seen")
        ask = lambda r: f"buffer_load_dword v{r}, v{vaddr}, {sr(srd,4)}, {soff} offen sc1"
        if not issued: a(ask(t3))
        a("s_waitcnt vmcnt(0)")
        a(f"v_cmp_gt_u32 vcc, {starget}, v{t3}")
        if a is self.tail:
            a(f"s_cbranch_vccz {ld}")
        else:
            a(f"s_cbranch_vccnz {lp}"); a(f"{ld}:")
        b = self.tail
        b(f"{lp}:")
        if True:
            b(ask(t3)); b("s_waitcnt vmcnt(0)"); b(f"v_cmp_gt_u32 vcc, {starget}, v{t3}"); b(f"s_cbranch_vccz {ld}")
            b(f"s_sub_u32 s{BUD}, s{BUD}, 1"); b(f"s_cbranch_scc0 {lp}")
            b(f"s_mov_b32 s{BUD}, 0")
            if a is not self.tail: b(f"s_branch {ld}")
        if a is self.tail: a(f"{ld}:")
    def swap_add(self, vs, tmp, which, op="v_add_f32"):
        a = self.a
        for i, v in enumerate(vs): a(f"v_mov_b32 v{tmp+i}, v{v}")
        a("s_nop 1")
        for i, v in enumerate(vs): a(f"v_permlane{which}_swap_b32 v{v}, v{tmp+i}")
        if len(vs) < 2: a("s_nop 0")
        for i, v in enumerate(vs): a(f"{op} v{v}, v{v}, v{tmp+i}")

    def dma_addr(self, dst, n, kind):
        a = self.a
        upr, mul, sh = (12, 171, 11) if kind == "w1" else (10, 205, 11)
        ld = dict(wq=3840, w1=3072, w80=1280)[kind]
        for i in range(n):
            a(f"v_add_u32 v{t0}, {64*i}, v{vL}")
            a(f"v_mul_u32_u24 v{t1}, {mul}, v{t0}"); a(f"v_lshrrev_b32 v{t1}, {sh}, v{t1}")
            a(f"v_mul_u32_u24 v{t2}, {upr}, v{t1}"); a(f"v_sub_u32 v{t0}, v{t0}, v{t2}")
            a(f"v_mul_u32_u24 v{t1}, {ld}, v{t1}")
            if kind == "wq":
                a(f"v_min_u32 v{t0}, 8, v{t0}")
                a(f"v_mul_u32_u24 v{t2}, 11, v{t0}"); a(f"v_lshrrev_b32 v{t2}, 5, v{t2}"); a(f"v_min_u32 v{t2}, 2, v{t2}")
                a(f"v_mul_u32_u24 v{t2}, 1232, v{t2}"); a(f"v_add_u32 v{t1}, v{t1}, v{t2}")
            elif kind == "w80":
                a(f"v_lshl_add_u32 v{t0}, s{ODD}, 1, v{t0}")
                a(f"v_subrev_u32 v{t2}, 10, v{t0}"); a(f"v_min_u32 v{t0}, v{t0}, v{t2}")
            a(f"v_lshl_add_u32 v{dst+i}, v{t0}, 4, v{t1}")
    def dma(self, vaddr, srd, soff, m0base, m0imm, mods=""):
        return [f"s_add_u32 m0, {m0base}, {m0imm}", "s_nop 0", f"buffer_load_dwordx4 v{vaddr}, {sr(srd,4)}, {soff} offen {mods} lds".replace("  ", " ")]

    def stat_loads(self, ST, soff, vm, swap=None):
        a = self.p
        g = vG
        if swap is not None:
            a(f"s_lshl_b32 s{T}, s{swap}, 1"); a(f"v_xor_b32 v{t0}, s{T}, v{vG}"); g = t0
        a(f"v_lshrrev_b32 v{t1}, 1, v{g}"); a(f"v_mul_u32_u24 v{t1}, {XB-1024}, v{t1}"); a(f"v_lshl_add_u32 v{t1}, v{g}, 9, v{t1}"); a(f"v_lshl_add_u32 v{t1}, v{vJ}, 4, v{t1}")
        for u in range(2):
            a(f"buffer_load_dwordx4 {vr(ST+4*u,4)}, v{t1}, {sr(WS,4)}, {soff} offen offset:{256*u} sc1"); vm.issue("st")
    def stat_sum(self, ST, tmp):
        a = self.p
        for u in (2, 4, 6):
            for i in range(2): a(f"v_add_f32 v{ST+i}, v{ST+i}, v{ST+u+i}")
        self.swap_add([ST, ST+1], tmp, 16)
    def stat_math(self, ST, RS, TX, bias, halves=False):
        a = self.p
        s, v, r, u = ST, ST+1, ST+2, ST+3
        x = ST + 4
        a(f"v_mul_f32 v{s}, {hx(f2u(-1.0/640))}, v{s}"); a(f"v_mul_f32 v{v}, {hx(f2u(1.0/640))}, v{v}")
        if halves: a(f"v_cmp_gt_u32 vcc, 2, v{vG}"); a(f"v_cmp_le_u32 {sr(T+2,2)}, 2, v{vG}")
        else: a(f"v_cmp_eq_u32 vcc, 0, v{vG}"); a(f"v_cmp_eq_u32 {sr(T+2,2)}, 2, v{vG}")
        a(f"v_fma_f32 v{v}, -v{s}, v{s}, v{v}")
        a(f"v_max_f32 v{v}, 0, v{v}"); a(f"v_add_f32 v{v}, {hx(f2u(1e-5))}, v{v}")
        a(f"v_rsq_f32 v{r}, v{v}")
        a(f"v_cvt_pk_bf16_f32 v{x}, v{s}, v{s}"); a(f"v_and_b32 v{u}, 0xffff0000, v{x}"); a(f"v_sub_f32 v{u}, v{s}, v{u}")
        a(f"v_mov_b32 v{RS}, v{r}"); a(f"v_mov_b32 v{RS+1}, v{r}")
        if bias:
            a(f"v_mul_f32 v{v}, v{v}, v{r}")
            a(f"v_cvt_pk_bf16_f32 v{x+1}, v{u}, v{v}"); a(f"v_and_b32 v{u}, 0xffff0000, v{x+1}"); a(f"v_sub_f32 v{u}, v{v}, v{u}")
            a(f"v_cvt_pk_bf16_f32 v{x+2}, v{u}, 0")
        else:
            a(f"v_cvt_pk_bf16_f32 v{x+1}, v{u}, v{u}"); a("s_nop 0")
        a(f"v_permlane32_swap_b32 v{RS}, v{RS+1}")
        for rb in range(2):
            m = "vcc" if rb == 0 else sr(T+2, 2)
            for i in range(3 if bias else 2): a(f"v_cndmask_b32 v{TX+4*rb+i}, 0, v{x+i}, {m}")
            a(f"v_mov_b32 v{TX+4*rb+3}, 0" if bias else f"v_mov_b64 {vr(TX+4*rb+2,2)}, 0")

    def a_loads(self, gs, RD, AR, rot=False):
        out = []
        for rb in range(2):
            sa = A0 + rb
            ls = [f"buffer_load_dwordx4 {vr(AR + 8*(gs % RD) + 4*rb, 4)}, v{vL16}, {sr(WS,4)}, s{sa} offen offset:{1024*(gs % 4)} sc1"]
            if gs % 4 == 3 and not rot: ls.append(f"s_add_u32 s{sa}, s{sa}, 4096")
            if gs % 4 == 3 and rot:
                if rb == 0: ls += [f"s_mov_b32 s{ROT+1}, 4096", f"s_cmp_eq_u32 s{ROT}, {4 - gs//4}", f"s_cmov_b32 s{ROT+1}, {4096 - 20480}"]
                ls.append(f"s_add_u32 s{sa}, s{sa}, s{ROT+1}")
            out.append(ls)
        return out
    def capture(self, fn):
        main, self.a = self.a, Asm()
        fn()
        out, self.a = self.a.lines, main
        return out
    def gemm(self, NS, NB, RD, AR, BR, AC, rdaddr, second, vm, bars={}, std=(), czero=(0, 1), extra={}, wgrp=1, xper=1, init=None, lper=None, cinit=None, areg={}, tail=None, rot=False, aload=None, aoff=0, hooks={}, gate={}):
        a = self.a
        lg = Cnt("lgkmcnt", 15)
        NF = len(BR)
        breg = lambda gs, nb: BR[(gs*NB + nb) % NF]
        def reads(n):
            if n >= NS*NB: return []
            gs, nb = divmod(n, NB)
            v, off = rdaddr(gs, nb)
            return [(f"ds_read_b128 {vr(breg(gs, nb),4)}, v{v} offset:{off}", (gs, nb))]
        merge = lambda x, y: x + y[9:] if x and y else x or y
        cost = lambda l: 2 if l.startswith(TRANS) else int(l.split()[1]) + 1 if l.startswith("s_nop") else 1
        def emit_x(l):
            if l == "WAITX": a(lg.wait("x")); return
            if l.startswith("WAITV:"): a(vm.wait(l[6:])); return
            a(l)
            if l.startswith("ds_"): lg.issue("x")
        for n in range(NF):
            for l, tg in reads(n): a(l); lg.issue(tg)
        pr, ex = [], []
        aload = aload or (lambda g: self.a_loads(g, RD, AR, rot))
        allA = [(ls, ("A", g)) for g in range(NS) if g not in areg for ls in aload(g)][2*init:]
        def burst(n):
            for _ in range(n):
                ls, tg = allA.pop(0); a.extend(ls); vm.issue(tg)
        lper = lper or OPT.get('lper', 3)
        lpos = [(i * NB) // lper for i in range(lper)]
        for gs in range(NS):
            if gs in bars:
                while pr:
                    l, tg = pr.pop(0); a(l); lg.issue(tg)
                for l in bars[gs]: a(l)
            if gs in hooks: hooks[gs](burst)
            wv = ""
            if gs not in areg: wv = vm.wait(("A", gs))
            elif areg[gs] is not None:
                for l in ex: emit_x(l)
                ex = []
            if tail is not None and gs == NS - 1:
                a(merge(wv, lg.wait(*[(gs, n) for n in range(NB)])))
                tl = list(tail)
                for rb in (1, 0):
                    for nb in range(NB):
                        d = vr(AC + 4*(NB*rb + nb), 4)
                        a(f"v_mfma_f32_16x16x32_bf16 {d}, {vr(breg(gs, nb), 4)}, {vr(AR + 8*((gs + aoff) % RD) + 4*rb, 4)}, {d}")
                        if rb == 0 and nb >= 3 and tl: a(tl.pop(0))
                for l in tl: a(l)
                break
            ex += list(extra.get(gs, []))
            for nb in range(NB):
                if nb % wgrp == 0:
                    tags = [(gs, n) for n in range(nb, min(nb + wgrp, NB))]
                    while any(tg in tags for _, tg in pr):
                        l, tg = pr.pop(0); a(l); lg.issue(tg)
                    a(merge(wv, lg.wait(*tags))); wv = ""
                for rb in range(2):
                    d = vr(AC + 4*(NB*rb + nb), 4)
                    c = "0" if (gs == 0 and rb in czero) else vr(cinit + 4*nb, 4) if (gs == 0 and cinit is not None) else d
                    w, x = vr(breg(gs, nb), 4), vr((areg.get(gs) or AR + 8*((gs + aoff) % RD)) + 4*rb, 4)
                    p, q = (x, w) if nb in std else (w, x)
                    a(f"v_mfma_f32_16x16x32_bf16 {d}, {p}, {q}, {c}")
                    room = 2
                    if rb == 1:
                        pr += reads(gs*NB + nb + NF)
                        if (nb + 1) % wgrp == 0 or nb == NB - 1: room -= 1
                    if pr:
                        l, tg = pr.pop(0); a(l); lg.issue(tg); room -= 1
                    if rb == 0 and nb in lpos and allA and allA[0][1][1] <= gs + RD - 1 and all(gs >= g0 for g1, g0 in gate.items() if allA[0][1][1] >= g1):
                        ls, tg = allA.pop(0); a.extend(ls); vm.issue(tg); room = 0
                    while ex and cost(ex[0]) <= room:
                        room -= cost(ex[0]); emit_x(ex.pop(0))
        for l in ex: emit_x(l)
        return lg

    def gemm2(self, plan, NB, AR, NA, BR, AC, rdaddr, aload, vm, cfirst, have=0, init=0, ahead=None, bars={}, hooks={}, gate={}, extra={}, wgrp=2):
        a = self.a
        lg = Cnt("lgkmcnt", 15)
        NF, NS = len(BR), len(plan)
        frs = [(i, ks, rb) for i, (ks, rbs) in enumerate(plan) for rb in rbs]
        idx = {(i, rb): m for m, (i, ks, rb) in enumerate(frs)}
        areg = lambda m: AR[m % NA]
        todo = list(range(have, len(frs)))
        def issue():
            m = todo.pop(0); i, ks, rb = frs[m]
            a(aload(ks, rb, areg(m))); vm.issue(("A", i))
        def burst(n):
            for _ in range(n): issue()
        def can(i):
            if not todo: return False
            m = todo[0]
            if m >= NA and frs[m - NA][0] >= i: return False
            if ahead and m - idx[(i, plan[i][1][0])] > ahead: return False
            return all(i >= g0 for g1, g0 in gate.items() if frs[m][0] >= g1)
        def read(n):
            if n >= NS*NB: return 0
            i, nb = divmod(n, NB)
            v, off = rdaddr(plan[i][0], nb)
            a(f"ds_read_b128 {vr(BR[n % NF],4)}, v{v} offset:{off}"); lg.issue((i, nb))
            return 1
        merge = lambda x, y: x + y[9:] if x and y else x or y
        cost = lambda l: 2 if l.startswith(TRANS) else int(l.split()[1]) + 1 if l.startswith("s_nop") else 1
        burst(init)
        for n in range(NF): read(n)
        seen, ex = set(), []
        for i, (ks, rbs) in enumerate(plan):
            for l in bars.get(i, []): a(l)
            if i in hooks: hooks[i](burst)
            wv = vm.wait(("A", i)) if idx[(i, rbs[-1])] >= have else ""
            ex += list(extra.get(i, []))
            for nb in range(NB):
                if nb % wgrp == 0:
                    a(merge(wv, lg.wait(*[(i, n) for n in range(nb, min(nb + wgrp, NB))]))); wv = ""
                for rb in rbs:
                    d = vr(AC + 4*(NB*rb + nb), 4)
                    c = d if (rb, nb) in seen else cfirst(rb, nb)
                    seen.add((rb, nb))
                    a(f"v_mfma_f32_16x16x32_bf16 {d}, {vr(BR[(i*NB + nb) % NF],4)}, {vr(areg(idx[(i, rb)]),4)}, {c}")
                    room = 2
                    if rb == rbs[-1]:
                        room -= read(i*NB + nb + NF)
                        if (nb + 1) % wgrp == 0 or nb == NB - 1: room -= 1
                    if rb == rbs[0] and nb in (0, 2) and can(i):
                        issue(); room = 0
                    while ex and cost(ex[0]) <= room:
                        room -= cost(ex[0]); a(ex.pop(0))
        assert not todo
        for l in ex: a(l)

    def xstore(self, sval, P, force=None, before_flag=None, packed=False, two=False, bar=False):
        a = self.a
        if not packed:
            for i in range(10): a(f"v_cvt_pk_bf16_f32 v{P+i}, v{RES+2*i}, v{RES+2*i+1}")
        self.mstore([f"buffer_store_dwordx4 {vr(P,4)}, v{vL16}, {sr(WS,4)}, s{XA} offen",
                     f"buffer_store_dwordx4 {vr(P+4,4)}, v{vL16}, {sr(WS,4)}, s{XA} offen offset:1024",
                     f"buffer_store_dwordx2 {vr(P+8,2)}, v{vL16}, {sr(WS,4)}, s{XS} offen"], force)
        a(f"v_mov_b32 v{P+14}, 0x3f803f80")
        for i in range(10):
            u = P + 10 + 2*(i & 1)
            a(f"v_dot2_f32_bf16 v{u+1}, v{P+i}, v{P+i}, {'0' if i < 2 else 'v%d' % (u+1)}")
            a(f"v_dot2_f32_bf16 v{u}, v{P+i}, v{P+14}, {'0' if i < 2 else 'v%d' % u}")
        a(f"v_lshlrev_b32 v{t0}, 2, v{vG}"); a(f"v_lshl_add_u32 v{t0}, v{vJ}, 4, v{t0}"); a("s_nop 0")
        a(f"v_pk_add_f32 {vr(P+10,2)}, {vr(P+10,2)}, {vr(P+12,2)}"); a("s_nop 1")
        a(f"v_permlane16_swap_b32 v{P+10}, v{P+11}"); a("s_nop 0")
        a(f"v_add_f32 v{P+10}, v{P+10}, v{P+11}")
        self.swap_add([P+10], P+11, 32)
        a("s_mov_b32 exec_hi, 0")
        self.mstore([f"buffer_store_dword v{P+10}, v{t0}, {sr(WS,4)}, s{STO} offen"], force)
        a("s_mov_b64 exec, -1")
        if bar: a("s_barrier")
        if two:
            a(f"v_mov_b32 v{t0}, {sval}"); a(f"v_mov_b32 v{t1}, 0"); a(f"v_add_u32 v{t0}, -1, v{t0}")
            a("s_waitcnt vmcnt(1)"); a("s_mov_b64 exec, 1")
            self.mstore([f"buffer_store_dword v{t0}, v{t1}, {sr(WS,4)}, s{FXO} offen"], force)
            a("s_mov_b64 exec, -1")
            if before_flag: before_flag()
        else:
            self.flag(f"s{FXO}", sval, force, before_flag)
    def xflag2(self, sval):
        a = self.p
        a(f"v_mov_b32 v{t0}, {sval}"); a(f"v_mov_b32 v{t1}, 0"); a("s_mov_b64 exec, 1")
        self.mstore([f"buffer_store_dword v{t0}, v{t1}, {sr(WS,4)}, s{FXO} offen"])
        a("s_mov_b64 exec, -1")
    def check(self, vm, tag, vaddr, soff, starget):
        a = self.p
        lp, ld = self.lab("ck"), self.lab("ckd")
        a(vm.wait(tag))
        a(f"v_cmp_gt_u32 vcc, {starget}, v{t3}"); a(f"s_cbranch_vccnz {lp}"); a(f"{ld}:")
        main, self.a = self.a, self.tail
        a(f"{lp}:"); self.poll(WS, vaddr, soff, starget); a(f"s_branch {ld}")
        self.a = main

    def entry(self):
        a = self.p
        a(".p2align 8"); a(f"{NAME}_kernel:")
        a("s_cmp_ge_u32 s2, 256"); a("s_cbranch_scc1 L_end")
        srds = [("ws", WS), ("x", XIN), ("wqkv", WQ), ("dbg", DBG), ("wo", WO), ("w1", W1), ("w2", W2), ("b1", B1), ("b2", B2), ("out", OUT)]
        for n, s in srds: a(f"s_load_dwordx2 {sr(s,2)}, s[0:1], {KA[n]}")
        a(f"v_lshrrev_b32 v{t0}, 6, v0"); a(f"v_and_b32 v{vL}, 63, v0"); a(f"v_readfirstlane_b32 s{WV}, v{t0}")
        a(f"v_and_b32 v{vJ}, 15, v{vL}"); a(f"s_lshr_b32 s{IDX}, s2, 3")
        if OPT.get("cp", 2) != 1: self.code_pull(OPT.get("cw", 3), "a")
        for n, s in srds:
            a(f"s_mov_b32 s{s+2}, {hx(SZ[n])}"); a(f"s_mov_b32 s{s+3}, 0x00020000")
        a(f"v_lshlrev_b32 v{vL16}, 4, v{vL}"); a(f"v_lshrrev_b32 v{vG}, 4, v{vL}")
        a(f"v_mov_b32 v{PB+9}, 0")
        if OPT["stamp"]:
            a("v_mov_b32 v254, 0"); a("v_mov_b32 v255, 0")
        a(f"s_and_b32 s{G}, s2, 7")
        a(f"s_mov_b32 s{FAST}, 0"); a(f"s_mov_b32 s{BUD}, 0x80000"); a(f"s_mov_b32 s{LAY}, 0")
        a(f"s_and_b32 s{NT}, s{IDX}, 7"); a(f"s_and_b32 s{ODD}, s{IDX}, 1")
        a(f"s_and_b32 s{WM}, s{WV}, 1"); a(f"s_bfe_u32 s{WK}, s{WV}, 0x10001"); a(f"s_and_b32 s{HW}, s{WV}, 3")
        a(f"s_mov_b32 s{VMK}, 0x000fffff"); a(f"s_mov_b32 s{VMK+1}, 0x000fffff")
        a(f"s_lshl_b32 s{FB}, s{G}, 13"); a(f"s_add_u32 s{FB}, s{FB}, {hx(FLG)}")
        if not OPT.get("rot"): return
        ri, rg = OPT["rot"]
        a(f"s_mul_i32 s{T}, s{IDX}, {ri}"); a(f"s_mul_i32 s{T+1}, s{G}, {rg}"); a(f"s_add_u32 s{T}, s{T}, s{T+1}")
        a(f"s_mul_i32 s{T+1}, s{T}, 205"); a(f"s_lshr_b32 s{T+1}, s{T+1}, 10"); a(f"s_mul_i32 s{T+1}, s{T+1}, 5"); a(f"s_sub_u32 s{ROT}, s{T}, s{T+1}")
    def code_pull(self, wave, tag):
        a = self.p
        a(f"s_cmp_eq_u32 s{WV}, {wave}"); a(f"s_cbranch_scc0 L_cp{tag}")
        a(f"s_getpc_b64 {sr(T,2)}")
        a(f"L_pc{tag}:")
        a(f"s_lshl_b32 s{T+2}, s{IDX}, 11"); a(f"s_cmp_lt_u32 s{T+2}, L_last-L_pc{tag}"); a(f"s_cbranch_scc0 L_cp{tag}")
        a(f"v_lshlrev_b32 v{t0}, 7, v{vJ}"); a(f"v_add_u32 v{t0}, s{T+2}, v{t0}"); a(f"v_min_u32 v{t0}, L_last-L_pc{tag}, v{t0}")
        a(f"global_load_dword v{PB+59}, v{t0}, {sr(T,2)}")
        a(f"L_cp{tag}:")

    def entry_tile(self):
        a = self.p
        a(f"s_mul_i32 s{T}, s{NT}, 160"); a(f"s_lshl_b32 s{T+1}, s{ODD}, 5"); a(f"s_add_u32 s{COL}, s{T}, s{T+1}")
        for i in range(1, 4): a(f"s_add_u32 s{COL+i}, s{COL}, {32*i}")
        a(f"s_add_u32 s{COL+4}, s{T}, 128"); a(f"s_cmp_eq_u32 s{ODD}, 1"); a(f"s_cmov_b32 s{COL+4}, s{T}")
        a(f"s_bfe_u32 s{KH}, s{IDX}, 0x10003")
        a(f"s_lshr_b32 s{T}, s{IDX}, 4"); a(f"s_lshl_b32 s{T}, s{T}, 2"); a(f"s_add_u32 s{T}, s{T}, s{HW}")
        a(f"s_lshl_b32 s{FXO}, s{T}, 8"); a(f"s_add_u32 s{FXO}, s{FXO}, s{FB}")
        a(f"s_lshl_b32 s{T+1}, s{NT}, 1"); a(f"s_add_u32 s{T+1}, s{T+1}, s{KH}"); a(f"s_lshl_b32 s{T+1}, s{T+1}, 2"); a(f"s_add_u32 s{FXO}, s{FXO}, s{T+1}")
        a(f"s_lshl_b32 s{RBO}, s{G}, 3"); a(f"s_add_u32 s{RBO}, s{RBO}, s{T}"); a(f"s_lshl_b32 s{RBO}, s{RBO}, 1"); a(f"s_add_u32 s{RBO}, s{RBO}, s{KH}")
        a(f"s_lshr_b32 s{T}, s{NT}, 1"); a(f"s_mul_i32 s{T+1}, s{T}, 5120"); a(f"s_mul_i32 s{T+2}, s{RBO}, {XB}"); a(f"s_add_u32 s{T+1}, s{T+1}, s{T+2}")
        a(f"s_mul_i32 s{XA}, s{ODD}, 3072"); a(f"s_add_u32 s{XA}, s{XA}, s{T+1}")
        a(f"s_lshl_b32 s{XS}, s{ODD}, 3"); a(f"s_add_u32 s{XS}, s{XS}, s{T+1}"); a(f"s_add_u32 s{XS}, s{XS}, 2048")
        a(f"s_lshl_b32 s{T}, s{T}, 8"); a(f"s_add_u32 s{STO}, s{T+2}, s{T}")
        a(f"s_lshl_b32 s{T}, s{ODD}, 3"); a(f"s_add_u32 s{STO}, s{STO}, s{T}"); a(f"s_add_u32 s{STO}, s{STO}, 20480")

    def pack_setup(self):
        a = self.p
        a(f"s_lshl_b32 s{T}, s{G}, 1"); a(f"s_lshr_b32 s{T+1}, s{IDX}, 4"); a(f"s_add_u32 s{T}, s{T}, s{T+1}"); a(f"s_lshl_b32 s{T}, s{T}, 3"); a(f"s_add_u32 s{T}, s{T}, s{WV}")
        d, o = PDST[0], PSRC[0]
        a(f"s_and_b32 s{T+3}, s{IDX}, 15")
        a(f"s_mul_i32 s{d}, s{T+3}, 120"); a(f"s_add_u32 s{d}, s{d}, s{T}"); a(f"s_lshl_b32 s{d}, s{d}, 10"); a(f"s_add_u32 s{d}, s{d}, {hx(PK1)}")
        a(f"s_cmp_ge_u32 s{T}, 120"); a(f"s_cmov_b32 s{d}, -1")
        a(f"s_mul_i32 s{T+1}, s{T}, 171"); a(f"s_lshr_b32 s{T+1}, s{T+1}, 10")
        a(f"s_mul_i32 s{T+2}, s{T+1}, {32*3072 - 6*32}"); a(f"s_lshl_b32 s{T}, s{T}, 5"); a(f"s_add_u32 s{T}, s{T}, s{T+2}")
        a(f"s_mul_i32 s{T+3}, s{T+3}, 192"); a(f"s_add_u32 s{o}, s{T}, s{T+3}")
        for u, (nfr, dst) in enumerate(((240, PK2), (100, PKO))):
            d, o = PDST[1+u], PSRC[1+u]
            a(f"s_lshl_b32 s{T}, s{G}, 2"); a(f"s_lshr_b32 s{T+1}, s{IDX}, 3"); a(f"s_add_u32 s{T}, s{T}, s{T+1}"); a(f"s_lshl_b32 s{T}, s{T}, 3"); a(f"s_add_u32 s{T}, s{T}, s{WV}")
            if u == 0:
                a(f"s_cmp_ge_u32 s{T}, 120"); a(f"s_cselect_b32 s{T+1}, 7, 0"); a(f"s_add_u32 s{T+1}, s{T+1}, s{NT}"); a(f"s_mul_i32 s{d}, s{T+1}, 120")
            else: a(f"s_mul_i32 s{d}, s{NT}, 100")
            a(f"s_add_u32 s{d}, s{d}, s{T}"); a(f"s_lshl_b32 s{d}, s{d}, 10"); a(f"s_add_u32 s{d}, s{d}, {hx(dst)}")
            a(f"s_cmp_ge_u32 s{T}, {nfr}"); a(f"s_cmov_b32 s{d}, -1")
            a(f"s_mul_i32 s{T+1}, s{T}, 205"); a(f"s_lshr_b32 s{T+1}, s{T+1}, 10")
            a(f"s_mul_i32 s{T+2}, s{T+1}, 5"); a(f"s_sub_u32 s{T}, s{T}, s{T+2}")
            a(f"s_add_u32 s{T}, s{T}, s{ODD}"); a(f"s_cmp_eq_u32 s{T}, 5"); a(f"s_cselect_b32 s{T}, 0, s{T}"); a(f"s_lshl_b32 s{T}, s{T}, 5")
            if u == 0:
                a(f"s_cmp_ge_u32 s{T+1}, 24"); a(f"s_cselect_b32 s{o}, 24, 0"); a(f"s_sub_u32 s{T+1}, s{T+1}, s{o}")
                a(f"s_sub_u32 s{T+2}, s{T+1}, 1"); a(f"s_and_b32 s{T+3}, s{T+2}, 1"); a(f"s_lshr_b32 s{T+2}, s{T+2}, 1")
                a(f"s_cmp_lt_u32 s{T+1}, 3"); a(f"s_cmov_b32 s{T+2}, 0"); a(f"s_cmov_b32 s{T+3}, s{T+1}")
                a(f"s_cmp_ge_u32 s{T+1}, 17"); a(f"s_cmov_b32 s{T+2}, s{T+1}"); a(f"s_cmov_b32 s{T+3}, 2")
                a(f"s_add_u32 s{T+2}, s{T+2}, s{NT}"); a(f"s_and_b32 s{T+2}, s{T+2}, 7"); a(f"s_mul_i32 s{T+2}, s{T+2}, 3")
                a(f"s_add_u32 s{T+1}, s{T+2}, s{T+3}"); a(f"s_add_u32 s{T+1}, s{T+1}, s{o}")
            a(f"s_mul_i32 s{T+1}, s{T+1}, {32*1280}"); a(f"s_add_u32 s{T}, s{T}, s{T+1}"); a(f"s_mul_i32 s{T+2}, s{NT}, 160"); a(f"s_add_u32 s{o}, s{T}, s{T+2}")

    def unstash(self, which=range(10)):
        a = self.p
        a(f"s_lshl_b32 s{T}, s{WV}, 10"); a(f"v_add_u32 v{t0}, s{T}, v{vL16}"); a(f"v_add_u32 v{t1}, 40960, v{t0}")
        for i in which: a(f"ds_write_b128 v{t0 + i//5}, {vr(STH+4*i,4)} offset:{(i%5)*8192}")

    def att_setup(self):
        a = self.p
        vM, vH, IDXR, AK, AK4, AV, QA, PA, V = PB, PB+1, PB+2, PB+3, PB+4, PB+5, PB+6, PB+9, PB+32
        a(f"v_and_b32 v{vM}, 31, v{vL}"); a(f"v_lshrrev_b32 v{vH}, 5, v{vL}")
        a(f"s_lshl_b32 s{T+4}, s{HW}, 1"); a(f"s_lshr_b32 s{T}, s{WV}, 2"); a(f"s_add_u32 s{T+4}, s{T+4}, s{T}")
        a(f"s_mul_i32 s{T}, s{T}, 10240"); a(f"s_add_u32 s{T}, s{T}, {7*SL}")
        a(f"v_lshl_add_u32 v{AK4}, v{vM}, 3, s{T}"); a(f"v_lshl_add_u32 v{AK}, v{vH}, 8, v{AK4}"); a(f"v_add_u32 v{AK4}, 1024, v{AK4}")
        a(f"v_mul_u32_u24 v{t0}, 20, v{vH}"); a(f"v_add_u32 v{t0}, v{t0}, v{vM}"); a(f"v_lshl_add_u32 v{AV}, v{t0}, 4, s{T}")
        a(f"s_mul_i32 s{T+1}, s{T+4}, 1280"); a(f"s_add_u32 s{T+1}, s{T+1}, {6*SL}")
        a(f"s_xor_b32 s{T}, s{T+4}, 1"); a(f"s_mul_i32 s{T}, s{T}, 1280"); a(f"s_add_u32 s{T}, s{T}, {6*SL}")
        a(f"v_lshlrev_b32 v{t0}, 3, v{vM}"); a(f"v_lshl_add_u32 v{t1}, v{vH}, 8, v{t0}")
        a(f"v_add_u32 v{QA}, s{T}, v{t1}"); a(f"v_add_u32 v{QA+1}, s{T+1}, v{t1}")
        a(f"s_sub_u32 s{T+1}, s{T+1}, s{T}"); a(f"v_mul_lo_u32 v{t1}, v{vH}, s{T+1}"); a(f"v_add3_u32 v{QA+2}, v{t0}, v{t1}, s{T}")
        a(f"v_cmp_eq_u32 vcc, 20, v{vM}"); a(f"v_mov_b32 v{t0}, 0x3f803f80"); a(f"v_mov_b32 v{IDXR}, 0xdddddddd")
        a(f"v_cndmask_b32 v{V}, 0, v{t0}, vcc"); a(f"v_cndmask_b32 v{V+1}, 0, v{t0}, vcc")
        for i in range(2, 16, 2): a(f"v_mov_b64 {vr(V+i,2)}, {vr(V,2)}")
        KS = OPT.get("ks", 0)
        a(f"s_and_b32 s{T}, s{IDX}, 7"); a(f"s_lshl_b32 s{T}, s{T}, 13"); a(f"s_lshr_b32 s{T+1}, s{IDX}, 3"); a(f"s_lshl_b32 s{T+1}, s{T+1}, {8+KS}"); a(f"s_add_u32 s{T}, s{T}, s{T+1}")
        a(f"s_add_u32 s{T}, s{T}, {hx(FLG+4096)}"); a(f"s_lshl_b32 s{T+1}, s{HW}, {5+KS}"); a(f"s_add_u32 s{T+5}, s{T}, s{T+1}")
        a(f"s_lshl_b32 s{T+1}, s{WV}, {3+KS}"); a(f"s_add_u32 s{T+1}, s{T+1}, s{G}"); a(f"s_lshl_b32 s{T+1}, s{T+1}, 2"); a(f"s_add_u32 s{FO}, s{T+1}, s{T}"); a(f"s_add_u32 s{T+6}, s{LAY}, 1")
        a(f"v_and_b32 v{PA}, 7, v{vL}"); a(f"v_lshlrev_b32 v{PA}, 2, v{PA}")

    def qkv(self):
        a = self.p
        RD = OPT.get("rd_q", 6); IN = OPT.get("in_q", 2)
        RA = PB + 12
        RT = PB + 16
        AD = PB + 24
        RS = PB + 48
        ST = PB + 60
        BR = PB + 68
        AC = PB + 84
        AR = PB + 116
        TX, TM = AR + 28, AR + 36
        RB = PB + 148
        BRL = ([BR + 4*i for i in range(4)] + [PB + 164, PB + 168])[:OPT.get('nf_q', 6)]
        assert AR + 8*RD <= STH and IN <= 3
        AQ, AK, A4, AV, AVS, ARB = AD, AD+1, AD+2, AD+3, AD+4, AD+5
        self.RB, self.ARB = RB, ARB
        def adprep():
            a(f"s_mul_i32 s{T}, s{WV}, 1280"); a(f"s_add_u32 s{T}, s{T}, {6*SL}")
            a(f"s_mul_i32 s{T+1}, s{WV}, 2560"); a(f"s_add_u32 s{T+1}, s{T+1}, {7*SL}")
            a(f"v_cmp_eq_u32 vcc, 0, v{vG}")
            a(f"v_lshlrev_b32 v{t0}, 3, v{vJ}"); a(f"v_lshl_add_u32 v{t1}, v{vG}, 8, v{t0}")
            a(f"v_add_u32 v{AQ}, s{T}, v{t1}"); a(f"v_add_u32 v{AK}, s{T+1}, v{t1}")
            a(f"v_add_u32 v{t1}, s{T}, v{t0}"); a(f"v_add_u32 v{t2}, s{T+1}, v{t0}"); a(f"v_cndmask_b32 v{A4}, v{t2}, v{t1}, vcc")
            a(f"v_lshrrev_b32 v{t1}, 1, v{vG}"); a(f"v_mul_u32_u24 v{t1}, 320, v{t1}"); a(f"v_lshl_add_u32 v{t1}, v{vJ}, 4, v{t1}")
            a(f"v_and_b32 v{t2}, 1, v{vG}"); a(f"v_lshl_add_u32 v{t1}, v{t2}, 3, v{t1}"); a(f"v_add_u32 v{AV}, s{T+1}, v{t1}")
            a(f"v_lshrrev_b32 v{t1}, 3, v{vJ}"); a(f"v_mul_u32_u24 v{t1}, 320, v{t1}"); a(f"v_and_b32 v{t2}, 7, v{vJ}")
            a(f"v_lshl_add_u32 v{t1}, v{t2}, 1, v{t1}"); a(f"v_add_u32 v{AVS}, s{T+1}, v{t1}")
            a(f"v_add_u32 v{ARB}, s{T+1}, v{vL16}")
            a(f"s_mul_i32 s{KVS}, s{IDX}, 163840"); a(f"s_mul_i32 s{T}, s{LAY}, {hx(0x500000)}"); a(f"s_add_u32 s{KVS}, s{KVS}, s{T}")
            a(f"s_mul_i32 s{T}, s{HW}, 2560"); a(f"s_add_u32 s{KVS}, s{KVS}, s{T}"); a(f"s_add_u32 s{KVS}, s{KVS}, {hx(KVF(0))}")
            a(f"s_lshl_b32 s{T}, s{G}, 1"); a(f"s_lshr_b32 s{T+1}, s{WV}, 2"); a(f"s_add_u32 s{T}, s{T}, s{T+1}")
            a(f"s_mul_i32 s{OS}, s{T}, 10240"); a(f"s_add_u32 s{OS}, s{OS}, s{KVS}")
        def qsetup():
            a(f"v_add_u32 v{RA}, 65536, v{vL16}")
            a(f"s_lshl_b32 s{T}, s{G}, 3"); a(f"s_add_u32 s{T}, s{T}, s{WV}")
            a(f"s_mul_i32 s{A0}, s{T}, {2*XB}"); a(f"s_add_u32 s{IT}, s{A0}, 20480")
            if OPT.get("rot"): a(f"s_lshl_b32 s{T}, s{ROT}, 12"); a(f"s_add_u32 s{A0}, s{A0}, s{T}")
            a(f"s_add_u32 s{A1}, s{A0}, {XB}")
            a(f"s_lshl_b32 s{T+2}, s{WV}, 8"); a(f"s_add_u32 s{T+2}, s{T+2}, s{FB}")
            a(f"v_lshlrev_b32 v{t2}, 2, v{vJ}")
            a(f"s_lshl_b32 s{T+9}, s{LAY}, 2"); a(f"s_add_u32 s{T+9}, s{T+9}, 2"); a(f"s_mov_b32 s{T+8}, s{T+2}")
            a(f"s_lshr_b32 s{T+3}, s{WV}, 2"); a(f"s_add_u32 s{T+3}, s{T+3}, s{T+9}"); a(f"s_sub_u32 s{T+3}, s{T+3}, 1")
        self.qsetup = qsetup; self.adprep = adprep
        def lnprep(first):
            self.stat_math(ST, RS, TX, False)
            a(f"v_lshlrev_b32 v{t0}, 4, v{vG}")
            for rb in range(2):
                for i in range(4): a(f"ds_bpermute_b32 v{RT+4*rb+i}, v{t0}, v{ST+2} offset:{128*rb+4*i}")
            cq = hx(f2u(20**-0.5 * math.log2(math.e)))
            for nb in range(4):
                x = BR + 4*nb
                a(f"v_mov_b32 v{x}, v{CSQ+nb}"); a(f"v_mov_b32 v{x+1}, v{CSQ+nb}")
                a(f"v_mov_b64 {vr(x+2,2)}, 0")
            for rb in range(2): a(f"v_mul_f32 v{RS+2+rb}, {cq}, v{RS+rb}")
            for rb in range(2): a(f"v_cndmask_b32 v{RS+4+rb}, v{RS+rb}, v{RS+2+rb}, vcc")
            for nb in (1, 2, 3, 0):
                for rb in range(2):
                    d = vr(AC + 4*(4*rb + nb), 4); w, x = vr(BR+4*nb, 4), vr(TX+4*rb, 4)
                    p, q = (x, w) if nb == 2 else (w, x)
                    a(f"v_mfma_f32_16x16x32_bf16 {d}, {p}, {q}, {'0' if first else d}")
            a("s_waitcnt lgkmcnt(0)")

        ONE = RT + 4
        def conv_setup():
            a(f"v_lshrrev_b32 v{t0}, 2, v{vL}"); a(f"v_mul_u32_u24 v{t0}, 160, v{t0}"); a(f"v_lshl_add_u32 v{t0}, s{ODD}, 3, v{t0}")
            a(f"v_and_b32 v{t1}, 3, v{vL}"); a(f"v_lshlrev_b32 v{t2}, 3, v{t1}")
            a(f"v_min_u32 v{t1}, 2, v{t1}"); a(f"v_mul_u32_u24 v{t1}, 48, v{t1}")
            a(f"s_mul_i32 s{T}, s{HW}, 48"); a(f"s_cmp_eq_u32 s{HW}, 3"); a("s_cselect_b64 vcc, -1, 0"); a(f"s_cselect_b32 s{T}, 32, s{T}")
            a(f"s_lshr_b32 s{T+1}, s{WV}, 2"); a(f"s_mul_i32 s{T+1}, s{T+1}, 5120"); a(f"s_add_u32 s{T}, s{T}, s{T+1}"); a(f"s_add_u32 s{T}, s{T}, {3*SL}")
            a(f"v_cndmask_b32 v{t1}, v{t2}, v{t1}, vcc"); a(f"v_add3_u32 v{RT}, v{t0}, v{t1}, s{T}"); a(f"v_add_u32 v{RT+1}, 51200, v{RT}")
            for i in range(4): a(f"v_mov_b32 v{ONE+i}, 0x3f803f80")
        def conv(i0, i1):
            for i in range(i0, i1):
                for u in range(2): a(f"ds_read_b64_tr_b16 {vr(STH+4*i+2*u,2)}, v{RT + i//5} offset:{(i % 5)*10240 + 2560*u}")
            a("s_waitcnt lgkmcnt(0)")
            for i in range(i0, i1):
                a(f"v_mfma_f32_16x16x32_bf16 {vr(CSQ,4)}, {vr(ONE,4)}, {vr(STH+4*i,4)}, {'0' if i == 0 else vr(CSQ,4)}")
            self.unstash(range(i0, i1))
        P = AC
        a(f"s_cmp_ge_u32 s{WV}, 4"); a("s_cbranch_scc1 L_q0_load")
        self.entry_tile()
        a(f"v_mul_u32_u24 v{t2}, 1280, v{vJ}"); a(f"v_lshl_add_u32 v{t2}, v{vG}, 3, v{t2}")
        a(f"s_mul_i32 s{T}, s{RBO}, 20480"); a(f"v_add_u32 v{t2}, s{T}, v{t2}")
        a("s_waitcnt lgkmcnt(0)")
        self.stamp(0)
        a(f"s_or_b32 s{T+5}, s{WV}, s{IDX}")
        a(f"s_cmp_eq_u32 s{T+5}, 0"); a("s_cbranch_scc0 L_q0_c1")
        for i in range(4): a(f"v_mov_b32 v{BR+i}, 0")
        a(f"s_add_u32 s{T}, s{FB}, 4096")
        for i in (0, 1, 3): a(f"buffer_store_dwordx4 {vr(BR,4)}, v{vL16}, {sr(WS,4)}, s{FB} offen offset:{1024*i} sc1")
        for i in range(1 << OPT.get("ks", 0)): a(f"buffer_store_dwordx4 {vr(BR,4)}, v{vL16}, {sr(WS,4)}, s{T} offen offset:{1024*i} sc1")
        a("L_q0_c1:")
        for i in range(5): a(f"buffer_load_dwordx2 {vr(P+2*i,2)}, v{t2}, {sr(XIN,4)}, s{COL+i} offen")
        conv_setup(); self.pack_setup()
        a(f"s_lshl_b32 s{T+6}, s{G}, 2")
        a(f"s_cmp_eq_u32 s{T+5}, 0"); a("s_cbranch_scc0 L_q0_c2")
        a(f"v_mov_b32 v{t0}, 1"); a(f"v_mov_b32 v{t1}, 0")
        a("s_waitcnt vmcnt(5)")
        a("s_mov_b64 exec, 1")
        a(f"buffer_store_dword v{t0}, v{t1}, {sr(DBG,4)}, s{T+6} offen sc1")
        a("s_mov_b64 exec, -1")
        a("s_waitcnt vmcnt(1)")
        a("s_branch L_q0_c3")
        a("L_q0_c2:")
        a("s_waitcnt vmcnt(0)")
        a("L_q0_c3:")
        self.stamp(21)
        def boot():
            for i in range(10):
                a(f"v_lshlrev_b32 v{RES+2*i}, 16, v{P+i}"); a(f"v_and_b32 v{RES+2*i+1}, 0xffff0000, v{P+i}")
            a(f"v_and_b32 v{t2}, 7, v{vL}"); a(f"v_lshlrev_b32 v{t2}, 2, v{t2}")
            if OPT.get("sboot", 1):
                a("s_waitcnt vmcnt(0)")
                a(f"s_buffer_load_dwordx8 {sr(T+6,8)}, {sr(DBG,4)}, 0"); a("s_waitcnt lgkmcnt(0)")
                for i in range(1, 4): a(f"s_and_b64 {sr(T+6,2)}, {sr(T+6,2)}, {sr(T+6+2*i,2)}")
                a(f"s_and_b32 s{T+6}, s{T+6}, s{T+7}"); a("s_cbranch_scc1 L_q0_boot")
            self.poll(DBG, t2, "0", "1")
            a("L_q0_boot:")
        self.xstore("2", P, "sc1", before_flag=boot, packed=True)
        self.stamp(23)
        a(f"v_lshlrev_b32 v{t0}, 7, v{vJ}"); a(f"v_and_b32 v{t1}, 0x380, v{t0}")
        a(f"buffer_load_dword v{BR}, v{t0}, {sr(WS,4)}, s{XA} offen sc1"); a(f"buffer_load_dword v{BR+1}, v{t1}, {sr(WS,4)}, s{XS} offen sc1")
        a(f"s_getreg_b32 s{T}, hwreg(HW_REG_XCC_ID)"); a(f"s_and_b32 s{T}, s{T}, 15"); a(f"s_add_u32 s{T}, s{T}, 16")
        a(f"v_mov_b32 v{t1}, s{T}"); a(f"v_mov_b32 v{t2}, 0")
        a(f"s_lshl_b32 s{T}, s{IDX}, 2"); a(f"s_add_u32 s{T}, s{T}, s{FB}")
        a(f"s_cmp_eq_u32 s{WV}, 0"); a("s_cbranch_scc0 L_q0_c4")
        a("s_mov_b64 exec, 1")
        a(f"buffer_store_dword v{t1}, v{t2}, {sr(WS,4)}, s{T} offen offset:3200 sc1")
        a("s_mov_b64 exec, -1")
        a("L_q0_c4:")
        a("s_barrier")
        conv(0, 4)
        a(f"s_setprio {OPT.get('qp', 2)}")
        a("s_branch L_q0_conv")
        a("L_q0_load:")
        D = AC
        self.dma_addr(D, 5, "wq")
        a(f"s_mul_i32 s{DS}, s{HW}, {32*3840}"); a(f"s_mul_i32 s{T}, s{IDX}, 40"); a(f"s_and_b32 s{T}, s{T}, -16"); a(f"s_add_u32 s{DS}, s{DS}, s{T}")
        a(f"s_mul_i32 s{T+8}, s{HW}, 5120")
        if OPT.get("rot"): a(f"s_mul_i32 s{T}, s{ROT}, {128*3840}"); a(f"s_add_u32 s{DS}, s{DS}, s{T}")
        a("s_waitcnt lgkmcnt(0)")
        self.stamp(0)
        def gather(c):
            for i in range(5):
                a.extend(self.dma(D+i, WQ, f"s{DS}", f"s{T+8}", (3+c)*SL + 1024*i, OPT.get("wqmod", "")))
                if OPT.get("ht0", 10): a(f"s_waitcnt vmcnt({OPT.get('ht0', 10)})")
            if OPT.get("rot"):
                a(f"s_mov_b32 s{ROT+1}, {128*3840}"); a(f"s_cmp_eq_u32 s{ROT}, {4 - c}"); a(f"s_cmov_b32 s{ROT+1}, {-4*128*3840}")
                a(f"s_add_u32 s{DS}, s{DS}, s{ROT+1}")
            else: a(f"s_add_u32 s{DS}, s{DS}, {128*3840}")
            self.stamp(24 + c)
        g1 = OPT.get("g1", 3); g0 = OPT.get("g0", 3)
        for c in range(g0): gather(c)
        conv_setup(); adprep(); self.att_setup(); self.pack_setup()
        for c in range(g0, g1): gather(c)
        a(f"s_waitcnt vmcnt({5*(g1-2)})")
        self.stamp(23)
        a("s_barrier")
        g2 = OPT.get("g2", 4)
        for c in range(g1, g2): gather(c)
        conv(0, 4)
        for c in range(max(g1, g2), 5): gather(c)
        a("s_waitcnt vmcnt(5)")
        a("L_q0_conv:")
        a("s_barrier")
        conv(4, 8)
        self.stamp(1)
        qsetup()
        a("s_branch L_q1_a")
        def last_chunk():
            a("s_barrier")
            if OPT.get("cp", 2) != 0: self.code_pull(3, "b")
            conv(8, 10)
            a(f"s_lshl_b32 s{T}, s{WV}, 2"); a(f"s_add_u32 s{T}, s{T}, {4*SL}"); a(f"v_lshl_add_u32 v{t2}, v{vJ}, 5, s{T}")
            a(f"s_mov_b32 s{T}, {4*SL}"); a(f"v_lshl_add_u32 v{t3}, v{vJ}, 5, s{T}")
            a(f"ds_write_b32 v{t2}, v{CSQ}")
            a("s_waitcnt lgkmcnt(0)"); a("s_barrier")
            a(f"ds_read_b128 {vr(CSQ,4)}, v{t3}"); a(f"ds_read_b128 {vr(BR,4)}, v{t3} offset:16")
            a("s_waitcnt lgkmcnt(0)")
            for i in range(4):
                a(f"v_add_f32 v{CSQ+i}, v{CSQ+i}, v{BR+i}")
                a(f"v_cvt_pk_bf16_f32 v{t0}, v{CSQ+i}, v{CSQ+i}"); a(f"v_and_b32 v{t0}, 0xffff0000, v{t0}"); a(f"v_sub_f32 v{t0}, v{CSQ+i}, v{t0}")
                a(f"v_cvt_pk_bf16_f32 v{CSQ+i}, v{CSQ+i}, v{t0}")

        a("L_qkv1:")
        self.stamp(1)
        adprep(); self.att_setup(); qsetup()
        a("L_q1_w:")
        a("s_waitcnt lgkmcnt(0)"); a("s_barrier")
        a("L_q1_a:")
        self.poll(WS, t2, f"s{T+2}", f"s{T+3}")
        self.stamp(2)
        vm = Cnt("vmcnt", 63); nv = Cnt("vmcnt", 63)
        def first(v):
            for gs in range(IN):
                for ls in self.a_loads(gs, RD, AR): a.extend(ls); v.issue(("A", gs))
        a(f"s_cmp_ge_u32 s{WV}, 4"); a("s_cbranch_scc1 L_q1_c")
        if OPT.get("sm_", 0) == 2: self.stat_loads(ST, f"s{IT}", nv)
        first(vm)
        for i in range(0, 32, 2): a(f"v_mov_b64 {vr(AC+i,2)}, 0")
        adprep()
        a(f"s_cmp_lg_u32 s{LAY}, 0"); a("s_cbranch_scc1 L_q1_loop")
        a("s_branch L_q1_d")
        a("L_q1_c:")
        self.stat_loads(ST, f"s{IT}", nv)
        a(f"s_cmp_lg_u32 s{LAY}, 0"); a("s_cbranch_scc1 L_q1_late")
        a("L_q1_d:")
        last_chunk()
        a(f"s_cmp_lt_u32 s{WV}, 4"); a("s_cbranch_scc1 L_q1_loop")
        a("L_q1_late:")
        a("s_waitcnt vmcnt(0)")
        self.stat_sum(ST, TM)
        first(nv)
        lnprep(True)
        a("L_q1_loop:")
        self.stamp(29)
        qh = {g: (lambda b, g=g: self.stamp(30 + g//4)) for g in (4, 8, 12, 16)} if OPT.get('qst') else {}
        def ask2(b):
            a(f"v_lshlrev_b32 v{t2}, 2, v{vJ}"); a(f"buffer_load_dword v{t3}, v{t2}, {sr(WS,4)}, s{T+8} offen sc1"); vm.issue("x2")
        def cond_stats(burst):
            lo, lb = self.lab("st"), self.lab("stb")
            a(f"s_cmp_lt_u32 s{WV}, 4"); a(f"s_cbranch_scc1 {lo}"); a(f"{lb}:")
            main, self.a = self.a, self.tail
            a(f"{lo}:"); self.stat_loads(ST, f"s{IT}", nv); a(f"s_branch {lb}")
            self.a = main
        if OPT.get("two", 0): qh[OPT.get('qs', 15) - 5] = ask2
        if OPT.get("sm_", 0) == 1: qh[OPT.get('qs', 17)] = cond_stats
        elif OPT.get("sm_", 0) == 0: qh[OPT.get('qs', 15)] = lambda b: (OPT.get("two", 0) and self.check(vm, "x2", t2, f"s{T+8}", f"s{T+9}"), self.stat_loads(ST, f"s{IT}", vm))
        self.gemm(20, 4, RD, AR, BRL, AC, lambda gs, nb: (vL16 if gs < 16 else RA, (gs % 16)*4096 + nb*1024), None, vm, std=(2,), czero=(), wgrp=OPT.get('wgq', 2), lper=OPT.get('lpq'), init=IN, hooks=qh, rot=bool(OPT.get('rot')))
        self.stamp(3)
        a(f"s_cmp_ge_u32 s{WV}, 4"); a("s_cbranch_scc1 L_q_epi")
        a("s_waitcnt vmcnt(0)")
        self.stat_sum(ST, TM); lnprep(False)
        a("L_q_epi:")
        PK = BR
        a("s_nop 2")
        for nb in (1, 2, 3, 0):
            for rb in range(2):
                r = AC + 4*(4*rb + nb)
                for i in range(4):
                    m = RT + 4*rb + i if nb == 2 else RS + {0: 2, 1: 0, 3: 4}[nb] + rb
                    a(f"v_mul_f32 v{r+i}, v{r+i}, v{m}")
            for r2 in range(2):
                r = AC + 4*(4*r2 + nb); p = PK + 2*(4*r2 + nb)
                a(f"v_cvt_pk_bf16_f32 v{p}, v{r}, v{r+1}"); a(f"v_cvt_pk_bf16_f32 v{p+1}, v{r+2}, v{r+3}")
                if nb == 0 and r2 == 0: a("s_waitcnt lgkmcnt(8)")
                if nb == 0: a(f"ds_write_b64 v{AQ}, {vr(p,2)} offset:{128*r2}")
                if nb == 1: a(f"ds_write_b64 v{AK}, {vr(p,2)} offset:{128*r2}")
                if nb == 2: a(f"ds_write_b64 v{AV}, {vr(p,2)} offset:{1280+640*r2}")
            if nb == 3:
                a("s_mov_b32 exec_hi, 0")
                for rb in range(2): a(f"ds_write_b64 v{A4}, {vr(PK+2*(4*rb+3),2)} offset:{1024+128*rb}")
                a("s_bfm_b64 exec, 16, 32")
                for rb in range(2):
                    for i in range(4):
                        a(f"ds_write_b16{'_d16_hi' if i & 1 else ''} v{AVS}, v{PK+2*(4*rb+3)+(i>>1)} offset:{1280+640*rb+256+16*i}")
                a("s_mov_b64 exec, -1")
        a("s_waitcnt lgkmcnt(0)")
        for i in range(3): a(f"ds_read_b128 {vr(RB+4*i,4)}, v{ARB} offset:{1024*i}")
        a(f"s_cmp_ge_u32 s{WV}, 4"); a("s_cbranch_scc1 L_att_late")
        a("s_waitcnt lgkmcnt(0)")
        self.publish()
        self.stamp(22)
        a("s_setprio 0")
        self.att_setup()
        self.flag(f"s{FO}", f"s{T+6}", "sc1")
        self.stamp(5)
        a("L_att_late:")
    def publish(self):
        a = self.p
        for i in range(3):
            if i == 2: a("s_mov_b32 exec_hi, 0")
            a(f"buffer_store_dwordx4 {vr(self.RB+4*i,4)}, v{vL16}, {sr(WS,4)}, s{OS} offen offset:{1024*i} sc1")
        a("s_mov_b64 exec, -1")

    def attention(self):
        a = self.p
        vM, vH, IDXR = PB, PB+1, PB+2
        AK, AK4, AV = PB+3, PB+4, PB+5
        OA = PB+6
        PA = PB+9
        Q = [PB+12, PB+16]; Q4 = PB+20; K4 = PB+22
        KK = [PB+24, PB+28]
        V = PB+32
        O = [PB+48, PB+64]
        S = [PB+80, PB+112]
        NM = S[1]
        PF = PB+144
        PR = PB+148
        EXM, EXF = f"s_mov_b64 exec, {sr(VMK,2)}", "s_mov_b64 exec, -1"
        HALF = "s_mov_b32 exec_hi, 0"
        kvm = OPT.get("kvmod", "sc1")
        base = [0]
        def off(n):
            o = (n // 4) * SL + (n % 4) * 2560 - base[0]
            assert 0 <= o < 65536 - 2560
            return o
        def rdK4(t): return f"ds_read_b64 {vr(K4,2)}, v{AK4} offset:{off(t)}"
        def rdK(t): return f"ds_read2st64_b64 {vr(KK[t&1],4)}, v{AK} offset0:{off(t)//512} offset1:{off(t)//512+1}"
        def rdV(t, i): return f"ds_read_b128 {vr(V+8*(t&1)+4*i,4)}, v{AV} offset:{off(t)+1280+640*i}"
        def m2b(t, c="0"): return f"v_mfma_f32_32x32x4_2b_bf16 {vr(S[t&1],32)}, {vr(K4,2)}, {vr(Q4,2)}, {c}"
        def mk(t, q): return f"v_mfma_f32_32x32x16_bf16 {vr(S[t&1]+16*q,16)}, {vr(KK[t&1],4)}, {vr(Q[q],4)}, {vr(S[t&1]+16*q,16)}"
        def pv(t, i): return f"v_smfmac_f32_32x32x32_bf16 {vr(O[i>>1],16)}, {vr(V+8*(t&1)+4*(i&1),4)}, {vr(S[t&1]+8*i,8)}, v{IDXR}"
        def set_addr(b):
            a(f"s_lshr_b32 s{T}, s{WV}, 2"); a(f"s_mul_i32 s{T}, s{T}, 10240"); a(f"s_add_u32 s{T}, s{T}, {b}")
            a(f"v_lshl_add_u32 v{AK4}, v{vM}, 3, s{T}"); a(f"v_lshl_add_u32 v{AK}, v{vH}, 8, v{AK4}"); a(f"v_add_u32 v{AK4}, 1024, v{AK4}")
            a(f"v_mul_u32_u24 v{t0}, 20, v{vH}"); a(f"v_add_u32 v{t0}, v{t0}, v{vM}"); a(f"v_lshl_add_u32 v{AV}, v{t0}, 4, s{T}")
        def fill(mid=[]):
            mid = list(mid)
            a(rdK4(0)); a(rdK(0)); a(rdK(1)); a(EXM); a(rdV(0, 0)); a(rdV(0, 1)); a(EXF)
            a("s_waitcnt lgkmcnt(4)"); a(m2b(0)); a(rdK4(1))
            a.extend(mid[:16])
            if len(mid) < 16: a(f"s_nop {15 - len(mid)}")
            a("s_waitcnt lgkmcnt(4)")
            a(mk(0, 0)); a(mk(0, 1))
            a.extend(mid[16:])
            if len(mid[16:]) < 11: a(f"s_nop {10 - len(mid[16:])}")
        def step(t, last, first=False, hook={}):
            nqk, nrd = t + 1 <= last, t + 2 <= last
            ins = {1: ([] if first else [pv(t-1, 3)]) + ["s_waitcnt lgkmcnt(0)"],
                   5: ([m2b(t+1)] if nqk else []) + ([rdK4(t+2)] if nrd else []),
                   13: [pv(t, 0)] + ([EXM, rdV(t+1, 0), rdV(t+1, 1), EXF] if nqk else []),
                   17: [pv(t, 1)] + ([rdK(t+2)] if nrd else []),
                   21: [mk(t+1, 0)] if nqk else [], 25: [pv(t, 2)], 29: [mk(t+1, 1)] if nqk else []}
            for e in range(32):
                a(f"v_exp_f32 v{S[t&1]+e}, v{S[t&1]+e}")
                for l in ins.get(e, []): a(l)
                for h in hook.get(e, []): h()
        prio = lambda p: (lambda: a(f"s_setprio {p}") if OPT.get("prio", 1) else None)
        WOFF = T + 10
        def kv_dma1(sblk, slot, i, add=0):
            a(f"s_add_u32 m0, s{WOFF}, {slot*SL + add}")
            a(HALF if i == 2 else "s_nop 0")
            a(f"buffer_load_dwordx4 v{vL16}, {sr(WS,4)}, s{sblk} offen offset:{1024*i} {kvm} lds")
            if i == 2: a(EXF)
        def kv_src(sd, b):
            a(f"s_lshr_b32 s{sd}, s{WV}, 2")
            if b == 4: a(f"s_mul_i32 s{T}, s{sd}, 10240"); a(f"s_lshl_b32 s{sd}, s{sd}, 1")
            a(f"s_add_u32 s{sd}, s{sd}, s{G}"); a(f"s_add_u32 s{sd}, s{sd}, {2*b - 1 + (b > 4)}"); a(f"s_and_b32 s{sd}, s{sd}, 7")
            a(f"s_mul_i32 s{sd}, s{sd}, {SL}"); a(f"s_add_u32 s{sd}, s{sd}, s{KVS}")
            if b == 4: a(f"s_add_u32 s{sd}, s{sd}, s{T}")
            if b > 4: a(f"s_add_u32 s{sd}, s{sd}, 10240")

        a("s_barrier")
        self.stamp(4)
        prio(3)()
        a(f"ds_read_b64 {vr(Q4,2)}, v{OA+2} offset:1024")
        a(f"ds_read2st64_b64 {vr(Q[0],4)}, v{OA} offset0:0 offset1:1"); a(f"ds_read2st64_b64 {vr(Q[1],4)}, v{OA+1} offset0:0 offset1:1")
        def misc0():
            for q in range(2):
                for i in range(0, 16, 2): a(f"v_mov_b64 {vr(O[q]+i,2)}, 0")
            a(f"s_mov_b32 s{PASS}, 0"); a(f"s_mul_i32 s{WOFF}, s{WV}, 2560")
            a(f"s_cmp_ge_u32 s{WV}, 4"); a("s_cbranch_scc1 L_att_pub")
            a(f"buffer_load_dword v{t3}, v{PA}, {sr(WS,4)}, s{T+5} offen sc1")
            a("L_att_pubd:")
            a("s_nop 6")
        fill(self.capture(misc0))
        main, self.a = self.a, self.tail
        a("L_att_pub:"); self.publish(); a("s_branch L_att_pubd")
        self.a = main
        def misc1():
            a(f"s_lshl_b32 s{T}, s{G}, 3"); a(f"s_add_u32 s{T}, s{T}, s{T+4}"); a(f"s_mul_i32 s{OS}, s{T}, {2*HB_}"); a(f"s_add_u32 s{OS}, s{OS}, {hx(OF)}")
            a(f"s_lshl_b32 s{FO}, s{T+4}, 8"); a(f"s_add_u32 s{FO}, s{FO}, s{FB}"); a(f"s_lshl_b32 s{T}, s{IDX}, 2"); a(f"s_add_u32 s{FO}, s{FO}, s{T}"); a(f"s_add_u32 s{FO}, s{FO}, 128")
            a(f"s_mul_i32 s{T}, s{IDX}, 5")
            a(f"v_lshrrev_b32 v{t0}, 4, v{vM}"); a(f"v_mul_u32_u24 v{t0}, {HB_}, v{t0}"); a(f"v_lshl_add_u32 v{t0}, v{vJ}, 4, v{t0}")
            for jj in range(3):
                a(f"v_add_u32 v{t1}, s{T}, v{vH}")
                a(f"v_lshrrev_b32 v{t2}, 3, v{t1}"); a(f"v_lshl_add_u32 v{OA+jj}, v{t2}, 10, v{t0}")
                a(f"v_and_b32 v{t2}, 3, v{t1}"); a(f"v_lshl_add_u32 v{OA+jj}, v{t2}, 8, v{OA+jj}")
                a(f"v_bfe_u32 v{t2}, v{t1}, 2, 1"); a(f"v_lshl_add_u32 v{OA+jj}, v{t2}, 3, v{OA+jj}")
                a(f"s_add_u32 s{T}, s{T}, 2")
        vm0, vm1 = Cnt("vmcnt", 63), Cnt("vmcnt", 63)
        def both(tag): vm0.issue(tag); vm1.issue(tag)
        def kvblock(b, pieces=(0, 1, 2)):
            def f():
                if pieces[0] == 0: kv_src(T+7, b)
                for i in pieces: kv_dma1(T+7, b-1, i); both(("kv", b))
            return f
        def early(b):
            def f():
                l = self.lab("early")
                a(f"s_cmp_ge_u32 s{WV}, 4"); a(f"s_cbranch_scc1 {l}")
                if b == 1:
                    self.poll(WS, PA, f"s{T+5}", f"s{T+6}", issued=True)
                    self.stamp(6)
                for k in range(2):
                    a(f"s_add_u32 s{T+7}, s{G}, {2*b - 1 + k}"); a(f"s_and_b32 s{T+7}, s{T+7}, 7"); a(f"s_mul_i32 s{T+7}, s{T+7}, {SL}"); a(f"s_add_u32 s{T+7}, s{T+7}, s{KVS}")
                    for i in range(3): kv_dma1(T+7, b-1, i, 10240*k); both(("kv", b))
                a(f"{l}:")
            return f
        def lateflag():
            l = self.lab("late")
            a(f"s_cmp_lt_u32 s{WV}, 4"); a(f"s_cbranch_scc1 {l}")
            self.flag(f"s{FO}", f"s{T+6}", "sc1")
            self.stamp(5); self.stamp(6)
            a(f"{l}:")
        hk = {t: {} for t in range(4)}
        def at(h, pos, f): h[pos // 32].setdefault(pos % 32, []).append(f)
        pg, pf, p2 = OPT.get("p1", (8, 63, 72))
        at(hk, pg, early(1)); at(hk, pf, lateflag); at(hk, p2, early(2))
        at(hk, 31, prio(2)); at(hk, 95, prio(1)); at(hk, 96 + OPT.get("plast", 26), prio(0))
        for t in range(4): step(t, 3, first=(t == 0), hook=hk[t])
        set_addr(0)
        a(pv(3, 3))
        a(vm1.wait(("kv", 1))); vm0.wait(("kv", 1)); a("s_barrier")
        self.stamp(7)
        prio(3)()
        fill(self.capture(misc1))
        NSTEP = 28
        hk = {t: {} for t in range(NSTEP)}
        def l0only(fn):
            def g():
                if fn.__name__ in OPT.get("x_nol0", ()):
                    self.capture(fn); return
                l = self.lab("l0")
                a(f"s_cmp_lg_u32 s{LAY}, 0"); a(f"s_cbranch_scc1 {l}")
                fn()
                a(f"{l}:")
            return g
        def late_issue():
            a(f"s_add_u32 s{T+5}, s{T+5}, {128 << OPT.get("ks", 0)}")
            a(f"buffer_load_dword v{t3}, v{PA}, {sr(WS,4)}, s{T+5} offen sc1"); both("lp")
        def late_check():
            lp, ld = self.lab("lpoll"), self.lab("lseen")
            w = vm1.wait("lp"); vm0.wait("lp"); a(w)
            a(f"v_cmp_gt_u32 vcc, s{T+6}, v{t3}"); a(f"s_cbranch_vccnz {lp}")
            a(f"{ld}:")
            main, self.a = self.a, self.tail
            a(f"{lp}:"); self.poll(WS, PA, f"s{T+5}", f"s{T+6}"); a(f"s_branch {ld}")
            self.a = main
        kvs = OPT.get("kvs", {3: 0, 4: 5, 5: 7, 6: 9, 7: 11})
        at(hk, (kvs[4] - 1)*32 + 3, late_issue); at(hk, kvs[4]*32 + 7, late_check)
        for b in range(3, 8):
            for i in range(3): at(hk, kvs[b]*32 + OPT.get('e1', 9) + 16*i, kvblock(b, (i,)))
        PS = T + 11
        def pack_load(u):
            def pack_load():
                if u == 0:
                    a(f"v_lshrrev_b32 v{t0}, 1, v{vL}"); a(f"v_and_b32 v{t1}, 1, v{vL}"); a(f"v_lshlrev_b32 v{t1}, 4, v{t1}")
                    a(f"v_mul_u32_u24 v{PA+1}, 3072, v{t0}"); a(f"v_add_u32 v{PA+1}, v{PA+1}, v{t1}")
                    a(f"v_mul_u32_u24 v{PA+2}, 1280, v{t0}"); a(f"v_add_u32 v{PA+2}, v{PA+2}, v{t1}")
                l1 = self.lab("pk")
                a(f"s_lshl_b32 s{T}, s{WV}, {10 if u == 2 else 11}"); a(f"s_add_u32 m0, s{T}, {(7*SL, 7*SL+1024, 6*SL+10240)[u]}")
                a(f"s_cmp_eq_u32 s{PDST[u]}, -1"); a(f"s_cbranch_scc1 {l1}")
                a(f"buffer_load_dwordx4 v{PA+1+(u > 0)}, {sr((W1, W2, WO)[u],4)}, s{PSRC[u]} offen lds")
                a(f"{l1}:")
                if u == 2: vm0.issue("pk")
            return pack_load
        def pack_read():
            a(f"s_lshl_b32 s{T}, s{WV}, 11"); a(f"s_add_u32 s{T}, s{T}, {7*SL}"); a(f"v_lshl_add_u32 v{t0}, v{vL}, 3, s{T}")
            a(f"s_lshl_b32 s{T}, s{WV}, 10"); a(f"s_add_u32 s{T}, s{T}, {6*SL+10240}"); a(f"v_lshl_add_u32 v{t1}, v{vL}, 3, s{T}")
            a(vm0.wait("pk"))
            for u in range(3):
                v, o = (t0, 1024*u) if u < 2 else (t1, 0)
                a(f"ds_read_b64_tr_b16 {vr(PR+4*u,2)}, v{v} offset:{o}"); a(f"ds_read_b64_tr_b16 {vr(PR+4*u+2,2)}, v{v} offset:{o+512}")
        def pack_store():
            for u in range(3):
                l1 = self.lab("pks")
                a(f"s_cmp_eq_u32 s{PDST[u]}, -1"); a(f"s_cbranch_scc1 {l1}")
                a(f"buffer_store_dwordx4 {vr(PR+4*u,4)}, v{vL16}, {sr(WS,4)}, s{PDST[u]} offen sc1")
                a(f"{l1}:")
            vm0.issue("pks")
        def pack_done(): a(vm0.wait("pks"))
        def pack_flag():
            a(f"s_lshl_b32 s{PS}, s{NT}, 13"); a(f"s_add_u32 s{PS}, s{PS}, {hx(FLG+3072)}")
            a(f"s_lshl_b32 s{T}, s{G}, 2"); a(f"s_lshr_b32 s{T+2}, s{IDX}, 3"); a(f"s_add_u32 s{T}, s{T}, s{T+2}"); a(f"s_lshl_b32 s{T}, s{T}, 2"); a(f"s_add_u32 s{T}, s{T}, s{PS}")
            a(f"v_mov_b32 v{t0}, 1"); a(f"v_mov_b32 v{t1}, 0"); a(f"v_lshlrev_b32 v{PA+1}, 2, v{vM}")
            a(f"s_cmp_eq_u32 s{WV}, 0"); a("s_cselect_b64 exec, 1, 0")
            l = self.lab("pkf")
            a(f"s_cbranch_execz {l}")
            a(f"buffer_store_dword v{t0}, v{t1}, {sr(WS,4)}, s{T} offen sc1")
            a(f"{l}:"); a(EXF)
        def pack_ask():
            a(f"buffer_load_dword v{PF}, v{PA+1}, {sr(WS,4)}, s{PS} offen sc1")
            a(f"buffer_load_dword v{t3}, v{PA+1}, {sr(WS,4)}, s{FB} offen offset:3200 sc1"); vm0.issue("ask")
        def pack_wait():
            lp, ld = self.lab("ppoll"), self.lab("pseen")
            a(vm0.wait("ask"))
            a(f"v_min_u32 v{t0}, v{PF}, v{t3}"); a(f"v_cmp_eq_u32 vcc, 0, v{t0}"); a(f"s_cbranch_vccnz {lp}")
            a(f"{ld}:")
            main, self.a = self.a, self.tail
            a(f"{lp}:"); self.poll(WS, PA+1, f"s{PS}", "1")
            a(f"s_add_u32 s{T}, s{FB}, 3200"); self.poll(WS, PA+1, f"s{T}", "16"); a(f"s_branch {ld}")
            self.a = main
            a(f"v_readfirstlane_b32 s{T}, v{t3}"); a("s_nop 1"); a(f"v_cmp_ne_u32 vcc, s{T}, v{t3}")
            a("s_cmp_eq_u64 vcc, 0"); a(f"s_cselect_b32 s{FAST}, {0 if OPT['forceslow'] else 1}, 0")
        pl_, pr_, pd_, pw_ = OPT.get("pk", (0, 3, 6, 12))
        if OPT.get("pspread", 0):
            for u in range(3): at(hk, pl_*32 + 4 + OPT["pspread"]*u, l0only(pack_load(u)))
        else:
            def pack_load_all():
                for u in range(3): pack_load(u)()
            at(hk, pl_*32 + 4, l0only(pack_load_all))
        at(hk, pr_*32 + 20, l0only(pack_read)); at(hk, (pr_+1)*32 + 3, l0only(pack_store))
        assert pd_ % 4 == 2 and kvs[7] >= pd_ > pr_ + 1
        at(hk, pd_*32 - 1, l0only(pack_done)); at(hk, pd_*32 + 3, l0only(pack_flag))
        at(hk, int((pw_ - OPT.get("pa", 1.5))*32) + 30, l0only(pack_ask)); at(hk, pw_*32 + 30, l0only(pack_wait))
        def wo_piece(n, lds, half=False):
            def f():
                if n == 0:
                    a(f"s_mul_i32 s{DS}, s{NT}, {100*1024}"); a(f"s_add_u32 s{DS}, s{DS}, {hx(PKO)}"); a(f"s_lshl_b32 s{T+8}, s{WV}, 10")
                r = WOFF if lds >= 4*SL else T+8
                a(f"s_add_u32 m0, s{r}, {lds}"); a(f"s_add_u32 s{T}, m0, s{DS}")
                if half: a(HALF)
                a(f"buffer_load_dwordx4 v{vL16}, {sr(WS,4)}, s{T} offen sc1 lds"); both("wo")
                if half: a(EXF)
            return f
        wst = OPT.get("wst", [13, 13.5, 14, 14.5, 15, 15.5, 16, 18, 18.5, 19, 22, 22.5, 23])
        wpos = [int(x*32) + OPT.get('e1', 9) for x in wst]
        for n in range(13):
            last = (n*8192 + 8191) // SL if n < 10 else 4
            assert wst[n] >= 4*last + 6 and wst[n] > pw_
        for n in range(0 if OPT.get("x_nowo") else 10): at(hk, wpos[n], wo_piece(n, n*8192))
        for i in range(0 if OPT.get("x_nowo") else 3): at(hk, wpos[10+i], wo_piece(10+i, 4*SL + 1024*i, i == 2))
        TB = T + 1
        def touch(setup, nlines, stride, k):
            def f():
                if setup:
                    setup()
                    a(f"v_min_u32 v{PA+2}, {nlines-1}, v{vL}"); a(f"v_lshlrev_b32 v{PA+2}, 7, v{PA+2}")
                else: a(f"s_add_u32 s{TB}, s{TB}, {stride}")
                a(f"buffer_load_dword v{PF+1+(k&1)}, v{PA+2}, {sr(WS,4)}, s{TB} offen sc1"); both("pf")
            return f
        def share(buf, per_wave):
            def f():
                a(f"s_lshl_b32 s{TB}, s{G}, 5"); a(f"s_add_u32 s{TB}, s{TB}, s{IDX}"); a(f"s_lshl_b32 s{TB}, s{TB}, 3"); a(f"s_add_u32 s{TB}, s{TB}, s{WV}")
                a(f"s_mul_i32 s{TB}, s{TB}, {per_wave}"); a(f"s_add_u32 s{TB}, s{TB}, {hx(buf)}")
            return f
        def tile(buf, mask, sh, tbytes, nl):
            def f():
                a(f"s_and_b32 s{T}, s{IDX}, {mask}"); a(f"s_mul_i32 s{T}, s{T}, {tbytes}")
                a(f"s_lshr_b32 s{TB}, s{IDX}, {sh}"); a(f"s_lshl_b32 s{TB}, s{TB}, 3"); a(f"s_add_u32 s{TB}, s{TB}, s{WV}"); a(f"s_mul_i32 s{TB}, s{TB}, {nl*128}")
                a(f"s_add_u32 s{TB}, s{TB}, s{T}"); a(f"s_add_u32 s{TB}, s{TB}, {hx(buf)}")
            return f
        tl = dict(x=(share(XF, XB//16), 11, 0), h=(share(HF, HB_//16), 13, 12*128),
                  a=(tile(PK1 + 32768, 15, 4, 120*1024, 6), 6, 61440 + 16384), c=(tile(PK2, 15, 4, 120*1024, 10), 10, SL))
        def code_touch(l0, l1):
            def f():
                l, pc = self.lab("ct"), self.lab("pc")
                a(f"s_cmp_eq_u32 s{WV}, 7"); a(f"s_cbranch_scc0 {l}")
                a(f"s_getpc_b64 {sr(T+2,2)}"); a(f"{pc}:")
                a(f"s_lshl_b32 s{T}, s{IDX}, 10"); a(f"s_add_u32 s{T}, s{T}, {l0}-{pc}")
                a(f"v_and_b32 v{t0}, 7, v{vL}"); a(f"v_lshl_add_u32 v{t0}, v{t0}, 7, s{T}"); a(f"v_min_u32 v{t0}, {l1}-{pc}, v{t0}")
                a(f"global_load_dword v{PF+3}, v{t0}, {sr(T+2,2)}")
                a(f"{l}:")
            return f
        def bias_touch():
            l = self.lab("bt")
            a(f"s_cmp_eq_u32 s{WV}, 6"); a(f"s_cbranch_scc0 {l}")
            a(f"v_lshlrev_b32 v{t0}, 7, v{vM}")
            a(f"buffer_load_dword v{PF+3}, v{t0}, {sr(B1,4)}, 0 offen"); a(f"buffer_load_dword v{PF+3}, v{t0}, {sr(B2,4)}, 0 offen")
            a(f"{l}:")
        def out_touch():
            l = self.lab("ot")
            a(f"s_cmp_eq_u32 s{LAY}, 1"); a(f"s_cbranch_scc0 {l}")
            a(f"s_lshl_b32 s{T}, s{G}, 5"); a(f"s_add_u32 s{T}, s{T}, s{IDX}"); a(f"s_lshl_b32 s{T}, s{T}, 3"); a(f"s_add_u32 s{T}, s{T}, s{WV}"); a(f"s_mul_i32 s{T}, s{T}, 1280")
            a(f"v_min_u32 v{t0}, 9, v{vL}"); a(f"v_lshlrev_b32 v{t0}, 7, v{t0}")
            a(f"buffer_load_dword v{PF+3}, v{t0}, {sr(OUT,4)}, s{T} offen")
            a(f"{l}:")
        if OPT.get("ct", 24) is not None: at(hk, OPT.get("ct", 24)*32 + 11, l0only(code_touch("L_att_fin", "L_last")))
        if OPT.get("bt", 25) is not None: at(hk, OPT.get("bt", 25)*32 + 11, bias_touch)
        if OPT.get("ot") is not None: at(hk, OPT["ot"]*32 + 19, out_touch)
        EA = KK[0]
        def ex_addr():
            for u in range(2):
                if u: a(f"s_xor_b32 s{T}, s{WV}, 4")
                w = T if u else WV
                a(f"s_lshl_b32 s{T+2}, s{w}, 11"); a(f"s_add_u32 s{T+2}, s{T+2}, {5*SL}"); a(f"v_add_u32 v{EA+2*u}, s{T+2}, v{vL16}")
                a(f"s_lshr_b32 s{T+2}, s{w}, 2"); a(f"s_mul_i32 s{T+2}, s{T+2}, {2*SL - 16384}"); a(f"s_lshl_b32 s{T+3}, s{HW}, 10"); a(f"s_add_u32 s{T+2}, s{T+2}, s{T+3}")
                a(f"s_add_u32 s{T+2}, s{T+2}, {5*SL + 16384}"); a(f"v_add_u32 v{EA+2*u+1}, s{T+2}, v{vL16}")
        def ex_write():
            for i in range(3): a(f"ds_write_b128 v{EA + (i == 2)}, {vr(O[0]+4*i,4)} offset:{1024*(i & 1)}")
        at(hk, (NSTEP-1)*32 + 5, ex_addr); at(hk, (NSTEP-1)*32 + 29, ex_write)
        PL = T + 12
        self.PLC = [188 + 4*i for i in range(6)] + [CS1 + 4, CS1]
        self.PLH = [188 + 4*i for i in range(6)] + [CS1 + 4] + [RES + 4*i for i in range(5)]
        def pl_load(reg, i): a(f"s_add_u32 s{T}, s{PL}, {4096*i}"); a(f"buffer_load_dwordx4 {vr(reg,4)}, v{vL16}, {sr(WS,4)}, s{T} offen sc1")
        def pl_piece(i):
            def f():
                if i == 0:
                    a(f"s_and_b32 s{T}, s{IDX}, 15"); a(f"s_lshl_b32 s{T}, s{T}, 1"); a(f"s_lshr_b32 s{PL}, s{WV}, 2"); a(f"s_add_u32 s{T}, s{T}, s{PL}")
                    a(f"s_mul_i32 s{T}, s{T}, 61440"); a(f"s_lshl_b32 s{PL}, s{HW}, 10"); a(f"s_add_u32 s{PL}, s{PL}, s{T}"); a(f"s_add_u32 s{PL}, s{PL}, {hx(PK1)}")
                if i < 7:
                    pl_load(self.PLC[i], i); both("pl")
                else:
                    l, l2 = self.lab("plh"), self.lab("pld")
                    a(f"s_cmp_ge_u32 s{WV}, 4"); a(f"s_cbranch_scc1 {l}")
                    if i == 7: pl_load(self.PLC[7], 7)
                    else:
                        a(f"s_lshl_b32 s{T}, s{HW}, 10"); a(f"s_add_u32 m0, s{T}, {5*SL + 4096*(i+3)}"); a(f"s_add_u32 s{T}, s{PL}, {4096*(i+3)}")
                        a(f"buffer_load_dwordx4 v{vL16}, {sr(WS,4)}, s{T} offen sc1 lds")
                    a(f"{l2}:"); both("pl")
                    main, self.a = self.a, self.tail
                    a(f"{l}:"); pl_load(self.PLH[i], i); a(f"s_branch {l2}")
                    self.a = main
            return f
        plst = OPT.get("plst", [13 + 0.5*i for i in range(12)])
        for i in range(0 if OPT.get("x_nopl") else 12):
            assert plst[i] > pw_
            at(hk, int(plst[i]*32) + OPT.get('e2', 3), pl_piece(i))
        k = 0
        for name, sts in OPT.get("touch", dict(c=[18.5, 19.5, 20.5, 21.5, 22.5, 23.5], a=[24, 24.5], h=[25, 25.5], x=[26])).items():
            for i, st in enumerate(sts):
                assert name in "xh" or st > pw_
                at(hk, int(st*32) + OPT.get('e3', 11), touch(tl[name][0] if i == 0 else None, tl[name][1], tl[name][2], k)); k += 1
        for t in range(NSTEP):
            if t % 4 == 2:
                b = t // 4 + 2
                if b <= 7:
                    a(vm1.wait(("kv", b))); vm0.wait(("kv", b))
                if t not in OPT.get("nobar", ()): a("s_barrier")
                prio(3)()
                if t + 3 < NSTEP:
                    at(hk, (t+1)*32 + 31, prio(2)); at(hk, (t+2)*32 + 31, prio(1)); at(hk, (t+3)*32 + OPT.get("plast", 26), prio(0))
            if t == 0:
                at(hk, 31, prio(1)); at(hk, 32 + OPT.get("plast", 26), prio(0))
            if t == NSTEP - 1:
                at(hk, t*32 + 0, prio(1)); at(hk, t*32 + OPT.get("plast", 26), prio(0))
            if t % 8 == 0 and t > 0:
                for r in (AK, AK4, AV): a(f"v_add_u32 v{r}, {2*SL}, v{r}")
                base[0] += 2*SL
            step(t, NSTEP - 1, first=(t == 0), hook=hk[t])
        a("s_nop 1")
        a(pv(NSTEP - 1, 3))
        base[0] = 0
        self.stamp(8)
        FL = 7*SL - 32
        a("L_att_fin:")
        a("s_waitcnt vmcnt(0) lgkmcnt(0)"); a("s_barrier")
        for i in range(3): a(f"ds_read_b128 {vr(S[0]+4*i,4)}, v{EA + 2 + (i == 2)} offset:{1024*(i & 1)}")
        a(f"s_lshl_b32 s{T}, s{WV}, 2"); a(f"s_add_u32 s{T}, s{T}, {FL}"); a(f"v_mov_b32 v{t2}, s{T}")
        a(f"v_and_b32 v{t3}, 7, v{vL}"); a(f"v_lshlrev_b32 v{t3}, 2, v{t3}"); a(f"v_add_u32 v{t3}, {FL}, v{t3}")
        a(f"s_mov_b32 s{T}, {hx(f2u(2.0**-24))}"); a(f"s_mov_b32 s{T+1}, {hx(f2u(2.0**48))}")
        a("s_waitcnt lgkmcnt(0)")
        Oo = O[1]
        a(f"v_add_f32 v{t0}, v{Oo+8}, v{S[0]+8}"); a(f"v_add_f32 v{t1}, v{Oo+8}, v{S[0]+8}")
        for i in (0, 2): a(f"v_pk_add_f32 {vr(Oo+i,2)}, {vr(Oo+i,2)}, {vr(S[0]+i,2)}")
        a(f"v_permlane32_swap_b32 v{t1}, v{t0}")
        for i in (4, 6): a(f"v_pk_add_f32 {vr(Oo+i,2)}, {vr(Oo+i,2)}, {vr(S[0]+i,2)}")
        a(f"v_rcp_f32 v{S[0]+12}, v{t0}")
        for i in (8, 10): a(f"v_pk_add_f32 {vr(Oo+i,2)}, {vr(Oo+i,2)}, {vr(S[0]+i,2)}")
        a(f"v_mov_b32 v{S[0]+13}, v{S[0]+12}")
        for i in range(0, 12, 2): a(f"v_pk_mul_f32 {vr(Oo+i,2)}, {vr(Oo+i,2)}, {vr(S[0]+12,2)}")
        for i in range(6): a(f"v_cvt_pk_bf16_f32 v{S[0]+i}, v{Oo+2*i}, v{Oo+2*i+1}")
        self.mstore([f"buffer_store_dwordx2 {vr(S[0],2)}, v{OA}, {sr(WS,4)}, s{OS} offen",
                     f"buffer_store_dwordx2 {vr(S[0]+2,2)}, v{OA+1}, {sr(WS,4)}, s{OS} offen",
                     "s_mov_b32 exec_hi, 0",
                     f"buffer_store_dwordx2 {vr(S[0]+4,2)}, v{OA+2}, {sr(WS,4)}, s{OS} offen",
                     EXF])
        Z = S[0] + 14
        a(f"v_mov_b64 {vr(Z,2)}, 0"); a(f"v_mov_b64 {vr(Z+2,2)}, 0")
        a(f"v_cmp_nle_f32 vcc, s{T}, v{t0}"); a(f"v_cmp_nge_f32 {sr(T+2,2)}, s{T+1}, v{t0}")
        for i in range(0, 12, 2): a(f"v_pk_fma_f32 {vr(Z,2)}, {vr(Oo+i,2)}, {vr(Z+2,2)}, {vr(Z,2)}")
        a(f"s_or_b64 vcc, vcc, {sr(T+2,2)}")
        a(f"v_cmp_u_f32 {sr(T+4,2)}, v{Z}, v{Z+1}")
        a(f"s_or_b64 vcc, vcc, {sr(T+4,2)}")
        a(f"s_cselect_b32 s{T}, 1, 0"); a(f"v_mov_b32 v{t1}, s{T}")
        a(f"ds_write_b32 v{t2}, v{t1}")
        a("s_waitcnt lgkmcnt(0)"); a("s_barrier")
        a(f"ds_read_b32 v{t1}, v{t3}")
        a(f"s_add_u32 s{T+6}, s{LAY}, 1")
        a("s_waitcnt lgkmcnt(0)")
        a(f"v_cmp_lt_u32 vcc, s{PASS}, v{t1}")
        if not OPT.get("x_nofb"): a("s_cbranch_vccnz L_att_redo")
        self.flag(f"s{FO}", f"s{T+6}")
        self.stamp(9)
        main, self.a = self.a, self.tail
        a("L_att_redo:")
        for i in range(32): a(f"v_mov_b32 v{NM+i}, 0")
        a(f"v_mov_b32 v{PF}, 0xff800000"); a(f"v_mov_b32 v{PF+1}, 0xff800000")
        for q in range(2):
            for i in range(16): a(f"v_mov_b32 v{O[q]+i}, 0")
        a("L_fb_pass:")
        a(f"s_mov_b32 s{IT}, 0")
        a("L_fb_blk:")
        a("s_waitcnt vmcnt(0) lgkmcnt(0)"); a("s_barrier")
        a(f"s_lshl_b32 s{T+7}, s{IT}, 1"); a(f"s_lshr_b32 s{T}, s{WV}, 2"); a(f"s_add_u32 s{T+7}, s{T+7}, s{T}")
        a(f"s_mul_i32 s{T+7}, s{T+7}, 10240"); a(f"s_add_u32 s{T+7}, s{T+7}, s{KVS}")
        for i in range(3): kv_dma1(T+7, 6, i)
        set_addr(6*SL)
        a(f"s_mov_b32 s{T+9}, 0")
        a("s_waitcnt vmcnt(0)"); a("s_barrier")
        a("L_fb_step:")
        a(rdK4(0)); a(rdK(0)); a(EXM); a(rdV(0, 0)); a(rdV(0, 1)); a(EXF)
        a("s_waitcnt lgkmcnt(0)")
        a(m2b(0, vr(NM, 32))); a("s_nop 15"); a("s_nop 1"); a(mk(0, 0)); a(mk(0, 1)); a("s_nop 11")
        a(f"s_cmp_eq_u32 s{PASS}, 0"); a("s_cbranch_scc0 L_fb_sum")
        for q in range(2):
            for i in range(0, 16, 2): a(f"v_max3_f32 v{PF+q}, v{PF+q}, v{S[0]+16*q+i}, v{S[0]+16*q+i+1}")
        a("s_branch L_fb_next")
        a("L_fb_sum:")
        for e in range(32): a(f"v_exp_f32 v{S[0]+e}, v{S[0]+e}")
        a("s_nop 1")
        for i in range(4): a(pv(0, i))
        a("L_fb_next:")
        for r in (AK, AK4, AV): a(f"v_add_u32 v{r}, 2560, v{r}")
        a(f"s_add_u32 s{T+9}, s{T+9}, 1"); a(f"s_cmp_lt_u32 s{T+9}, 4"); a("s_cbranch_scc1 L_fb_step")
        a(f"s_add_u32 s{IT}, s{IT}, 1"); a(f"s_cmp_lt_u32 s{IT}, 8"); a("s_cbranch_scc1 L_fb_blk")
        a("s_nop 15")
        a(f"s_cmp_eq_u32 s{PASS}, 0"); a("s_cbranch_scc1 L_fb_max")
        ex_addr(); ex_write()
        a("s_branch L_att_fin")
        a("L_fb_max:")
        self.swap_add([PF, PF+1], t0, 32, "v_max_f32")
        a(f"s_lshl_b32 s{T}, s{WV}, 9"); a(f"s_add_u32 s{T}, s{T}, {5*SL}"); a(f"v_lshl_add_u32 v{t0}, v{vL}, 3, s{T}")
        a(f"s_xor_b32 s{T}, s{WV}, 4"); a(f"s_lshl_b32 s{T}, s{T}, 9"); a(f"s_add_u32 s{T}, s{T}, {5*SL}"); a(f"v_lshl_add_u32 v{t1}, v{vL}, 3, s{T}")
        a(f"ds_write_b64 v{t0}, {vr(PF,2)}")
        a("s_waitcnt lgkmcnt(0)"); a("s_barrier")
        a(f"ds_read_b64 {vr(t2,2)}, v{t1}")
        a("s_waitcnt lgkmcnt(0)")
        a(f"v_max_f32 v{PF}, v{PF}, v{t3}"); a(f"v_max_f32 v{PF+1}, v{PF+1}, v{t2}")
        for i in range(32): a(f"v_sub_f32 v{NM+i}, 0, v{PF+(i>>4)}")
        a(f"s_mov_b32 s{PASS}, 1"); a("s_branch L_fb_pass")
        self.a = main

    def chain(self):
        a = self.p
        a(f"s_cmp_ge_u32 s{WV}, 4"); a("s_cbranch_scc1 L_ch_h")
        RA = PB
        BI = PB + 4
        BR = PB + 16
        AC = PB + 48
        P  = PB + 88
        AR = PB + 104
        WXL = 2*SL - 4096
        ring = lambda b, n: [b + 4*i for i in range(n)]
        NF5, NF6 = OPT.get("nf5", 8), OPT.get("nf6", 8)
        def abase(buf, ks, sk, other):
            a(f"s_mul_i32 s{T}, s{sk}, {ks//2*1024}"); a(f"s_add_u32 s{T}, s{T}, {hx(buf)}")
            a(f"s_mul_i32 s{A0}, s{RBO}, {HB_}"); a(f"s_add_u32 s{A0}, s{A0}, s{T}")
            a(f"s_xor_b32 s{A1}, s{RBO}, {other}"); a(f"s_mul_i32 s{A1}, s{A1}, {HB_}"); a(f"s_add_u32 s{A1}, s{A1}, s{T}")
        def first(vm, RD, AR):
            for gs in range(IN):
                for ls in self.a_loads(gs, RD, AR): a.extend(ls); vm.issue(("A", gs))
        IN = OPT.get("in_c", 2)
        B_ = ["s_barrier"]
        TWO = OPT.get("two", 0)
        a("s_setprio 1")
        a(f"s_and_b32 s{T+2}, s{FXO}, -256"); a(f"s_add_u32 s{T+2}, s{T+2}, 128")
        a(f"v_and_b32 v{t2}, 31, v{vL}"); a(f"v_lshlrev_b32 v{t2}, 2, v{t2}")
        a(f"s_lshl_b32 s{T}, s{WV}, 10"); a(f"s_add_u32 s{T}, s{T}, {5*SL}"); a(f"v_add_u32 v{t0}, s{T}, v{vL16}")
        OB = [A0, A1, T+7, T+8, T+9]
        a(f"s_mul_i32 s{A0}, s{RBO}, {HB_}"); a(f"s_add_u32 s{A0}, s{A0}, {hx(OF)}")
        for i in range(1, 5): a(f"s_add_u32 s{OB[i]}, s{A0}, {4096*i}")
        a(f"v_add_u32 v{RA}, 61440, v{vL16}"); a(f"v_lshlrev_b32 v{t1}, 3, v{vG}")
        for i, r in enumerate(self.PLC):
            if i == OPT.get("pi", 3): a(f"buffer_load_dword v{t3}, v{t2}, {sr(WS,4)}, s{T+2} offen sc1")
            a(f"ds_write_b128 v{t0}, {vr(r,4)} offset:{4096*i}")
        self.poll(WS, t2, f"s{T+2}", f"s{T+6}", issued=OPT.get("pi", 3) < 8)
        self.stamp(10)
        vm = Cnt("vmcnt", 63)
        def bias2(burst):
            for nb in range(5):
                a(f"buffer_load_dwordx2 {vr(BI+2*nb,2)}, v{t1}, {sr(B2,4)}, s{COL+nb} offen"); vm.issue("b2")
        self.gemm2([(ks, (0,)) for ks in range(20)], 5, ring(AR, 10), 10, ring(BR, NF5), RES,
                   lambda ks, nb: (vL16 if ks < 12 else RA, (ks % 12)*5120 + nb*1024),
                   lambda ks, rb, r: f"buffer_load_dwordx4 {vr(r,4)}, v{vL16}, {sr(WS,4)}, s{OB[ks//4]} offen offset:{1024*(ks % 4)} sc1",
                   vm, lambda rb, nb: vr(RES + 4*nb, 4), init=OPT.get("in_o", 4), ahead=OPT.get("ah_o", 6), bars={OPT.get("ob", 2): B_})
        self.stamp(11)
        if not OPT.get("lb", 0): a("s_barrier")
        else: a("s_nop 0")
        a(f"s_lshl_b32 s{T+3}, s{LAY}, 2"); a(f"s_add_u32 s{T+5}, s{T+3}, 4"); a(f"s_add_u32 s{T+3}, s{T+3}, 3")
        for i in range(10): a(f"v_cvt_pk_bf16_f32 v{P+i}, v{RES+2*i}, v{RES+2*i+1}")
        def f1_setup():
            a(f"s_and_b32 s{T+2}, s{FXO}, -256"); a(f"s_and_b32 s{T+4}, s{IDX}, 15")
            a(f"s_lshl_b32 s{FO}, s{T+4}, 2"); a(f"s_add_u32 s{FO}, s{FO}, s{T+2}"); a(f"s_add_u32 s{FO}, s{FO}, 64")
            a(f"s_xor_b32 s{T}, s{RBO}, 1")
            a(f"s_mul_i32 s{A0}, s{RBO}, {XB}"); a(f"s_mul_i32 s{A1}, s{T}, {XB}"); a(f"s_min_u32 s{T+1}, s{A0}, s{A1}"); a(f"s_add_u32 s{T+1}, s{T+1}, 20480")
            a(f"s_mul_i32 s{IT}, s{T}, {HB_}"); a(f"s_mul_i32 s{OS}, s{RBO}, {HB_}"); a(f"s_mul_i32 s{T}, s{T+4}, 3072"); a(f"s_add_u32 s{T}, s{T}, {hx(HF)}")
            a(f"s_add_u32 s{OS}, s{OS}, s{T}"); a(f"s_add_u32 s{IT}, s{IT}, s{T}")
            a(f"v_add_u32 v{RA}, {5*SL}, v{vL16}"); a(f"v_add_u32 v{RA+1}, {2*SL}, v{vL16}")
            a(f"v_and_b32 v{RA+2}, 511, v{vL16}")
            a(f"v_lshlrev_b32 v{t1}, 3, v{vG}"); bias2(None)
            a(f"v_lshlrev_b32 v{t2}, 2, v{vJ}")
        self.xstore(f"s{T+5}", P, before_flag=f1_setup, packed=True, two=TWO, bar=OPT.get("lb", 0))
        self.stamp(12)
        RD = OPT.get("rd_1", 6)
        ST = PB + 96; RS = PB + 104; TX = PB + 108; TM = PB + 116; AR1 = PB + 120
        assert AR1 + 8*RD <= STH
        a(f"buffer_load_dword v{t3}, v{t2}, {sr(WS,4)}, s{T+2} offen sc1")
        if not TWO:
            for i in range(10):
                a(f"v_lshlrev_b32 v{t0}, 16, v{BI+i}"); a(f"v_and_b32 v{t1}, 0xffff0000, v{BI+i}")
                a(f"v_pk_add_f32 {vr(RES+2*i,2)}, {vr(RES+2*i,2)}, {vr(t0,2)}")
        a("s_waitcnt vmcnt(0)")
        if TWO: self.xflag2(f"s{T+5}")
        lp, ld = self.lab("x1"), self.lab("x1d")
        a(f"v_cmp_gt_u32 vcc, s{T+3}, v{t3}"); a(f"s_cbranch_vccnz {lp}"); a(f"{ld}:")
        main, self.a = self.a, self.tail
        a(f"{lp}:"); self.poll(WS, t2, f"s{T+2}", f"s{T+3}"); a(f"s_branch {ld}")
        self.a = main
        self.stamp(13)
        vm = Cnt("vmcnt", 63)
        first(vm, RD, AR1)
        if not TWO: self.stat_loads(ST, f"s{T+1}", vm, KH)
        for i in range(10 if TWO else 0):
            a(f"v_lshlrev_b32 v{t0}, 16, v{BI+i}"); a(f"v_and_b32 v{t1}, 0xffff0000, v{BI+i}")
            a(f"v_pk_add_f32 {vr(RES+2*i,2)}, {vr(RES+2*i,2)}, {vr(t0,2)}")
        a("s_barrier")
        self.stamp(14)
        c1 = 2*math.sqrt(2/math.pi)*math.log2(math.e)
        def prep():
            a("WAITV:st")
            self.stat_sum(ST, TM); self.stat_math(ST, RS, TX, True, halves=True)
            for rb in range(2):
                a(f"v_mul_f32 v{ST+4*rb}, {hx(f2u(-c1))}, v{RS+rb}"); a(f"v_mul_f32 v{TM}, v{RS+rb}, v{RS+rb}")
                a(f"v_mul_f32 v{TM}, {hx(f2u(0.044715))}, v{TM}"); a(f"v_mul_f32 v{ST+4*rb+2}, v{TM}, v{ST+4*rb}")
                a(f"v_mov_b32 v{ST+4*rb+1}, v{ST+4*rb}"); a(f"v_mov_b32 v{ST+4*rb+3}, v{ST+4*rb+2}")
            a(f"v_rcp_f32 v{RS+2}, v{RS+1}"); a(f"v_rcp_f32 v{RS}, v{RS}"); a("s_nop 0")
            a(f"v_mov_b32 v{RS+3}, v{RS+2}"); a(f"v_mov_b32 v{RS+1}, v{RS}")
            f2_setup()
        HO_ = [89, 90, 91, 92, 94, 95, 101]
        VA = BI
        def f2_setup():
            for j in range(1, 8):
                a(f"s_add_u32 s{T}, s{NT}, {j}"); a(f"s_and_b32 s{T}, s{T}, 7"); a(f"s_mul_i32 s{HO_[j-1]}, s{T}, 3072")
            a(f"s_mul_i32 s{T}, s{NT}, 3072")
            a(f"s_sub_u32 s{T+1}, s{OS}, s{T}"); a(f"v_add_u32 v{VA}, s{T+1}, v{vL16}")
            a(f"s_sub_u32 s{T+1}, s{IT}, s{T}"); a(f"v_add_u32 v{VA+1}, s{T+1}, v{vL16}")
            a(f"v_add_u32 v{RA+3}, 61440, v{vL16}")
            a(f"s_mul_i32 s{T}, s{KH}, {2*XB}"); a(f"s_sub_u32 s{T}, {XB}, s{T}"); a(f"s_add_u32 s{T+4}, s{XA}, s{T}"); a(f"s_add_u32 s{T+5}, s{XS}, s{T}")
            a(f"s_bfe_u32 s{T}, s{FXO}, 0x30008"); a(f"s_lshl_b32 s{T}, s{T}, 6"); a(f"s_and_b32 s{T+1}, s{FXO}, 63"); a(f"s_add_u32 s{T}, s{T}, s{T+1}")
            a(f"s_add_u32 s{T}, s{T}, s{FB}"); a(f"s_add_u32 s{T+6}, s{T}, 3328"); a(f"s_xor_b32 s{T+7}, s{T+6}, 4")
            a(f"s_and_b32 s{T+8}, s{FXO}, -256"); a(f"s_add_u32 s{T+8}, s{T+8}, 64")
            a(f"s_lshl_b32 s{T}, s{KH}, 5"); a(f"s_add_u32 s{T+9}, s{T+8}, s{T}")
            a(f"s_lshl_b32 s{T+10}, s{LAY}, 1"); a(f"s_add_u32 s{T+10}, s{T+10}, 1"); a(f"s_add_u32 s{T+11}, s{T+10}, 1")
            a(f"v_lshlrev_b32 v{VA+2}, 2, v{vJ}"); a(f"v_and_b32 v{VA+3}, 28, v{VA+2}")
            a(f"v_mov_b32 v{VA+4}, s{T+10}"); a(f"v_mov_b32 v{VA+5}, s{T+11}"); a(f"v_mov_b32 v{VA+6}, 0")
        pl = self.capture(prep)
        xs = OPT.get("xs", 20); fs = OPT.get("fs", 4) if TWO else IN - 1
        def ask1(b): a(f"buffer_load_dword v{t3}, v{t2}, {sr(WS,4)}, s{T+2} offen sc1"); vm.issue("x2")
        self.gemm(21, 6, RD, AR1, ring(BR, NF6), AC, lambda gs, nb: (RA + gs // 10, (gs % 10)*6144 + nb*1024 if gs < 20 else WXL + nb*512), None, vm,
                  extra={fs + 2 + i: pl[i*xs:(i+1)*xs] for i in range((len(pl) + xs - 1)//xs)},
                  hooks={fs - 2: ask1, fs: lambda b: (self.check(vm, "x2", t2, f"s{T+2}", f"s{T+5}"), self.stat_loads(ST, f"s{T+1}", vm, KH))} if TWO else {},
                  wgrp=OPT.get("wg6", 2), init=IN, areg={20: TX})
        a("s_barrier")
        self.stamp(15)
        TM = AR1
        RD = 8
        def hflag(v):
            a("s_mov_b64 exec, 1")
            self.mstore([f"buffer_store_dword v{v}, v{VA+6}, {sr(WS,4)}, s{FO} offen"])
            a("s_mov_b64 exec, -1")
        TM = BR
        groups = [[(kp, 0), (kp, 1)] for kp in range(3)] if OPT.get("gw", 2) == 2 else [[(kp, rb)] for kp in range(3) for rb in range(2)]
        for gi, grp in enumerate(groups):
            E = [(AC + 4*(6*rb + 2*kp) + 2*i, TM + 8*rb + 2*i, rb, AR + 24 + 4*(2*kp + rb) + i) for kp, rb in grp for i in range(4)]
            for r, t, rb, p in E: a(f"v_pk_mul_f32 {vr(t,2)}, {vr(r,2)}, {vr(r,2)}")
            for r, t, rb, p in E: a(f"v_pk_fma_f32 {vr(t,2)}, {vr(t,2)}, {vr(ST+4*rb+2,2)}, {vr(ST+4*rb,2)}")
            for r, t, rb, p in E: a(f"v_pk_mul_f32 {vr(t,2)}, {vr(t,2)}, {vr(r,2)}")
            for r, t, rb, p in E: a(f"v_exp_f32 v{t}, v{t}"); a(f"v_exp_f32 v{t+1}, v{t+1}")
            for r, t, rb, p in E: a(f"v_pk_fma_f32 {vr(t,2)}, {vr(t,2)}, {vr(RS+2*rb,2)}, {vr(RS+2*rb,2)}")
            for n, (r, t, rb, p) in enumerate(E):
                if gi == len(groups) - 1 and OPT.get("fa", 1) and n == OPT.get("fap", 4) % len(E):
                    a(f"s_waitcnt vmcnt({2 - len(grp)})"); hflag(VA+4)
                a(f"v_rcp_f32 v{t}, v{t}"); a(f"v_rcp_f32 v{t+1}, v{t+1}")
            for r, t, rb, p in E: a(f"v_pk_mul_f32 {vr(r,2)}, {vr(r,2)}, {vr(t,2)}")
            for r, t, rb, p in E: a(f"v_cvt_pk_bf16_f32 v{p}, v{r}, v{r+1}")
            self.mstore([f"buffer_store_dwordx4 {vr(AR + 24 + 4*(2*kp + rb),4)}, v{vL16}, {sr(WS,4)}, s{OS if rb == 0 else IT} offen offset:{1024*kp}" for kp, rb in grp])
        if not OPT.get("fa", 1):
            a("s_waitcnt vmcnt(2)"); hflag(VA+4)
        self.stamp(16)
        vm = Cnt("vmcnt", 63)
        def hload(gs, rb, r):
            j, kp = (1 + (gs - 3)//2, (gs - 3) & 1) if gs < 17 else (gs - 16, 2)
            return f"buffer_load_dwordx4 {vr(r,4)}, v{VA+rb}, {sr(WS,4)}, s{HO_[j-1]} offen offset:{1024*kp} sc1"
        def ask_a(burst): a(f"buffer_load_dword v{t3}, v{VA+3}, {sr(WS,4)}, s{T+9} offen sc1")
        def got_a(burst):
            a("s_waitcnt vmcnt(0)"); hflag(VA+5)
            lp, ld = self.lab("ha"), self.lab("had")
            a(f"v_cmp_gt_u32 vcc, s{T+10}, v{t3}"); a(f"s_cbranch_vccnz {lp}"); a(f"{ld}:")
            main, self.a = self.a, self.tail
            a(f"{lp}:"); self.poll(WS, VA+3, f"s{T+9}", f"s{T+10}"); a(f"s_branch {ld}")
            self.a = main
            self.stamp(17); self.stamp(18)
            burst(OPT.get("hb", 4))
        def ask_b(burst):
            a(f"buffer_load_dword v{t3}, v{VA+2}, {sr(WS,4)}, s{T+8} offen sc1"); vm.issue("hb")
        def got_b(burst):
            lp, ld = self.lab("hb"), self.lab("hbd")
            a(vm.wait("hb"))
            a(f"v_cmp_gt_u32 vcc, s{T+11}, v{t3}"); a(f"s_cbranch_vccnz {lp}"); a(f"{ld}:")
            main, self.a = self.a, self.tail
            a(f"{lp}:"); self.poll(WS, VA+2, f"s{T+8}", f"s{T+11}"); a(f"s_branch {ld}")
            self.a = main
        ha = OPT.get("ha", 1)
        g1_, g2_ = OPT.get("gb", (5, 14))
        SP_ = OPT.get("sp", 10)
        plan = [(ks, (0, 1)) for ks in range(SP_)] + [(ks, (1,)) for ks in range(SP_, 24)] + [(ks, (0,)) for ks in range(SP_, 24)]
        Q = AC + 20
        def send(burst):
            self.mstore([f"buffer_store_dwordx4 {vr(P,4)}, v{vL16}, {sr(WS,4)}, s{T+4} offen",
                         f"buffer_store_dwordx4 {vr(P+4,4)}, v{vL16}, {sr(WS,4)}, s{T+4} offen offset:1024",
                         f"buffer_store_dwordx2 {vr(P+8,2)}, v{vL16}, {sr(WS,4)}, s{T+5} offen"])
            for _ in range(3): vm.issue("ps")
        def sent(burst):
            a(vm.wait("ps"))
            a("s_mov_b64 exec, 1")
            self.mstore([f"buffer_store_dword v{VA+5}, v{VA+6}, {sr(WS,4)}, s{T+6} offen"]); vm.issue("pf")
            a("s_mov_b64 exec, -1")
        def ask_p(burst):
            a(f"buffer_load_dword v{t3}, v{VA+6}, {sr(WS,4)}, s{T+7} offen sc1"); vm.issue("pa")
        def got_p(burst):
            lp, ld = self.lab("pp"), self.lab("ppd")
            a(vm.wait("pa"))
            a(f"v_cmp_gt_u32 vcc, s{T+11}, v{t3}"); a(f"s_cbranch_vccnz {lp}"); a(f"{ld}:")
            main, self.a = self.a, self.tail
            a(f"{lp}:"); self.poll(WS, VA+6, f"s{T+7}", f"s{T+11}"); a(f"s_branch {ld}")
            self.a = main
            a(f"buffer_load_dwordx4 {vr(Q,4)}, v{vL16}, {sr(WS,4)}, s{XA} offen sc1")
            a(f"buffer_load_dwordx4 {vr(Q+4,4)}, v{vL16}, {sr(WS,4)}, s{XA} offen offset:1024 sc1")
            a(f"buffer_load_dwordx2 {vr(Q+8,2)}, v{vL16}, {sr(WS,4)}, s{XS} offen sc1")
            for _ in range(3): vm.issue("pl")
        x0, x1, x2, x3 = [24 + x for x in OPT.get("xp", (1, 5, 7, 11))]
        def cvt_send(burst):
            for i in range(10): a(f"v_cvt_pk_bf16_f32 v{P+i}, v{AC+20+2*i}, v{AC+21+2*i}")
            send(burst)
        hk2 = {ha - 1: ask_a, ha: got_a, 6: ask_b, 11: got_b, x0: cvt_send, x1: sent, x2: ask_p, x3: got_p}
        self.gemm2(plan, 5, [AR + 4*((m + 6) % 16) for m in range(16)], 16, ring(BR, NF5), AC,
                   lambda ks, nb: (vL16 if ks < 12 else RA+3, (ks % 12)*5120 + nb*1024), hload, vm,
                   lambda rb, nb: vr(RES + 4*nb, 4) if rb == 0 else "0", have=6, ahead=OPT.get("ah_2", 8),
                   bars={g1_: B_, g2_: B_}, hooks={k: v for k, v in hk2.items() if k < len(plan)}, gate={3: ha, 17: 11})
        for k in sorted(hk2):
            if k >= len(plan): hk2[k](None)
        self.stamp(19)
        if not OPT.get("lb", 0): a("s_barrier")
        a("s_waitcnt vmcnt(0)"); a("s_nop 2")
        for i in range(10):
            u = t0 + 2*(i & 1)
            a(f"v_lshlrev_b32 v{u}, 16, v{Q+i}"); a(f"v_and_b32 v{u+1}, 0xffff0000, v{Q+i}")
            a(f"v_pk_add_f32 {vr(RES+2*i,2)}, {vr(AC+2*i,2)}, {vr(u,2)}")
            a(f"v_cvt_pk_bf16_f32 v{P+i}, v{RES+2*i}, v{RES+2*i+1}")
        a(f"s_cmp_lg_u32 s{LAY}, 0"); a("s_cbranch_scc1 L_out")
        us = OPT.get("us", 6)
        self.xstore("6", P, before_flag=lambda: self.unstash(range(us)), packed=True, two=TWO, bar=OPT.get("lb", 0))
        if TWO: a("s_waitcnt vmcnt(0)"); self.xflag2("6")
        self.stamp(20); self.stamp_dump()
        a(f"s_mov_b32 s{LAY}, 1"); self.stamp(1)
        a(f"s_setprio {OPT.get('qp', 2)}")
        if us < 10: self.unstash(range(us, 10))
        self.qsetup()
        a("s_branch L_q1_w")
        a("L_out:")
        if OPT.get("lb", 0): a("s_barrier")
        a(f"s_mul_i32 s{T}, s{WV}, 3072"); a(f"v_mul_u32_u24 v{RA+3}, 160, v{vJ}"); a(f"v_lshl_add_u32 v{RA+3}, v{vG}, 3, v{RA+3}")
        a(f"v_add_u32 v{RA+3}, s{T}, v{RA+3}"); a(f"v_add_u32 v{BI}, s{T}, v{vL16}")
        for nb in range(5): a(f"ds_write_b64 v{RA+3}, {vr(P+2*nb,2)} offset:{32*nb}")
        a(f"s_mul_i32 s{T}, s{RBO}, 20480"); a(f"s_mul_i32 s{T+1}, s{NT}, 160"); a(f"s_add_u32 s{T}, s{T}, s{T+1}")
        a("s_waitcnt lgkmcnt(0)")
        for i in range(3): a(f"ds_read_b128 {vr(Q+4*i,4)}, v{BI} offset:{1024*i}")
        self.dma_addr(RA, 3, "w80")
        for i in range(3):
            a(f"s_waitcnt lgkmcnt({2-i})")
            if i == 2: a("s_mov_b32 exec_hi, 0")
            a(f"buffer_store_dwordx4 {vr(Q+4*i,4)}, v{RA+i}, {sr(OUT,4)}, s{T} offen {OPT.get('outmod', 'nt')}")
        a("s_mov_b64 exec, -1")
        if OPT["stamp"]: a("s_waitcnt vmcnt(0)")
        self.stamp(20); self.stamp_dump()
        a("s_endpgm")

        a("L_ch_h:")
        HB = PB + 8
        HX = PB + 48
        ONE = PB + 60
        HO = T + 8
        vm = Cnt("vmcnt", 63)
        h0, h1, hg = OPT.get("ht", (6, 0, 3))
        HT = {"w1": h0, 0: h1, 2: hg, 3: hg}
        def lin(src, lds, tag):
            if tag in OPT.get("x_skip", ()):
                vm.issue(tag); return
            if OPT.get("x_fake"): src %= SL
            a(f"s_add_u32 m0, s{HO}, {lds}"); a(f"s_add_u32 s{T}, s{DS}, {src}")
            a(f"buffer_load_dwordx4 v{vL16}, {sr(WS,4)}, s{T} offen sc1 lds"); vm.issue(tag)
            if HT[tag] is not None: a(f"s_waitcnt vmcnt({HT[tag]})")
        def tilebase(buf):
            a(f"s_and_b32 s{DS}, s{IDX}, 15"); a(f"s_mul_i32 s{DS}, s{DS}, {120*1024}"); a(f"s_add_u32 s{DS}, s{DS}, s{HO}"); a(f"s_add_u32 s{DS}, s{DS}, {hx(buf)}")
        a(f"s_lshl_b32 s{HO}, s{HW}, 10")
        tilebase(PK1)
        a(f"s_and_b32 s{T}, s{IDX}, 15"); a(f"s_mul_i32 s{T}, s{T}, 192"); a(f"s_lshl_b32 s{T+1}, s{WM}, 5"); a(f"s_add_u32 s{T}, s{T}, s{T+1}")
        a(f"v_lshlrev_b32 v{t1}, 1, v{vJ}")
        for m in range(3):
            a(f"buffer_load_ushort v{PB+m}, v{t1}, {sr(B1,4)}, s{T} offen offset:{64*(2*m % 3)}"); vm.issue("w1")
        for n in (8, 10): lin(n*4096, 5*SL + n*4096, "w1")
        def l0(fn):
            l = self.lab("hl0")
            a(f"s_cmp_lg_u32 s{LAY}, 0"); a(f"s_cbranch_scc1 {l}"); fn(); a(f"{l}:")
        csum = lambda r, n, first=False: a(f"v_mfma_f32_16x16x32_bf16 {vr(HX+4*(n%3),4)}, {vr(ONE,4)}, {vr(r,4)}, {'0' if first else vr(HX+4*(n%3),4)}")
        def cs_regs():
            for i in range(4): a(f"v_mov_b32 v{ONE+i}, 0x3f803f80")
            a("s_nop 1")
            for i, r in enumerate(self.PLH): csum(r, i, i < 3)
        l0(cs_regs)
        a("s_barrier")
        lin(9*4096, 5*SL + 9*4096, "w1")
        a(f"s_add_u32 s{T}, s{HO}, {2*SL}"); a(f"v_add_u32 v{t0}, s{T}, v{vL16}"); a(f"v_add_u32 v{t2}, {3*SL}, v{t0}")
        a(vm.wait("w1")); a("s_barrier")
        for n in (12, 13, 14): lin(61440 + n*4096, 2*SL + n*4096, "w1")
        for i, r in enumerate(self.PLH): a(f"ds_write_b128 v{t0}, {vr(r,4)} offset:{4096*i}")
        tilebase(PK2)
        a(vm.wait("w1")); a("s_waitcnt lgkmcnt(0)")
        def cs_lds():
            jobs = [(t2, n) for n in range(15)] + [(t0, n) for n in (12, 13, 14)]
            for b in (0, 9):
                for u, (v, n) in enumerate(jobs[b:b+9]): a(f"ds_read_b128 {vr(HB+4*u,4)}, v{v} offset:{4096*n}")
                for u, (v, n) in enumerate(jobs[b:b+9]):
                    a(f"s_waitcnt lgkmcnt({8-u})"); csum(HB+4*u, n)
            a("s_nop 7")
            for m in range(3): a(f"v_mov_b32 v{CS1+m}, v{HX+4*m}")
        l0(cs_lds)
        a(f"s_cmp_eq_u32 s{WK}, 0"); a("s_cselect_b64 vcc, -1, 0")
        a(f"s_lshl_b32 s{T}, s{WM}, 9"); a(f"s_lshl_b32 s{T+1}, s{WK}, 8"); a(f"s_add_u32 s{T}, s{T}, s{T+1}"); a(f"s_add_u32 s{T}, s{T}, {WXL}")
        for m in range(3):
            c = CS1 + m; x = HX + 4*m
            a(f"s_mul_i32 s{T+1}, s{WK}, {1024*((2*m + 1) % 3 - (2*m) % 3)}"); a(f"s_add_u32 s{T+1}, s{T+1}, s{T}"); a(f"v_lshl_add_u32 v{HB+m}, v{vJ}, 4, s{T+1}")
            a(f"v_cndmask_b32 v{x+2}, 0, v{PB+m}, vcc")
            a(f"v_cvt_pk_bf16_f32 v{x}, v{c}, v{c}"); a(f"v_and_b32 v{t1}, 0xffff0000, v{x}"); a(f"v_sub_f32 v{t1}, v{c}, v{t1}")
            a(f"v_and_b32 v{x+1}, 0xffff, v{x}"); a(f"v_cvt_pk_bf16_f32 v{x}, v{c}, v{t1}")
            a(f"v_lshl_or_b32 v{x+1}, v{x+2}, 16, v{x+1}"); a(f"v_mov_b32 v{x+3}, 0")
        a("s_mov_b64 exec, 0xffff")
        for m in range(3): a(f"ds_write_b128 v{HB+m}, {vr(HX+4*m,4)} offset:{1024*(2*m % 3)}")
        a("s_mov_b64 exec, -1")
        nf1 = OPT.get("nf1", 9)
        pre = [5, 6, 7, 8][:OPT.get("nf0", 0)]
        for n in pre: lin(n*4096, n*4096, 2)
        a("s_waitcnt lgkmcnt(0)"); a("s_barrier")
        for n in range(nf1):
            if n not in pre: lin(n*4096, n*4096, 0)
        assert nf1*4096 >= (g1_*5 + NF5)*1024
        a(vm.wait(0)); a("s_barrier")
        n1 = ((g2_*5 + NF5)*1024 + 4095) // 4096
        ng = max(n1, OPT.get("ng", 30))
        for n in range(nf1, ng): lin(n*4096, n*4096, 2 if n < n1 else 3)
        a(vm.wait(2)); a("s_barrier")
        for n in range(ng, 30): lin(n*4096, n*4096, 3)
        a(vm.wait(3)); a("s_barrier")
        a("s_barrier")
        a(f"s_cmp_lg_u32 s{LAY}, 0"); a("s_cbranch_scc1 L_h_last")
        self.unstash()
        self.stamp_dump()
        a(f"s_mov_b32 s{LAY}, 1"); a("s_branch L_qkv1")
        a("L_h_last:")
        self.stamp_dump()
        a("L_end:")
        a("s_endpgm")

def build(**opt):
    OPT.update(opt)
    g = Gen()
    g.entry(); g.qkv(); g.attention(); g.chain()
    a = g.a
    a.lines += g.tail.lines
    for (l0, l1), pats in OPT.get("x_drop", {}).items():
        i0 = a.lines.index(l0 + ":"); i1 = a.lines.index(l1 + ":")
        a.lines[i0:i1] = [("s_nop 0" if OPT.get("x_nop") else "") if any(l.startswith(p) for p in pats) else l for l in a.lines[i0:i1]]
        a.lines = [l for l in a.lines if l]
    a("L_last:"); a("s_endpgm")
    probs = check_hazards(a.lines)
    if probs and not OPT.get("x_drop"):
        print("\n".join(probs), file=sys.stderr); raise SystemExit("hazards")
    hdr = open("cdna_kernels/" + NAME + ".s.ref").read().split("; Override launch")[0]
    s = hdr + "; @launch grid=(256,1,1) block=(512,1,1) lds=163840\n" + '.amdgcn_target "amdgcn-amd-amdhsa--gfx950"\n.text\n'
    s += f".globl {NAME}_kernel\n.type {NAME}_kernel,@function\n" + a.text()
    s += f""".section .rodata,"a"
.p2align 6
.amdhsa_kernel {NAME}_kernel
  .amdhsa_next_free_vgpr 256
  .amdhsa_next_free_sgpr 102
  .amdhsa_accum_offset 256
  .amdhsa_group_segment_fixed_size 0
  .amdhsa_kernarg_size 88
  .amdhsa_user_sgpr_count 2
  .amdhsa_user_sgpr_kernarg_segment_ptr 1
  .amdhsa_system_sgpr_workgroup_id_x 1
.end_amdhsa_kernel
"""
    return s

if __name__ == "__main__":
    out = sys.argv[1]
    opt = {}
    for x in sys.argv[2:]:
        k, v = x.split("=", 1); opt[k] = eval(v)
    open(out, "w").write(build(**opt))
```

```python
import sys, math, struct, copy
from asmlib import *

NAME = "interleave_layers__softmax_full_mha__dense_activation_gelu__prompt"
OPT = dict(stamp=False, forceslow=False)

XF   = 0x0
HF   = 0x300000
XB   = 21504
HB_  = 50176
OF   = HF
KVF  = lambda l: 0xB00000 + l * 0x500000
FLG  = 0x1520000
PK1  = 0x1600000
PK2  = 0x1800000
PKO  = 0x1A00000
STAMPS = 0x4000000
WS_BYTES = 0x10000000
KA = dict(x=0, wqkv=8, wo=16, w1=32, b1=40, w2=48, b2=56, out=64, dbg=72, ws=80)
SZ = dict(x=2048*640*2, wqkv=640*1920*2, wo=640*640*2, w1=640*1536*2, b1=1536*2, w2=1536*640*2, b2=640*2, out=2048*640*2, ws=WS_BYTES, dbg=256)
SL = 20480

def f2u(x): return struct.unpack("<I", struct.pack("<f", x))[0]
def hx(x): return f"0x{x & 0xffffffff:x}"

class Cnt:
    def __init__(self, name, mx): self.q = []; self.name = name; self.mx = mx; self.done = 0
    def issue(self, tag):
        self.q.append(tag)
        assert self.name == "lgkmcnt" or len(self.q) - self.done <= self.mx, (self.name, "too many outstanding")
    def wait(self, *tags):
        last = max((i for i, t in enumerate(self.q) if t in tags), default=-1)
        assert last >= 0, tags
        if last < self.done: return ""
        n = min(len(self.q) - 1 - last, self.mx)
        self.done = len(self.q) - n
        return f"s_waitcnt {self.name}({n})"

LAY = 3
WS, WQ, WO, W1, W2, B1, B2, XIN, OUT, DBG = 4, 8, 12, 16, 20, 24, 28, 32, 36, 40
G, IDX, WV, FAST, BUD, NT, ODD, WM, WK, HW = range(44, 54)
COL = 54
XA, XS, STO, FXO, RBO = 59, 60, 61, 62, 63
VMK = 64
T = 66
FB = 80
A0, A1, DS, IT, KVS, PASS, OS, FO = 81, 82, 83, 84, 85, 86, 87, 88
KH = 93
ROT = 100
PSRC, PDST = (89, 90, 91), (92, 94, 95)
vL, vL16, vJ, vG, t0, t1, t2, t3 = 0, 1, 2, 3, 4, 5, 6, 7
RES = 8
CSQ = 28
CS1 = 32
PB = 40
STH = 212

class Proxy:
    def __init__(self, g): self.g = g
    def __call__(self, s): self.g.a(s)
    def extend(self, ls): self.g.a.extend(ls)

class Gen:
    def __init__(self):
        self.a = Asm(); self.tail = Asm(); self.nlab = 0; self.p = Proxy(self)
    def lab(self, s):
        self.nlab += 1; return f"L{self.nlab}_{s}"
    def stamp(self, i):
        if not OPT["stamp"]: return
        a = self.a
        a("s_memrealtime s[96:97]"); a("s_memtime s[98:99]"); a("s_waitcnt lgkmcnt(0)")
        a(f"v_writelane_b32 v254, s96, {i}"); a(f"v_writelane_b32 v255, s98, {i}")
    def stamp_dump(self):
        if not OPT["stamp"]: return
        a = self.a
        a(f"s_lshl_b32 s96, s2, 3"); a(f"s_add_u32 s96, s96, s{WV}"); a("s_lshl_b32 s96, s96, 1"); a(f"s_add_u32 s96, s96, s{LAY}")
        a("s_lshl_b32 s96, s96, 9"); a(f"s_add_u32 s96, s96, {hx(STAMPS)}")
        a(f"v_lshlrev_b32 v253, 3, v{vL}")
        a(f"buffer_store_dwordx2 v[254:255], v253, {sr(WS,4)}, s96 offen")
    def mstore(self, lines, force=None):
        a = self.a
        sc = lambda l: l + " sc1" if l.startswith("buffer_store") else l
        if force == "sc1":
            for l in lines: a(sc(l))
            return
        ls, lb = self.lab("slow"), self.lab("back")
        a(f"s_cmp_eq_u32 s{FAST}, 0"); a(f"s_cbranch_scc1 {ls}")
        for l in lines: a(l + " " + OPT.get("fastmod", "nt") if l.startswith(("buffer_store_dwordx4", "buffer_store_dwordx2")) else l)
        a(f"{lb}:")
        self.tail(f"{ls}:")
        for l in lines: self.tail(sc(l))
        self.tail(f"s_branch {lb}")
    def flag(self, soff, sval, force=None, shadow=None):
        a = self.a
        if shadow: shadow()
        a(f"v_mov_b32 v{t0}, {sval}"); a(f"v_mov_b32 v{t1}, 0")
        a("s_waitcnt vmcnt(0)")
        a("s_mov_b64 exec, 1")
        self.mstore([f"buffer_store_dword v{t0}, v{t1}, {sr(WS,4)}, {soff} offen"], force)
        a("s_mov_b64 exec, -1")
    def poll(self, srd, vaddr, soff, starget, issued=False):
        a = self.a
        lp, ld = self.lab("poll"), self.lab("seen")
        ask = lambda r: f"buffer_load_dword v{r}, v{vaddr}, {sr(srd,4)}, {soff} offen sc1"
        if not issued: a(ask(t3))
        a("s_waitcnt vmcnt(0)")
        a(f"v_cmp_gt_u32 vcc, {starget}, v{t3}")
        if a is self.tail:
            a(f"s_cbranch_vccz {ld}")
        else:
            a(f"s_cbranch_vccnz {lp}"); a(f"{ld}:")
        b = self.tail
        b(f"{lp}:")
        if True:
            b(ask(t3)); b("s_waitcnt vmcnt(0)"); b(f"v_cmp_gt_u32 vcc, {starget}, v{t3}"); b(f"s_cbranch_vccz {ld}")
            b(f"s_sub_u32 s{BUD}, s{BUD}, 1"); b(f"s_cbranch_scc0 {lp}")
            b(f"s_mov_b32 s{BUD}, 0")
            if a is not self.tail: b(f"s_branch {ld}")
        if a is self.tail: a(f"{ld}:")
    def swap_add(self, vs, tmp, which, op="v_add_f32"):
        a = self.a
        for i, v in enumerate(vs): a(f"v_mov_b32 v{tmp+i}, v{v}")
        a("s_nop 1")
        for i, v in enumerate(vs): a(f"v_permlane{which}_swap_b32 v{v}, v{tmp+i}")
        if len(vs) < 2: a("s_nop 0")
        for i, v in enumerate(vs): a(f"{op} v{v}, v{v}, v{tmp+i}")

    def dma_addr(self, dst, n, kind):
        a = self.a
        upr, mul, sh = (12, 171, 11) if kind == "w1" else (10, 205, 11)
        ld = dict(wq=3840, w1=3072, w80=1280)[kind]
        for i in range(n):
            a(f"v_add_u32 v{t0}, {64*i}, v{vL}")
            a(f"v_mul_u32_u24 v{t1}, {mul}, v{t0}"); a(f"v_lshrrev_b32 v{t1}, {sh}, v{t1}")
            a(f"v_mul_u32_u24 v{t2}, {upr}, v{t1}"); a(f"v_sub_u32 v{t0}, v{t0}, v{t2}")
            a(f"v_mul_u32_u24 v{t1}, {ld}, v{t1}")
            if kind == "wq":
                a(f"v_min_u32 v{t0}, 8, v{t0}")
                a(f"v_mul_u32_u24 v{t2}, 11, v{t0}"); a(f"v_lshrrev_b32 v{t2}, 5, v{t2}"); a(f"v_min_u32 v{t2}, 2, v{t2}")
                a(f"v_mul_u32_u24 v{t2}, 1232, v{t2}"); a(f"v_add_u32 v{t1}, v{t1}, v{t2}")
            elif kind == "w80":
                a(f"v_lshl_add_u32 v{t0}, s{ODD}, 1, v{t0}")
                a(f"v_subrev_u32 v{t2}, 10, v{t0}"); a(f"v_min_u32 v{t0}, v{t0}, v{t2}")
            a(f"v_lshl_add_u32 v{dst+i}, v{t0}, 4, v{t1}")
    def dma(self, vaddr, srd, soff, m0base, m0imm, mods=""):
        return [f"s_add_u32 m0, {m0base}, {m0imm}", "s_nop 0", f"buffer_load_dwordx4 v{vaddr}, {sr(srd,4)}, {soff} offen {mods} lds".replace("  ", " ")]

    def stat_loads(self, ST, soff, vm, swap=None):
        a = self.p
        g = vG
        if swap is not None:
            a(f"s_lshl_b32 s{T}, s{swap}, 1"); a(f"v_xor_b32 v{t0}, s{T}, v{vG}"); g = t0
        a(f"v_lshrrev_b32 v{t1}, 1, v{g}"); a(f"v_mul_u32_u24 v{t1}, {XB-1024}, v{t1}"); a(f"v_lshl_add_u32 v{t1}, v{g}, 9, v{t1}"); a(f"v_lshl_add_u32 v{t1}, v{vJ}, 4, v{t1}")
        for u in range(2):
            a(f"buffer_load_dwordx4 {vr(ST+4*u,4)}, v{t1}, {sr(WS,4)}, {soff} offen offset:{256*u} sc1"); vm.issue("st")
    def stat_sum(self, ST, tmp):
        a = self.p
        for u in (2, 4, 6):
            for i in range(2): a(f"v_add_f32 v{ST+i}, v{ST+i}, v{ST+u+i}")
        self.swap_add([ST, ST+1], tmp, 16)
    def stat_math(self, ST, RS, TX, bias, halves=False):
        a = self.p
        s, v, r, u = ST, ST+1, ST+2, ST+3
        x = ST + 4
        a(f"v_mul_f32 v{s}, {hx(f2u(-1.0/640))}, v{s}"); a(f"v_mul_f32 v{v}, {hx(f2u(1.0/640))}, v{v}")
        if halves: a(f"v_cmp_gt_u32 vcc, 2, v{vG}"); a(f"v_cmp_le_u32 {sr(T+2,2)}, 2, v{vG}")
        else: a(f"v_cmp_eq_u32 vcc, 0, v{vG}"); a(f"v_cmp_eq_u32 {sr(T+2,2)}, 2, v{vG}")
        a(f"v_fma_f32 v{v}, -v{s}, v{s}, v{v}")
        a(f"v_max_f32 v{v}, 0, v{v}"); a(f"v_add_f32 v{v}, {hx(f2u(1e-5))}, v{v}")
        a(f"v_rsq_f32 v{r}, v{v}")
        a(f"v_cvt_pk_bf16_f32 v{x}, v{s}, v{s}"); a(f"v_and_b32 v{u}, 0xffff0000, v{x}"); a(f"v_sub_f32 v{u}, v{s}, v{u}")
        a(f"v_mov_b32 v{RS}, v{r}"); a(f"v_mov_b32 v{RS+1}, v{r}")
        if bias:
            a(f"v_mul_f32 v{v}, v{v}, v{r}")
            a(f"v_cvt_pk_bf16_f32 v{x+1}, v{u}, v{v}"); a(f"v_and_b32 v{u}, 0xffff0000, v{x+1}"); a(f"v_sub_f32 v{u}, v{v}, v{u}")
            a(f"v_cvt_pk_bf16_f32 v{x+2}, v{u}, 0")
        else:
            a(f"v_cvt_pk_bf16_f32 v{x+1}, v{u}, v{u}"); a("s_nop 0")
        a(f"v_permlane32_swap_b32 v{RS}, v{RS+1}")
        for rb in range(2):
            m = "vcc" if rb == 0 else sr(T+2, 2)
            for i in range(3 if bias else 2): a(f"v_cndmask_b32 v{TX+4*rb+i}, 0, v{x+i}, {m}")
            a(f"v_mov_b32 v{TX+4*rb+3}, 0" if bias else f"v_mov_b64 {vr(TX+4*rb+2,2)}, 0")

    def a_loads(self, gs, RD, AR, rot=False):
        out = []
        for rb in range(2):
            sa = A0 + rb
            ls = [f"buffer_load_dwordx4 {vr(AR + 8*(gs % RD) + 4*rb, 4)}, v{vL16}, {sr(WS,4)}, s{sa} offen offset:{1024*(gs % 4)} sc1"]
            if gs % 4 == 3 and not rot: ls.append(f"s_add_u32 s{sa}, s{sa}, 4096")
            if gs % 4 == 3 and rot:
                if rb == 0: ls += [f"s_mov_b32 s{ROT+1}, 4096", f"s_cmp_eq_u32 s{ROT}, {4 - gs//4}", f"s_cmov_b32 s{ROT+1}, {4096 - 20480}"]
                ls.append(f"s_add_u32 s{sa}, s{sa}, s{ROT+1}")
            out.append(ls)
        return out
    def capture(self, fn):
        main, self.a = self.a, Asm()
        fn()
        out, self.a = self.a.lines, main
        return out
    def gemm(self, NS, NB, RD, AR, BR, AC, rdaddr, second, vm, bars={}, std=(), czero=(0, 1), extra={}, wgrp=1, xper=1, init=None, lper=None, cinit=None, areg={}, tail=None, rot=False, aload=None, aoff=0, hooks={}, gate={}):
        a = self.a
        lg = Cnt("lgkmcnt", 15)
        NF = len(BR)
        breg = lambda gs, nb: BR[(gs*NB + nb) % NF]
        def reads(n):
            if n >= NS*NB: return []
            gs, nb = divmod(n, NB)
            v, off = rdaddr(gs, nb)
            return [(f"ds_read_b128 {vr(breg(gs, nb),4)}, v{v} offset:{off}", (gs, nb))]
        merge = lambda x, y: x + y[9:] if x and y else x or y
        cost = lambda l: 2 if l.startswith(TRANS) else int(l.split()[1]) + 1 if l.startswith("s_nop") else 1
        def emit_x(l):
            if l == "WAITX": a(lg.wait("x")); return
            if l.startswith("WAITV:"): a(vm.wait(l[6:])); return
            a(l)
            if l.startswith("ds_"): lg.issue("x")
        for n in range(NF):
            for l, tg in reads(n): a(l); lg.issue(tg)
        pr, ex = [], []
        aload = aload or (lambda g: self.a_loads(g, RD, AR, rot))
        allA = [(ls, ("A", g)) for g in range(NS) if g not in areg for ls in aload(g)][2*init:]
        def burst(n):
            for _ in range(n):
                ls, tg = allA.pop(0); a.extend(ls); vm.issue(tg)
        lper = lper or OPT.get('lper', 3)
        lpos = [(i * NB) // lper for i in range(lper)]
        for gs in range(NS):
            if gs in bars:
                while pr:
                    l, tg = pr.pop(0); a(l); lg.issue(tg)
                for l in bars[gs]: a(l)
            if gs in hooks: hooks[gs](burst)
            wv = ""
            if gs not in areg: wv = vm.wait(("A", gs))
            elif areg[gs] is not None:
                for l in ex: emit_x(l)
                ex = []
            if tail is not None and gs == NS - 1:
                a(merge(wv, lg.wait(*[(gs, n) for n in range(NB)])))
                tl = list(tail)
                for rb in (1, 0):
                    for nb in range(NB):
                        d = vr(AC + 4*(NB*rb + nb), 4)
                        a(f"v_mfma_f32_16x16x32_bf16 {d}, {vr(breg(gs, nb), 4)}, {vr(AR + 8*((gs + aoff) % RD) + 4*rb, 4)}, {d}")
                        if rb == 0 and nb >= 3 and tl: a(tl.pop(0))
                for l in tl: a(l)
                break
            ex += list(extra.get(gs, []))
            for nb in range(NB):
                if nb % wgrp == 0:
                    tags = [(gs, n) for n in range(nb, min(nb + wgrp, NB))]
                    while any(tg in tags for _, tg in pr):
                        l, tg = pr.pop(0); a(l); lg.issue(tg)
                    a(merge(wv, lg.wait(*tags))); wv = ""
                for rb in range(2):
                    d = vr(AC + 4*(NB*rb + nb), 4)
                    c = "0" if (gs == 0 and rb in czero) else vr(cinit + 4*nb, 4) if (gs == 0 and cinit is not None) else d
                    w, x = vr(breg(gs, nb), 4), vr((areg.get(gs) or AR + 8*((gs + aoff) % RD)) + 4*rb, 4)
                    p, q = (x, w) if nb in std else (w, x)
                    a(f"v_mfma_f32_16x16x32_bf16 {d}, {p}, {q}, {c}")
                    room = 2
                    if rb == 1:
                        pr += reads(gs*NB + nb + NF)
                        if (nb + 1) % wgrp == 0 or nb == NB - 1: room -= 1
                    if pr:
                        l, tg = pr.pop(0); a(l); lg.issue(tg); room -= 1
                    if rb == 0 and nb in lpos and allA and allA[0][1][1] <= gs + RD - 1 and all(gs >= g0 for g1, g0 in gate.items() if allA[0][1][1] >= g1):
                        ls, tg = allA.pop(0); a.extend(ls); vm.issue(tg); room = 0
                    while ex and cost(ex[0]) <= room:
                        room -= cost(ex[0]); emit_x(ex.pop(0))
        for l in ex: emit_x(l)
        return lg

    def gemm2(self, plan, NB, AR, NA, BR, AC, rdaddr, aload, vm, cfirst, have=0, init=0, ahead=None, bars={}, hooks={}, gate={}, extra={}, wgrp=2):
        a = self.a
        lg = Cnt("lgkmcnt", 15)
        NF, NS = len(BR), len(plan)
        frs = [(i, ks, rb) for i, (ks, rbs) in enumerate(plan) for rb in rbs]
        idx = {(i, rb): m for m, (i, ks, rb) in enumerate(frs)}
        areg = lambda m: AR[m % NA]
        todo = list(range(have, len(frs)))
        def issue():
            m = todo.pop(0); i, ks, rb = frs[m]
            a(aload(ks, rb, areg(m))); vm.issue(("A", i))
        def burst(n):
            for _ in range(n): issue()
        def can(i):
            if not todo: return False
            m = todo[0]
            if m >= NA and frs[m - NA][0] >= i: return False
            if ahead and m - idx[(i, plan[i][1][0])] > ahead: return False
            return all(i >= g0 for g1, g0 in gate.items() if frs[m][0] >= g1)
        def read(n):
            if n >= NS*NB: return 0
            i, nb = divmod(n, NB)
            v, off = rdaddr(plan[i][0], nb)
            a(f"ds_read_b128 {vr(BR[n % NF],4)}, v{v} offset:{off}"); lg.issue((i, nb))
            return 1
        merge = lambda x, y: x + y[9:] if x and y else x or y
        cost = lambda l: 2 if l.startswith(TRANS) else int(l.split()[1]) + 1 if l.startswith("s_nop") else 1
        burst(init)
        for n in range(NF): read(n)
        seen, ex = set(), []
        for i, (ks, rbs) in enumerate(plan):
            for l in bars.get(i, []): a(l)
            if i in hooks: hooks[i](burst)
            wv = vm.wait(("A", i)) if idx[(i, rbs[-1])] >= have else ""
            ex += list(extra.get(i, []))
            for nb in range(NB):
                if nb % wgrp == 0:
                    a(merge(wv, lg.wait(*[(i, n) for n in range(nb, min(nb + wgrp, NB))]))); wv = ""
                for rb in rbs:
                    d = vr(AC + 4*(NB*rb + nb), 4)
                    c = d if (rb, nb) in seen else cfirst(rb, nb)
                    seen.add((rb, nb))
                    a(f"v_mfma_f32_16x16x32_bf16 {d}, {vr(BR[(i*NB + nb) % NF],4)}, {vr(areg(idx[(i, rb)]),4)}, {c}")
                    room = 2
                    if rb == rbs[-1]:
                        room -= read(i*NB + nb + NF)
                        if (nb + 1) % wgrp == 0 or nb == NB - 1: room -= 1
                    if rb == rbs[0] and nb in (0, 2) and can(i):
                        issue(); room = 0
                    while ex and cost(ex[0]) <= room:
                        room -= cost(ex[0]); a(ex.pop(0))
        assert not todo
        for l in ex: a(l)

    def xstore(self, sval, P, force=None, before_flag=None, packed=False, two=False, bar=False):
        a = self.a
        if not packed:
            for i in range(10): a(f"v_cvt_pk_bf16_f32 v{P+i}, v{RES+2*i}, v{RES+2*i+1}")
        self.mstore([f"buffer_store_dwordx4 {vr(P,4)}, v{vL16}, {sr(WS,4)}, s{XA} offen",
                     f"buffer_store_dwordx4 {vr(P+4,4)}, v{vL16}, {sr(WS,4)}, s{XA} offen offset:1024",
                     f"buffer_store_dwordx2 {vr(P+8,2)}, v{vL16}, {sr(WS,4)}, s{XS} offen"], force)
        a(f"v_mov_b32 v{P+14}, 0x3f803f80")
        for i in range(10):
            u = P + 10 + 2*(i & 1)
            a(f"v_dot2_f32_bf16 v{u+1}, v{P+i}, v{P+i}, {'0' if i < 2 else 'v%d' % (u+1)}")
            a(f"v_dot2_f32_bf16 v{u}, v{P+i}, v{P+14}, {'0' if i < 2 else 'v%d' % u}")
        a(f"v_lshlrev_b32 v{t0}, 2, v{vG}"); a(f"v_lshl_add_u32 v{t0}, v{vJ}, 4, v{t0}"); a("s_nop 0")
        a(f"v_pk_add_f32 {vr(P+10,2)}, {vr(P+10,2)}, {vr(P+12,2)}"); a("s_nop 1")
        a(f"v_permlane16_swap_b32 v{P+10}, v{P+11}"); a("s_nop 0")
        a(f"v_add_f32 v{P+10}, v{P+10}, v{P+11}")
        self.swap_add([P+10], P+11, 32)
        a("s_mov_b32 exec_hi, 0")
        self.mstore([f"buffer_store_dword v{P+10}, v{t0}, {sr(WS,4)}, s{STO} offen"], force)
        a("s_mov_b64 exec, -1")
        if bar: a("s_barrier")
        if two:
            a(f"v_mov_b32 v{t0}, {sval}"); a(f"v_mov_b32 v{t1}, 0"); a(f"v_add_u32 v{t0}, -1, v{t0}")
            a("s_waitcnt vmcnt(1)"); a("s_mov_b64 exec, 1")
            self.mstore([f"buffer_store_dword v{t0}, v{t1}, {sr(WS,4)}, s{FXO} offen"], force)
            a("s_mov_b64 exec, -1")
            if before_flag: before_flag()
        else:
            self.flag(f"s{FXO}", sval, force, before_flag)
    def xflag2(self, sval):
        a = self.p
        a(f"v_mov_b32 v{t0}, {sval}"); a(f"v_mov_b32 v{t1}, 0"); a("s_mov_b64 exec, 1")
        self.mstore([f"buffer_store_dword v{t0}, v{t1}, {sr(WS,4)}, s{FXO} offen"])
        a("s_mov_b64 exec, -1")
    def check(self, vm, tag, vaddr, soff, starget):
        a = self.p
        lp, ld = self.lab("ck"), self.lab("ckd")
        a(vm.wait(tag))
        a(f"v_cmp_gt_u32 vcc, {starget}, v{t3}"); a(f"s_cbranch_vccnz {lp}"); a(f"{ld}:")
        main, self.a = self.a, self.tail
        a(f"{lp}:"); self.poll(WS, vaddr, soff, starget); a(f"s_branch {ld}")
        self.a = main

    def entry(self):
        a = self.p
        a(".p2align 8"); a(f"{NAME}_kernel:")
        a("s_cmp_ge_u32 s2, 256"); a("s_cbranch_scc1 L_end")
        srds = [("ws", WS), ("x", XIN), ("wqkv", WQ), ("dbg", DBG), ("wo", WO), ("w1", W1), ("w2", W2), ("b1", B1), ("b2", B2), ("out", OUT)]
        for n, s in srds: a(f"s_load_dwordx2 {sr(s,2)}, s[0:1], {KA[n]}")
        a(f"v_lshrrev_b32 v{t0}, 6, v0"); a(f"v_and_b32 v{vL}, 63, v0"); a(f"v_readfirstlane_b32 s{WV}, v{t0}")
        a(f"v_and_b32 v{vJ}, 15, v{vL}"); a(f"s_lshr_b32 s{IDX}, s2, 3")
        if OPT.get("cp", 2) != 1: self.code_pull(OPT.get("cw", 3), "a")
        for n, s in srds:
            a(f"s_mov_b32 s{s+2}, {hx(SZ[n])}"); a(f"s_mov_b32 s{s+3}, 0x00020000")
        a(f"v_lshlrev_b32 v{vL16}, 4, v{vL}"); a(f"v_lshrrev_b32 v{vG}, 4, v{vL}")
        for i in range(6, 10): a(f"v_mov_b32 v{PB+i}, 0")
        if OPT["stamp"]:
            a("v_mov_b32 v254, 0"); a("v_mov_b32 v255, 0")
        a(f"s_and_b32 s{G}, s2, 7")
        a(f"s_mov_b32 s{FAST}, 0"); a(f"s_mov_b32 s{BUD}, 0x80000"); a(f"s_mov_b32 s{LAY}, 0")
        a(f"s_and_b32 s{NT}, s{IDX}, 7"); a(f"s_and_b32 s{ODD}, s{IDX}, 1")
        a(f"s_and_b32 s{WM}, s{WV}, 1"); a(f"s_bfe_u32 s{WK}, s{WV}, 0x10001"); a(f"s_and_b32 s{HW}, s{WV}, 3")
        a(f"s_mov_b32 s{VMK}, 0x000fffff"); a(f"s_mov_b32 s{VMK+1}, 0x000fffff")
        a(f"s_lshl_b32 s{FB}, s{G}, 13"); a(f"s_add_u32 s{FB}, s{FB}, {hx(FLG)}")
        if not OPT.get("rot"): return
        ri, rg = OPT["rot"]
        a(f"s_mul_i32 s{T}, s{IDX}, {ri}"); a(f"s_mul_i32 s{T+1}, s{G}, {rg}"); a(f"s_add_u32 s{T}, s{T}, s{T+1}")
        a(f"s_mul_i32 s{T+1}, s{T}, 205"); a(f"s_lshr_b32 s{T+1}, s{T+1}, 10"); a(f"s_mul_i32 s{T+1}, s{T+1}, 5"); a(f"s_sub_u32 s{ROT}, s{T}, s{T+1}")
    def code_pull(self, wave, tag):
        a = self.p
        a(f"s_cmp_eq_u32 s{WV}, {wave}"); a(f"s_cbranch_scc0 L_cp{tag}")
        a(f"s_getpc_b64 {sr(T,2)}")
        a(f"L_pc{tag}:")
        a(f"s_lshl_b32 s{T+2}, s{IDX}, 11"); a(f"s_cmp_lt_u32 s{T+2}, L_last-L_pc{tag}"); a(f"s_cbranch_scc0 L_cp{tag}")
        a(f"v_lshlrev_b32 v{t0}, 7, v{vJ}"); a(f"v_add_u32 v{t0}, s{T+2}, v{t0}"); a(f"v_min_u32 v{t0}, L_last-L_pc{tag}, v{t0}")
        a(f"global_load_dword v{PB+59}, v{t0}, {sr(T,2)}")
        a(f"L_cp{tag}:")

    def entry_tile(self):
        a = self.p
        a(f"s_mul_i32 s{T}, s{NT}, 160"); a(f"s_lshl_b32 s{T+1}, s{ODD}, 5"); a(f"s_add_u32 s{COL}, s{T}, s{T+1}")
        for i in range(1, 4): a(f"s_add_u32 s{COL+i}, s{COL}, {32*i}")
        a(f"s_add_u32 s{COL+4}, s{T}, 128"); a(f"s_cmp_eq_u32 s{ODD}, 1"); a(f"s_cmov_b32 s{COL+4}, s{T}")
        a(f"s_bfe_u32 s{KH}, s{IDX}, 0x10003")
        a(f"s_lshr_b32 s{T}, s{IDX}, 4"); a(f"s_lshl_b32 s{T}, s{T}, 2"); a(f"s_add_u32 s{T}, s{T}, s{HW}")
        a(f"s_lshl_b32 s{FXO}, s{T}, 8"); a(f"s_add_u32 s{FXO}, s{FXO}, s{FB}")
        a(f"s_lshl_b32 s{T+1}, s{NT}, 1"); a(f"s_add_u32 s{T+1}, s{T+1}, s{KH}"); a(f"s_lshl_b32 s{T+1}, s{T+1}, 2"); a(f"s_add_u32 s{FXO}, s{FXO}, s{T+1}")
        a(f"s_lshl_b32 s{RBO}, s{G}, 3"); a(f"s_add_u32 s{RBO}, s{RBO}, s{T}"); a(f"s_lshl_b32 s{RBO}, s{RBO}, 1"); a(f"s_add_u32 s{RBO}, s{RBO}, s{KH}")
        a(f"s_lshr_b32 s{T}, s{NT}, 1"); a(f"s_mul_i32 s{T+1}, s{T}, 5120"); a(f"s_mul_i32 s{T+2}, s{RBO}, {XB}"); a(f"s_add_u32 s{T+1}, s{T+1}, s{T+2}")
        a(f"s_mul_i32 s{XA}, s{ODD}, 3072"); a(f"s_add_u32 s{XA}, s{XA}, s{T+1}")
        a(f"s_lshl_b32 s{XS}, s{ODD}, 3"); a(f"s_add_u32 s{XS}, s{XS}, s{T+1}"); a(f"s_add_u32 s{XS}, s{XS}, 2048")
        a(f"s_lshl_b32 s{T}, s{T}, 8"); a(f"s_add_u32 s{STO}, s{T+2}, s{T}")
        a(f"s_lshl_b32 s{T}, s{ODD}, 3"); a(f"s_add_u32 s{STO}, s{STO}, s{T}"); a(f"s_add_u32 s{STO}, s{STO}, 20480")

    def pack_setup(self):
        a = self.p
        a(f"s_lshl_b32 s{T}, s{G}, 1"); a(f"s_lshr_b32 s{T+1}, s{IDX}, 4"); a(f"s_add_u32 s{T}, s{T}, s{T+1}"); a(f"s_lshl_b32 s{T}, s{T}, 3"); a(f"s_add_u32 s{T}, s{T}, s{WV}")
        d, o = PDST[0], PSRC[0]
        a(f"s_and_b32 s{T+3}, s{IDX}, 15")
        a(f"s_mul_i32 s{d}, s{T+3}, 120"); a(f"s_add_u32 s{d}, s{d}, s{T}"); a(f"s_lshl_b32 s{d}, s{d}, 10"); a(f"s_add_u32 s{d}, s{d}, {hx(PK1)}")
        a(f"s_cmp_ge_u32 s{T}, 120"); a(f"s_cmov_b32 s{d}, -1")
        a(f"s_mul_i32 s{T+1}, s{T}, 171"); a(f"s_lshr_b32 s{T+1}, s{T+1}, 10")
        a(f"s_mul_i32 s{T+2}, s{T+1}, {32*3072 - 6*32}"); a(f"s_lshl_b32 s{T}, s{T}, 5"); a(f"s_add_u32 s{T}, s{T}, s{T+2}")
        a(f"s_mul_i32 s{T+3}, s{T+3}, 192"); a(f"s_add_u32 s{o}, s{T}, s{T+3}")
        for u, (nfr, dst) in enumerate(((240, PK2), (100, PKO))):
            d, o = PDST[1+u], PSRC[1+u]
            a(f"s_lshl_b32 s{T}, s{G}, 2"); a(f"s_lshr_b32 s{T+1}, s{IDX}, 3"); a(f"s_add_u32 s{T}, s{T}, s{T+1}"); a(f"s_lshl_b32 s{T}, s{T}, 3"); a(f"s_add_u32 s{T}, s{T}, s{WV}")
            if u == 0:
                a(f"s_cmp_ge_u32 s{T}, 120"); a(f"s_cselect_b32 s{T+1}, 7, 0"); a(f"s_add_u32 s{T+1}, s{T+1}, s{NT}"); a(f"s_mul_i32 s{d}, s{T+1}, 120")
            else: a(f"s_mul_i32 s{d}, s{NT}, 100")
            a(f"s_add_u32 s{d}, s{d}, s{T}"); a(f"s_lshl_b32 s{d}, s{d}, 10"); a(f"s_add_u32 s{d}, s{d}, {hx(dst)}")
            a(f"s_cmp_ge_u32 s{T}, {nfr}"); a(f"s_cmov_b32 s{d}, -1")
            a(f"s_mul_i32 s{T+1}, s{T}, 205"); a(f"s_lshr_b32 s{T+1}, s{T+1}, 10")
            a(f"s_mul_i32 s{T+2}, s{T+1}, 5"); a(f"s_sub_u32 s{T}, s{T}, s{T+2}")
            a(f"s_add_u32 s{T}, s{T}, s{ODD}"); a(f"s_cmp_eq_u32 s{T}, 5"); a(f"s_cselect_b32 s{T}, 0, s{T}"); a(f"s_lshl_b32 s{T}, s{T}, 5")
            if u == 0:
                a(f"s_cmp_ge_u32 s{T+1}, 24"); a(f"s_cselect_b32 s{o}, 24, 0"); a(f"s_sub_u32 s{T+1}, s{T+1}, s{o}")
                a(f"s_sub_u32 s{T+2}, s{T+1}, 1"); a(f"s_and_b32 s{T+3}, s{T+2}, 1"); a(f"s_lshr_b32 s{T+2}, s{T+2}, 1")
                a(f"s_cmp_lt_u32 s{T+1}, 3"); a(f"s_cmov_b32 s{T+2}, 0"); a(f"s_cmov_b32 s{T+3}, s{T+1}")
                a(f"s_cmp_ge_u32 s{T+1}, 17"); a(f"s_cmov_b32 s{T+2}, s{T+1}"); a(f"s_cmov_b32 s{T+3}, 2")
                a(f"s_add_u32 s{T+2}, s{T+2}, s{NT}"); a(f"s_and_b32 s{T+2}, s{T+2}, 7"); a(f"s_mul_i32 s{T+2}, s{T+2}, 3")
                a(f"s_add_u32 s{T+1}, s{T+2}, s{T+3}"); a(f"s_add_u32 s{T+1}, s{T+1}, s{o}")
            a(f"s_mul_i32 s{T+1}, s{T+1}, {32*1280}"); a(f"s_add_u32 s{T}, s{T}, s{T+1}"); a(f"s_mul_i32 s{T+2}, s{NT}, 160"); a(f"s_add_u32 s{o}, s{T}, s{T+2}")

    def unstash(self, which=range(10)):
        a = self.p
        a(f"s_lshl_b32 s{T}, s{WV}, 10"); a(f"v_add_u32 v{t0}, s{T}, v{vL16}"); a(f"v_add_u32 v{t1}, 40960, v{t0}")
        for i in which: a(f"ds_write_b128 v{t0 + i//5}, {vr(STH+4*i,4)} offset:{(i%5)*8192}")

    def att_setup(self):
        a = self.p
        vM, vH, IDXR, AK, AK4, AV, QA, PA, OA, V = PB, PB+1, PB+2, PB+3, PB+4, PB+5, PB+54, PB+9, PB+6, PB+32
        a(f"v_and_b32 v{vM}, 31, v{vL}"); a(f"v_lshrrev_b32 v{vH}, 5, v{vL}")
        a(f"s_lshl_b32 s{T+4}, s{HW}, 1"); a(f"s_lshr_b32 s{T}, s{WV}, 2"); a(f"s_add_u32 s{T+4}, s{T+4}, s{T}")
        a(f"s_mul_i32 s{T}, s{T}, 10240"); a(f"s_add_u32 s{T}, s{T}, {7*SL}")
        a(f"v_lshl_add_u32 v{AK4}, v{vM}, 3, s{T}"); a(f"v_lshl_add_u32 v{AK}, v{vH}, 8, v{AK4}"); a(f"v_add_u32 v{AK4}, 1024, v{AK4}")
        a(f"v_mul_u32_u24 v{t0}, 20, v{vH}"); a(f"v_add_u32 v{t0}, v{t0}, v{vM}"); a(f"v_lshl_add_u32 v{AV}, v{t0}, 4, s{T}")
        a(f"s_mul_i32 s{T+1}, s{T+4}, 1280"); a(f"s_add_u32 s{T+1}, s{T+1}, {6*SL}")
        a(f"s_xor_b32 s{T}, s{T+4}, 1"); a(f"s_mul_i32 s{T}, s{T}, 1280"); a(f"s_add_u32 s{T}, s{T}, {6*SL}")
        a(f"v_lshlrev_b32 v{t0}, 3, v{vM}"); a(f"v_lshl_add_u32 v{t1}, v{vH}, 8, v{t0}")
        a(f"v_add_u32 v{QA}, s{T}, v{t1}"); a(f"v_add_u32 v{QA+1}, s{T+1}, v{t1}")
        a(f"s_sub_u32 s{T+1}, s{T+1}, s{T}"); a(f"v_mul_lo_u32 v{t1}, v{vH}, s{T+1}"); a(f"v_add3_u32 v{QA+2}, v{t0}, v{t1}, s{T}")
        a(f"v_cmp_eq_u32 vcc, 20, v{vM}"); a(f"v_mov_b32 v{t0}, 0x3f803f80"); a(f"v_mov_b32 v{IDXR}, 0xdddddddd")
        a(f"v_cndmask_b32 v{V}, 0, v{t0}, vcc"); a(f"v_cndmask_b32 v{V+1}, 0, v{t0}, vcc")
        for i in range(2, 16, 2): a(f"v_mov_b64 {vr(V+i,2)}, {vr(V,2)}")
        a(f"s_mul_i32 s{T}, s{IDX}, 5")
        a(f"v_lshrrev_b32 v{t0}, 4, v{vM}"); a(f"v_mul_u32_u24 v{t0}, {HB_}, v{t0}"); a(f"v_lshl_add_u32 v{t0}, v{vJ}, 4, v{t0}")
        for jj in range(3):
            a(f"v_add_u32 v{t1}, s{T}, v{vH}")
            a(f"v_lshrrev_b32 v{t2}, 3, v{t1}"); a(f"v_lshl_add_u32 v{OA+jj}, v{t2}, 10, v{t0}")
            a(f"v_and_b32 v{t2}, 3, v{t1}"); a(f"v_lshl_add_u32 v{OA+jj}, v{t2}, 8, v{OA+jj}")
            a(f"v_bfe_u32 v{t2}, v{t1}, 2, 1"); a(f"v_lshl_add_u32 v{OA+jj}, v{t2}, 3, v{OA+jj}")
            a(f"s_add_u32 s{T}, s{T}, 2")
        a(f"s_mov_b32 s{PASS}, 0"); a(f"s_mul_i32 s{T+10}, s{WV}, 2560")
        KS = OPT.get("ks", 0)
        a(f"s_and_b32 s{T}, s{IDX}, 7"); a(f"s_lshl_b32 s{T}, s{T}, 13"); a(f"s_lshr_b32 s{T+1}, s{IDX}, 3"); a(f"s_lshl_b32 s{T+1}, s{T+1}, {8+KS}"); a(f"s_add_u32 s{T}, s{T}, s{T+1}")
        a(f"s_add_u32 s{T}, s{T}, {hx(FLG+4096)}"); a(f"s_lshl_b32 s{T+1}, s{HW}, {5+KS}"); a(f"s_add_u32 s{T+5}, s{T}, s{T+1}")
        a(f"s_lshl_b32 s{T+1}, s{WV}, {3+KS}"); a(f"s_add_u32 s{T+1}, s{T+1}, s{G}"); a(f"s_lshl_b32 s{T+1}, s{T+1}, 2"); a(f"s_add_u32 s{FO}, s{T+1}, s{T}"); a(f"s_add_u32 s{T+6}, s{LAY}, 1")
        a(f"v_and_b32 v{PA}, 7, v{vL}"); a(f"v_lshlrev_b32 v{PA}, 2, v{PA}")

    def qkv(self):
        a = self.p
        RD = OPT.get("rd_q", 6); IN = OPT.get("in_q", 2)
        RA = PB + 12
        RT = PB + 16
        AD = PB + 24
        RS = PB + 48
        ST = PB + 60
        BR = PB + 68
        AC = PB + 84
        AR = PB + 116
        TX, TM = AR + 28, AR + 36
        RB = PB + 148
        BRL = ([BR + 4*i for i in range(4)] + [PB + 164, PB + 168])[:OPT.get('nf_q', 6)]
        assert AR + 8*RD <= STH and IN <= 3
        AQ, AK, A4, AV, AVS, ARB = AD, AD+1, AD+2, AD+3, AD+4, AD+5
        self.RB, self.ARB = RB, ARB
        def adprep():
            a(f"s_mul_i32 s{T}, s{WV}, 1280"); a(f"s_add_u32 s{T}, s{T}, {6*SL}")
            a(f"s_mul_i32 s{T+1}, s{WV}, 2560"); a(f"s_add_u32 s{T+1}, s{T+1}, {7*SL}")
            a(f"v_cmp_eq_u32 vcc, 0, v{vG}")
            a(f"v_lshlrev_b32 v{t0}, 3, v{vJ}"); a(f"v_lshl_add_u32 v{t1}, v{vG}, 8, v{t0}")
            a(f"v_add_u32 v{AQ}, s{T}, v{t1}"); a(f"v_add_u32 v{AK}, s{T+1}, v{t1}")
            a(f"v_add_u32 v{t1}, s{T}, v{t0}"); a(f"v_add_u32 v{t2}, s{T+1}, v{t0}"); a(f"v_cndmask_b32 v{A4}, v{t2}, v{t1}, vcc")
            a(f"v_lshrrev_b32 v{t1}, 1, v{vG}"); a(f"v_mul_u32_u24 v{t1}, 320, v{t1}"); a(f"v_lshl_add_u32 v{t1}, v{vJ}, 4, v{t1}")
            a(f"v_and_b32 v{t2}, 1, v{vG}"); a(f"v_lshl_add_u32 v{t1}, v{t2}, 3, v{t1}"); a(f"v_add_u32 v{AV}, s{T+1}, v{t1}")
            a(f"v_lshrrev_b32 v{t1}, 3, v{vJ}"); a(f"v_mul_u32_u24 v{t1}, 320, v{t1}"); a(f"v_and_b32 v{t2}, 7, v{vJ}")
            a(f"v_lshl_add_u32 v{t1}, v{t2}, 1, v{t1}"); a(f"v_add_u32 v{AVS}, s{T+1}, v{t1}")
            a(f"v_add_u32 v{ARB}, s{T+1}, v{vL16}")
            a(f"s_mul_i32 s{KVS}, s{IDX}, 163840"); a(f"s_mul_i32 s{T}, s{LAY}, {hx(0x500000)}"); a(f"s_add_u32 s{KVS}, s{KVS}, s{T}")
            a(f"s_mul_i32 s{T}, s{HW}, 2560"); a(f"s_add_u32 s{KVS}, s{KVS}, s{T}"); a(f"s_add_u32 s{KVS}, s{KVS}, {hx(KVF(0))}")
            a(f"s_lshl_b32 s{T}, s{G}, 1"); a(f"s_lshr_b32 s{T+1}, s{WV}, 2"); a(f"s_add_u32 s{T}, s{T}, s{T+1}")
            a(f"s_mul_i32 s{OS}, s{T}, 10240"); a(f"s_add_u32 s{OS}, s{OS}, s{KVS}")
        def qsetup():
            a(f"v_add_u32 v{RA}, 65536, v{vL16}")
            a(f"s_lshl_b32 s{T}, s{G}, 3"); a(f"s_add_u32 s{T}, s{T}, s{WV}")
            a(f"s_mul_i32 s{A0}, s{T}, {2*XB}"); a(f"s_add_u32 s{IT}, s{A0}, 20480")
            if OPT.get("rot"): a(f"s_lshl_b32 s{T}, s{ROT}, 12"); a(f"s_add_u32 s{A0}, s{A0}, s{T}")
            a(f"s_add_u32 s{A1}, s{A0}, {XB}")
            a(f"s_lshl_b32 s{T+2}, s{WV}, 8"); a(f"s_add_u32 s{T+2}, s{T+2}, s{FB}")
            a(f"v_lshlrev_b32 v{t2}, 2, v{vJ}")
            a(f"s_lshl_b32 s{T+9}, s{LAY}, 2"); a(f"s_add_u32 s{T+9}, s{T+9}, 2"); a(f"s_mov_b32 s{T+8}, s{T+2}")
            a(f"s_lshr_b32 s{T+3}, s{WV}, 2"); a(f"s_add_u32 s{T+3}, s{T+3}, s{T+9}"); a(f"s_sub_u32 s{T+3}, s{T+3}, 1")
        self.qsetup = qsetup; self.adprep = adprep
        def lnprep(first):
            self.stat_math(ST, RS, TX, False)
            a(f"v_lshlrev_b32 v{t0}, 4, v{vG}")
            for rb in range(2):
                for i in range(4): a(f"ds_bpermute_b32 v{RT+4*rb+i}, v{t0}, v{ST+2} offset:{128*rb+4*i}")
            cq = hx(f2u(20**-0.5 * math.log2(math.e)))
            for nb in range(4):
                x = BR + 4*nb
                a(f"v_mov_b32 v{x}, v{CSQ+nb}"); a(f"v_mov_b32 v{x+1}, v{CSQ+nb}")
                a(f"v_mov_b64 {vr(x+2,2)}, 0")
            for rb in range(2): a(f"v_mul_f32 v{RS+2+rb}, {cq}, v{RS+rb}")
            for rb in range(2): a(f"v_cndmask_b32 v{RS+4+rb}, v{RS+rb}, v{RS+2+rb}, vcc")
            for nb in (1, 2, 3, 0):
                for rb in range(2):
                    d = vr(AC + 4*(4*rb + nb), 4); w, x = vr(BR+4*nb, 4), vr(TX+4*rb, 4)
                    p, q = (x, w) if nb == 2 else (w, x)
                    a(f"v_mfma_f32_16x16x32_bf16 {d}, {p}, {q}, {'0' if first else d}")
            a("s_waitcnt lgkmcnt(0)")

        ONE = RT + 4
        def conv_setup():
            a(f"v_lshrrev_b32 v{t0}, 2, v{vL}"); a(f"v_mul_u32_u24 v{t0}, 160, v{t0}"); a(f"v_lshl_add_u32 v{t0}, s{ODD}, 3, v{t0}")
            a(f"v_and_b32 v{t1}, 3, v{vL}"); a(f"v_lshlrev_b32 v{t2}, 3, v{t1}")
            a(f"v_min_u32 v{t1}, 2, v{t1}"); a(f"v_mul_u32_u24 v{t1}, 48, v{t1}")
            a(f"s_mul_i32 s{T}, s{HW}, 48"); a(f"s_cmp_eq_u32 s{HW}, 3"); a("s_cselect_b64 vcc, -1, 0"); a(f"s_cselect_b32 s{T}, 32, s{T}")
            a(f"s_lshr_b32 s{T+1}, s{WV}, 2"); a(f"s_mul_i32 s{T+1}, s{T+1}, 5120"); a(f"s_add_u32 s{T}, s{T}, s{T+1}"); a(f"s_add_u32 s{T}, s{T}, {3*SL}")
            a(f"v_cndmask_b32 v{t1}, v{t2}, v{t1}, vcc"); a(f"v_add3_u32 v{RT}, v{t0}, v{t1}, s{T}"); a(f"v_add_u32 v{RT+1}, 51200, v{RT}")
            for i in range(4): a(f"v_mov_b32 v{ONE+i}, 0x3f803f80")
        def conv(i0, i1):
            for i in range(i0, i1):
                for u in range(2): a(f"ds_read_b64_tr_b16 {vr(STH+4*i+2*u,2)}, v{RT + i//5} offset:{(i % 5)*10240 + 2560*u}")
            a("s_waitcnt lgkmcnt(0)")
            for i in range(i0, i1):
                a(f"v_mfma_f32_16x16x32_bf16 {vr(CSQ,4)}, {vr(ONE,4)}, {vr(STH+4*i,4)}, {'0' if i == 0 else vr(CSQ,4)}")
            self.unstash(range(i0, i1))
        P = AC
        a(f"s_cmp_ge_u32 s{WV}, 4"); a("s_cbranch_scc1 L_q0_load")
        self.entry_tile()
        a(f"v_mul_u32_u24 v{t2}, 1280, v{vJ}"); a(f"v_lshl_add_u32 v{t2}, v{vG}, 3, v{t2}")
        a(f"s_mul_i32 s{T}, s{RBO}, 20480"); a(f"v_add_u32 v{t2}, s{T}, v{t2}")
        a("s_waitcnt lgkmcnt(0)")
        self.stamp(0)
        a(f"s_or_b32 s{T+5}, s{WV}, s{IDX}")
        a(f"s_cmp_eq_u32 s{T+5}, 0"); a("s_cbranch_scc0 L_q0_c1")
        for i in range(4): a(f"v_mov_b32 v{BR+i}, 0")
        a(f"s_add_u32 s{T}, s{FB}, 4096")
        for i in (0, 1, 3): a(f"buffer_store_dwordx4 {vr(BR,4)}, v{vL16}, {sr(WS,4)}, s{FB} offen offset:{1024*i} sc1")
        for i in range(1 << OPT.get("ks", 0)): a(f"buffer_store_dwordx4 {vr(BR,4)}, v{vL16}, {sr(WS,4)}, s{T} offen offset:{1024*i} sc1")
        a("L_q0_c1:")
        for i in range(5): a(f"buffer_load_dwordx2 {vr(P+2*i,2)}, v{t2}, {sr(XIN,4)}, s{COL+i} offen")
        conv_setup(); self.pack_setup()
        a(f"s_lshl_b32 s{T+6}, s{G}, 2")
        a(f"s_cmp_eq_u32 s{T+5}, 0"); a("s_cbranch_scc0 L_q0_c2")
        a(f"v_mov_b32 v{t0}, 1"); a(f"v_mov_b32 v{t1}, 0")
        a("s_waitcnt vmcnt(5)")
        a("s_mov_b64 exec, 1")
        a(f"buffer_store_dword v{t0}, v{t1}, {sr(DBG,4)}, s{T+6} offen sc1")
        a("s_mov_b64 exec, -1")
        a("s_waitcnt vmcnt(1)")
        a("s_branch L_q0_c3")
        a("L_q0_c2:")
        a("s_waitcnt vmcnt(0)")
        a("L_q0_c3:")
        self.stamp(21)
        def boot():
            for i in range(10):
                a(f"v_lshlrev_b32 v{RES+2*i}, 16, v{P+i}"); a(f"v_and_b32 v{RES+2*i+1}, 0xffff0000, v{P+i}")
            a(f"v_and_b32 v{t2}, 7, v{vL}"); a(f"v_lshlrev_b32 v{t2}, 2, v{t2}")
            if OPT.get("sboot", 1):
                a("s_waitcnt vmcnt(0)")
                a(f"s_buffer_load_dwordx8 {sr(T+6,8)}, {sr(DBG,4)}, 0"); a("s_waitcnt lgkmcnt(0)")
                for i in range(1, 4): a(f"s_and_b64 {sr(T+6,2)}, {sr(T+6,2)}, {sr(T+6+2*i,2)}")
                a(f"s_and_b32 s{T+6}, s{T+6}, s{T+7}"); a("s_cbranch_scc1 L_q0_boot")
            self.poll(DBG, t2, "0", "1")
            a("L_q0_boot:")
        self.xstore("2", P, "sc1", before_flag=boot, packed=True)
        self.stamp(23)
        a(f"v_lshlrev_b32 v{t0}, 7, v{vJ}"); a(f"v_and_b32 v{t1}, 0x380, v{t0}")
        a(f"buffer_load_dword v{BR}, v{t0}, {sr(WS,4)}, s{XA} offen sc1"); a(f"buffer_load_dword v{BR+1}, v{t1}, {sr(WS,4)}, s{XS} offen sc1")
        a(f"s_getreg_b32 s{T}, hwreg(HW_REG_XCC_ID)"); a(f"s_and_b32 s{T}, s{T}, 15"); a(f"s_add_u32 s{T}, s{T}, 16")
        a(f"v_mov_b32 v{t1}, s{T}"); a(f"v_mov_b32 v{t2}, 0")
        a(f"s_lshl_b32 s{T}, s{IDX}, 2"); a(f"s_add_u32 s{T}, s{T}, s{FB}")
        a(f"s_cmp_eq_u32 s{WV}, 0"); a("s_cbranch_scc0 L_q0_c4")
        a("s_mov_b64 exec, 1")
        a(f"buffer_store_dword v{t1}, v{t2}, {sr(WS,4)}, s{T} offen offset:3200 sc1")
        a("s_mov_b64 exec, -1")
        a("L_q0_c4:")
        a("s_barrier")
        conv(0, 4)
        a(f"s_setprio {OPT.get('qp', 2)}")
        a("s_branch L_q0_conv")
        a("L_q0_load:")
        D = AC
        self.dma_addr(D, 5, "wq")
        a(f"s_mul_i32 s{DS}, s{HW}, {32*3840}"); a(f"s_mul_i32 s{T}, s{IDX}, 40"); a(f"s_and_b32 s{T}, s{T}, -16"); a(f"s_add_u32 s{DS}, s{DS}, s{T}")
        a(f"s_mul_i32 s{T+8}, s{HW}, 5120")
        if OPT.get("rot"): a(f"s_mul_i32 s{T}, s{ROT}, {128*3840}"); a(f"s_add_u32 s{DS}, s{DS}, s{T}")
        a("s_waitcnt lgkmcnt(0)")
        self.stamp(0)
        def gather(c):
            for i in range(5):
                a.extend(self.dma(D+i, WQ, f"s{DS}", f"s{T+8}", (3+c)*SL + 1024*i, OPT.get("wqmod", "")))
                if OPT.get("ht0", 10): a(f"s_waitcnt vmcnt({OPT.get('ht0', 10)})")
            if OPT.get("rot"):
                a(f"s_mov_b32 s{ROT+1}, {128*3840}"); a(f"s_cmp_eq_u32 s{ROT}, {4 - c}"); a(f"s_cmov_b32 s{ROT+1}, {-4*128*3840}")
                a(f"s_add_u32 s{DS}, s{DS}, s{ROT+1}")
            else: a(f"s_add_u32 s{DS}, s{DS}, {128*3840}")
            self.stamp(24 + c)
        g1 = OPT.get("g1", 3); g0 = OPT.get("g0", 3)
        for c in range(g0): gather(c)
        conv_setup(); adprep(); self.att_setup(); self.pack_setup()
        for c in range(g0, g1): gather(c)
        a(f"s_waitcnt vmcnt({5*(g1-2)})")
        self.stamp(23)
        a("s_barrier")
        g2 = OPT.get("g2", 4)
        for c in range(g1, g2): gather(c)
        conv(0, 4)
        for c in range(max(g1, g2), 5): gather(c)
        a("s_waitcnt vmcnt(5)")
        a("L_q0_conv:")
        a("s_barrier")
        conv(4, 8)
        self.stamp(1)
        qsetup()
        a("s_branch L_q1_a")
        def last_chunk():
            a("s_barrier")
            if OPT.get("cp", 2) != 0: self.code_pull(3, "b")
            conv(8, 10)
            a(f"s_lshl_b32 s{T}, s{WV}, 2"); a(f"s_add_u32 s{T}, s{T}, {4*SL}"); a(f"v_lshl_add_u32 v{t2}, v{vJ}, 5, s{T}")
            a(f"s_mov_b32 s{T}, {4*SL}"); a(f"v_lshl_add_u32 v{t3}, v{vJ}, 5, s{T}")
            a(f"ds_write_b32 v{t2}, v{CSQ}")
            a("s_waitcnt lgkmcnt(0)"); a("s_barrier")
            a(f"ds_read_b128 {vr(CSQ,4)}, v{t3}"); a(f"ds_read_b128 {vr(BR,4)}, v{t3} offset:16")
            a("s_waitcnt lgkmcnt(0)")
            for i in range(4):
                a(f"v_add_f32 v{CSQ+i}, v{CSQ+i}, v{BR+i}")
                a(f"v_cvt_pk_bf16_f32 v{t0}, v{CSQ+i}, v{CSQ+i}"); a(f"v_and_b32 v{t0}, 0xffff0000, v{t0}"); a(f"v_sub_f32 v{t0}, v{CSQ+i}, v{t0}")
                a(f"v_cvt_pk_bf16_f32 v{CSQ+i}, v{CSQ+i}, v{t0}")

        a("L_qkv1:")
        self.stamp(1)
        adprep(); self.att_setup(); qsetup()
        a("L_q1_w:")
        a("s_waitcnt lgkmcnt(0)"); a("s_barrier")
        a("L_q1_a:")
        self.poll(WS, t2, f"s{T+2}", f"s{T+3}")
        self.stamp(2)
        vm = Cnt("vmcnt", 63); nv = Cnt("vmcnt", 63)
        def first(v):
            for gs in range(IN):
                for ls in self.a_loads(gs, RD, AR): a.extend(ls); v.issue(("A", gs))
        a(f"s_cmp_ge_u32 s{WV}, 4"); a("s_cbranch_scc1 L_q1_c")
        if OPT.get("sm_", 1) == 2: self.stat_loads(ST, f"s{IT}", nv)
        first(vm)
        for i in range(0, 32, 2): a(f"v_mov_b64 {vr(AC+i,2)}, 0")
        adprep()
        a(f"s_cmp_lg_u32 s{LAY}, 0"); a("s_cbranch_scc1 L_q1_loop")
        a("s_branch L_q1_d")
        a("L_q1_c:")
        self.stat_loads(ST, f"s{IT}", nv)
        a(f"s_cmp_lg_u32 s{LAY}, 0"); a("s_cbranch_scc1 L_q1_late")
        a("L_q1_d:")
        last_chunk()
        a(f"s_cmp_lt_u32 s{WV}, 4"); a("s_cbranch_scc1 L_q1_loop")
        a("L_q1_late:")
        a("s_waitcnt vmcnt(0)")
        self.stat_sum(ST, TM)
        first(nv)
        lnprep(True)
        a("L_q1_loop:")
        self.stamp(29)
        qh = {g: (lambda b, g=g: self.stamp(30 + g//4)) for g in (4, 8, 12, 16)} if OPT.get('qst') else {}
        def ask2(b):
            a(f"v_lshlrev_b32 v{t2}, 2, v{vJ}"); a(f"buffer_load_dword v{t3}, v{t2}, {sr(WS,4)}, s{T+8} offen sc1"); vm.issue("x2")
        def cond_stats(burst):
            lo, lb = self.lab("st"), self.lab("stb")
            a(f"s_cmp_lt_u32 s{WV}, 4"); a(f"s_cbranch_scc1 {lo}"); a(f"{lb}:")
            main, self.a = self.a, self.tail
            a(f"{lo}:"); self.stat_loads(ST, f"s{IT}", nv); a(f"s_branch {lb}")
            self.a = main
        if OPT.get("two", 0): qh[OPT.get('qs', 15) - 5] = ask2
        if OPT.get("sm_", 1) == 1: qh[OPT.get('qs', 17)] = cond_stats
        elif OPT.get("sm_", 1) == 0: qh[OPT.get('qs', 15)] = lambda b: (OPT.get("two", 0) and self.check(vm, "x2", t2, f"s{T+8}", f"s{T+9}"), self.stat_loads(ST, f"s{IT}", vm))
        self.gemm(20, 4, RD, AR, BRL, AC, lambda gs, nb: (vL16 if gs < 16 else RA, (gs % 16)*4096 + nb*1024), None, vm, std=(2,), czero=(), wgrp=OPT.get('wgq', 2), lper=OPT.get('lpq'), init=IN, hooks=qh, rot=bool(OPT.get('rot')))
        self.stamp(3)
        a(f"s_cmp_ge_u32 s{WV}, 4"); a("s_cbranch_scc1 L_q_epi")
        a("s_waitcnt vmcnt(0)")
        self.stat_sum(ST, TM); lnprep(False)
        a("L_q_epi:")
        PK = BR
        a("s_nop 2")
        for nb in (1, 2, 3, 0):
            for rb in range(2):
                r = AC + 4*(4*rb + nb)
                for i in range(4):
                    m = RT + 4*rb + i if nb == 2 else RS + {0: 2, 1: 0, 3: 4}[nb] + rb
                    a(f"v_mul_f32 v{r+i}, v{r+i}, v{m}")
            for r2 in range(2):
                r = AC + 4*(4*r2 + nb); p = PK + 2*(4*r2 + nb)
                a(f"v_cvt_pk_bf16_f32 v{p}, v{r}, v{r+1}"); a(f"v_cvt_pk_bf16_f32 v{p+1}, v{r+2}, v{r+3}")
                if nb == 0 and r2 == 0: a("s_waitcnt lgkmcnt(8)")
                if nb == 0: a(f"ds_write_b64 v{AQ}, {vr(p,2)} offset:{128*r2}")
                if nb == 1: a(f"ds_write_b64 v{AK}, {vr(p,2)} offset:{128*r2}")
                if nb == 2: a(f"ds_write_b64 v{AV}, {vr(p,2)} offset:{1280+640*r2}")
            if nb == 3:
                a("s_mov_b32 exec_hi, 0")
                for rb in range(2): a(f"ds_write_b64 v{A4}, {vr(PK+2*(4*rb+3),2)} offset:{1024+128*rb}")
                a("s_bfm_b64 exec, 16, 32")
                for rb in range(2):
                    for i in range(4):
                        a(f"ds_write_b16{'_d16_hi' if i & 1 else ''} v{AVS}, v{PK+2*(4*rb+3)+(i>>1)} offset:{1280+640*rb+256+16*i}")
                a("s_mov_b64 exec, -1")
        a("s_waitcnt lgkmcnt(0)")
        for i in range(3): a(f"ds_read_b128 {vr(RB+4*i,4)}, v{ARB} offset:{1024*i}")
        a(f"s_cmp_ge_u32 s{WV}, 4"); a("s_cbranch_scc1 L_att_late")
        a("s_waitcnt lgkmcnt(0)")
        self.publish()
        self.stamp(22)
        a("s_setprio 0")
        self.att_setup()
        self.flag(f"s{FO}", f"s{T+6}", "sc1")
        self.stamp(5)
        a("L_att_late:")
    def publish(self):
        a = self.p
        for i in range(3):
            if i == 2: a("s_mov_b32 exec_hi, 0")
            a(f"buffer_store_dwordx4 {vr(self.RB+4*i,4)}, v{vL16}, {sr(WS,4)}, s{OS} offen offset:{1024*i} sc1")
        a("s_mov_b64 exec, -1")

    def attention(self):
        a = self.p
        vM, vH, IDXR = PB, PB+1, PB+2
        AK, AK4, AV = PB+3, PB+4, PB+5
        OA = PB+6
        PA = PB+9
        Q = [PB+12, PB+16]; Q4 = PB+20; K4 = PB+22
        KK = [PB+24, PB+28]
        V = PB+32
        O = [PB+48, PB+64]
        S = [PB+80, PB+112]
        NM = S[1]
        PF = PB+144
        PR = PB+148
        EXM, EXF = f"s_mov_b64 exec, {sr(VMK,2)}", "s_mov_b64 exec, -1"
        HALF = "s_mov_b32 exec_hi, 0"
        kvm = OPT.get("kvmod", "sc1")
        base = {AK: 7*SL, AK4: 7*SL, AV: 7*SL}
        def off(r, n):
            p = ((n // 4) % 8) * SL
            pre = ""
            if not 0 <= p - base[r] <= (5 if r == AK else 2) * SL:
                pre = f"v_add_u32 v{r}, {hx(p - base[r])}, v{r}\n"; base[r] = p
            return pre, p + (n % 4) * 2560 - base[r]
        def rdK4(t):
            pre, o = off(AK4, t); return pre + f"ds_read_b64 {vr(K4,2)}, v{AK4} offset:{o}"
        def rdK(t):
            pre, o = off(AK, t); return pre + f"ds_read2st64_b64 {vr(KK[t&1],4)}, v{AK} offset0:{o//512} offset1:{o//512+1}"
        def rdV(t):
            pre, o = off(AV, t)
            return pre + "\n".join([EXM] + [f"ds_read_b128 {vr(V+8*(t&1)+4*i,4)}, v{AV} offset:{o+1280+640*i}" for i in range(2)] + [EXF])
        def m2b(t, c="0"): return f"v_mfma_f32_32x32x4_2b_bf16 {vr(S[t&1],32)}, {vr(K4,2)}, {vr(Q4,2)}, {c}"
        def mk(t, q): return f"v_mfma_f32_32x32x16_bf16 {vr(S[t&1]+16*q,16)}, {vr(KK[t&1],4)}, {vr(Q[q],4)}, {vr(S[t&1]+16*q,16)}"
        def pv(t, i): return f"v_smfmac_f32_32x32x32_bf16 {vr(O[i>>1],16)}, {vr(V+8*(t&1)+4*(i&1),4)}, {vr(S[t&1]+8*i,8)}, v{IDXR}"
        def set_addr(b):
            a(f"s_lshr_b32 s{T}, s{WV}, 2"); a(f"s_mul_i32 s{T}, s{T}, 10240"); a(f"s_add_u32 s{T}, s{T}, {b}")
            a(f"v_lshl_add_u32 v{AK4}, v{vM}, 3, s{T}"); a(f"v_lshl_add_u32 v{AK}, v{vH}, 8, v{AK4}"); a(f"v_add_u32 v{AK4}, 1024, v{AK4}")
            a(f"v_mul_u32_u24 v{t0}, 20, v{vH}"); a(f"v_add_u32 v{t0}, v{t0}, v{vM}"); a(f"v_lshl_add_u32 v{AV}, v{t0}, 4, s{T}")
        def fill(t, mid):
            a(rdK4(t)); a(rdK(t)); a(rdK(t+1)); a(rdV(t))
            a("s_waitcnt lgkmcnt(4)"); a(m2b(t)); a(rdK4(t+1))
            a.extend(mid[:16])
            a("s_waitcnt lgkmcnt(4)")
            a(mk(t, 0)); a(mk(t, 1))
            a.extend(mid[16:])
        def step(t, last, first=False, hook={}, kpos=(5, 17)):
            nqk, nrd = t + 1 <= last, t + 2 <= last
            for e in range(32):
                a(f"v_exp_f32 v{S[t&1]+e}, v{S[t&1]+e}")
                if e == 1:
                    if not first: a(pv(t-1, 3))
                    a("s_waitcnt lgkmcnt(0)")
                if e == 5 and nqk: a(m2b(t+1))
                if e in (13, 17, 25): a(pv(t, {13: 0, 17: 1, 25: 2}[e]))
                if e == 13 and nqk: a(rdV(t+1))
                if e in (21, 29) and nqk: a(mk(t+1, e == 29))
                if kpos != (5, 17):
                    for h in hook.get(e, []): h()
                if e == kpos[0] and nrd: a(rdK4(t+2))
                if e == kpos[1] and nrd: a(rdK(t+2))
                if kpos == (5, 17):
                    for h in hook.get(e, []): h()
        prio = lambda p: (lambda: a(f"s_setprio {p}") if OPT.get("prio", 1) else None)
        WOFF = T + 10
        def kv_dma1(sblk, slot, i, add=0):
            a(f"s_add_u32 m0, s{WOFF}, {slot*SL + add}")
            a(HALF if i == 2 else "s_nop 0")
            a(f"buffer_load_dwordx4 v{vL16}, {sr(WS,4)}, s{sblk} offen offset:{1024*i} {kvm} lds")
            if i == 2: a(EXF)
        def kv_src(sd, b):
            a(f"s_lshr_b32 s{sd}, s{WV}, 2")
            if b == 4: a(f"s_mul_i32 s{T}, s{sd}, 10240"); a(f"s_lshl_b32 s{sd}, s{sd}, 1")
            a(f"s_add_u32 s{sd}, s{sd}, s{G}"); a(f"s_add_u32 s{sd}, s{sd}, {2*b - 1 + (b > 4)}"); a(f"s_and_b32 s{sd}, s{sd}, 7")
            a(f"s_mul_i32 s{sd}, s{sd}, {SL}"); a(f"s_add_u32 s{sd}, s{sd}, s{KVS}")
            if b == 4: a(f"s_add_u32 s{sd}, s{sd}, s{T}")
            if b > 4: a(f"s_add_u32 s{sd}, s{sd}, 10240")

        vm0, vm1 = Cnt("vmcnt", 63), Cnt("vmcnt", 63)
        def both(tag): vm0.issue(tag); vm1.issue(tag)
        def kvblock(b, pieces=(0, 1, 2)):
            def f():
                if pieces[0] == 0: kv_src(T+7, b)
                for i in pieces: kv_dma1(T+7, b-1, i); both(("kv", b))
            return f
        def slot1():
            self.stamp(6)
            for k in range(2):
                a(f"s_add_u32 s{T+7}, s{G}, {1 + k}"); a(f"s_and_b32 s{T+7}, s{T+7}, 7"); a(f"s_mul_i32 s{T+7}, s{T+7}, {SL}"); a(f"s_add_u32 s{T+7}, s{T+7}, s{KVS}")
                for i in range(3): kv_dma1(T+7, 0, i, 10240*k)
        def aside(cond, fn):
            lo, lb = self.lab("as"), self.lab("asb")
            a(f"s_cmp_{'ge' if cond else 'lt'}_u32 s{WV}, 4"); a(f"s_cbranch_scc1 {lo}"); a(f"{lb}:")
            main, self.a = self.a, self.tail
            a(f"{lo}:"); fn(); a(f"s_branch {lb}")
            self.a = main
        QA = PB + 54
        a("s_barrier")
        self.stamp(4)
        prio(3)()
        l = self.lab("ask")
        a(f"s_cmp_ge_u32 s{WV}, 4"); a(f"s_cbranch_scc1 {l}")
        a(f"buffer_load_dword v{t3}, v{PA}, {sr(WS,4)}, s{T+5} offen sc1")
        a(f"{l}:")
        a(f"ds_read_b64 {vr(Q4,2)}, v{QA+2} offset:1024")
        a(f"ds_read2st64_b64 {vr(Q[0],4)}, v{QA} offset0:0 offset1:1"); a(f"ds_read2st64_b64 {vr(Q[1],4)}, v{QA+1} offset0:0 offset1:1")
        def misc0():
            for q in range(2):
                for i in range(0, 16, 2): a(f"v_mov_b64 {vr(O[q]+i,2)}, 0")
            aside(1, self.publish)
            a("s_nop 8")
        fill(-4, self.capture(misc0))
        def retry():
            aside(0, lambda: (self.poll(WS, PA, f"s{T+5}", f"s{T+6}", issued=True), slot1()))
            both(("kv", 1))
        def lateflag():
            aside(1, lambda: (self.flag(f"s{FO}", f"s{T+6}", "sc1"), self.stamp(5), self.stamp(6)))
            a(f"s_lshl_b32 s{T}, s{G}, 3"); a(f"s_add_u32 s{T}, s{T}, s{T+4}"); a(f"s_mul_i32 s{OS}, s{T}, {2*HB_}"); a(f"s_add_u32 s{OS}, s{OS}, {hx(OF)}")
            a(f"s_lshl_b32 s{FO}, s{T+4}, 8"); a(f"s_add_u32 s{FO}, s{FO}, s{FB}"); a(f"s_lshl_b32 s{T}, s{IDX}, 2"); a(f"s_add_u32 s{FO}, s{FO}, s{T}"); a(f"s_add_u32 s{FO}, s{FO}, 128")
        def bar1():
            a(vm1.wait(("kv", 1))); vm0.wait(("kv", 1)); a("s_barrier")
            self.stamp(7)
            prio(3)()
        NSTEP = 28
        hk = {t: {} for t in range(-4, NSTEP)}
        def at(h, pos, f): h[pos // 32].setdefault(pos % 32, []).append(f)
        pg, pf, b1 = OPT.get("p1", (8, 60, 31))
        at(hk, -128 + pg, retry); at(hk, -128 + pf, lateflag); at(hk, -64 + b1, bar1)
        at(hk, -128 + 31, prio(2)); at(hk, -128 + 63, prio(1)); at(hk, -64 + b1 - 6, prio(0))
        at(hk, -1, prio(2)); at(hk, 31, prio(1)); at(hk, 32 + OPT.get("plast", 26), prio(0))
        def l0only(fn):
            def g():
                if fn.__name__ in OPT.get("x_nol0", ()):
                    self.capture(fn); return
                l = self.lab("l0")
                a(f"s_cmp_lg_u32 s{LAY}, 0"); a(f"s_cbranch_scc1 {l}")
                fn()
                a(f"{l}:")
            return g
        def late_issue():
            a(f"s_add_u32 s{T+5}, s{T+5}, {128 << OPT.get("ks", 0)}")
            a(f"buffer_load_dword v{t3}, v{PA}, {sr(WS,4)}, s{T+5} offen sc1"); both("lp")
        def late_check():
            lp, ld = self.lab("lpoll"), self.lab("lseen")
            w = vm1.wait("lp"); vm0.wait("lp"); a(w)
            a(f"v_cmp_gt_u32 vcc, s{T+6}, v{t3}"); a(f"s_cbranch_vccnz {lp}")
            a(f"{ld}:")
            main, self.a = self.a, self.tail
            a(f"{lp}:"); self.poll(WS, PA, f"s{T+5}", f"s{T+6}"); a(f"s_branch {ld}")
            self.a = main
        kvs = OPT.get("kvs", {2: -1, 3: 2, 4: 6, 5: 8, 6: 10, 7: 12})
        at(hk, int((kvs[4] - OPT.get("la", 2))*32) + 3, late_issue); at(hk, int(kvs[4]*32) + 7, late_check)
        assert kvs[2]*32 + OPT.get('e1', 9) > -64 + b1
        for b in range(2, 8):
            for i in range(3): at(hk, int(kvs[b]*32) + OPT.get('e1', 9) + (4 if b == 2 else OPT.get("kd", 24))*i, kvblock(b, (i,)))
        PS = T + 11
        def pack_load(u):
            def pack_load():
                if u == 0:
                    a(f"v_lshrrev_b32 v{t0}, 1, v{vL}"); a(f"v_and_b32 v{t1}, 1, v{vL}"); a(f"v_lshlrev_b32 v{t1}, 4, v{t1}")
                    a(f"v_mul_u32_u24 v{PA+1}, 3072, v{t0}"); a(f"v_add_u32 v{PA+1}, v{PA+1}, v{t1}")
                    a(f"v_mul_u32_u24 v{PA+2}, 1280, v{t0}"); a(f"v_add_u32 v{PA+2}, v{PA+2}, v{t1}")
                l1 = self.lab("pk")
                a(f"s_lshl_b32 s{T}, s{WV}, {10 if u == 2 else 11}"); a(f"s_add_u32 m0, s{T}, {(5*SL, 5*SL+1024, 6*SL+10240)[u]}")
                a(f"s_cmp_eq_u32 s{PDST[u]}, -1"); a(f"s_cbranch_scc1 {l1}")
                a(f"buffer_load_dwordx4 v{PA+1+(u > 0)}, {sr((W1, W2, WO)[u],4)}, s{PSRC[u]} offen lds")
                a(f"{l1}:")
                if u == 2: vm0.issue("pk")
            return pack_load
        def pack_read():
            a(f"s_lshl_b32 s{T}, s{WV}, 11"); a(f"s_add_u32 s{T}, s{T}, {5*SL}"); a(f"v_lshl_add_u32 v{t0}, v{vL}, 3, s{T}")
            a(f"s_lshl_b32 s{T}, s{WV}, 10"); a(f"s_add_u32 s{T}, s{T}, {6*SL+10240}"); a(f"v_lshl_add_u32 v{t1}, v{vL}, 3, s{T}")
            a(vm0.wait("pk"))
            for u in range(3):
                v, o = (t0, 1024*u) if u < 2 else (t1, 0)
                a(f"ds_read_b64_tr_b16 {vr(PR+4*u,2)}, v{v} offset:{o}"); a(f"ds_read_b64_tr_b16 {vr(PR+4*u+2,2)}, v{v} offset:{o+512}")
        def pack_store():
            for u in range(3):
                l1 = self.lab("pks")
                a(f"s_cmp_eq_u32 s{PDST[u]}, -1"); a(f"s_cbranch_scc1 {l1}")
                a(f"buffer_store_dwordx4 {vr(PR+4*u,4)}, v{vL16}, {sr(WS,4)}, s{PDST[u]} offen sc1")
                a(f"{l1}:")
            vm0.issue("pks")
        def pack_done(): a(vm0.wait("pks"))
        def pack_flag():
            a(f"s_lshl_b32 s{PS}, s{NT}, 13"); a(f"s_add_u32 s{PS}, s{PS}, {hx(FLG+3072)}")
            a(f"s_lshl_b32 s{T}, s{G}, 2"); a(f"s_lshr_b32 s{T+2}, s{IDX}, 3"); a(f"s_add_u32 s{T}, s{T}, s{T+2}"); a(f"s_lshl_b32 s{T}, s{T}, 2"); a(f"s_add_u32 s{T}, s{T}, s{PS}")
            a(f"v_mov_b32 v{t0}, 1"); a(f"v_mov_b32 v{t1}, 0"); a(f"v_lshlrev_b32 v{PA+1}, 2, v{vM}")
            a(f"s_cmp_eq_u32 s{WV}, 0"); a("s_cselect_b64 exec, 1, 0")
            l = self.lab("pkf")
            a(f"s_cbranch_execz {l}")
            a(f"buffer_store_dword v{t0}, v{t1}, {sr(WS,4)}, s{T} offen sc1")
            a(f"{l}:"); a(EXF)
        def pack_ask():
            a(f"buffer_load_dword v{PF}, v{PA+1}, {sr(WS,4)}, s{PS} offen sc1")
            a(f"buffer_load_dword v{t3}, v{PA+1}, {sr(WS,4)}, s{FB} offen offset:3200 sc1"); vm0.issue("ask")
        def pack_wait():
            lp, ld = self.lab("ppoll"), self.lab("pseen")
            a(vm0.wait("ask"))
            a(f"v_min_u32 v{t0}, v{PF}, v{t3}"); a(f"v_cmp_eq_u32 vcc, 0, v{t0}"); a(f"s_cbranch_vccnz {lp}")
            a(f"{ld}:")
            main, self.a = self.a, self.tail
            a(f"{lp}:"); self.poll(WS, PA+1, f"s{PS}", "1")
            a(f"s_add_u32 s{T}, s{FB}, 3200"); self.poll(WS, PA+1, f"s{T}", "16"); a(f"s_branch {ld}")
            self.a = main
            a(f"v_readfirstlane_b32 s{T}, v{t3}"); a("s_nop 1"); a(f"v_cmp_ne_u32 vcc, s{T}, v{t3}")
            a("s_cmp_eq_u64 vcc, 0"); a(f"s_cselect_b32 s{FAST}, {0 if OPT['forceslow'] else 1}, 0")
        pl_, pr_, pd_, pw_ = OPT.get("pk", (0, 3, 6, 12))
        if OPT.get("pspread", 0):
            for u in range(3): at(hk, pl_*32 + 4 + OPT["pspread"]*u, l0only(pack_load(u)))
        else:
            def pack_load_all():
                for u in range(3): pack_load(u)()
            at(hk, pl_*32 + 4, l0only(pack_load_all))
        at(hk, pr_*32 + 20, l0only(pack_read)); at(hk, (pr_+1)*32 + 3, l0only(pack_store))
        assert pd_ % 4 == 2 and pd_ > pr_ + 1 and any(pr_ + 1 < b <= kvs[6] for b in (2, 6, 10, 14))
        at(hk, pd_*32 - 1, l0only(pack_done)); at(hk, pd_*32 + 3, l0only(pack_flag))
        at(hk, int((pw_ - OPT.get("pa", 1.5))*32) + 30, l0only(pack_ask)); at(hk, pw_*32 + 30, l0only(pack_wait))
        def wo_piece(n, lds, half=False):
            def f():
                if n == 0:
                    a(f"s_mul_i32 s{DS}, s{NT}, {100*1024}"); a(f"s_add_u32 s{DS}, s{DS}, {hx(PKO)}"); a(f"s_lshl_b32 s{T+8}, s{WV}, 10")
                r = WOFF if lds >= 4*SL else T+8
                a(f"s_add_u32 m0, s{r}, {lds}"); a(f"s_add_u32 s{T}, m0, s{DS}")
                if half: a(HALF)
                a(f"buffer_load_dwordx4 v{vL16}, {sr(WS,4)}, s{T} offen sc1 lds"); both("wo")
                if half: a(EXF)
            return f
        wst = OPT.get("wst", [13, 13.5, 14, 14.5, 15, 15.5, 16, 18, 18.5, 19, 22, 22.5, 23])
        wpos = [int(x*32) + OPT.get('e1', 9) for x in wst]
        for n in range(13):
            last = (n*8192 + 8191) // SL if n < 10 else 4
            assert wst[n] >= 4*last + 6 and wst[n] > pw_
        for n in range(0 if OPT.get("x_nowo") else 10): at(hk, wpos[n], wo_piece(n, n*8192))
        for i in range(0 if OPT.get("x_nowo") else 3): at(hk, wpos[10+i], wo_piece(10+i, 4*SL + 1024*i, i == 2))
        TB = T + 1
        def touch(setup, nlines, stride, k):
            def f():
                if setup:
                    setup()
                    a(f"v_min_u32 v{PA+2}, {nlines-1}, v{vL}"); a(f"v_lshlrev_b32 v{PA+2}, 7, v{PA+2}")
                else: a(f"s_add_u32 s{TB}, s{TB}, {stride}")
                a(f"buffer_load_dword v{PF+1+(k&1)}, v{PA+2}, {sr(WS,4)}, s{TB} offen sc1"); both("pf")
            return f
        def share(buf, per_wave):
            def f():
                a(f"s_lshl_b32 s{TB}, s{G}, 5"); a(f"s_add_u32 s{TB}, s{TB}, s{IDX}"); a(f"s_lshl_b32 s{TB}, s{TB}, 3"); a(f"s_add_u32 s{TB}, s{TB}, s{WV}")
                a(f"s_mul_i32 s{TB}, s{TB}, {per_wave}"); a(f"s_add_u32 s{TB}, s{TB}, {hx(buf)}")
            return f
        def tile(buf, mask, sh, tbytes, nl):
            def f():
                a(f"s_and_b32 s{T}, s{IDX}, {mask}"); a(f"s_mul_i32 s{T}, s{T}, {tbytes}")
                a(f"s_lshr_b32 s{TB}, s{IDX}, {sh}"); a(f"s_lshl_b32 s{TB}, s{TB}, 3"); a(f"s_add_u32 s{TB}, s{TB}, s{WV}"); a(f"s_mul_i32 s{TB}, s{TB}, {nl*128}")
                a(f"s_add_u32 s{TB}, s{TB}, s{T}"); a(f"s_add_u32 s{TB}, s{TB}, {hx(buf)}")
            return f
        def opart():
            a(f"s_lshl_b32 s{TB}, s{G}, 4"); a(f"s_lshr_b32 s{T}, s{IDX}, 1"); a(f"s_add_u32 s{TB}, s{TB}, s{T}"); a(f"s_mul_i32 s{TB}, s{TB}, {HB_}")
            a(f"s_lshl_b32 s{T}, s{ODD}, 3"); a(f"s_add_u32 s{T}, s{T}, s{WV}"); a(f"s_mul_i32 s{T}, s{T}, 1280"); a(f"s_add_u32 s{TB}, s{TB}, s{T}"); a(f"s_add_u32 s{TB}, s{TB}, {hx(HF)}")
        tl = dict(o=(opart, 10, 0), x=(share(XF, XB//16), 11, 0), h=(share(HF, HB_//16), 13, 12*128),
                  a=(tile(PK1 + 32768, 15, 4, 120*1024, 6), 6, 61440 + 16384), c=(tile(PK2 + OPT.get('c0', 0)*SL, 15, 4, 120*1024, 10), 10, OPT.get('cd', 1)*SL))
        def code_touch(l0, l1):
            def f():
                l, pc = self.lab("ct"), self.lab("pc")
                a(f"s_cmp_eq_u32 s{WV}, 7"); a(f"s_cbranch_scc0 {l}")
                a(f"s_getpc_b64 {sr(T+2,2)}"); a(f"{pc}:")
                a(f"s_lshl_b32 s{T}, s{IDX}, 10"); a(f"s_add_u32 s{T}, s{T}, {l0}-{pc}")
                a(f"v_and_b32 v{t0}, 7, v{vL}"); a(f"v_lshl_add_u32 v{t0}, v{t0}, 7, s{T}"); a(f"v_min_u32 v{t0}, {l1}-{pc}, v{t0}")
                a(f"global_load_dword v{PF+3}, v{t0}, {sr(T+2,2)}")
                a(f"{l}:")
            return f
        def bias_touch():
            l = self.lab("bt")
            a(f"s_cmp_eq_u32 s{WV}, 6"); a(f"s_cbranch_scc0 {l}")
            a(f"v_lshlrev_b32 v{t0}, 7, v{vM}")
            a(f"buffer_load_dword v{PF+3}, v{t0}, {sr(B1,4)}, 0 offen"); a(f"buffer_load_dword v{PF+3}, v{t0}, {sr(B2,4)}, 0 offen")
            a(f"{l}:")
        def out_touch():
            l = self.lab("ot")
            a(f"s_cmp_eq_u32 s{LAY}, 1"); a(f"s_cbranch_scc0 {l}")
            a(f"s_lshl_b32 s{T}, s{G}, 5"); a(f"s_add_u32 s{T}, s{T}, s{IDX}"); a(f"s_lshl_b32 s{T}, s{T}, 3"); a(f"s_add_u32 s{T}, s{T}, s{WV}"); a(f"s_mul_i32 s{T}, s{T}, 1280")
            a(f"v_min_u32 v{t0}, 9, v{vL}"); a(f"v_lshlrev_b32 v{t0}, 7, v{t0}")
            a(f"buffer_load_dword v{PF+3}, v{t0}, {sr(OUT,4)}, s{T} offen")
            a(f"{l}:")
        if OPT.get("ct", 24) is not None: at(hk, OPT.get("ct", 24)*32 + 11, l0only(code_touch("L_att_fin", "L_last")))
        if OPT.get("bt", 25) is not None: at(hk, OPT.get("bt", 25)*32 + 11, bias_touch)
        if OPT.get("ot") is not None: at(hk, OPT["ot"]*32 + 19, out_touch)
        EA = KK[0]
        def ex_addr():
            for u in range(2):
                if u: a(f"s_xor_b32 s{T}, s{WV}, 4")
                w = T if u else WV
                a(f"s_lshl_b32 s{T+2}, s{w}, 11"); a(f"s_add_u32 s{T+2}, s{T+2}, {5*SL}"); a(f"v_add_u32 v{EA+2*u}, s{T+2}, v{vL16}")
                a(f"s_lshr_b32 s{T+2}, s{w}, 2"); a(f"s_mul_i32 s{T+2}, s{T+2}, {2*SL - 16384}"); a(f"s_lshl_b32 s{T+3}, s{HW}, 10"); a(f"s_add_u32 s{T+2}, s{T+2}, s{T+3}")
                a(f"s_add_u32 s{T+2}, s{T+2}, {5*SL + 16384}"); a(f"v_add_u32 v{EA+2*u+1}, s{T+2}, v{vL16}")
        def ex_write():
            for i in range(3): a(f"ds_write_b128 v{EA + (i == 2)}, {vr(O[0]+4*i,4)} offset:{1024*(i & 1)}")
        at(hk, (NSTEP-1)*32 + 5, ex_addr); at(hk, (NSTEP-1)*32 + 29, ex_write)
        PL = T + 12
        self.PLC = [188 + 4*i for i in range(6)] + [CS1 + 4, CS1]
        self.PLH = [188 + 4*i for i in range(6)] + [CS1 + 4] + [RES + 4*i for i in range(5)]
        def pl_load(reg, i): a(f"s_add_u32 s{T}, s{PL}, {4096*i}"); a(f"buffer_load_dwordx4 {vr(reg,4)}, v{vL16}, {sr(WS,4)}, s{T} offen sc1")
        def pl_piece(i):
            def f():
                if i == 0:
                    a(f"s_and_b32 s{T}, s{IDX}, 15"); a(f"s_lshl_b32 s{T}, s{T}, 1"); a(f"s_lshr_b32 s{PL}, s{WV}, 2"); a(f"s_add_u32 s{T}, s{T}, s{PL}")
                    a(f"s_mul_i32 s{T}, s{T}, 61440"); a(f"s_lshl_b32 s{PL}, s{HW}, 10"); a(f"s_add_u32 s{PL}, s{PL}, s{T}"); a(f"s_add_u32 s{PL}, s{PL}, {hx(PK1)}")
                if i < 7:
                    pl_load(self.PLC[i], i); both("pl")
                else:
                    l, l2 = self.lab("plh"), self.lab("pld")
                    a(f"s_cmp_ge_u32 s{WV}, 4"); a(f"s_cbranch_scc1 {l}")
                    if i == 7: pl_load(self.PLC[7], 7)
                    else:
                        a(f"s_lshl_b32 s{T}, s{HW}, 10"); a(f"s_add_u32 m0, s{T}, {5*SL + 4096*(i+3)}"); a(f"s_add_u32 s{T}, s{PL}, {4096*(i+3)}")
                        a(f"buffer_load_dwordx4 v{vL16}, {sr(WS,4)}, s{T} offen sc1 lds")
                    a(f"{l2}:"); both("pl")
                    main, self.a = self.a, self.tail
                    a(f"{l}:"); pl_load(self.PLH[i], i); a(f"s_branch {l2}")
                    self.a = main
            return f
        plst = OPT.get("plst", [13 + 0.5*i for i in range(12)])
        for i in range(0 if OPT.get("x_nopl") else 12):
            assert plst[i] > pw_
            at(hk, int(plst[i]*32) + OPT.get('e2', 3), pl_piece(i))
        k = 0
        for name, sts in OPT.get("touch", dict(c=[18.5, 19.5, 20.5, 21.5, 22.5, 23.5], a=[24, 24.5], h=[25, 25.5], x=[26])).items():
            for i, st in enumerate(sts):
                assert name in "xho" or st > pw_
                at(hk, int(st*32) + OPT.get('e3', 11), touch(tl[name][0] if i == 0 else None, tl[name][1], tl[name][2], k)); k += 1
        for t in range(-4, NSTEP):
            if t % 4 == 2 and t > 0:
                b = t // 4 + 2
                if b <= 7:
                    a(vm1.wait(("kv", b))); vm0.wait(("kv", b))
                a("s_barrier")
                prio(3)()
                if t + 3 < NSTEP:
                    at(hk, (t+1)*32 + 31, prio(2)); at(hk, (t+2)*32 + 31, prio(1)); at(hk, (t+3)*32 + OPT.get("plast", 26), prio(0))
            if t == NSTEP - 1:
                at(hk, t*32 + 0, prio(1)); at(hk, t*32 + OPT.get("plast", 26), prio(0))
            step(t, NSTEP - 1, first=(t == -4), hook=hk[t], kpos=(max(b1, 6), max(b1, 17)) if t == -2 else (5, 17))
        a("s_nop 1")
        a(pv(NSTEP - 1, 3))
        for r in base: base[r] = 0
        self.stamp(8)
        FL = 7*SL - 32
        a("L_att_fin:")
        a("s_waitcnt vmcnt(0) lgkmcnt(0)"); a("s_barrier")
        for i in range(3): a(f"ds_read_b128 {vr(S[0]+4*i,4)}, v{EA + 2 + (i == 2)} offset:{1024*(i & 1)}")
        a(f"s_lshl_b32 s{T}, s{WV}, 2"); a(f"s_add_u32 s{T}, s{T}, {FL}"); a(f"v_mov_b32 v{t2}, s{T}")
        a(f"v_and_b32 v{t3}, 7, v{vL}"); a(f"v_lshlrev_b32 v{t3}, 2, v{t3}"); a(f"v_add_u32 v{t3}, {FL}, v{t3}")
        a(f"s_mov_b32 s{T}, {hx(f2u(2.0**-24))}"); a(f"s_mov_b32 s{T+1}, {hx(f2u(2.0**48))}")
        a("s_waitcnt lgkmcnt(0)")
        Oo = O[1]
        a(f"v_add_f32 v{t0}, v{Oo+8}, v{S[0]+8}"); a(f"v_add_f32 v{t1}, v{Oo+8}, v{S[0]+8}")
        for i in (0, 2): a(f"v_pk_add_f32 {vr(Oo+i,2)}, {vr(Oo+i,2)}, {vr(S[0]+i,2)}")
        a(f"v_permlane32_swap_b32 v{t1}, v{t0}")
        for i in (4, 6): a(f"v_pk_add_f32 {vr(Oo+i,2)}, {vr(Oo+i,2)}, {vr(S[0]+i,2)}")
        a(f"v_rcp_f32 v{S[0]+12}, v{t0}")
        for i in (8, 10): a(f"v_pk_add_f32 {vr(Oo+i,2)}, {vr(Oo+i,2)}, {vr(S[0]+i,2)}")
        a(f"v_mov_b32 v{S[0]+13}, v{S[0]+12}")
        for i in range(0, 12, 2): a(f"v_pk_mul_f32 {vr(Oo+i,2)}, {vr(Oo+i,2)}, {vr(S[0]+12,2)}")
        for i in range(6): a(f"v_cvt_pk_bf16_f32 v{S[0]+i}, v{Oo+2*i}, v{Oo+2*i+1}")
        self.mstore([f"buffer_store_dwordx2 {vr(S[0],2)}, v{OA}, {sr(WS,4)}, s{OS} offen",
                     f"buffer_store_dwordx2 {vr(S[0]+2,2)}, v{OA+1}, {sr(WS,4)}, s{OS} offen",
                     "s_mov_b32 exec_hi, 0",
                     f"buffer_store_dwordx2 {vr(S[0]+4,2)}, v{OA+2}, {sr(WS,4)}, s{OS} offen",
                     EXF])
        Z = S[0] + 14
        a(f"v_mov_b64 {vr(Z,2)}, 0"); a(f"v_mov_b64 {vr(Z+2,2)}, 0")
        a(f"v_cmp_nle_f32 vcc, s{T}, v{t0}"); a(f"v_cmp_nge_f32 {sr(T+2,2)}, s{T+1}, v{t0}")
        for i in range(0, 12, 2): a(f"v_pk_fma_f32 {vr(Z,2)}, {vr(Oo+i,2)}, {vr(Z+2,2)}, {vr(Z,2)}")
        a(f"s_or_b64 vcc, vcc, {sr(T+2,2)}")
        a(f"v_cmp_u_f32 {sr(T+4,2)}, v{Z}, v{Z+1}")
        a(f"s_or_b64 vcc, vcc, {sr(T+4,2)}")
        a(f"s_cselect_b32 s{T}, 1, 0"); a(f"v_mov_b32 v{t1}, s{T}")
        a(f"ds_write_b32 v{t2}, v{t1}")
        a("s_waitcnt lgkmcnt(0)"); a("s_barrier")
        a(f"ds_read_b32 v{t1}, v{t3}")
        a(f"s_add_u32 s{T+6}, s{LAY}, 1")
        a("s_waitcnt lgkmcnt(0)")
        a(f"v_cmp_lt_u32 vcc, s{PASS}, v{t1}")
        if not OPT.get("x_nofb"): a("s_cbranch_vccnz L_att_redo")
        self.flag(f"s{FO}", f"s{T+6}")
        self.stamp(9)
        main, self.a = self.a, self.tail
        a("L_att_redo:")
        for i in range(32): a(f"v_mov_b32 v{NM+i}, 0")
        a(f"v_mov_b32 v{PF}, 0xff800000"); a(f"v_mov_b32 v{PF+1}, 0xff800000")
        for q in range(2):
            for i in range(16): a(f"v_mov_b32 v{O[q]+i}, 0")
        a("L_fb_pass:")
        a(f"s_mov_b32 s{IT}, 0")
        a("L_fb_blk:")
        a("s_waitcnt vmcnt(0) lgkmcnt(0)"); a("s_barrier")
        a(f"s_lshl_b32 s{T+7}, s{IT}, 1"); a(f"s_lshr_b32 s{T}, s{WV}, 2"); a(f"s_add_u32 s{T+7}, s{T+7}, s{T}")
        a(f"s_mul_i32 s{T+7}, s{T+7}, 10240"); a(f"s_add_u32 s{T+7}, s{T+7}, s{KVS}")
        for i in range(3): kv_dma1(T+7, 6, i)
        set_addr(6*SL)
        a(f"s_mov_b32 s{T+9}, 0")
        a("s_waitcnt vmcnt(0)"); a("s_barrier")
        a("L_fb_step:")
        a(rdK4(0)); a(rdK(0)); a(rdV(0))
        a("s_waitcnt lgkmcnt(0)")
        a(m2b(0, vr(NM, 32))); a("s_nop 15"); a("s_nop 1"); a(mk(0, 0)); a(mk(0, 1)); a("s_nop 11")
        a(f"s_cmp_eq_u32 s{PASS}, 0"); a("s_cbranch_scc0 L_fb_sum")
        for q in range(2):
            for i in range(0, 16, 2): a(f"v_max3_f32 v{PF+q}, v{PF+q}, v{S[0]+16*q+i}, v{S[0]+16*q+i+1}")
        a("s_branch L_fb_next")
        a("L_fb_sum:")
        for e in range(32): a(f"v_exp_f32 v{S[0]+e}, v{S[0]+e}")
        a("s_nop 1")
        for i in range(4): a(pv(0, i))
        a("L_fb_next:")
        for r in (AK, AK4, AV): a(f"v_add_u32 v{r}, 2560, v{r}")
        a(f"s_add_u32 s{T+9}, s{T+9}, 1"); a(f"s_cmp_lt_u32 s{T+9}, 4"); a("s_cbranch_scc1 L_fb_step")
        a(f"s_add_u32 s{IT}, s{IT}, 1"); a(f"s_cmp_lt_u32 s{IT}, 8"); a("s_cbranch_scc1 L_fb_blk")
        a("s_nop 15")
        a(f"s_cmp_eq_u32 s{PASS}, 0"); a("s_cbranch_scc1 L_fb_max")
        ex_addr(); ex_write()
        a("s_branch L_att_fin")
        a("L_fb_max:")
        self.swap_add([PF, PF+1], t0, 32, "v_max_f32")
        a(f"s_lshl_b32 s{T}, s{WV}, 9"); a(f"s_add_u32 s{T}, s{T}, {5*SL}"); a(f"v_lshl_add_u32 v{t0}, v{vL}, 3, s{T}")
        a(f"s_xor_b32 s{T}, s{WV}, 4"); a(f"s_lshl_b32 s{T}, s{T}, 9"); a(f"s_add_u32 s{T}, s{T}, {5*SL}"); a(f"v_lshl_add_u32 v{t1}, v{vL}, 3, s{T}")
        a(f"ds_write_b64 v{t0}, {vr(PF,2)}")
        a("s_waitcnt lgkmcnt(0)"); a("s_barrier")
        a(f"ds_read_b64 {vr(t2,2)}, v{t1}")
        a("s_waitcnt lgkmcnt(0)")
        a(f"v_max_f32 v{PF}, v{PF}, v{t3}"); a(f"v_max_f32 v{PF+1}, v{PF+1}, v{t2}")
        for i in range(32): a(f"v_sub_f32 v{NM+i}, 0, v{PF+(i>>4)}")
        a(f"s_mov_b32 s{PASS}, 1"); a("s_branch L_fb_pass")
        self.a = main

    def chain(self):
        a = self.p
        a(f"s_cmp_ge_u32 s{WV}, 4"); a("s_cbranch_scc1 L_ch_h")
        RA = PB
        BI = PB + 4
        BR = PB + 16
        AC = PB + 48
        P  = PB + 88
        AR = PB + 104
        WXL = 2*SL - 4096
        ring = lambda b, n: [b + 4*i for i in range(n)]
        NF5, NF6 = OPT.get("nf5", 8), OPT.get("nf6", 8)
        def abase(buf, ks, sk, other):
            a(f"s_mul_i32 s{T}, s{sk}, {ks//2*1024}"); a(f"s_add_u32 s{T}, s{T}, {hx(buf)}")
            a(f"s_mul_i32 s{A0}, s{RBO}, {HB_}"); a(f"s_add_u32 s{A0}, s{A0}, s{T}")
            a(f"s_xor_b32 s{A1}, s{RBO}, {other}"); a(f"s_mul_i32 s{A1}, s{A1}, {HB_}"); a(f"s_add_u32 s{A1}, s{A1}, s{T}")
        def first(vm, RD, AR):
            for gs in range(IN):
                for ls in self.a_loads(gs, RD, AR): a.extend(ls); vm.issue(("A", gs))
        IN = OPT.get("in_c", 2)
        B_ = ["s_barrier"]
        TWO = OPT.get("two", 0)
        a("s_setprio 1")
        a(f"s_and_b32 s{T+2}, s{FXO}, -256"); a(f"s_add_u32 s{T+2}, s{T+2}, 128")
        a(f"v_and_b32 v{t2}, 31, v{vL}"); a(f"v_lshlrev_b32 v{t2}, 2, v{t2}")
        a(f"s_lshl_b32 s{T}, s{WV}, 10"); a(f"s_add_u32 s{T}, s{T}, {5*SL}"); a(f"v_add_u32 v{t0}, s{T}, v{vL16}")
        OB = [A0, A1, T+7, T+8, T+9]
        a(f"s_mul_i32 s{A0}, s{RBO}, {HB_}"); a(f"s_add_u32 s{A0}, s{A0}, {hx(OF)}")
        for i in range(1, 5): a(f"s_add_u32 s{OB[i]}, s{A0}, {4096*i}")
        a(f"v_add_u32 v{RA}, 61440, v{vL16}"); a(f"v_lshlrev_b32 v{t1}, 3, v{vG}")
        for i, r in enumerate(self.PLC):
            if i == OPT.get("pi", 3): a(f"buffer_load_dword v{t3}, v{t2}, {sr(WS,4)}, s{T+2} offen sc1")
            a(f"ds_write_b128 v{t0}, {vr(r,4)} offset:{4096*i}")
        self.poll(WS, t2, f"s{T+2}", f"s{T+6}", issued=OPT.get("pi", 3) < 8)
        self.stamp(10)
        vm = Cnt("vmcnt", 63)
        def bias2(burst):
            for nb in range(5):
                a(f"buffer_load_dwordx2 {vr(BI+2*nb,2)}, v{t1}, {sr(B2,4)}, s{COL+nb} offen"); vm.issue("b2")
        self.gemm2([(ks, (0,)) for ks in range(20)], 5, ring(AR, 10), 10, ring(BR, NF5), RES,
                   lambda ks, nb: (vL16 if ks < 12 else RA, (ks % 12)*5120 + nb*1024),
                   lambda ks, rb, r: f"buffer_load_dwordx4 {vr(r,4)}, v{vL16}, {sr(WS,4)}, s{OB[ks//4]} offen offset:{1024*(ks % 4)} sc1",
                   vm, lambda rb, nb: vr(RES + 4*nb, 4), init=OPT.get("in_o", 3), ahead=OPT.get("ah_o", 6), bars={OPT.get("ob", 2): B_})
        self.stamp(11)
        if not OPT.get("lb", 0): a("s_barrier")
        else: a("s_nop 0")
        a(f"s_lshl_b32 s{T+3}, s{LAY}, 2"); a(f"s_add_u32 s{T+5}, s{T+3}, 4"); a(f"s_add_u32 s{T+3}, s{T+3}, 3")
        for i in range(10): a(f"v_cvt_pk_bf16_f32 v{P+i}, v{RES+2*i}, v{RES+2*i+1}")
        def f1_setup():
            a(f"s_and_b32 s{T+2}, s{FXO}, -256"); a(f"s_and_b32 s{T+4}, s{IDX}, 15")
            a(f"s_lshl_b32 s{FO}, s{T+4}, 2"); a(f"s_add_u32 s{FO}, s{FO}, s{T+2}"); a(f"s_add_u32 s{FO}, s{FO}, 64")
            a(f"s_xor_b32 s{T}, s{RBO}, 1")
            a(f"s_mul_i32 s{A0}, s{RBO}, {XB}"); a(f"s_mul_i32 s{A1}, s{T}, {XB}"); a(f"s_min_u32 s{T+1}, s{A0}, s{A1}"); a(f"s_add_u32 s{T+1}, s{T+1}, 20480")
            a(f"s_mul_i32 s{IT}, s{T}, {HB_}"); a(f"s_mul_i32 s{OS}, s{RBO}, {HB_}"); a(f"s_mul_i32 s{T}, s{T+4}, 3072"); a(f"s_add_u32 s{T}, s{T}, {hx(HF)}")
            a(f"s_add_u32 s{OS}, s{OS}, s{T}"); a(f"s_add_u32 s{IT}, s{IT}, s{T}")
            a(f"v_add_u32 v{RA}, {5*SL}, v{vL16}"); a(f"v_add_u32 v{RA+1}, {2*SL}, v{vL16}")
            a(f"v_and_b32 v{RA+2}, 511, v{vL16}")
            a(f"v_lshlrev_b32 v{t1}, 3, v{vG}"); bias2(None)
            a(f"v_lshlrev_b32 v{t2}, 2, v{vJ}")
        self.xstore(f"s{T+5}", P, before_flag=f1_setup, packed=True, two=TWO, bar=OPT.get("lb", 0))
        self.stamp(12)
        RD = OPT.get("rd_1", 6)
        ST = PB + 96; RS = PB + 104; TX = PB + 108; TM = PB + 116; AR1 = PB + 120
        assert AR1 + 8*RD <= STH
        a(f"buffer_load_dword v{t3}, v{t2}, {sr(WS,4)}, s{T+2} offen sc1")
        if not TWO:
            for i in range(10):
                a(f"v_lshlrev_b32 v{t0}, 16, v{BI+i}"); a(f"v_and_b32 v{t1}, 0xffff0000, v{BI+i}")
                a(f"v_pk_add_f32 {vr(RES+2*i,2)}, {vr(RES+2*i,2)}, {vr(t0,2)}")
        a("s_waitcnt vmcnt(0)")
        if TWO: self.xflag2(f"s{T+5}")
        lp, ld = self.lab("x1"), self.lab("x1d")
        a(f"v_cmp_gt_u32 vcc, s{T+3}, v{t3}"); a(f"s_cbranch_vccnz {lp}"); a(f"{ld}:")
        main, self.a = self.a, self.tail
        a(f"{lp}:"); self.poll(WS, t2, f"s{T+2}", f"s{T+3}"); a(f"s_branch {ld}")
        self.a = main
        self.stamp(13)
        vm = Cnt("vmcnt", 63)
        first(vm, RD, AR1)
        if not TWO: self.stat_loads(ST, f"s{T+1}", vm, KH)
        for i in range(10 if TWO else 0):
            a(f"v_lshlrev_b32 v{t0}, 16, v{BI+i}"); a(f"v_and_b32 v{t1}, 0xffff0000, v{BI+i}")
            a(f"v_pk_add_f32 {vr(RES+2*i,2)}, {vr(RES+2*i,2)}, {vr(t0,2)}")
        a("s_barrier")
        self.stamp(14)
        c1 = 2*math.sqrt(2/math.pi)*math.log2(math.e)
        def prep():
            a("WAITV:st")
            self.stat_sum(ST, TM); self.stat_math(ST, RS, TX, True, halves=True)
            for rb in range(2):
                a(f"v_mul_f32 v{ST+4*rb}, {hx(f2u(-c1))}, v{RS+rb}"); a(f"v_mul_f32 v{TM}, v{RS+rb}, v{RS+rb}")
                a(f"v_mul_f32 v{TM}, {hx(f2u(0.044715))}, v{TM}"); a(f"v_mul_f32 v{ST+4*rb+2}, v{TM}, v{ST+4*rb}")
                a(f"v_mov_b32 v{ST+4*rb+1}, v{ST+4*rb}"); a(f"v_mov_b32 v{ST+4*rb+3}, v{ST+4*rb+2}")
            a(f"v_rcp_f32 v{RS+2}, v{RS+1}"); a(f"v_rcp_f32 v{RS}, v{RS}"); a("s_nop 0")
            a(f"v_mov_b32 v{RS+3}, v{RS+2}"); a(f"v_mov_b32 v{RS+1}, v{RS}")
            f2_setup()
        HO_ = [89, 90, 91, 92, 94, 95, 101]
        VA = BI
        def f2_setup():
            for j in range(1, 8):
                a(f"s_add_u32 s{T}, s{NT}, {j}"); a(f"s_and_b32 s{T}, s{T}, 7"); a(f"s_mul_i32 s{HO_[j-1]}, s{T}, 3072")
            a(f"s_mul_i32 s{T}, s{NT}, 3072")
            a(f"s_sub_u32 s{T+1}, s{OS}, s{T}"); a(f"v_add_u32 v{VA}, s{T+1}, v{vL16}")
            a(f"s_sub_u32 s{T+1}, s{IT}, s{T}"); a(f"v_add_u32 v{VA+1}, s{T+1}, v{vL16}")
            a(f"v_add_u32 v{RA+3}, 61440, v{vL16}")
            a(f"s_mul_i32 s{T}, s{KH}, {2*XB}"); a(f"s_sub_u32 s{T}, {XB}, s{T}"); a(f"s_add_u32 s{T+4}, s{XA}, s{T}"); a(f"s_add_u32 s{T+5}, s{XS}, s{T}")
            a(f"s_bfe_u32 s{T}, s{FXO}, 0x30008"); a(f"s_lshl_b32 s{T}, s{T}, 6"); a(f"s_and_b32 s{T+1}, s{FXO}, 63"); a(f"s_add_u32 s{T}, s{T}, s{T+1}")
            a(f"s_add_u32 s{T}, s{T}, s{FB}"); a(f"s_add_u32 s{T+6}, s{T}, 3328"); a(f"s_xor_b32 s{T+7}, s{T+6}, 4")
            a(f"s_and_b32 s{T+8}, s{FXO}, -256"); a(f"s_add_u32 s{T+8}, s{T+8}, 64")
            a(f"s_lshl_b32 s{T}, s{KH}, 5"); a(f"s_add_u32 s{T+9}, s{T+8}, s{T}")
            a(f"s_lshl_b32 s{T+10}, s{LAY}, 1"); a(f"s_add_u32 s{T+10}, s{T+10}, 1"); a(f"s_add_u32 s{T+11}, s{T+10}, 1")
            a(f"v_lshlrev_b32 v{VA+2}, 2, v{vJ}"); a(f"v_and_b32 v{VA+3}, 28, v{VA+2}")
            a(f"v_mov_b32 v{VA+4}, s{T+10}"); a(f"v_mov_b32 v{VA+5}, s{T+11}"); a(f"v_mov_b32 v{VA+6}, 0")
        pl = self.capture(prep)
        xs = OPT.get("xs", 20); fs = OPT.get("fs", 4) if TWO else IN - 1
        def ask1(b): a(f"buffer_load_dword v{t3}, v{t2}, {sr(WS,4)}, s{T+2} offen sc1"); vm.issue("x2")
        self.gemm(21, 6, RD, AR1, ring(BR, NF6), AC, lambda gs, nb: (RA + gs // 10, (gs % 10)*6144 + nb*1024 if gs < 20 else WXL + nb*512), None, vm,
                  extra={fs + 2 + i: pl[i*xs:(i+1)*xs] for i in range((len(pl) + xs - 1)//xs)},
                  hooks={fs - 2: ask1, fs: lambda b: (self.check(vm, "x2", t2, f"s{T+2}", f"s{T+5}"), self.stat_loads(ST, f"s{T+1}", vm, KH))} if TWO else {},
                  wgrp=OPT.get("wg6", 2), init=IN, areg={20: TX})
        a("s_barrier")
        self.stamp(15)
        TM = AR1
        RD = 8
        def hflag(v):
            a("s_mov_b64 exec, 1")
            self.mstore([f"buffer_store_dword v{v}, v{VA+6}, {sr(WS,4)}, s{FO} offen"])
            a("s_mov_b64 exec, -1")
        TM = BR
        groups = [[(kp, 0), (kp, 1)] for kp in range(3)] if OPT.get("gw", 1) == 2 else [[(kp, rb)] for kp in range(3) for rb in range(2)]
        for gi, grp in enumerate(groups):
            E = [(AC + 4*(6*rb + 2*kp) + 2*i, TM + 8*rb + 2*i, rb, AR + 24 + 4*(2*kp + rb) + i) for kp, rb in grp for i in range(4)]
            for r, t, rb, p in E: a(f"v_pk_mul_f32 {vr(t,2)}, {vr(r,2)}, {vr(r,2)}")
            for r, t, rb, p in E: a(f"v_pk_fma_f32 {vr(t,2)}, {vr(t,2)}, {vr(ST+4*rb+2,2)}, {vr(ST+4*rb,2)}")
            for r, t, rb, p in E: a(f"v_pk_mul_f32 {vr(t,2)}, {vr(t,2)}, {vr(r,2)}")
            for r, t, rb, p in E: a(f"v_exp_f32 v{t}, v{t}"); a(f"v_exp_f32 v{t+1}, v{t+1}")
            for r, t, rb, p in E: a(f"v_pk_fma_f32 {vr(t,2)}, {vr(t,2)}, {vr(RS+2*rb,2)}, {vr(RS+2*rb,2)}")
            for n, (r, t, rb, p) in enumerate(E):
                if gi == len(groups) - 1 and OPT.get("fa", 1) and n == OPT.get("fap", 4) % len(E):
                    a(f"s_waitcnt vmcnt({2 - len(grp)})"); hflag(VA+4)
                a(f"v_rcp_f32 v{t}, v{t}"); a(f"v_rcp_f32 v{t+1}, v{t+1}")
            for r, t, rb, p in E: a(f"v_pk_mul_f32 {vr(r,2)}, {vr(r,2)}, {vr(t,2)}")
            for r, t, rb, p in E: a(f"v_cvt_pk_bf16_f32 v{p}, v{r}, v{r+1}")
            self.mstore([f"buffer_store_dwordx4 {vr(AR + 24 + 4*(2*kp + rb),4)}, v{vL16}, {sr(WS,4)}, s{OS if rb == 0 else IT} offen offset:{1024*kp}" for kp, rb in grp])
        if not OPT.get("fa", 1):
            a("s_waitcnt vmcnt(2)"); hflag(VA+4)
        self.stamp(16)
        vm = Cnt("vmcnt", 63)
        def hload(gs, rb, r):
            j, kp = (1 + (gs - 3)//2, (gs - 3) & 1) if gs < 17 else (gs - 16, 2)
            return f"buffer_load_dwordx4 {vr(r,4)}, v{VA+rb}, {sr(WS,4)}, s{HO_[j-1]} offen offset:{1024*kp} sc1"
        def ask_a(burst): a(f"buffer_load_dword v{t3}, v{VA+3}, {sr(WS,4)}, s{T+9} offen sc1")
        def got_a(burst):
            a("s_waitcnt vmcnt(0)"); hflag(VA+5)
            lp, ld = self.lab("ha"), self.lab("had")
            a(f"v_cmp_gt_u32 vcc, s{T+10}, v{t3}"); a(f"s_cbranch_vccnz {lp}"); a(f"{ld}:")
            main, self.a = self.a, self.tail
            a(f"{lp}:"); self.poll(WS, VA+3, f"s{T+9}", f"s{T+10}"); a(f"s_branch {ld}")
            self.a = main
            self.stamp(17); self.stamp(18)
            burst(OPT.get("hb", 4))
        def ask_b(burst):
            a(f"buffer_load_dword v{t3}, v{VA+2}, {sr(WS,4)}, s{T+8} offen sc1"); vm.issue("hb")
        def got_b(burst):
            lp, ld = self.lab("hb"), self.lab("hbd")
            a(vm.wait("hb"))
            a(f"v_cmp_gt_u32 vcc, s{T+11}, v{t3}"); a(f"s_cbranch_vccnz {lp}"); a(f"{ld}:")
            main, self.a = self.a, self.tail
            a(f"{lp}:"); self.poll(WS, VA+2, f"s{T+8}", f"s{T+11}"); a(f"s_branch {ld}")
            self.a = main
        ha = OPT.get("ha", 1)
        g1_, g2_ = OPT.get("gb", (5, 14))
        SP_ = OPT.get("sp", 10)
        plan = [(ks, (0, 1)) for ks in range(SP_)] + [(ks, (1,)) for ks in range(SP_, 24)] + [(ks, (0,)) for ks in range(SP_, 24)]
        Q = AC + 20
        def send(burst):
            self.mstore([f"buffer_store_dwordx4 {vr(P,4)}, v{vL16}, {sr(WS,4)}, s{T+4} offen",
                         f"buffer_store_dwordx4 {vr(P+4,4)}, v{vL16}, {sr(WS,4)}, s{T+4} offen offset:1024",
                         f"buffer_store_dwordx2 {vr(P+8,2)}, v{vL16}, {sr(WS,4)}, s{T+5} offen"])
            for _ in range(3): vm.issue("ps")
        def sent(burst):
            a(vm.wait("ps"))
            a("s_mov_b64 exec, 1")
            self.mstore([f"buffer_store_dword v{VA+5}, v{VA+6}, {sr(WS,4)}, s{T+6} offen"]); vm.issue("pf")
            a("s_mov_b64 exec, -1")
        def ask_p(burst):
            a(f"buffer_load_dword v{t3}, v{VA+6}, {sr(WS,4)}, s{T+7} offen sc1"); vm.issue("pa")
        def got_p(burst):
            lp, ld = self.lab("pp"), self.lab("ppd")
            a(vm.wait("pa"))
            a(f"v_cmp_gt_u32 vcc, s{T+11}, v{t3}"); a(f"s_cbranch_vccnz {lp}"); a(f"{ld}:")
            main, self.a = self.a, self.tail
            a(f"{lp}:"); self.poll(WS, VA+6, f"s{T+7}", f"s{T+11}"); a(f"s_branch {ld}")
            self.a = main
            a(f"buffer_load_dwordx4 {vr(Q,4)}, v{vL16}, {sr(WS,4)}, s{XA} offen sc1")
            a(f"buffer_load_dwordx4 {vr(Q+4,4)}, v{vL16}, {sr(WS,4)}, s{XA} offen offset:1024 sc1")
            a(f"buffer_load_dwordx2 {vr(Q+8,2)}, v{vL16}, {sr(WS,4)}, s{XS} offen sc1")
            for _ in range(3): vm.issue("pl")
        x0, x1, x2, x3 = [24 + x for x in OPT.get("xp", (1, 5, 7, 11))]
        def cvt_send(burst):
            for i in range(10): a(f"v_cvt_pk_bf16_f32 v{P+i}, v{AC+20+2*i}, v{AC+21+2*i}")
            send(burst)
        hk2 = {ha - 1: ask_a, ha: got_a, 6: ask_b, 11: got_b, x0: cvt_send, x1: sent, x2: ask_p, x3: got_p}
        self.gemm2(plan, 5, [AR + 4*((m + 6) % 16) for m in range(16)], 16, ring(BR, NF5), AC,
                   lambda ks, nb: (vL16 if ks < 12 else RA+3, (ks % 12)*5120 + nb*1024), hload, vm,
                   lambda rb, nb: vr(RES + 4*nb, 4) if rb == 0 else "0", have=6, ahead=OPT.get("ah_2", 8),
                   bars={g1_: B_, g2_: B_}, hooks={k: v for k, v in hk2.items() if k < len(plan)}, gate={3: ha, 17: 11})
        for k in sorted(hk2):
            if k >= len(plan): hk2[k](None)
        self.stamp(19)
        if not OPT.get("lb", 0): a("s_barrier")
        a("s_waitcnt vmcnt(0)"); a("s_nop 2")
        for i in range(10):
            u = t0 + 2*(i & 1)
            a(f"v_lshlrev_b32 v{u}, 16, v{Q+i}"); a(f"v_and_b32 v{u+1}, 0xffff0000, v{Q+i}")
            a(f"v_pk_add_f32 {vr(RES+2*i,2)}, {vr(AC+2*i,2)}, {vr(u,2)}")
            a(f"v_cvt_pk_bf16_f32 v{P+i}, v{RES+2*i}, v{RES+2*i+1}")
        a(f"s_cmp_lg_u32 s{LAY}, 0"); a("s_cbranch_scc1 L_out")
        us = OPT.get("us", 6)
        self.xstore("6", P, before_flag=lambda: self.unstash(range(us)), packed=True, two=TWO, bar=OPT.get("lb", 0))
        if TWO: a("s_waitcnt vmcnt(0)"); self.xflag2("6")
        self.stamp(20); self.stamp_dump()
        a(f"s_mov_b32 s{LAY}, 1"); self.stamp(1)
        a(f"s_setprio {OPT.get('qp', 2)}")
        if us < 10: self.unstash(range(us, 10))
        self.qsetup()
        a("s_branch L_q1_w")
        a("L_out:")
        if OPT.get("lb", 0): a("s_barrier")
        a(f"s_mul_i32 s{T}, s{WV}, 3072"); a(f"v_mul_u32_u24 v{RA+3}, 160, v{vJ}"); a(f"v_lshl_add_u32 v{RA+3}, v{vG}, 3, v{RA+3}")
        a(f"v_add_u32 v{RA+3}, s{T}, v{RA+3}"); a(f"v_add_u32 v{BI}, s{T}, v{vL16}")
        for nb in range(5): a(f"ds_write_b64 v{RA+3}, {vr(P+2*nb,2)} offset:{32*nb}")
        a(f"s_mul_i32 s{T}, s{RBO}, 20480"); a(f"s_mul_i32 s{T+1}, s{NT}, 160"); a(f"s_add_u32 s{T}, s{T}, s{T+1}")
        a("s_waitcnt lgkmcnt(0)")
        for i in range(3): a(f"ds_read_b128 {vr(Q+4*i,4)}, v{BI} offset:{1024*i}")
        self.dma_addr(RA, 3, "w80")
        for i in range(3):
            a(f"s_waitcnt lgkmcnt({2-i})")
            if i == 2: a("s_mov_b32 exec_hi, 0")
            a(f"buffer_store_dwordx4 {vr(Q+4*i,4)}, v{RA+i}, {sr(OUT,4)}, s{T} offen {OPT.get('outmod', 'nt')}")
        a("s_mov_b64 exec, -1")
        if OPT["stamp"]: a("s_waitcnt vmcnt(0)")
        self.stamp(20); self.stamp_dump()
        a("s_endpgm")

        a("L_ch_h:")
        HB = PB + 8
        HX = PB + 48
        ONE = PB + 60
        HO = T + 8
        vm = Cnt("vmcnt", 63)
        h0, h1, hg = OPT.get("ht", (6, 0, 3))
        HT = {"w1": h0, 0: h1, 2: hg, 3: hg}
        def lin(src, lds, tag):
            if tag in OPT.get("x_skip", ()):
                vm.issue(tag); return
            if OPT.get("x_fake"): src %= SL
            a(f"s_add_u32 m0, s{HO}, {lds}"); a(f"s_add_u32 s{T}, s{DS}, {src}")
            a(f"buffer_load_dwordx4 v{vL16}, {sr(WS,4)}, s{T} offen sc1 lds"); vm.issue(tag)
            if HT[tag] is not None: a(f"s_waitcnt vmcnt({HT[tag]})")
        def tilebase(buf):
            a(f"s_and_b32 s{DS}, s{IDX}, 15"); a(f"s_mul_i32 s{DS}, s{DS}, {120*1024}"); a(f"s_add_u32 s{DS}, s{DS}, s{HO}"); a(f"s_add_u32 s{DS}, s{DS}, {hx(buf)}")
        a(f"s_lshl_b32 s{HO}, s{HW}, 10")
        tilebase(PK1)
        a(f"s_and_b32 s{T}, s{IDX}, 15"); a(f"s_mul_i32 s{T}, s{T}, 192"); a(f"s_lshl_b32 s{T+1}, s{WM}, 5"); a(f"s_add_u32 s{T}, s{T}, s{T+1}")
        a(f"v_lshlrev_b32 v{t1}, 1, v{vJ}")
        for m in range(3):
            a(f"buffer_load_ushort v{PB+m}, v{t1}, {sr(B1,4)}, s{T} offen offset:{64*(2*m % 3)}"); vm.issue("w1")
        for n in (8, 10): lin(n*4096, 5*SL + n*4096, "w1")
        def l0(fn):
            l = self.lab("hl0")
            a(f"s_cmp_lg_u32 s{LAY}, 0"); a(f"s_cbranch_scc1 {l}"); fn(); a(f"{l}:")
        csum = lambda r, n, first=False: a(f"v_mfma_f32_16x16x32_bf16 {vr(HX+4*(n%3),4)}, {vr(ONE,4)}, {vr(r,4)}, {'0' if first else vr(HX+4*(n%3),4)}")
        def cs_regs():
            for i in range(4): a(f"v_mov_b32 v{ONE+i}, 0x3f803f80")
            a("s_nop 1")
            for i, r in enumerate(self.PLH): csum(r, i, i < 3)
        l0(cs_regs)
        a("s_barrier")
        lin(9*4096, 5*SL + 9*4096, "w1")
        a(f"s_add_u32 s{T}, s{HO}, {2*SL}"); a(f"v_add_u32 v{t0}, s{T}, v{vL16}"); a(f"v_add_u32 v{t2}, {3*SL}, v{t0}")
        a(vm.wait("w1")); a("s_barrier")
        for n in (12, 13, 14): lin(61440 + n*4096, 2*SL + n*4096, "w1")
        for i, r in enumerate(self.PLH): a(f"ds_write_b128 v{t0}, {vr(r,4)} offset:{4096*i}")
        tilebase(PK2)
        a(vm.wait("w1")); a("s_waitcnt lgkmcnt(0)")
        def cs_lds():
            jobs = [(t2, n) for n in range(15)] + [(t0, n) for n in (12, 13, 14)]
            for b in (0, 9):
                for u, (v, n) in enumerate(jobs[b:b+9]): a(f"ds_read_b128 {vr(HB+4*u,4)}, v{v} offset:{4096*n}")
                for u, (v, n) in enumerate(jobs[b:b+9]):
                    a(f"s_waitcnt lgkmcnt({8-u})"); csum(HB+4*u, n)
            a("s_nop 7")
            for m in range(3): a(f"v_mov_b32 v{CS1+m}, v{HX+4*m}")
        l0(cs_lds)
        a(f"s_cmp_eq_u32 s{WK}, 0"); a("s_cselect_b64 vcc, -1, 0")
        a(f"s_lshl_b32 s{T}, s{WM}, 9"); a(f"s_lshl_b32 s{T+1}, s{WK}, 8"); a(f"s_add_u32 s{T}, s{T}, s{T+1}"); a(f"s_add_u32 s{T}, s{T}, {WXL}")
        for m in range(3):
            c = CS1 + m; x = HX + 4*m
            a(f"s_mul_i32 s{T+1}, s{WK}, {1024*((2*m + 1) % 3 - (2*m) % 3)}"); a(f"s_add_u32 s{T+1}, s{T+1}, s{T}"); a(f"v_lshl_add_u32 v{HB+m}, v{vJ}, 4, s{T+1}")
            a(f"v_cndmask_b32 v{x+2}, 0, v{PB+m}, vcc")
            a(f"v_cvt_pk_bf16_f32 v{x}, v{c}, v{c}"); a(f"v_and_b32 v{t1}, 0xffff0000, v{x}"); a(f"v_sub_f32 v{t1}, v{c}, v{t1}")
            a(f"v_and_b32 v{x+1}, 0xffff, v{x}"); a(f"v_cvt_pk_bf16_f32 v{x}, v{c}, v{t1}")
            a(f"v_lshl_or_b32 v{x+1}, v{x+2}, 16, v{x+1}"); a(f"v_mov_b32 v{x+3}, 0")
        a("s_mov_b64 exec, 0xffff")
        for m in range(3): a(f"ds_write_b128 v{HB+m}, {vr(HX+4*m,4)} offset:{1024*(2*m % 3)}")
        a("s_mov_b64 exec, -1")
        nf1 = OPT.get("nf1", 9)
        pre = [5, 6, 7, 8][:OPT.get("nf0", 0)]
        for n in pre: lin(n*4096, n*4096, 2)
        a("s_waitcnt lgkmcnt(0)"); a("s_barrier")
        for n in range(nf1):
            if n not in pre: lin(n*4096, n*4096, 0)
        assert nf1*4096 >= (g1_*5 + NF5)*1024
        a(vm.wait(0)); a("s_barrier")
        n1 = ((g2_*5 + NF5)*1024 + 4095) // 4096
        ng = max(n1, OPT.get("ng", 30))
        for n in range(nf1, ng): lin(n*4096, n*4096, 2 if n < n1 else 3)
        a(vm.wait(2)); a("s_barrier")
        for n in range(ng, 30): lin(n*4096, n*4096, 3)
        a(vm.wait(3)); a("s_barrier")
        a("s_barrier")
        a(f"s_cmp_lg_u32 s{LAY}, 0"); a("s_cbranch_scc1 L_h_last")
        self.unstash()
        self.stamp_dump()
        a(f"s_mov_b32 s{LAY}, 1"); a("s_branch L_qkv1")
        a("L_h_last:")
        self.stamp_dump()
        a("L_end:")
        a("s_endpgm")

def build(**opt):
    OPT.update(opt)
    g = Gen()
    g.entry(); g.qkv(); g.attention(); g.chain()
    a = g.a
    a.lines += g.tail.lines
    for (l0, l1), pats in OPT.get("x_drop", {}).items():
        i0 = a.lines.index(l0 + ":"); i1 = a.lines.index(l1 + ":")
        a.lines[i0:i1] = [("s_nop 0" if OPT.get("x_nop") else "") if any(l.startswith(p) for p in pats) else l for l in a.lines[i0:i1]]
        a.lines = [l for l in a.lines if l]
    a("L_last:"); a("s_endpgm")
    probs = check_hazards(a.lines)
    if probs and not OPT.get("x_drop"):
        print("\n".join(probs), file=sys.stderr); raise SystemExit("hazards")
    hdr = open("cdna_kernels/" + NAME + ".s.ref").read().split("; Override launch")[0]
    s = hdr + "; @launch grid=(256,1,1) block=(512,1,1) lds=163840\n" + '.amdgcn_target "amdgcn-amd-amdhsa--gfx950"\n.text\n'
    s += f".globl {NAME}_kernel\n.type {NAME}_kernel,@function\n" + a.text()
    s += f""".section .rodata,"a"
.p2align 6
.amdhsa_kernel {NAME}_kernel
  .amdhsa_next_free_vgpr 256
  .amdhsa_next_free_sgpr 102
  .amdhsa_accum_offset 256
  .amdhsa_group_segment_fixed_size 0
  .amdhsa_kernarg_size 88
  .amdhsa_user_sgpr_count 2
  .amdhsa_user_sgpr_kernarg_segment_ptr 1
  .amdhsa_system_sgpr_workgroup_id_x 1
.end_amdhsa_kernel
"""
    return s

if __name__ == "__main__":
    out = sys.argv[1]
    opt = {}
    for x in sys.argv[2:]:
        k, v = x.split("=", 1); opt[k] = eval(v)
    open(out, "w").write(build(**opt))
```
